```python
import torch

def _softmax(x, axis=-1):
    return torch.softmax(x, dim=axis)
def _gelu(x):
    return torch.nn.functional.gelu(x, approximate="tanh")
def _silu(x):
    return torch.nn.functional.silu(x)
def _sigmoid(x):
    return torch.sigmoid(x)
def _layernorm(x, axis=-1, eps=1e-5):
    m = x.mean(dim=axis, keepdim=True)
    v = x.var(dim=axis, keepdim=True, unbiased=False)
    return (x - m) / torch.sqrt(v + eps)
def _scatter_add(tgt, idx, src, axis=0):
    return tgt.clone().index_add_(axis, idx, src)
def _segment_sum(src, seg, n):
    out = torch.zeros((n,) + src.shape[1:], dtype=src.dtype)
    return out.index_add_(0, seg, src)
def _pad(x, pw):
    flat = tuple(v for pair in reversed(pw) for v in pair)
    return torch.nn.functional.pad(x, flat)

kernel_name = 'sequential_preLN__sliding_local_dilated__glu_gated_geglu__prompt'

def setup_inputs():

    _w = (lambda a: (lambda t: t.to(torch.bfloat16) if t.is_floating_point() else t)(torch.as_tensor(a)))
    def _A_setup():
        B, S, D = 1, 2048, 512
        return {
            "x": _w((lambda *s: torch.randn(*s, dtype=torch.bfloat16) * 0.05)(B, S, D)),
            "wqkv": _w((lambda *s: torch.randn(*s, dtype=torch.bfloat16) * 0.05)(D, 3 * D)),
            "wo": _w((lambda *s: torch.randn(*s, dtype=torch.bfloat16) * 0.05)(D, D)),
        }
    _A_in = _A_setup()

    def _B_setup():
        B, S, Dm, Df = 1, 2048, 512, 1792
        return {
            "x": _w((lambda *s: torch.randn(*s, dtype=torch.bfloat16) * 0.05)(B, S, Dm)),
            "w_gate": _w((lambda *s: torch.randn(*s, dtype=torch.bfloat16) * 0.8)(Dm, Df) * (Dm ** -0.5)),
            "w_up": _w((lambda *s: torch.randn(*s, dtype=torch.bfloat16) * 0.8)(Dm, Df) * (Dm ** -0.5)),
            "w_down": _w((lambda *s: torch.randn(*s, dtype=torch.bfloat16) * 0.8)(Df, Dm) * (Df ** -0.5)),
        }
    _B_in = _B_setup()

    return {
        "A_x": _A_in["x"],
        "A_wqkv": _A_in["wqkv"],
        "A_wo": _A_in["wo"],
        "B_x": _B_in["x"],
        "B_w_gate": _B_in["w_gate"],
        "B_w_up": _B_in["w_up"],
        "B_w_down": _B_in["w_down"],
    }

def reference(A_x, A_wqkv, A_wo, B_x, B_w_gate, B_w_up, B_w_down):
    def _A_ref(x, wqkv, wo):
        B, S, D = x.shape
        H = 32; Dh = D // H
        W, dil = 8, 2
        qkv = (lambda x, *d: x.permute(*d))((x @ wqkv).reshape(B, S, 3, H, Dh), 2, 0, 3, 1, 4)
        q, k, v = qkv[0], qkv[1], qkv[2]
        scale = Dh ** -0.5
        pos = torch.arange(S)
        off = torch.arange(W) * dil
        idx = pos[:, None] - off[None, :]
        mask = idx >= 0
        idx_c = torch.where(mask, idx, 0).reshape(-1)
        kg = k[:, :, idx_c, :].reshape(B, H, S, W, Dh)
        vg = v[:, :, idx_c, :].reshape(B, H, S, W, Dh)
        logits = torch.einsum("bhsd,bhswd->bhsw", q, kg) * scale
        logits = torch.where(mask[None, None, :, :], logits, -1e9)
        attn = _softmax(logits, axis=-1)
        o = torch.einsum("bhsw,bhswd->bhsd", attn, vg)
        return (lambda x, *d: x.permute(*d))(o, 0, 2, 1, 3).reshape(B, S, D) @ wo

    def _B_ref(x, w_gate, w_up, w_down):
        g = torch.einsum("bsd,df->bsf", x, w_gate)
        u = torch.einsum("bsd,df->bsf", x, w_up)
        h = _gelu(g) * u
        return torch.einsum("bsf,fd->bsd", h, w_down)

    x = A_x
    h = x + _A_ref(_layernorm(x, axis=-1), A_wqkv, A_wo)
    h2 = h + _B_ref(_layernorm(h, axis=-1), B_w_gate, B_w_up, B_w_down)
    return h2
```

```python
from gen import K, vr, sr, srd, header, KA_X, KA_WQKV, KA_WS, WS_O, f32bits

A_BYTES = 80 * 128
W_SUB = 64 * 128
SLOT = A_BYTES + 3 * W_SUB
NS = 4
ST_BASE = NS * SLOT
LDS = ST_BASE + 4 * 320
NEG = -1.0e30


def gen_k1(name):
    k = K()
    header(k, name)
    S_A, S_B, S_C = 8, 12, 16
    sW, sRB, sHG, sT = 28, 29, 30, 31
    sOff, sM = 34, 35
    sScale = 36
    k.e("s_cmp_ge_u32 s2, 256")
    k.e("s_cbranch_scc1 %s_end" % name)
    k.e("s_load_dwordx4 s[44:47], s[0:1], %d" % KA_X)
    k.e("s_load_dwordx2 s[4:5], s[0:1], %d" % KA_WS)
    k.e("v_lshrrev_b32 v2, 6, v0")
    k.e("v_and_b32 v1, 63, v0")
    k.e("v_readfirstlane_b32 s%d, v2" % sW)
    k.e("s_and_b32 s3, s2, 7")
    k.e("s_lshr_b32 s%d, s2, 3" % sT)
    k.e("s_lshr_b32 s%d, s3, 1" % sRB)
    k.e("s_lshl_b32 s%d, s%d, 3" % (sRB, sRB))
    k.e("s_lshr_b32 s%d, s%d, 2" % (sHG, sT))
    k.e("s_add_u32 s%d, s%d, s%d" % (sRB, sRB, sHG))
    k.e("s_and_b32 s%d, s3, 1" % sHG)
    k.e("s_lshl_b32 s%d, s%d, 2" % (sHG, sHG))
    k.e("s_and_b32 s%d, s%d, 3" % (sT, sT))
    k.e("s_add_u32 s%d, s%d, s%d" % (sHG, sHG, sT))
    k.e("s_waitcnt lgkmcnt(0)")
    k.e("s_cmp_ge_u32 s%d, 4" % sW)
    k.e("s_cbranch_scc1 %s_loader" % name)

    vL = 1
    vXa = 2
    vWa = 6
    vOnes = 8
    vT0, vT1, vT2, vT3 = 12, 13, 14, 15
    vX = 16
    vWf = 56
    vQ = 80
    vKk = 96
    vV = 116
    vCq, vCk, vCv = 136, 140, 144
    vE = 148
    nv = 256
    srd(k, S_C, 4, 2 << 20, WS_O)
    k.e("v_and_b32 v%d, 15, v%d" % (vT0, vL))
    k.e("v_lshrrev_b32 v%d, 4, v%d" % (vT1, vL))
    k.e("v_lshrrev_b32 v%d, 1, v%d" % (vT2, vT0))
    k.e("v_xor_b32 v%d, v%d, v%d" % (vT2, vT2, vT1))
    k.e("v_lshlrev_b32 v%d, 7, v%d" % (vT3, vT0))
    k.e("v_lshl_add_u32 v%d, v%d, 4, v%d" % (vXa, vT2, vT3))
    k.e("v_xor_b32 v%d, 4, v%d" % (vT2, vT2))
    k.e("v_lshl_add_u32 v%d, v%d, 4, v%d" % (vXa + 1, vT2, vT3))
    k.e("v_add_u32 v%d, %d, v%d" % (vXa + 2, 2 * SLOT, vXa))
    k.e("v_add_u32 v%d, %d, v%d" % (vXa + 3, 2 * SLOT, vXa + 1))
    k.e("v_bfe_u32 v%d, v%d, 2, 2" % (vT2, vL))
    k.e("v_lshl_add_u32 v%d, v%d, 3, v%d" % (vT2, vT1, vT2))
    k.e("v_lshlrev_b32 v%d, 7, v%d" % (vT2, vT2))
    k.e("v_and_b32 v%d, 3, v%d" % (vT3, vL))
    k.e("v_lshl_add_u32 v%d, v%d, 3, v%d" % (vT2, vT3, vT2))
    k.e("v_bfe_u32 v%d, v%d, 3, 1" % (vT3, vL))
    k.e("v_bfe_u32 v%d, v%d, 4, 1" % (vT0, vL))
    k.e("v_lshl_or_b32 v%d, v%d, 1, v%d" % (vT0, vT0, vT3))
    k.e("v_xor_b32 v%d, s%d, v%d" % (vT0, sW, vT0))
    k.e("v_lshl_add_u32 v%d, v%d, 5, v%d" % (vWa, vT0, vT2))
    k.e("v_add_u32 v%d, %d, v%d" % (vWa, A_BYTES, vWa))
    k.e("v_add_u32 v%d, %d, v%d" % (vWa + 1, 2 * SLOT, vWa))
    for i in range(4):
        k.e("v_mov_b32 v%d, 0x3f803f80" % (vOnes + i))

    def rd_ops(j):
        st, kk = j // 2, j % 2
        slot = st % NS
        sp, so = slot // 2, (slot % 2) * SLOT
        xb = vX + (j & 1) * 20
        wb = vWf + (j & 1) * 12
        ops = []
        for s in range(3):
            ops.append("ds_read_b64_tr_b16 %s, v%d offset:%d" % (vr(wb + 4 * s, 2), vWa + sp, so + s * W_SUB + kk * 4096))
            ops.append("ds_read_b64_tr_b16 %s, v%d offset:%d" % (vr(wb + 4 * s + 2, 2), vWa + sp, so + s * W_SUB + kk * 4096 + 512))
        for t in range(5):
            ops.append("ds_read_b128 %s, v%d offset:%d" % (vr(xb + 4 * t, 4), vXa + sp * 2 + kk, so + 2048 * t))
        return ops

    k.e("s_barrier")
    for op in rd_ops(0):
        k.e(op)
    for j in range(16):
        xb = vX + (j & 1) * 20
        wb = vWf + (j & 1) * 12
        k.e("s_waitcnt lgkmcnt(0)")
        if j % 2 == 1 and j + 1 < 16:
            k.e("s_barrier")
        fill = rd_ops(j + 1) if j + 1 < 16 else []
        mf = []

        def mm(d, a, b):
            mf.append("v_mfma_f32_16x16x32_bf16 %s, %s, %s, %s" % (vr(d, 4), vr(a, 4), vr(b, 4), "0" if j == 0 else vr(d, 4)))
        for t in range(5):
            mm(vKk + 4 * t, wb + 4, xb + 4 * t)
            mm(vV + 4 * t, xb + 4 * t, wb + 8)
            if t >= 1:
                mm(vQ + 4 * (t - 1), wb, xb + 4 * t)
        mm(vCq, wb, vOnes)
        mm(vCk, wb + 4, vOnes)
        mm(vCv, vOnes, wb + 8)
        fi = 0
        for m_ in mf:
            k.e(m_)
            if fi < len(fill):
                k.e(fill[fi]); fi += 1
        assert fi == len(fill)
    k.e("s_barrier")
    k.e("s_barrier")
    vSr = vE
    vSn = vE + 5
    vVr = vE + 12
    vVn = vE + 32
    k.e("v_and_b32 v%d, 15, v%d" % (vT0, vL))
    k.e("v_lshlrev_b32 v%d, 2, v%d" % (vT2, vT0))
    k.e("v_lshrrev_b32 v%d, 4, v%d" % (vT1, vL))
    k.e("v_lshlrev_b32 v%d, 4, v%d" % (vT3, vT1))
    k.e("v_add_u32 v%d, %d, v%d" % (vT2, ST_BASE, vT2))
    k.e("v_add_u32 v%d, %d, v%d" % (vT3, ST_BASE, vT3))
    for t in range(5):
        k.e("ds_read_b32 v%d, v%d offset:%d" % (vSr + t, vT2, 640 + 64 * t))
        k.e("ds_read_b32 v%d, v%d offset:%d" % (vSn + t, vT2, 960 + 64 * t))
        k.e("ds_read_b128 %s, v%d offset:%d" % (vr(vVr + 4 * t, 4), vT3, 640 + 64 * t))
        k.e("ds_read_b128 %s, v%d offset:%d" % (vr(vVn + 4 * t, 4), vT3, 960 + 64 * t))
    vBc = vE + 52
    vBp = vE + 56
    vBp1 = vE + 60
    vNeg = vE + 64
    k.e("v_mov_b32 v%d, 0x%08x" % (vNeg, f32bits(NEG)))
    k.e("v_lshlrev_b32 v%d, 2, v%d" % (vT2, vT1))
    k.e("v_sub_u32 v%d, v%d, v%d" % (vT2, vT0, vT2))
    vSgn = vE + 65
    k.e("v_mov_b32 v%d, 0x80000000" % vSgn)
    for r in range(4):
        k.e("v_subrev_u32 v%d, %d, v%d" % (vT3, r, vT2))
        k.e("v_and_b32 v%d, 0x80000001, v%d" % (vT3, vT3))
        k.e("v_cmp_eq_u32 vcc, 0, v%d" % vT3)
        k.e("v_cmp_eq_u32 s[38:39], v%d, v%d" % (vSgn, vT3))
        k.e("s_nop 1")
        k.e("v_cndmask_b32_e64 v%d, v%d, 0, vcc" % (vBc + r, vNeg))
        k.e("v_cndmask_b32_e64 v%d, v%d, 0, s[38:39]" % (vBp + r, vNeg))
    k.e("s_cmp_eq_u32 s%d, 0" % sRB)
    k.e("s_cselect_b64 s[38:39], -1, 0")
    for r in range(4):
        k.e("v_cndmask_b32_e64 v%d, v%d, v%d, s[38:39]" % (vBp1 + r, vBp + r, vNeg))
    k.e("s_mov_b32 s%d, 0x%08x" % (sScale, f32bits(0.25 * 1.4426950408889634)))
    k.e("s_waitcnt lgkmcnt(0)")
    vQb = vX
    vKb = vX + 8
    vVb = vX + 18
    for t in range(5):
        for (acc, cs, dst, on) in ((vQ + 4 * (t - 1), vCq, vQb + 2 * (t - 1), t >= 1), (vKk + 4 * t, vCk, vKb + 2 * t, True)):
            if not on:
                continue
            for r in range(4):
                k.e("v_mul_f32 v%d, v%d, v%d" % (vT0 + r, vSn + t, cs + r))
            for r in range(4):
                k.e("v_fma_f32 v%d, v%d, v%d, v%d" % (vT0 + r, vSr + t, acc + r, vT0 + r))
            k.e("v_cvt_pk_bf16_f32 v%d, v%d, v%d" % (dst, vT0, vT1))
            k.e("v_cvt_pk_bf16_f32 v%d, v%d, v%d" % (dst + 1, vT2, vT3))
        for r in range(4):
            k.e("v_mul_f32 v%d, v%d, v%d" % (vT0 + r, vVn + 4 * t + r, vCv))
        for r in range(4):
            k.e("v_fma_f32 v%d, v%d, v%d, v%d" % (vT0 + r, vVr + 4 * t + r, vV + 4 * t + r, vT0 + r))
        k.e("v_cvt_pk_bf16_f32 v%d, v%d, v%d" % (vVb + 2 * t, vT0, vT1))
        k.e("v_cvt_pk_bf16_f32 v%d, v%d, v%d" % (vVb + 2 * t + 1, vT2, vT3))
    k.e("s_nop 1")
    vS = vQ
    for t in range(4):
        k.e("v_mfma_f32_16x16x16_bf16 %s, %s, %s, 0" % (vr(vS + 8 * t, 4), vr(vKb + 2 * t, 2), vr(vQb + 2 * t, 2)))
        k.e("v_mfma_f32_16x16x16_bf16 %s, %s, %s, 0" % (vr(vS + 8 * t + 4, 4), vr(vKb + 2 * (t + 1), 2), vr(vQb + 2 * t, 2)))
    k.e("s_nop 7")
    k.e("s_nop 1")
    vMx = vE
    vMy = vE + 4
    vSum = vE + 8
    for t in range(4):
        for r in range(4):
            k.e("v_fma_f32 v%d, v%d, s%d, v%d" % (vS + 8 * t + r, vS + 8 * t + r, sScale, (vBp1 if t == 0 else vBp) + r))
            k.e("v_fma_f32 v%d, v%d, s%d, v%d" % (vS + 8 * t + 4 + r, vS + 8 * t + 4 + r, sScale, vBc + r))
        b = vS + 8 * t
        k.e("v_max3_f32 v%d, v%d, v%d, v%d" % (vMx + t, b, b + 1, b + 2))
        k.e("v_max3_f32 v%d, v%d, v%d, v%d" % (vMx + t, vMx + t, b + 3, b + 4))
        k.e("v_max3_f32 v%d, v%d, v%d, v%d" % (vMx + t, vMx + t, b + 5, b + 6))
        k.e("v_max_f32 v%d, v%d, v%d" % (vMx + t, vMx + t, b + 7))
    for op in ("v_permlane32_swap_b32", "v_permlane16_swap_b32"):
        for t in range(4):
            k.e("v_mov_b32 v%d, v%d" % (vMy + t, vMx + t))
        k.e("s_nop 1")
        for t in range(4):
            k.e("%s v%d, v%d" % (op, vMx + t, vMy + t))
        for t in range(4):
            k.e("v_max_f32 v%d, v%d, v%d" % (vMx + t, vMx + t, vMy + t))
    for t in range(4):
        b = vS + 8 * t
        for i in range(8):
            k.e("v_sub_f32 v%d, v%d, v%d" % (b + i, b + i, vMx + t))
        for i in range(8):
            k.e("v_exp_f32 v%d, v%d" % (b + i, b + i))
        k.e("s_nop 0")
        k.e("v_add_f32 v%d, v%d, v%d" % (vSum + t, b, b + 1))
        for i in range(2, 8):
            k.e("v_add_f32 v%d, v%d, v%d" % (vSum + t, vSum + t, b + i))
    vP = vE + 12
    for t in range(4):
        b = vS + 8 * t
        for i in range(4):
            k.e("v_cvt_pk_bf16_f32 v%d, v%d, v%d" % (vP + 4 * t + i, b + 2 * i, b + 2 * i + 1))
    for op in ("v_permlane32_swap_b32", "v_permlane16_swap_b32"):
        for t in range(4):
            k.e("v_mov_b32 v%d, v%d" % (vMy + t, vSum + t))
        k.e("s_nop 1")
        for t in range(4):
            k.e("%s v%d, v%d" % (op, vSum + t, vMy + t))
        for t in range(4):
            k.e("v_add_f32 v%d, v%d, v%d" % (vSum + t, vSum + t, vMy + t))
    vOa = vE + 28
    for t in range(4):
        k.e("v_mfma_f32_16x16x16_bf16 %s, %s, %s, 0" % (vr(vOa + 4 * t, 4), vr(vVb + 2 * t, 2), vr(vP + 4 * t, 2)))
    for t in range(4):
        k.e("v_mfma_f32_16x16x16_bf16 %s, %s, %s, %s" % (vr(vOa + 4 * t, 4), vr(vVb + 2 * (t + 1), 2), vr(vP + 4 * t + 2, 2), vr(vOa + 4 * t, 4)))
    for t in range(4):
        k.e("v_rcp_f32 v%d, v%d" % (vSum + t, vSum + t))
    k.e("v_and_b32 v%d, 15, v%d" % (vT0, vL))
    k.e("s_lshl_b32 s3, s%d, 6" % sRB)
    k.e("v_add_u32 v%d, s3, v%d" % (vT0, vT0))
    k.e("v_lshlrev_b32 v%d, 10, v%d" % (vT0, vT0))
    k.e("v_lshrrev_b32 v%d, 4, v%d" % (vT1, vL))
    k.e("v_lshl_add_u32 v%d, v%d, 3, v%d" % (vT0, vT1, vT0))
    k.e("s_lshl_b32 s3, s%d, 2" % sHG)
    k.e("s_add_u32 s3, s3, s%d" % sW)
    k.e("s_lshl_b32 s3, s3, 5")
    k.e("v_add_u32 v%d, s3, v%d" % (vT0, vT0))
    k.e("s_nop 3")
    for t in range(4):
        for r in range(4):
            k.e("v_mul_f32 v%d, v%d, v%d" % (vOa + 4 * t + r, vOa + 4 * t + r, vSum + t))
        k.e("v_cvt_pk_bf16_f32 v%d, v%d, v%d" % (vP + 2 * t, vOa + 4 * t, vOa + 4 * t + 1))
        k.e("v_cvt_pk_bf16_f32 v%d, v%d, v%d" % (vP + 2 * t + 1, vOa + 4 * t + 2, vOa + 4 * t + 3))
        k.e("s_mov_b32 s3, %d" % (t * 16384))
        k.vmem("buffer_store_dwordx2 %s, v%d, %s, s3 offen" % (vr(vP + 2 * t, 2), vT0, sr(S_C, 4)), "st")
    k.e("s_endpgm")

    k.lab("%s_loader" % name)
    k.vm = []
    k.e("s_cmp_ge_u32 s%d, 6" % sW)
    k.e("s_cbranch_scc1 %s_loadw" % name)
    srd(k, S_A, 44, 2 << 20)
    vOff = 4
    vRa = 10
    vSm = 12
    vSq = 17
    vF = 24
    vOne = 22
    k.e("s_and_b32 s%d, s%d, 1" % (sT, sW))
    k.e("v_mov_b32 v2, 0")
    k.e("v_mov_b32 v3, 0")
    k.e("s_mul_i32 s3, s%d, 320" % sT)
    k.e("s_add_u32 s3, s3, %d" % ST_BASE)
    k.e("v_lshlrev_b32 v9, 3, v1")
    k.e("v_add_u32 v9, s3, v9")
    k.e("v_cmp_gt_u32 vcc, 40, v1")
    k.e("s_and_saveexec_b64 s[38:39], vcc")
    k.e("ds_write_b64 v9, v[2:3]")
    k.e("s_mov_b64 exec, s[38:39]")
    k.e("s_lshl_b32 s3, s%d, 6" % sRB)
    k.e("s_sub_u32 s3, s3, 16")
    k.e("s_mul_i32 s%d, s%d, 40" % (sOff, sT))
    k.e("s_add_u32 s3, s3, s%d" % sOff)
    k.e("v_lshrrev_b32 v2, 3, v1")
    k.e("v_add_u32 v2, s3, v2")
    k.e("v_and_b32 v3, 7, v1")
    k.e("v_lshrrev_b32 v9, 4, v1")
    k.e("v_xor_b32 v3, v3, v9")
    k.e("s_lshl_b32 s3, s%d, 2" % sT)
    k.e("v_xor_b32 v3, s3, v3")
    for p in range(5):
        k.e("v_add_u32 v9, %d, v2" % (8 * p))
        k.e("v_max_i32 v9, 0, v9")
        k.e("v_lshlrev_b32 v9, 10, v9")
        if p & 1:
            k.e("v_xor_b32 v%d, 4, v3" % (vOff + p))
            k.e("v_lshl_add_u32 v%d, v%d, 4, v9" % (vOff + p, vOff + p))
        else:
            k.e("v_lshl_add_u32 v%d, v3, 4, v9" % (vOff + p))
    k.e("s_mul_i32 s%d, s%d, 5120" % (sM, sT))
    k.e("v_and_b32 v2, 15, v1")
    k.e("v_lshrrev_b32 v3, 4, v1")
    k.e("v_lshrrev_b32 v9, 1, v2")
    k.e("v_xor_b32 v9, v9, v3")
    k.e("v_xor_b32 v9, s3, v9")
    k.e("v_lshlrev_b32 v2, 7, v2")
    k.e("v_lshl_add_u32 v%d, v9, 4, v2" % vRa)
    k.e("v_add_u32 v%d, %d, v%d" % (vRa + 1, 2 * SLOT, vRa))
    k.e("v_mov_b32 v%d, 0x3f803f80" % vOne)
    for t in range(5):
        k.e("v_mov_b32 v%d, 0" % (vSm + t))
        k.e("v_mov_b32 v%d, 0" % (vSq + t))

    def lda(st):
        slot = st % NS
        k.e("s_mov_b32 s%d, %d" % (sOff, st * 128))
        for p in range(5):
            k.e("s_add_u32 m0, s%d, %d" % (sM, slot * SLOT + p * 1024))
            k.e("s_nop 0")
            k.vmem("buffer_load_dwordx4 v%d, %s, s%d offen lds" % (vOff + p, sr(S_A, 4), sOff), ("s", st))

    for st in range(NS):
        lda(st)
    for i in range(8):
        k.wait_vm(("s", i))
        k.e("s_waitcnt lgkmcnt(0)")
        k.e("s_barrier")
        if i >= 1 and i - 1 + NS < 8:
            lda(i - 1 + NS)
        slot = i % NS
        for t in range(5):
            k.e("ds_read_b128 %s, v%d offset:%d" % (vr(vF + 4 * t, 4), vRa + slot // 2, (slot % 2) * SLOT + 2048 * t))
        for t in range(5):
            k.e("s_waitcnt lgkmcnt(%d)" % (4 - t))
            for i_ in range(4):
                k.e("v_dot2c_f32_bf16 v%d, v%d, v%d" % (vSm + t, vOne, vF + 4 * t + i_))
                k.e("v_dot2c_f32_bf16 v%d, v%d, v%d" % (vSq + t, vF + 4 * t + i_, vF + 4 * t + i_))
    k.e("v_and_b32 v2, 15, v1")
    k.e("v_lshlrev_b32 v2, 2, v2")
    k.e("v_add_u32 v2, %d, v2" % ST_BASE)
    k.e("s_nop 2")
    for t in range(5):
        k.e("ds_add_f32 v2, v%d offset:%d" % (vSm + t, 64 * t))
        k.e("ds_add_f32 v2, v%d offset:%d" % (vSq + t, 320 + 64 * t))
    k.e("s_waitcnt lgkmcnt(0)")
    k.e("s_barrier")
    k.e("s_mul_i32 s3, s%d, 160" % sT)
    k.e("s_add_u32 s3, s3, %d" % ST_BASE)
    k.e("v_lshlrev_b32 v2, 2, v1")
    k.e("v_add_u32 v2, s3, v2")
    k.e("v_cmp_gt_u32 vcc, 40, v1")
    k.e("s_and_saveexec_b64 s[38:39], vcc")
    k.e("ds_read_b32 v3, v2")
    k.e("ds_read_b32 v9, v2 offset:320")
    k.e("s_waitcnt lgkmcnt(0)")
    k.e("v_mul_f32 v3, 0x3b000000, v3")
    k.e("v_mul_f32 v9, 0x3b000000, v9")
    k.e("v_fma_f32 v9, -v3, v3, v9")
    k.e("v_max_f32 v9, 0, v9")
    k.e("v_add_f32 v9, 0x3727c5ac, v9")
    k.e("v_rsq_f32 v9, v9")
    k.e("s_nop 0")
    k.e("v_mul_f32 v3, v3, v9")
    k.e("v_sub_f32 v3, 0, v3")
    k.e("ds_write_b32 v2, v9 offset:640")
    k.e("ds_write_b32 v2, v3 offset:960")
    k.e("s_waitcnt lgkmcnt(0)")
    k.e("s_mov_b64 exec, s[38:39]")
    k.e("s_barrier")
    k.e("s_endpgm")

    k.lab("%s_loadw" % name)
    k.vm = []
    srd(k, S_B, 46, 512 * 3072)
    vWe, vWo = 4, 5
    k.e("v_lshrrev_b32 v2, 3, v1")
    k.e("v_mul_u32_u24 v%d, 3072, v2" % vWe)
    k.e("v_and_b32 v2, 1, v1")
    k.e("v_lshl_add_u32 v%d, v2, 4, v%d" % (vWe, vWe))
    k.e("s_lshl_b32 s3, s%d, 7" % sHG)
    k.e("v_add_u32 v%d, s3, v%d" % (vWe, vWe))
    k.e("v_bfe_u32 v2, v1, 1, 2")
    k.e("v_bfe_u32 v3, v1, 4, 1")
    k.e("v_xor_b32 v2, v2, v3")
    k.e("v_xor_b32 v3, 2, v2")
    k.e("v_lshl_add_u32 v%d, v3, 5, v%d" % (vWo, vWe))
    k.e("v_lshl_add_u32 v%d, v2, 5, v%d" % (vWe, vWe))
    k.e("s_and_b32 s%d, s%d, 1" % (sT, sW))
    k.e("s_mul_i32 s%d, s%d, %d" % (sM, sT, 12 * 1024))
    k.e("s_add_u32 s%d, s%d, %d" % (sM, sM, A_BYTES))
    sG = 48
    for p in range(12):
        p0, p1 = p, 12 + p
        g0 = (p0 // 8) * 1024 + (p0 % 8) * 8 * 3072
        g1 = (p1 // 8) * 1024 + (p1 % 8) * 8 * 3072
        k.e("s_cmp_eq_u32 s%d, 0" % sT)
        k.e("s_mov_b32 s%d, %d" % (sG + p, g1))
        k.e("s_cmov_b32 s%d, %d" % (sG + p, g0))

    def ldw(st):
        slot = st % NS
        for p in range(12):
            k.e("s_add_u32 m0, s%d, %d" % (sM, slot * SLOT + p * 1024))
            k.e("s_add_u32 s%d, s%d, %d" % (sOff, sG + p, st * 64 * 3072))
            k.vmem("buffer_load_dwordx4 v%d, %s, s%d offen lds" % (vWo if p & 1 else vWe, sr(S_B, 4), sOff), ("s", st))

    for st in range(NS):
        ldw(st)
    for i in range(8):
        k.wait_vm(("s", i))
        k.e("s_barrier")
        if i >= 1 and i - 1 + NS < 8:
            ldw(i - 1 + NS)
    k.e("s_barrier")
    k.e("s_barrier")
    k.lab("%s_end" % name)
    k.e("s_endpgm")
    return k.text(), nv, LDS
```

```python
import sys

NAME = "sequential_preLN__sliding_local_dilated__glu_gated_geglu__prompt"

WS_O = 0
WS_H = 2 << 20
WS_HH = 4 << 20
WS_HST = 12 << 20

KA_X, KA_WQKV, KA_WO, KA_BX, KA_WG, KA_WU, KA_WD, KA_OUT, KA_DBG, KA_WS = [8 * i for i in range(10)]


class K:
    def __init__(self):
        self.lines = []
        self.vm = []

    def e(self, s):
        self.lines.append("  " + s)

    def lab(self, s):
        self.lines.append(s + ":")

    def c(self, s):
        self.lines.append("  ; " + s)

    def vmem(self, s, tag):
        self.e(s)
        self.vm.append(tag)

    def wait_vm(self, tag):
        idx = max((i for i, t in enumerate(self.vm) if t == tag), default=None)
        if idx is None:
            return
        n = len(self.vm) - 1 - idx
        assert n <= 63, n
        self.e("s_waitcnt vmcnt(%d)" % n)
        self.vm = self.vm[idx + 1:]

    def wait_vm_all(self):
        self.e("s_waitcnt vmcnt(0)")
        self.vm = []

    def text(self):
        return "\n".join(self.lines) + "\n"


def vr(a, n=1):
    return "v%d" % a if n == 1 else "v[%d:%d]" % (a, a + n - 1)


def sr(a, n=1):
    return "s%d" % a if n == 1 else "s[%d:%d]" % (a, a + n - 1)


def srd(k, d, ptr, nbytes, off=0):
    if off:
        k.e("s_add_u32 s%d, s%d, 0x%x" % (d, ptr, off))
        k.e("s_addc_u32 s%d, s%d, 0" % (d + 1, ptr + 1))
    else:
        k.e("s_mov_b32 s%d, s%d" % (d, ptr))
        k.e("s_mov_b32 s%d, s%d" % (d + 1, ptr + 1))
    k.e("s_mov_b32 s%d, 0x%x" % (d + 2, nbytes))
    k.e("s_mov_b32 s%d, 0x00020000" % (d + 3))


def header(k, name):
    k.lines.append(".globl %s" % name)
    k.lines.append(".p2align 8")
    k.lines.append(".type %s,@function" % name)
    k.lab(name)


def descriptor(name, nvgpr, nsgpr=96):
    nv = (nvgpr + 7) // 8 * 8
    return """.p2align 6
.amdhsa_kernel %s
  .amdhsa_next_free_vgpr %d
  .amdhsa_next_free_sgpr %d
  .amdhsa_accum_offset %d
  .amdhsa_group_segment_fixed_size 0
  .amdhsa_kernarg_size 80
  .amdhsa_user_sgpr_count 2
  .amdhsa_user_sgpr_kernarg_segment_ptr 1
  .amdhsa_system_sgpr_workgroup_id_x 1
.end_amdhsa_kernel
""" % (name, nv, nsgpr, min(nv, 256))


def gen_t2(name, Kdim, lda, a_src, b_ka, r_src, c_dst, stats):
    k = K()
    header(k, name)
    Kw = Kdim // 4
    ns = Kw // 32
    D = min(ns, 7)
    S_A, S_B, S_R, S_C, S_ST = 8, 12, 16, 20, 24
    sW, sRB, sCB, sT, sLB = 28, 29, 30, 31, 32
    sTile = 36
    sBoff = 40
    vL, vA, vBe, vBo = 1, 2, 3, 4
    vTr = 5
    vRo = 9
    vT0, vT1, vT2 = 10, 11, 12
    vRes = 16
    vAcc = 24
    vBf = 88
    vAr = 120
    nv = vAr + D * 16

    k.e("s_cmp_ge_u32 s2, 256")
    k.e("s_cbranch_scc1 %s_end" % name)
    k.e("s_load_dwordx2 s[4:5], s[0:1], %d" % KA_WS)
    k.e("s_load_dwordx2 s[6:7], s[0:1], %d" % b_ka)
    pa = pr = pc = None
    nxt = 44
    for src in (a_src, r_src, c_dst):
        if src[0] == 'ka':
            k.e("s_load_dwordx2 s[%d:%d], s[0:1], %d" % (nxt, nxt + 1, src[1]))
            nxt += 2
    k.e("v_lshrrev_b32 v%d, 6, v0" % vT0)
    k.e("v_and_b32 v%d, 63, v0" % vL)
    k.e("v_readfirstlane_b32 s%d, v%d" % (sW, vT0))
    k.e("s_and_b32 s3, s2, 7")
    k.e("s_lshr_b32 s%d, s2, 3" % sT)
    k.e("s_lshr_b32 s%d, s3, 1" % sRB)
    k.e("s_lshl_b32 s%d, s%d, 3" % (sRB, sRB))
    k.e("s_lshr_b32 s%d, s%d, 2" % (sCB, sT))
    k.e("s_add_u32 s%d, s%d, s%d" % (sRB, sRB, sCB))
    k.e("s_and_b32 s%d, s3, 1" % sCB)
    k.e("s_lshl_b32 s%d, s%d, 2" % (sCB, sCB))
    k.e("s_and_b32 s%d, s%d, 3" % (sT, sT))
    k.e("s_add_u32 s%d, s%d, s%d" % (sCB, sCB, sT))
    k.e("s_waitcnt lgkmcnt(0)")
    nxt = 44
    for d, src, nbytes in ((S_A, a_src, 2048 * lda), (S_R, r_src, 2 << 20), (S_C, c_dst, 2 << 20)):
        if src[0] == 'ka':
            srd(k, d, nxt, nbytes)
            nxt += 2
        else:
            srd(k, d, 4, nbytes, src[1])
    srd(k, S_B, 6, Kdim * 1024)
    if stats:
        srd(k, S_ST, 4, 2048 * 64, WS_HST)
    wave_lds = D * 4096
    k.e("s_mul_i32 s%d, s%d, %d" % (sLB, sW, wave_lds))
    for t in range(4):
        k.e("s_add_u32 s%d, s%d, %d" % (sT, sW, t))
        k.e("s_and_b32 s%d, s%d, 3" % (sT, sT))
        k.e("s_mul_i32 s%d, s%d, %d" % (sTile + t, sT, 16 * lda))
    k.e("s_lshl_b32 s%d, s%d, 6" % (sT, sRB))
    k.e("v_and_b32 v%d, 15, v%d" % (vT0, vL))
    k.e("v_add_u32 v%d, s%d, v%d" % (vT1, sT, vT0))
    k.e("s_mov_b32 s3, %d" % lda)
    k.e("v_mul_lo_u32 v%d, v%d, s3" % (vA, vT1))
    k.e("v_lshrrev_b32 v%d, 4, v%d" % (vT2, vL))
    k.e("v_lshl_add_u32 v%d, v%d, 4, v%d" % (vA, vT2, vA))
    k.e("s_mul_i32 s3, s%d, %d" % (sW, Kw * 2))
    k.e("v_add_u32 v%d, s3, v%d" % (vA, vA))
    k.e("s_lshl_b32 s3, s%d, 4" % sW)
    k.e("v_add_u32 v%d, s3, v%d" % (vT1, vT1))
    k.e("v_lshlrev_b32 v%d, 10, v%d" % (vRo, vT1))
    k.e("v_lshl_add_u32 v%d, v%d, 3, v%d" % (vRo, vT2, vRo))
    k.e("s_lshl_b32 s3, s%d, 7" % sCB)
    k.e("v_add_u32 v%d, s3, v%d" % (vRo, vRo))
    for j in range(4):
        k.vmem("buffer_load_dwordx2 %s, v%d, %s, 0 offen offset:%d" % (vr(vRes + 2 * j, 2), vRo, sr(S_R, 4), 32 * j), "res")
    k.e("v_lshrrev_b32 v%d, 3, v%d" % (vT0, vL))
    k.e("v_lshlrev_b32 v%d, 10, v%d" % (vBe, vT0))
    k.e("v_and_b32 v%d, 1, v%d" % (vT0, vL))
    k.e("v_lshl_add_u32 v%d, v%d, 4, v%d" % (vBe, vT0, vBe))
    k.e("s_mul_i32 s%d, s%d, %d" % (sT, sW, Kw * 1024))
    k.e("s_add_u32 s3, s3, s%d" % sT)
    k.e("v_add_u32 v%d, s3, v%d" % (vBe, vBe))
    k.e("v_bfe_u32 v%d, v%d, 1, 2" % (vT0, vL))
    k.e("v_bfe_u32 v%d, v%d, 4, 1" % (vT1, vL))
    k.e("v_xor_b32 v%d, v%d, v%d" % (vT0, vT0, vT1))
    k.e("v_xor_b32 v%d, 2, v%d" % (vT1, vT0))
    k.e("v_lshl_add_u32 v%d, v%d, 5, v%d" % (vBo, vT1, vBe))
    k.e("v_lshl_add_u32 v%d, v%d, 5, v%d" % (vBe, vT0, vBe))
    k.e("v_lshrrev_b32 v%d, 4, v%d" % (vT0, vL))
    k.e("v_bfe_u32 v%d, v%d, 2, 2" % (vT1, vL))
    k.e("v_lshl_add_u32 v%d, v%d, 3, v%d" % (vT2, vT0, vT1))
    k.e("v_lshlrev_b32 v%d, 7, v%d" % (vT2, vT2))
    k.e("v_add_u32 v%d, s%d, v%d" % (vT2, sLB, vT2))
    k.e("v_and_b32 v%d, 3, v%d" % (vTr, vL))
    k.e("v_lshl_add_u32 v%d, v%d, 3, v%d" % (vT2, vTr, vT2))
    k.e("v_bfe_u32 v%d, v%d, 3, 1" % (vT1, vL))
    k.e("v_bfe_u32 v%d, v%d, 4, 1" % (vT0, vL))
    k.e("v_lshl_or_b32 v%d, v%d, 1, v%d" % (vT0, vT0, vT1))
    for j in range(4):
        k.e("v_xor_b32 v%d, %d, v%d" % (vT1, j, vT0))
        k.e("v_lshl_add_u32 v%d, v%d, 5, v%d" % (vTr + j, vT1, vT2))
    k.e("s_mov_b32 s%d, 0" % sBoff)

    def issue(s):
        slot = s % D
        for t in range(4):
            k.vmem("buffer_load_dwordx4 %s, v%d, %s, s%d offen offset:%d" % (
                vr(vAr + slot * 16 + t * 4, 4), vA, sr(S_A, 4), sTile + t, 64 * s), ("s", s))
        for i in range(4):
            k.e("s_add_u32 m0, s%d, %d" % (sLB, slot * 4096 + i * 1024))
            k.e("s_nop 0")
            k.vmem("buffer_load_dwordx4 v%d, %s, s%d offen lds" % (vBo if i & 1 else vBe, sr(S_B, 4), sBoff), ("s", s))
            k.e("s_add_u32 s%d, s%d, 8192" % (sBoff, sBoff))

    def trread(s):
        slot = s % D
        buf = vBf + (s & 1) * 16
        for j in range(4):
            k.e("ds_read_b64_tr_b16 %s, v%d offset:%d" % (vr(buf + j * 4, 2), vTr + j, slot * 4096))
            k.e("ds_read_b64_tr_b16 %s, v%d offset:%d" % (vr(buf + j * 4 + 2, 2), vTr + j, slot * 4096 + 512))

    for s in range(D):
        issue(s)
    k.wait_vm(("s", 0))
    trread(0)
    for s in range(ns):
        slot = s % D
        buf = vBf + (s & 1) * 16
        if s + 1 < ns:
            k.wait_vm(("s", s + 1))
            k.e("s_waitcnt lgkmcnt(0)")
            trread(s + 1)
        else:
            k.e("s_waitcnt lgkmcnt(0)")
        for t in range(4):
            for j in range(4):
                a = vAcc + (j * 4 + t) * 4
                cin = "0" if s == 0 else vr(a, 4)
                k.e("v_mfma_f32_16x16x32_bf16 %s, %s, %s, %s" % (vr(a, 4), vr(buf + j * 4, 4), vr(vAr + slot * 16 + t * 4, 4), cin))
        if s + D < ns:
            issue(s + D)
    k.e("v_lshlrev_b32 v%d, 4, v%d" % (vT0, vL))
    k.e("v_add_u32 v%d, s%d, v%d" % (vT1, sLB, vT0))
    k.e("s_nop 7")
    k.e("s_nop 3")
    for t in range(1, 4):
        for j in range(4):
            k.e("ds_write_b128 v%d, %s offset:%d" % (vT1, vr(vAcc + (j * 4 + t) * 4, 4), (t - 1) * 4096 + j * 1024))
    k.e("s_waitcnt lgkmcnt(0)")
    k.e("s_barrier")
    vP = vBf
    for d in range(1, 4):
        k.e("s_sub_u32 s3, s%d, %d" % (sW, d))
        k.e("s_and_b32 s3, s3, 3")
        k.e("s_mul_i32 s3, s3, %d" % wave_lds)
        k.e("v_add_u32 v%d, s3, v%d" % (vT1, vT0))
        for j in range(4):
            k.e("ds_read_b128 %s, v%d offset:%d" % (vr(vP + ((d - 1) * 4 + j) * 4, 4), vT1, (d - 1) * 4096 + j * 1024))
    k.wait_vm("res")
    vO = vP + 48
    for j in range(4):
        for h in range(2):
            k.e("v_lshlrev_b32 v%d, 16, v%d" % (vO + j * 4 + 2 * h, vRes + 2 * j + h))
            k.e("v_and_b32 v%d, 0xffff0000, v%d" % (vO + j * 4 + 2 * h + 1, vRes + 2 * j + h))
    for j in range(4):
        for r in range(4):
            k.e("v_add_f32 v%d, v%d, v%d" % (vO + j * 4 + r, vO + j * 4 + r, vAcc + (j * 4) * 4 + r))
    k.e("s_waitcnt lgkmcnt(0)")
    for d in range(3):
        for j in range(4):
            for r in range(4):
                k.e("v_add_f32 v%d, v%d, v%d" % (vO + j * 4 + r, vO + j * 4 + r, vP + (d * 4 + j) * 4 + r))
    vPk = vP
    for j in range(4):
        k.e("v_cvt_pk_bf16_f32 v%d, v%d, v%d" % (vPk + 2 * j, vO + 4 * j, vO + 4 * j + 1))
        k.e("v_cvt_pk_bf16_f32 v%d, v%d, v%d" % (vPk + 2 * j + 1, vO + 4 * j + 2, vO + 4 * j + 3))
    for j in range(4):
        k.vmem("buffer_store_dwordx2 %s, v%d, %s, 0 offen offset:%d" % (vr(vPk + 2 * j, 2), vRo, sr(S_C, 4), 32 * j), "st")
    if stats:
        vS, vQ, vX, vY = vPk + 8, vPk + 9, vPk + 10, vPk + 11
        k.e("v_mov_b32 v%d, 0" % vS)
        k.e("v_mov_b32 v%d, 0" % vQ)
        for i in range(8):
            k.e("v_lshlrev_b32 v%d, 16, v%d" % (vX, vPk + i))
            k.e("v_and_b32 v%d, 0xffff0000, v%d" % (vY, vPk + i))
            k.e("v_add_f32 v%d, v%d, v%d" % (vS, vS, vX))
            k.e("v_fmac_f32 v%d, v%d, v%d" % (vQ, vX, vX))
            k.e("v_add_f32 v%d, v%d, v%d" % (vS, vS, vY))
            k.e("v_fmac_f32 v%d, v%d, v%d" % (vQ, vY, vY))
        for op in ("v_permlane32_swap_b32", "v_permlane16_swap_b32"):
            k.e("v_mov_b32 v%d, v%d" % (vX, vS))
            k.e("v_mov_b32 v%d, v%d" % (vY, vQ))
            k.e("s_nop 1")
            k.e("%s v%d, v%d" % (op, vS, vX))
            k.e("%s v%d, v%d" % (op, vQ, vY))
            k.e("v_add_f32 v%d, v%d, v%d" % (vS, vS, vX))
            k.e("v_add_f32 v%d, v%d, v%d" % (vQ, vQ, vY))
        k.e("v_lshrrev_b32 v%d, 10, v%d" % (vX, vRo))
        k.e("v_lshlrev_b32 v%d, 6, v%d" % (vX, vX))
        k.e("s_lshl_b32 s3, s%d, 3" % sCB)
        k.e("v_add_u32 v%d, s3, v%d" % (vX, vX))
        k.e("v_cmp_gt_u32 vcc, 16, v%d" % vL)
        k.e("s_and_saveexec_b64 s[34:35], vcc")
        k.vmem("buffer_store_dwordx2 %s, v%d, %s, 0 offen" % (vr(vS, 2), vX, sr(S_ST, 4)), "st")
        k.e("s_mov_b64 exec, s[34:35]")
    k.lab("%s_end" % name)
    k.e("s_endpgm")
    return k.text(), nv, 4 * wave_lds


K3_UP = 14464
K3_SLOT = 28800
K3_NS = 5


def gen_k3(name):
    k = K()
    header(k, name)
    S_A, S_B, S_C, S_ST = 8, 12, 16, 20
    sW, sRB, sFB, sT = 28, 29, 30, 31
    sC0, sC1 = 32, 33
    sOff = 34
    sM = 35
    k.e("s_cmp_ge_u32 s2, 256")
    k.e("s_cbranch_scc1 %s_end" % name)
    k.e("s_load_dwordx2 s[4:5], s[0:1], %d" % KA_WS)
    k.e("s_load_dwordx4 s[44:47], s[0:1], %d" % KA_WG)
    k.e("v_lshrrev_b32 v2, 6, v0")
    k.e("v_and_b32 v1, 63, v0")
    k.e("v_readfirstlane_b32 s%d, v2" % sW)
    k.e("s_and_b32 s3, s2, 7")
    k.e("s_lshr_b32 s%d, s2, 3" % sT)
    k.e("s_lshr_b32 s%d, s3, 2" % sRB)
    k.e("s_lshl_b32 s%d, s%d, 3" % (sRB, sRB))
    k.e("s_lshr_b32 s%d, s%d, 2" % (sFB, sT))
    k.e("s_add_u32 s%d, s%d, s%d" % (sRB, sRB, sFB))
    k.e("s_and_b32 s%d, s3, 3" % sFB)
    k.e("s_lshl_b32 s%d, s%d, 2" % (sFB, sFB))
    k.e("s_and_b32 s%d, s%d, 3" % (sT, sT))
    k.e("s_add_u32 s%d, s%d, s%d" % (sFB, sFB, sT))
    k.e("s_waitcnt lgkmcnt(0)")
    k.e("s_cmp_ge_u32 s%d, 4" % sW)
    k.e("s_cbranch_scc1 %s_loader" % name)

    vL = 1
    vA, vO = 2, 3
    vTr = 4
    vRstd, vNmr = 7, 8
    vT0, vT1, vT2, vT3 = 9, 10, 11, 12
    vN = 16
    vW = 24
    vAr = 80
    vAcc = 144
    nv = 256
    srd(k, S_A, 4, 2 << 20, WS_H)
    srd(k, S_C, 4, 2048 * 3584, WS_HH)
    srd(k, S_ST, 4, 2048 * 64, WS_HST)
    k.e("s_lshl_b32 s3, s%d, 7" % sRB)
    k.e("s_lshl_b32 s%d, s%d, 5" % (sT, sW))
    k.e("s_add_u32 s3, s3, s%d" % sT)
    k.e("v_and_b32 v%d, 31, v%d" % (vT0, vL))
    k.e("v_add_u32 v%d, s3, v%d" % (vT0, vT0))
    k.e("v_lshrrev_b32 v%d, 5, v%d" % (vT1, vL))
    k.e("v_lshlrev_b32 v%d, 6, v%d" % (vT2, vT0))
    for i in range(4):
        k.vmem("buffer_load_dwordx4 %s, v%d, %s, 0 offen offset:%d" % (vr(vW + 4 * i, 4), vT2, sr(S_ST, 4), 16 * i), "st")
    k.e("v_lshlrev_b32 v%d, 10, v%d" % (vA, vT0))
    k.e("v_lshl_add_u32 v%d, v%d, 4, v%d" % (vA, vT1, vA))
    for j in range(16):
        k.vmem("buffer_load_dwordx4 %s, v%d, %s, 0 offen offset:%d" % (vr(vAr + 4 * j, 4), vA, sr(S_A, 4), 32 * j), ("a", j))
    k.e("s_mov_b32 s3, 3584")
    k.e("v_mul_lo_u32 v%d, v%d, s3" % (vO, vT0))
    k.e("v_lshl_add_u32 v%d, v%d, 4, v%d" % (vO, vT1, vO))
    k.e("s_mul_i32 s3, s%d, 224" % sFB)
    k.e("v_add_u32 v%d, s3, v%d" % (vO, vO))
    k.e("v_bfe_u32 v%d, v%d, 4, 1" % (vT0, vL))
    k.e("v_mul_u32_u24 v%d, %d, v%d" % (vTr, K3_UP, vT0))
    k.e("v_lshrrev_b32 v%d, 5, v%d" % (vT0, vL))
    k.e("v_bfe_u32 v%d, v%d, 2, 2" % (vT1, vL))
    k.e("v_lshl_add_u32 v%d, v%d, 3, v%d" % (vT0, vT0, vT1))
    k.e("v_mul_u32_u24 v%d, 224, v%d" % (vT0, vT0))
    k.e("v_add_u32 v%d, v%d, v%d" % (vTr, vTr, vT0))
    k.e("v_and_b32 v%d, 1, v%d" % (vT0, vL))
    k.e("v_lshl_add_u32 v%d, v%d, 4, v%d" % (vTr, vT0, vTr))
    k.e("v_bfe_u32 v%d, v%d, 1, 1" % (vT0, vL))
    k.e("v_lshl_add_u32 v%d, v%d, 3, v%d" % (vTr, vT0, vTr))
    k.e("v_add_u32 v%d, %d, v%d" % (vTr + 1, 2 * K3_SLOT, vTr))
    k.e("v_add_u32 v%d, %d, v%d" % (vTr + 2, 4 * K3_SLOT, vTr))
    k.wait_vm("st")
    k.e("v_add_f32 v%d, v%d, v%d" % (vT0, vW, vW + 2))
    k.e("v_add_f32 v%d, v%d, v%d" % (vT1, vW + 1, vW + 3))
    for i in range(2, 8):
        k.e("v_add_f32 v%d, v%d, v%d" % (vT0, vT0, vW + 2 * i))
        k.e("v_add_f32 v%d, v%d, v%d" % (vT1, vT1, vW + 2 * i + 1))
    k.e("v_mul_f32 v%d, 0x3b000000, v%d" % (vT0, vT0))
    k.e("v_mul_f32 v%d, 0x3b000000, v%d" % (vT1, vT1))
    k.e("v_fma_f32 v%d, -v%d, v%d, v%d" % (vT1, vT0, vT0, vT1))
    k.e("v_max_f32 v%d, 0, v%d" % (vT1, vT1))
    k.e("v_add_f32 v%d, 0x3727c5ac, v%d" % (vT1, vT1))
    k.e("v_rsq_f32 v%d, v%d" % (vRstd, vT1))
    k.e("s_nop 0")
    k.e("v_mul_f32 v%d, v%d, v%d" % (vNmr, vT0, vRstd))
    k.e("v_sub_f32 v%d, 0, v%d" % (vNmr, vNmr))

    def norm_ops(j):
        src = vAr + (j % 16) * 4
        dst = vN + (j & 1) * 4
        ops = []
        for i in range(4):
            a, b = (vT0, vT1) if i & 1 == 0 else (vT2, vT3)
            ops.append("v_lshlrev_b32 v%d, 16, v%d" % (a, src + i))
            ops.append("v_and_b32 v%d, 0xffff0000, v%d" % (b, src + i))
            ops.append("v_fma_f32 v%d, v%d, v%d, v%d" % (a, a, vRstd, vNmr))
            ops.append("v_fma_f32 v%d, v%d, v%d, v%d" % (b, b, vRstd, vNmr))
            ops.append("v_cvt_pk_bf16_f32 v%d, v%d, v%d" % (dst + i, a, b))
        return ops

    def tr_ops(j):
        st, u = j // 4, j % 4
        slot = st % K3_NS
        base = vTr + slot // 2
        off = (slot % 2) * K3_SLOT + u * 3584
        buf = vW + (j & 1) * 28
        ops = []
        for t in range(7):
            ops.append("ds_read_b64_tr_b16 %s, v%d offset:%d" % (vr(buf + 4 * t, 2), base, off + 32 * t))
            ops.append("ds_read_b64_tr_b16 %s, v%d offset:%d" % (vr(buf + 4 * t + 2, 2), base, off + 32 * t + 896))
        return ops

    k.wait_vm(("a", 0))
    for op in norm_ops(0):
        k.e(op)
    k.e("s_barrier")
    for op in tr_ops(0):
        k.e(op)
    for j in range(32):
        st, u = j // 4, j % 4
        buf = vW + (j & 1) * 28
        fill = []
        if j + 1 < 32:
            k.wait_vm(("a", j + 1))
        k.e("s_waitcnt lgkmcnt(0)")
        if u == 3 and j + 1 < 32:
            k.e("s_barrier")
        if j + 1 < 32:
            fill = tr_ops(j + 1)
            nrm = norm_ops(j + 1)
        else:
            nrm = []
        seq = []
        fi = ni = 0
        for t in range(7):
            a = vAcc + 16 * t
            cin = "0" if j == 0 else vr(a, 16)
            seq.append("v_mfma_f32_32x32x16_bf16 %s, %s, %s, %s" % (vr(a, 16), vr(buf + 4 * t, 4), vr(vN + (j & 1) * 4, 4), cin))
            for _ in range(2):
                if fi < len(fill):
                    seq.append(fill[fi]); fi += 1
            for _ in range(3):
                if ni < len(nrm):
                    seq.append(nrm[ni]); ni += 1
        assert fi == len(fill) and ni == len(nrm)
        for s_ in seq:
            k.e(s_)
        if j + 16 < 32:
            k.vmem("buffer_load_dwordx4 %s, v%d, %s, 0 offen offset:%d" % (vr(vAr + 4 * (j % 16), 4), vA, sr(S_A, 4), 32 * (j + 16)), ("a", j + 16))
    k.e("s_nop 7")
    k.e("s_nop 7")
    tmp = vW
    k.e("v_mov_b32 v%d, 0xbdd2d3e8" % vT3)
    for t in range(7):
        a = vAcc + 16 * t
        o = tmp + 8 * (t & 1) + 32
        for r in range(8):
            g, u_ = a + r, a + 8 + r
            x0, x1 = tmp + 2 * (r & 3), tmp + 2 * (r & 3) + 1
            k.e("v_mul_f32 v%d, v%d, v%d" % (x0, g, g))
            k.e("v_fmaak_f32 v%d, v%d, v%d, 0xc0135761" % (x1, x0, vT3))
            k.e("v_mul_f32 v%d, v%d, v%d" % (x1, x1, g))
            k.e("v_exp_f32 v%d, v%d" % (x1, x1))
            k.e("v_mul_f32 v%d, v%d, v%d" % (x0, g, u_))
            k.e("v_add_f32 v%d, 1.0, v%d" % (x1, x1))
            k.e("v_rcp_f32 v%d, v%d" % (x1, x1))
            k.e("s_nop 0")
            k.e("v_mul_f32 v%d, v%d, v%d" % (a + r, x0, x1))
        for i in range(4):
            k.e("v_cvt_pk_bf16_f32 v%d, v%d, v%d" % (o + i, a + 2 * i, a + 2 * i + 1))
        k.vmem("buffer_store_dwordx4 %s, v%d, %s, 0 offen offset:%d" % (vr(o, 4), vO, sr(S_C, 4), 32 * t), "st")
    k.e("s_endpgm")

    k.lab("%s_loader" % name)
    k2 = k
    k2.vm = []
    vOff = 4
    k.e("s_cmp_ge_u32 s%d, 6" % sW)
    k.e("s_cselect_b32 s6, s46, s44")
    k.e("s_cselect_b32 s7, s47, s45")
    k.e("s_cselect_b32 s%d, %d, 0" % (sM, K3_UP))
    srd(k, S_B, 6, 512 * 3584)
    k.e("s_and_b32 s%d, s%d, 1" % (sT, sW))
    k.e("s_mul_i32 s3, s%d, 7168" % sT)
    k.e("s_add_u32 s%d, s%d, s3" % (sM, sM))
    k.e("s_mul_i32 s3, s%d, 448" % sT)
    k.e("s_mul_i32 s%d, s%d, 224" % (sT, sFB))
    for p in range(7):
        k.e("v_add_u32 v2, s3, v1")
        if p:
            k.e("v_add_u32 v2, %d, v2" % (64 * p))
        k.e("v_mul_u32_u24 v3, 4682, v2")
        k.e("v_lshrrev_b32 v3, 16, v3")
        k.e("v_mul_u32_u24 v11, 14, v3")
        k.e("v_sub_u32 v2, v2, v11")
        k.e("v_mul_u32_u24 v3, 3584, v3")
        k.e("v_lshl_add_u32 v3, v2, 4, v3")
        k.e("v_add_u32 v%d, s%d, v3" % (vOff + p, sT))

    def ld(st):
        slot = st % K3_NS
        k.e("s_mov_b32 s%d, %d" % (sOff, st * 64 * 3584))
        for p in range(7):
            k.e("s_add_u32 m0, s%d, %d" % (sM, slot * K3_SLOT + p * 1024))
            k.e("s_nop 0")
            k.vmem("buffer_load_dwordx4 v%d, %s, s%d offen lds" % (vOff + p, sr(S_B, 4), sOff), ("s", st))

    for st in range(K3_NS):
        ld(st)
    for i in range(8):
        k.wait_vm(("s", i))
        k.e("s_barrier")
        if i >= 1 and i - 1 + K3_NS < 8:
            ld(i - 1 + K3_NS)
    k.lab("%s_end" % name)
    k.e("s_endpgm")
    return k.text(), nv, K3_NS * K3_SLOT


import struct


def f32bits(x):
    return struct.unpack("<I", struct.pack("<f", x))[0]


def main():
    from gen_k1 import gen_k1
    parts = []
    descs = []
    launches = []
    t, nv, lds = gen_k1("k1_kernel")
    parts.append(t); descs.append(descriptor("k1_kernel", nv)); launches.append(("k1_kernel", 512, lds))
    t, nv, lds = gen_t2("k2_kernel", 512, 1024, ('ws', WS_O), KA_WO, ('ka', KA_X), ('ws', WS_H), True)
    parts.append(t); descs.append(descriptor("k2_kernel", nv)); launches.append(("k2_kernel", 256, lds))
    t, nv, lds = gen_k3("k3_kernel")
    c0 = -2.0 * 1.4426950408889634 * 0.7978845608028654
    t = t.replace("0xc0135761", "0x%08x" % f32bits(c0)).replace("0xbdd2d3e8", "0x%08x" % f32bits(c0 * 0.044715))
    parts.append(t); descs.append(descriptor("k3_kernel", nv)); launches.append(("k3_kernel", 512, lds))
    t, nv, lds = gen_t2("k4_kernel", 1792, 3584, ('ws', WS_HH), KA_WD, ('ws', WS_H), ('ka', KA_OUT), False)
    parts.append(t); descs.append(descriptor("k4_kernel", nv)); launches.append(("k4_kernel", 256, lds))
    out = []
    for n, b, lds in launches:
        out.append("; @launch kernel=%s grid=(256,1,1) block=(%d,1,1) lds=%d" % (n, b, lds))
    out.append('.amdgcn_target "amdgcn-amd-amdhsa--gfx950"')
    out.append(".text")
    out += parts
    out.append('.section .rodata,"a"')
    out += descs
    path = sys.argv[1] if len(sys.argv) > 1 else "cdna_kernels/%s.s" % NAME
    open(path, "w").write("\n".join(out))
    print("wrote", path)


if __name__ == "__main__":
    main()
```

```python
from gen import K, vr, sr, srd, header, KA_X, KA_WQKV, KA_WS, WS_O, f32bits, ROT, KA_WO, KA_WG, KA_WD, PREF

A_BYTES = 80 * 128
W_SUB = 64 * 128
SLOT = A_BYTES + 3 * W_SUB
NS = 4
ST_BASE = NS * SLOT
LDS = ST_BASE + 6 * 320
NEG = -1.0e30


def gen_k1(name):
    k = K()
    header(k, name)
    S_A, S_B, S_C = 8, 12, 16
    sW, sRB, sHG, sT = 28, 29, 30, 31
    sOff, sM = 34, 35
    sScale = 36
    sK = 40
    sKb = 41
    k.e("s_cmp_ge_u32 s2, 256")
    k.e("s_cbranch_scc1 %s_end" % name)
    k.stamp_rt(0)
    k.stamp(1)
    k.e("s_load_dwordx4 s[44:47], s[0:1], %d" % KA_X)
    k.e("s_load_dwordx2 s[4:5], s[0:1], %d" % KA_WS)
    k.e("s_load_dwordx2 s[6:7], s[0:1], %d" % KA_WO)
    k.e("s_load_dwordx4 s[20:23], s[0:1], %d" % KA_WG)
    k.e("v_lshrrev_b32 v2, 6, v0")
    k.e("v_and_b32 v1, 63, v0")
    k.e("v_readfirstlane_b32 s%d, v2" % sW)
    k.e("s_and_b32 s3, s2, 7")
    k.e("s_lshr_b32 s%d, s2, 3" % sT)
    k.e("s_lshr_b32 s%d, s3, 1" % sRB)
    k.e("s_lshl_b32 s%d, s%d, 3" % (sRB, sRB))
    k.e("s_lshr_b32 s%d, s%d, 2" % (sHG, sT))
    k.e("s_add_u32 s%d, s%d, s%d" % (sRB, sRB, sHG))
    k.e("s_and_b32 s%d, s3, 1" % sHG)
    k.e("s_lshl_b32 s%d, s%d, 2" % (sHG, sHG))
    k.e("s_and_b32 s%d, s%d, 3" % (sT, sT))
    k.e("s_add_u32 s%d, s%d, s%d" % (sHG, sHG, sT))
    k.e("s_lshr_b32 s3, s2, 5")
    k.e("s_lshl_b32 s%d, s%d, 1" % (sK, sT))
    k.e("s_add_u32 s%d, s%d, s3" % (sK, sK))
    k.e("s_and_b32 s%d, s%d, 7" % (sK, sK))
    if not ROT:
        k.e("s_mov_b32 s%d, 0" % sK)
    k.e("s_waitcnt lgkmcnt(0)")
    k.e("s_cmp_ge_u32 s%d, 4" % sW)
    k.e("s_cbranch_scc1 %s_loader" % name)

    vL = 1
    vXa = 2
    vWa = 6
    vOnes = 8
    vT0, vT1, vT2, vT3 = 12, 13, 14, 15
    vX = 16
    vWf = 56
    vQ = 80
    vKk = 96
    vV = 116
    vCq, vCk, vCv = 136, 140, 144
    vE = 148
    nv = 256
    srd(k, S_C, 4, 2 << 20, WS_O)
    k.e("v_and_b32 v%d, 15, v%d" % (vT0, vL))
    k.e("v_lshrrev_b32 v%d, 4, v%d" % (vT1, vL))
    k.e("v_lshrrev_b32 v%d, 1, v%d" % (vT2, vT0))
    k.e("v_xor_b32 v%d, v%d, v%d" % (vT2, vT2, vT1))
    k.e("v_lshlrev_b32 v%d, 7, v%d" % (vT3, vT0))
    k.e("v_lshl_add_u32 v%d, v%d, 4, v%d" % (vXa, vT2, vT3))
    k.e("v_xor_b32 v%d, 4, v%d" % (vT2, vT2))
    k.e("v_lshl_add_u32 v%d, v%d, 4, v%d" % (vXa + 1, vT2, vT3))
    k.e("v_add_u32 v%d, %d, v%d" % (vXa + 2, 2 * SLOT, vXa))
    k.e("v_add_u32 v%d, %d, v%d" % (vXa + 3, 2 * SLOT, vXa + 1))
    k.e("v_bfe_u32 v%d, v%d, 2, 2" % (vT2, vL))
    k.e("v_lshl_add_u32 v%d, v%d, 3, v%d" % (vT2, vT1, vT2))
    k.e("v_lshlrev_b32 v%d, 7, v%d" % (vT2, vT2))
    k.e("v_and_b32 v%d, 3, v%d" % (vT3, vL))
    k.e("v_lshl_add_u32 v%d, v%d, 3, v%d" % (vT2, vT3, vT2))
    k.e("v_bfe_u32 v%d, v%d, 3, 1" % (vT3, vL))
    k.e("v_bfe_u32 v%d, v%d, 4, 1" % (vT0, vL))
    k.e("v_lshl_or_b32 v%d, v%d, 1, v%d" % (vT0, vT0, vT3))
    k.e("v_xor_b32 v%d, s%d, v%d" % (vT0, sW, vT0))
    k.e("v_lshl_add_u32 v%d, v%d, 5, v%d" % (vWa, vT0, vT2))
    k.e("v_add_u32 v%d, %d, v%d" % (vWa, A_BYTES, vWa))
    k.e("v_add_u32 v%d, %d, v%d" % (vWa + 1, 2 * SLOT, vWa))
    for i in range(4):
        k.e("v_mov_b32 v%d, 0x3f803f80" % (vOnes + i))

    def rd(j, what):
        st, kk = j // 2, j % 2
        slot = st % NS
        sp, so = slot // 2, (slot % 2) * SLOT
        xb = vX + (j & 1) * 20
        wb = vWf + (j & 1) * 12
        if what[0] == 'w':
            s_ = what[1]
            k.lds("ds_read_b64_tr_b16 %s, v%d offset:%d" % (vr(wb + 4 * s_, 2), vWa + sp, so + s_ * W_SUB + kk * 4096), (j, what))
            k.lds("ds_read_b64_tr_b16 %s, v%d offset:%d" % (vr(wb + 4 * s_ + 2, 2), vWa + sp, so + s_ * W_SUB + kk * 4096 + 512), (j, what))
        else:
            t = what[1]
            k.lds("ds_read_b128 %s, v%d offset:%d" % (vr(xb + 4 * t, 4), vXa + sp * 2 + kk, so + 2048 * t), (j, what))

    RD_ORDER = [('w', 1), ('x', 0), ('w', 2), ('x', 1), ('w', 0), ('x', 2), ('x', 3), ('x', 4)]
    k.stamp(2)
    k.e("s_barrier")
    k.stamp(3)
    for w_ in RD_ORDER:
        rd(0, w_)
    for j in range(16):
        xb = vX + (j & 1) * 20
        wb = vWf + (j & 1) * 12
        last = j + 1 >= 16
        boundary = (j % 2 == 1 and not last)
        pend = list(RD_ORDER) if not last else []
        mf = []
        for t in range(5):
            mf.append((vKk + 4 * t, wb + 4, xb + 4 * t, [('w', 1), ('x', t)]))
            mf.append((vV + 4 * t, xb + 4 * t, wb + 8, [('w', 2), ('x', t)]))
            if t >= 1:
                mf.append((vQ + 4 * (t - 1), wb, xb + 4 * t, [('w', 0), ('x', t)]))
        mf.append((vCq, wb, vOnes, []))
        mf.append((vCk, wb + 4, vOnes, []))
        mf.append((vCv, vOnes, wb + 8, []))
        for n, (d, a_, b_, deps) in enumerate(mf):
            for dp in deps:
                k.wait_lds((j, dp))
            k.e("v_mfma_f32_16x16x32_bf16 %s, %s, %s, %s" % (vr(d, 4), vr(a_, 4), vr(b_, 4), "0" if j == 0 else vr(d, 4)))
            if boundary and n < 5:
                continue
            if boundary and n == 5:
                k.wait_lds_all()
                k.e("s_barrier")
                k.stamp(4 + j // 2)
            if pend and (boundary or n % 2 == 0 or n >= 8):
                rd(j + 1, pend.pop(0))
        assert not pend
    k.stamp(11)
    k.e("s_barrier")
    k.e("s_barrier")
    k.stamp(12)
    vSr = vE
    vSn = vE + 5
    vVr = vE + 12
    vVn = vE + 32
    k.e("v_and_b32 v%d, 15, v%d" % (vT0, vL))
    k.e("v_lshlrev_b32 v%d, 2, v%d" % (vT2, vT0))
    k.e("v_lshrrev_b32 v%d, 4, v%d" % (vT1, vL))
    k.e("v_lshlrev_b32 v%d, 4, v%d" % (vT3, vT1))
    k.e("v_add_u32 v%d, %d, v%d" % (vT2, ST_BASE, vT2))
    k.e("v_add_u32 v%d, %d, v%d" % (vT3, ST_BASE, vT3))
    for t in range(5):
        k.e("ds_read_b32 v%d, v%d offset:%d" % (vSr + t, vT2, 640 + 64 * t))
        k.e("ds_read_b32 v%d, v%d offset:%d" % (vSn + t, vT2, 960 + 64 * t))
        k.e("ds_read_b128 %s, v%d offset:%d" % (vr(vVr + 4 * t, 4), vT3, 640 + 64 * t))
        k.e("ds_read_b128 %s, v%d offset:%d" % (vr(vVn + 4 * t, 4), vT3, 960 + 64 * t))
    vBc = vE + 52
    vBp = vE + 56
    vBp1 = vE + 60
    vNeg = vE + 64
    k.e("v_mov_b32 v%d, 0x%08x" % (vNeg, f32bits(NEG)))
    k.e("v_lshlrev_b32 v%d, 2, v%d" % (vT2, vT1))
    k.e("v_sub_u32 v%d, v%d, v%d" % (vT2, vT0, vT2))
    vSgn = vE + 65
    k.e("v_mov_b32 v%d, 0x80000000" % vSgn)
    for r in range(4):
        k.e("v_subrev_u32 v%d, %d, v%d" % (vT3, r, vT2))
        k.e("v_and_b32 v%d, 0x80000001, v%d" % (vT3, vT3))
        k.e("v_cmp_eq_u32 vcc, 0, v%d" % vT3)
        k.e("v_cmp_eq_u32 s[38:39], v%d, v%d" % (vSgn, vT3))
        k.e("s_nop 1")
        k.e("v_cndmask_b32_e64 v%d, v%d, 0, vcc" % (vBc + r, vNeg))
        k.e("v_cndmask_b32_e64 v%d, v%d, 0, s[38:39]" % (vBp + r, vNeg))
    k.e("s_cmp_eq_u32 s%d, 0" % sRB)
    k.e("s_cselect_b64 s[38:39], -1, 0")
    for r in range(4):
        k.e("v_cndmask_b32_e64 v%d, v%d, v%d, s[38:39]" % (vBp1 + r, vBp + r, vNeg))
    k.e("s_mov_b32 s%d, 0x%08x" % (sScale, f32bits(0.25 * 1.4426950408889634)))
    k.e("s_waitcnt lgkmcnt(0)")
    vQb = vX
    vKb = vX + 8
    vVb = vX + 18
    for t in range(5):
        for (acc, cs, dst, on) in ((vQ + 4 * (t - 1), vCq, vQb + 2 * (t - 1), t >= 1), (vKk + 4 * t, vCk, vKb + 2 * t, True)):
            if not on:
                continue
            for r in range(4):
                k.e("v_mul_f32 v%d, v%d, v%d" % (vT0 + r, vSn + t, cs + r))
            for r in range(4):
                k.e("v_fma_f32 v%d, v%d, v%d, v%d" % (vT0 + r, vSr + t, acc + r, vT0 + r))
            k.e("v_cvt_pk_bf16_f32 v%d, v%d, v%d" % (dst, vT0, vT1))
            k.e("v_cvt_pk_bf16_f32 v%d, v%d, v%d" % (dst + 1, vT2, vT3))
        for r in range(4):
            k.e("v_mul_f32 v%d, v%d, v%d" % (vT0 + r, vVn + 4 * t + r, vCv))
        for r in range(4):
            k.e("v_fma_f32 v%d, v%d, v%d, v%d" % (vT0 + r, vVr + 4 * t + r, vV + 4 * t + r, vT0 + r))
        k.e("v_cvt_pk_bf16_f32 v%d, v%d, v%d" % (vVb + 2 * t, vT0, vT1))
        k.e("v_cvt_pk_bf16_f32 v%d, v%d, v%d" % (vVb + 2 * t + 1, vT2, vT3))
    k.e("s_nop 1")
    vS = vQ
    for t in range(4):
        k.e("v_mfma_f32_16x16x16_bf16 %s, %s, %s, 0" % (vr(vS + 8 * t, 4), vr(vKb + 2 * t, 2), vr(vQb + 2 * t, 2)))
        k.e("v_mfma_f32_16x16x16_bf16 %s, %s, %s, 0" % (vr(vS + 8 * t + 4, 4), vr(vKb + 2 * (t + 1), 2), vr(vQb + 2 * t, 2)))
    k.e("s_nop 7")
    k.e("s_nop 1")
    vMx = vE
    vMy = vE + 4
    vSum = vE + 8
    for t in range(4):
        for r in range(4):
            k.e("v_fma_f32 v%d, v%d, s%d, v%d" % (vS + 8 * t + r, vS + 8 * t + r, sScale, (vBp1 if t == 0 else vBp) + r))
            k.e("v_fma_f32 v%d, v%d, s%d, v%d" % (vS + 8 * t + 4 + r, vS + 8 * t + 4 + r, sScale, vBc + r))
        b = vS + 8 * t
        k.e("v_max3_f32 v%d, v%d, v%d, v%d" % (vMx + t, b, b + 1, b + 2))
        k.e("v_max3_f32 v%d, v%d, v%d, v%d" % (vMx + t, vMx + t, b + 3, b + 4))
        k.e("v_max3_f32 v%d, v%d, v%d, v%d" % (vMx + t, vMx + t, b + 5, b + 6))
        k.e("v_max_f32 v%d, v%d, v%d" % (vMx + t, vMx + t, b + 7))
    for op in ("v_permlane32_swap_b32", "v_permlane16_swap_b32"):
        for t in range(4):
            k.e("v_mov_b32 v%d, v%d" % (vMy + t, vMx + t))
        k.e("s_nop 1")
        for t in range(4):
            k.e("%s v%d, v%d" % (op, vMx + t, vMy + t))
        for t in range(4):
            k.e("v_max_f32 v%d, v%d, v%d" % (vMx + t, vMx + t, vMy + t))
    for t in range(4):
        b = vS + 8 * t
        for i in range(8):
            k.e("v_sub_f32 v%d, v%d, v%d" % (b + i, b + i, vMx + t))
        for i in range(8):
            k.e("v_exp_f32 v%d, v%d" % (b + i, b + i))
        k.e("s_nop 0")
        k.e("v_add_f32 v%d, v%d, v%d" % (vSum + t, b, b + 1))
        for i in range(2, 8):
            k.e("v_add_f32 v%d, v%d, v%d" % (vSum + t, vSum + t, b + i))
    vP = vE + 12
    for t in range(4):
        b = vS + 8 * t
        for i in range(4):
            k.e("v_cvt_pk_bf16_f32 v%d, v%d, v%d" % (vP + 4 * t + i, b + 2 * i, b + 2 * i + 1))
    for op in ("v_permlane32_swap_b32", "v_permlane16_swap_b32"):
        for t in range(4):
            k.e("v_mov_b32 v%d, v%d" % (vMy + t, vSum + t))
        k.e("s_nop 1")
        for t in range(4):
            k.e("%s v%d, v%d" % (op, vSum + t, vMy + t))
        for t in range(4):
            k.e("v_add_f32 v%d, v%d, v%d" % (vSum + t, vSum + t, vMy + t))
    vOa = vE + 28
    for t in range(4):
        k.e("v_mfma_f32_16x16x16_bf16 %s, %s, %s, 0" % (vr(vOa + 4 * t, 4), vr(vVb + 2 * t, 2), vr(vP + 4 * t, 2)))
    for t in range(4):
        k.e("v_mfma_f32_16x16x16_bf16 %s, %s, %s, %s" % (vr(vOa + 4 * t, 4), vr(vVb + 2 * (t + 1), 2), vr(vP + 4 * t + 2, 2), vr(vOa + 4 * t, 4)))
    for t in range(4):
        k.e("v_rcp_f32 v%d, v%d" % (vSum + t, vSum + t))
    k.e("v_and_b32 v%d, 15, v%d" % (vT0, vL))
    k.e("s_lshl_b32 s3, s%d, 6" % sRB)
    k.e("v_add_u32 v%d, s3, v%d" % (vT0, vT0))
    k.e("v_lshlrev_b32 v%d, 10, v%d" % (vT0, vT0))
    k.e("v_lshrrev_b32 v%d, 4, v%d" % (vT1, vL))
    k.e("v_lshl_add_u32 v%d, v%d, 3, v%d" % (vT0, vT1, vT0))
    k.e("s_lshl_b32 s3, s%d, 2" % sHG)
    k.e("s_add_u32 s3, s3, s%d" % sW)
    k.e("s_lshl_b32 s3, s3, 5")
    k.e("v_add_u32 v%d, s3, v%d" % (vT0, vT0))
    k.e("s_nop 3")
    for t in range(4):
        for r in range(4):
            k.e("v_mul_f32 v%d, v%d, v%d" % (vOa + 4 * t + r, vOa + 4 * t + r, vSum + t))
        k.e("v_cvt_pk_bf16_f32 v%d, v%d, v%d" % (vP + 2 * t, vOa + 4 * t, vOa + 4 * t + 1))
        k.e("v_cvt_pk_bf16_f32 v%d, v%d, v%d" % (vP + 2 * t + 1, vOa + 4 * t + 2, vOa + 4 * t + 3))
        k.e("s_mov_b32 s3, %d" % (t * 16384))
        k.vmem("buffer_store_dwordx2 %s, v%d, %s, s3 offen" % (vr(vP + 2 * t, 2), vT0, sr(S_C, 4)), "st")
    k.stamp(13)
    k.stamp_rt(14)
    k.dump(0, sW, 15)
    k.e("s_endpgm")

    k.lab("%s_loader" % name)
    vRa = 10
    vOne = 12
    vF = 16
    vG = 28
    vR = 40
    k.e("s_and_b32 s%d, s%d, 1" % (sT, sW))
    k.e("s_lshl_b32 s3, s%d, 2" % sT)
    k.e("v_and_b32 v2, 15, v1")
    k.e("v_lshrrev_b32 v3, 4, v1")
    k.e("v_lshrrev_b32 v9, 1, v2")
    k.e("v_xor_b32 v9, v9, v3")
    k.e("v_xor_b32 v9, s3, v9")
    k.e("v_lshlrev_b32 v2, 7, v2")
    k.e("v_lshl_add_u32 v%d, v9, 4, v2" % vRa)
    k.e("v_add_u32 v%d, %d, v%d" % (vRa + 1, 2 * SLOT, vRa))
    for i in range(4):
        k.e("v_mov_b32 v%d, 0x3f803f80" % (vOne + i))

    def stats_stage(i, tiles):
        slot = i % NS
        for n, t in enumerate(tiles):
            k.lds("ds_read_b128 %s, v%d offset:%d" % (vr(vF + 4 * n, 4), vRa + slot // 2, (slot % 2) * SLOT + 2048 * t), ("f", n))
        for n, t in enumerate(tiles):
            k.wait_lds(("f", n))
            k.e("v_mfma_f32_16x16x32_bf16 %s, %s, %s, %s" % (vr(vG + 4 * n, 4), vr(vF + 4 * n, 4), vr(vF + 4 * n, 4), "0" if i == 0 else vr(vG + 4 * n, 4)))
            k.e("v_mfma_f32_16x16x32_bf16 %s, %s, %s, %s" % (vr(vR + 4 * n, 4), vr(vF + 4 * n, 4), vr(vOne, 4), "0" if i == 0 else vr(vR + 4 * n, 4)))

    def stats_finish(tiles):
        k.e("v_and_b32 v2, 3, v1")
        k.e("v_cmp_eq_u32 s[48:49], 1, v2")
        k.e("v_cmp_eq_u32 s[50:51], 2, v2")
        k.e("v_cmp_eq_u32 s[52:53], 3, v2")
        k.e("v_bfe_u32 v2, v1, 2, 2")
        k.e("v_lshrrev_b32 v3, 4, v1")
        k.e("v_cmp_eq_u32 vcc, v2, v3")
        k.e("s_mul_i32 s3, s%d, 1280" % sT)
        k.e("s_add_u32 s3, s3, %d" % ST_BASE)
        k.e("v_and_b32 v2, 15, v1")
        k.e("v_lshlrev_b32 v2, 2, v2")
        k.e("v_add_u32 v2, s3, v2")
        k.e("s_nop 3")
        for n, t in enumerate(tiles):
            for base in (vG + 4 * n, vR + 4 * n):
                k.e("v_cndmask_b32_e64 v%d, v%d, v%d, s[48:49]" % (base, base, base + 1))
                k.e("v_cndmask_b32_e64 v%d, v%d, v%d, s[50:51]" % (base, base, base + 2))
                k.e("v_cndmask_b32_e64 v%d, v%d, v%d, s[52:53]" % (base, base, base + 3))
        k.e("s_and_saveexec_b64 s[38:39], vcc")
        for n, t in enumerate(tiles):
            k.e("ds_write_b32 v2, v%d offset:%d" % (vR + 4 * n, 64 * t))
            k.e("ds_write_b32 v2, v%d offset:%d" % (vG + 4 * n, 320 + 64 * t))
        k.e("s_mov_b64 exec, s[38:39]")
        k.e("s_waitcnt lgkmcnt(0)")
        k.e("s_barrier")

    k.e("s_cmp_ge_u32 s%d, 6" % sW)
    k.e("s_cbranch_scc1 %s_loadw" % name)
    k.e("s_cmp_eq_u32 s%d, 5" % sW)
    k.e("s_cbranch_scc1 %s_pref" % name)
    k.vm = []
    k.lq = []
    srd(k, S_A, 44, 2 << 20)
    vOff = 4
    vPo = 56
    k.e("s_lshl_b32 s3, s%d, 6" % sRB)
    k.e("s_sub_u32 s3, s3, 16")
    k.e("v_lshrrev_b32 v2, 3, v1")
    k.e("v_add_u32 v2, s3, v2")
    k.e("v_and_b32 v3, 7, v1")
    k.e("v_lshrrev_b32 v9, 4, v1")
    k.e("v_xor_b32 v3, v3, v9")
    for p in range(10):
        k.e("v_add_u32 v9, %d, v2" % (8 * p))
        k.e("v_max_i32 v9, 0, v9")
        k.e("v_lshlrev_b32 v9, 10, v9")
        if p & 1:
            k.e("v_xor_b32 v%d, 4, v3" % (vPo + p))
            k.e("v_lshl_add_u32 v%d, v%d, 4, v9" % (vPo + p, vPo + p))
        else:
            k.e("v_lshl_add_u32 v%d, v3, 4, v9" % (vPo + p))

    def lda(st):
        slot = st % NS
        k.e("s_lshl_b32 s%d, s%d, 7" % (sOff, sK))
        k.e("s_add_u32 s%d, s%d, 1" % (sK, sK))
        k.e("s_and_b32 s%d, s%d, 7" % (sK, sK))
        for p in range(10):
            k.e("s_mov_b32 m0, %d" % (slot * SLOT + p * 1024))
            k.e("s_nop 0")
            k.vmem("buffer_load_dwordx4 v%d, %s, s%d offen lds" % (vPo + p, sr(S_A, 4), sOff), ("s", st))

    k.stamp(2)
    lda(0)
    lda(1)
    k.stamp(3)
    for i in range(8):
        k.wait_vm(("s", i))
        k.stamp(4 + i)
        k.e("s_barrier")
        if i + 2 < 8:
            lda(i + 2)
        stats_stage(i, [0, 1, 2])
    stats_finish([0, 1, 2])
    k.e("s_branch %s_fin" % name)
    k.lab("%s_pref" % name)
    k.vm = []
    k.lq = []
    k.stamp(2)
    k.stamp(3)
    for i in range(8):
        k.stamp(4 + i)
        k.e("s_barrier")
        if i == 6 and PREF:
            srd(k, S_A, 6, 512 * 1024)
            k.e("v_lshrrev_b32 v4, 2, v1")
            k.e("v_lshlrev_b32 v4, 10, v4")
            k.e("v_and_b32 v3, 3, v1")
            k.e("v_lshl_add_u32 v4, v3, 7, v4")
            k.e("s_lshr_b32 s%d, s2, 3" % sOff)
            k.e("s_lshl_b32 s%d, s%d, 14" % (sOff, sOff))
            k.e("s_and_b32 s%d, s2, 1" % sM)
            k.e("s_lshl_b32 s%d, s%d, 9" % (sM, sM))
            k.e("s_add_u32 s%d, s%d, s%d" % (sOff, sOff, sM))
            k.vmem("buffer_load_dword v56, v4, %s, s%d offen" % (sr(S_A, 4), sOff), "pf")
            k.e("v_lshlrev_b32 v2, 7, v1")
            k.e("s_mul_i32 s3, s2, 7168")
            k.e("v_cmp_gt_u32 vcc, 56, v1")
            k.e("s_and_saveexec_b64 s[38:39], vcc")
            for ptr in (20, 22):
                srd(k, S_B, ptr, 512 * 3584)
                k.vmem("buffer_load_dword v57, v2, %s, s3 offen" % sr(S_B, 4), "pf")
            k.e("s_mov_b64 exec, s[38:39]")
        stats_stage(i, [0, 1, 2])
    stats_finish([0, 1, 2])
    k.lab("%s_fin" % name)
    k.e("s_mul_i32 s3, s%d, 160" % sT)
    k.e("s_add_u32 s3, s3, %d" % ST_BASE)
    k.e("v_lshlrev_b32 v2, 2, v1")
    k.e("v_add_u32 v2, s3, v2")
    k.e("v_cmp_gt_u32 vcc, 40, v1")
    k.e("s_and_saveexec_b64 s[38:39], vcc")
    k.e("ds_read_b32 v3, v2")
    k.e("ds_read_b32 v9, v2 offset:320")
    k.e("ds_read_b32 v4, v2 offset:1280")
    k.e("ds_read_b32 v5, v2 offset:1600")
    k.e("s_waitcnt lgkmcnt(0)")
    k.e("v_add_f32 v3, v3, v4")
    k.e("v_add_f32 v9, v9, v5")
    k.e("v_mul_f32 v3, 0x3b000000, v3")
    k.e("v_mul_f32 v9, 0x3b000000, v9")
    k.e("v_fma_f32 v9, -v3, v3, v9")
    k.e("v_max_f32 v9, 0, v9")
    k.e("v_add_f32 v9, 0x3727c5ac, v9")
    k.e("v_rsq_f32 v9, v9")
    k.e("s_nop 0")
    k.e("v_mul_f32 v3, v3, v9")
    k.e("v_sub_f32 v3, 0, v3")
    k.e("ds_write_b32 v2, v9 offset:640")
    k.e("ds_write_b32 v2, v3 offset:960")
    k.e("s_waitcnt lgkmcnt(0)")
    k.e("s_mov_b64 exec, s[38:39]")
    k.e("s_barrier")
    k.stamp(12)
    k.e("s_waitcnt vmcnt(0)")
    k.stamp(13)
    k.stamp_rt(14)
    k.dump(0, sW, 15)
    k.e("s_endpgm")

    k.lab("%s_loadw" % name)
    k.vm = []
    k.lq = []
    srd(k, S_B, 46, 512 * 3072)
    vWe, vWo = 4, 5
    k.e("v_lshrrev_b32 v2, 3, v1")
    k.e("v_mul_u32_u24 v%d, 3072, v2" % vWe)
    k.e("v_and_b32 v2, 1, v1")
    k.e("v_lshl_add_u32 v%d, v2, 4, v%d" % (vWe, vWe))
    k.e("s_lshl_b32 s3, s%d, 7" % sHG)
    k.e("v_add_u32 v%d, s3, v%d" % (vWe, vWe))
    k.e("v_bfe_u32 v2, v1, 1, 2")
    k.e("v_bfe_u32 v3, v1, 4, 1")
    k.e("v_xor_b32 v2, v2, v3")
    k.e("v_xor_b32 v3, 2, v2")
    k.e("v_lshl_add_u32 v%d, v3, 5, v%d" % (vWo, vWe))
    k.e("v_lshl_add_u32 v%d, v2, 5, v%d" % (vWe, vWe))
    k.e("s_mul_i32 s%d, s%d, %d" % (sM, sT, 12 * 1024))
    k.e("s_add_u32 s%d, s%d, %d" % (sM, sM, A_BYTES))
    sG = 82
    for p in range(12):
        p0, p1 = p, 12 + p
        g0 = (p0 // 8) * 1024 + (p0 % 8) * 8 * 3072
        g1 = (p1 // 8) * 1024 + (p1 % 8) * 8 * 3072
        k.e("s_cmp_eq_u32 s%d, 0" % sT)
        k.e("s_mov_b32 s%d, %d" % (sG + p, g1))
        k.e("s_cmov_b32 s%d, %d" % (sG + p, g0))

    def ldw(st):
        slot = st % NS
        k.e("s_mul_i32 s%d, s%d, %d" % (sKb, sK, 64 * 3072))
        k.e("s_add_u32 s%d, s%d, 1" % (sK, sK))
        k.e("s_and_b32 s%d, s%d, 7" % (sK, sK))
        for p in range(12):
            k.e("s_add_u32 m0, s%d, %d" % (sM, slot * SLOT + p * 1024))
            k.e("s_add_u32 s%d, s%d, s%d" % (sOff, sG + p, sKb))
            k.vmem("buffer_load_dwordx4 v%d, %s, s%d offen lds" % (vWo if p & 1 else vWe, sr(S_B, 4), sOff), ("s", st))

    k.stamp(2)
    ldw(0)
    ldw(1)
    k.stamp(3)
    for i in range(8):
        k.wait_vm(("s", i))
        k.stamp(4 + i)
        k.e("s_barrier")
        stats_stage(i, [3, 4])
        if i + 2 < 8:
            ldw(i + 2)
    stats_finish([3, 4])
    k.e("s_barrier")
    k.stamp(12)
    k.e("s_waitcnt vmcnt(0)")
    k.stamp(13)
    k.stamp_rt(14)
    k.dump(0, sW, 15)
    k.lab("%s_end" % name)
    k.e("s_endpgm")
    return k.text(), nv, LDS
```

```python
import sys

import os
import re
DIAG = bool(os.environ.get("DIAG"))
ROT = not os.environ.get("NOROT")
PREF = not os.environ.get("NOPREF")
PREF2 = bool(os.environ.get("PREF2"))
MAP48 = not os.environ.get("NOMAP48")
PKN = bool(os.environ.get("PKN"))
V_WAIT = os.environ.get("V_WAIT", "2")
V_ARD = int(os.environ.get("V_ARD", "3"))
V_NRM = [int(c) for c in os.environ.get("V_NRM", "3333332")]
NAME = "sequential_preLN__sliding_local_dilated__glu_gated_geglu__prompt"

WS_O = 0
WS_H = 2 << 20
WS_HH = 4 << 20
WS_HST = 12 << 20

KA_X, KA_WQKV, KA_WO, KA_BX, KA_WG, KA_WU, KA_WD, KA_OUT, KA_DBG, KA_WS = [8 * i for i in range(10)]


class K:
    def __init__(self):
        self.lines = []
        self.vm = []
        self.lq = []

    def e(self, s):
        m = re.search(r"offset:(\d+)", s)
        if m:
            lim = 4096 if s.startswith("buffer_") else 65536
            assert int(m.group(1)) < lim, s
        self.lines.append("  " + s)

    def lab(self, s):
        self.lines.append(s + ":")

    def c(self, s):
        self.lines.append("  ; " + s)

    def vmem(self, s, tag):
        self.e(s)
        self.vm.append(tag)

    def wait_vm(self, tag):
        idx = max((i for i, t in enumerate(self.vm) if t == tag), default=None)
        if idx is None:
            return
        n = len(self.vm) - 1 - idx
        assert n <= 63, n
        self.e("s_waitcnt vmcnt(%d)" % n)
        self.vm = self.vm[idx + 1:]

    def lds(self, s, tag):
        self.e(s)
        self.lq.append(tag)

    def wait_lds(self, tag):
        idx = max((i for i, t in enumerate(self.lq) if t == tag), default=None)
        if idx is None:
            return False
        n = len(self.lq) - 1 - idx
        if n > 15:
            n = 15
            idx = len(self.lq) - 1 - n
        self.e("s_waitcnt lgkmcnt(%d)" % n)
        self.lq = self.lq[idx + 1:]
        return True

    def wait_lds_all(self):
        self.e("s_waitcnt lgkmcnt(0)")
        self.lq = []

    def wait_vm_all(self):
        self.e("s_waitcnt vmcnt(0)")
        self.vm = []

    def text(self):
        return "\n".join(self.lines) + "\n"

    def stamp(self, i):
        if not DIAG:
            return
        self.e("s_memtime s[58:59]")
        self.e("s_waitcnt lgkmcnt(0)")
        self.lq = []
        self.e("s_mov_b32 s%d, s58" % (64 + i))

    def stamp_rt(self, i):
        if not DIAG:
            return
        self.e("s_memrealtime s[58:59]")
        self.e("s_waitcnt lgkmcnt(0)")
        self.e("s_mov_b32 s%d, s58" % (64 + i))

    def dump(self, kidx, sW, n):
        if not DIAG:
            return
        self.e("s_add_u32 s60, s4, 0x%x" % ((32 << 20) + (kidx << 20)))
        self.e("s_addc_u32 s61, s5, 0")
        self.e("s_mov_b32 s62, 0x100000")
        self.e("s_mov_b32 s63, 0x00020000")
        self.e("s_lshl_b32 s58, s2, 3")
        self.e("s_add_u32 s58, s58, s%d" % sW)
        self.e("s_lshl_b32 s58, s58, 7")
        self.e("v_mov_b32 v0, s58")
        for i in range(n):
            self.e("v_mov_b32 v1, s%d" % (64 + i))
            self.e("buffer_store_dword v1, v0, s[60:63], 0 offen offset:%d" % (4 * i))
            self.e("s_nop 1")


def vr(a, n=1):
    return "v%d" % a if n == 1 else "v[%d:%d]" % (a, a + n - 1)


def sr(a, n=1):
    return "s%d" % a if n == 1 else "s[%d:%d]" % (a, a + n - 1)


def srd(k, d, ptr, nbytes, off=0):
    if off:
        k.e("s_add_u32 s%d, s%d, 0x%x" % (d, ptr, off))
        k.e("s_addc_u32 s%d, s%d, 0" % (d + 1, ptr + 1))
    else:
        k.e("s_mov_b32 s%d, s%d" % (d, ptr))
        k.e("s_mov_b32 s%d, s%d" % (d + 1, ptr + 1))
    k.e("s_mov_b32 s%d, 0x%x" % (d + 2, nbytes))
    k.e("s_mov_b32 s%d, 0x00020000" % (d + 3))


def header(k, name):
    k.lines.append(".globl %s" % name)
    k.lines.append(".p2align 8")
    k.lines.append(".type %s,@function" % name)
    k.lab(name)


def descriptor(name, nvgpr, nsgpr=96):
    nv = (nvgpr + 7) // 8 * 8
    return """.p2align 6
.amdhsa_kernel %s
  .amdhsa_next_free_vgpr %d
  .amdhsa_next_free_sgpr %d
  .amdhsa_accum_offset %d
  .amdhsa_group_segment_fixed_size 0
  .amdhsa_kernarg_size 80
  .amdhsa_user_sgpr_count 2
  .amdhsa_user_sgpr_kernarg_segment_ptr 1
  .amdhsa_system_sgpr_workgroup_id_x 1
.end_amdhsa_kernel
""" % (name, nv, nsgpr, min(nv, 256))


def gen_t2(name, Kdim, lda, a_src, b_ka, r_src, c_dst, stats, kidx=0, LOOK=3, skip=''):
    k = K()
    header(k, name)
    Kw = Kdim // 4
    ns = Kw // 32
    nu = ns // 2
    DA = min(nu, 3)
    DB = min(ns, 4)
    BOFF = DA * 8192
    S_A, S_B, S_R, S_C, S_ST = 8, 12, 16, 20, 24
    sW, sRB, sCB, sT, sLB = 28, 29, 30, 31, 32
    sTile = 36
    sBoff = 40
    sAoff = 41
    sK = 42
    sKb = 43
    sKB = 50
    vL, vAe, vBe, vBo = 1, 2, 3, 4
    vTr = 5
    vRo = 9
    vT0, vT1, vT2 = 10, 11, 12
    vXa = 13
    vAo = 15
    vRes = 16
    vAcc = 24
    vBf = 88
    vAf = 120
    nv = 160

    k.e("s_cmp_ge_u32 s2, 256")
    k.e("s_cbranch_scc1 %s_end" % name)
    k.stamp_rt(0)
    k.stamp(1)
    k.e("s_load_dwordx2 s[4:5], s[0:1], %d" % KA_WS)
    k.e("s_load_dwordx2 s[6:7], s[0:1], %d" % b_ka)
    if stats:
        k.e("s_load_dwordx4 s[52:55], s[0:1], %d" % KA_WG)
    nxt = 44
    for src in (a_src, r_src, c_dst):
        if src[0] == 'ka':
            k.e("s_load_dwordx2 s[%d:%d], s[0:1], %d" % (nxt, nxt + 1, src[1]))
            nxt += 2
    k.e("v_lshrrev_b32 v%d, 6, v0" % vT0)
    k.e("v_and_b32 v%d, 63, v0" % vL)
    k.e("v_readfirstlane_b32 s%d, v%d" % (sW, vT0))
    if MAP48 and ns == 14:
        k.e("s_and_b32 s3, s2, 7")
        k.e("s_lshl_b32 s%d, s3, 2" % sRB)
        k.e("s_lshr_b32 s3, s2, 6")
        k.e("s_add_u32 s%d, s%d, s3" % (sRB, sRB))
        k.e("s_lshr_b32 s%d, s2, 3" % sT)
        k.e("s_and_b32 s%d, s%d, 7" % (sCB, sT))
        k.e("s_lshl_b32 s%d, s3, 1" % sK)
        k.e("s_add_u32 s%d, s%d, s%d" % (sK, sK, sCB))
        k.e("s_cmp_ge_u32 s%d, 7" % sK)
        k.e("s_cselect_b32 s3, 7, 0")
        k.e("s_sub_u32 s%d, s%d, s3" % (sK, sK))
    else:
        k.e("s_and_b32 s3, s2, 7")
        k.e("s_lshr_b32 s%d, s2, 3" % sT)
        k.e("s_lshr_b32 s%d, s3, 1" % sRB)
        k.e("s_lshl_b32 s%d, s%d, 3" % (sRB, sRB))
        k.e("s_lshr_b32 s%d, s%d, 2" % (sCB, sT))
        k.e("s_add_u32 s%d, s%d, s%d" % (sRB, sRB, sCB))
        k.e("s_and_b32 s%d, s3, 1" % sCB)
        k.e("s_lshl_b32 s%d, s%d, 2" % (sCB, sCB))
        k.e("s_and_b32 s%d, s%d, 3" % (sT, sT))
        k.e("s_add_u32 s%d, s%d, s%d" % (sCB, sCB, sT))
        k.e("s_lshr_b32 s3, s2, 5")
        if nu == 7:
            k.e("s_lshl_b32 s%d, s%d, 1" % (sK, sT))
            k.e("s_add_u32 s%d, s%d, s3" % (sK, sK))
            k.e("s_cmp_ge_u32 s%d, 7" % sK)
            k.e("s_cselect_b32 s3, 7, 0")
            k.e("s_sub_u32 s%d, s%d, s3" % (sK, sK))
        else:
            assert nu == 2
            k.e("s_add_u32 s%d, s%d, s3" % (sK, sT))
            k.e("s_and_b32 s%d, s%d, 1" % (sK, sK))
    if not ROT:
        k.e("s_mov_b32 s%d, 0" % sK)
    k.e("s_mov_b32 s%d, s%d" % (sKB, sK))
    wave_lds = max(BOFF + DB * 4096, 12288)
    k.e("s_mul_i32 s%d, s%d, %d" % (sLB, sW, wave_lds))
    for t in range(4):
        k.e("s_add_u32 s%d, s%d, %d" % (sT, sW, t))
        k.e("s_and_b32 s%d, s%d, 3" % (sT, sT))
        k.e("s_mul_i32 s%d, s%d, %d" % (sTile + t, sT, 16 * lda))
    k.e("s_lshl_b32 s%d, s%d, 6" % (sT, sRB))
    k.e("v_lshrrev_b32 v%d, 3, v%d" % (vT0, vL))
    k.e("v_add_u32 v%d, s%d, v%d" % (vT1, sT, vT0))
    k.e("s_mov_b32 s3, %d" % lda)
    k.e("v_mul_lo_u32 v%d, v%d, s3" % (vAe, vT1))
    k.e("s_mul_i32 s3, s%d, %d" % (sW, Kw * 2))
    k.e("v_add_u32 v%d, s3, v%d" % (vAe, vAe))
    k.e("v_and_b32 v%d, 7, v%d" % (vT0, vL))
    k.e("v_lshrrev_b32 v%d, 4, v%d" % (vT2, vL))
    k.e("v_xor_b32 v%d, v%d, v%d" % (vT0, vT0, vT2))
    k.e("v_xor_b32 v%d, 4, v%d" % (vT1, vT0))
    k.e("v_add_u32 v%d, %d, v%d" % (vAo, 8 * lda, vAe))
    k.e("v_lshl_add_u32 v%d, v%d, 4, v%d" % (vAo, vT1, vAo))
    k.e("v_lshl_add_u32 v%d, v%d, 4, v%d" % (vAe, vT0, vAe))
    k.e("v_and_b32 v%d, 15, v%d" % (vT1, vL))
    k.e("v_lshrrev_b32 v%d, 1, v%d" % (vT0, vT1))
    k.e("v_xor_b32 v%d, v%d, v%d" % (vT0, vT0, vT2))
    k.e("v_lshlrev_b32 v%d, 7, v%d" % (vXa, vT1))
    k.e("v_add_u32 v%d, s%d, v%d" % (vXa, sLB, vXa))
    k.e("v_lshl_add_u32 v%d, v%d, 4, v%d" % (vXa, vT0, vXa))
    k.e("v_xor_b32 v%d, 64, v%d" % (vXa + 1, vXa))
    k.e("s_lshl_b32 s3, s%d, 4" % sW)
    k.e("s_add_u32 s3, s3, s%d" % sT)
    k.e("v_add_u32 v%d, s3, v%d" % (vT1, vT1))
    k.e("v_lshlrev_b32 v%d, 10, v%d" % (vRo, vT1))
    k.e("v_lshl_add_u32 v%d, v%d, 3, v%d" % (vRo, vT2, vRo))
    k.e("s_lshl_b32 s3, s%d, 7" % sCB)
    k.e("v_add_u32 v%d, s3, v%d" % (vRo, vRo))
    k.e("v_lshrrev_b32 v%d, 3, v%d" % (vT0, vL))
    k.e("v_lshlrev_b32 v%d, 10, v%d" % (vBe, vT0))
    k.e("v_and_b32 v%d, 1, v%d" % (vT0, vL))
    k.e("v_lshl_add_u32 v%d, v%d, 4, v%d" % (vBe, vT0, vBe))
    k.e("s_mul_i32 s%d, s%d, %d" % (sT, sW, Kw * 1024))
    k.e("s_add_u32 s3, s3, s%d" % sT)
    k.e("v_add_u32 v%d, s3, v%d" % (vBe, vBe))
    k.e("v_bfe_u32 v%d, v%d, 1, 2" % (vT0, vL))
    k.e("v_bfe_u32 v%d, v%d, 4, 1" % (vT1, vL))
    k.e("v_xor_b32 v%d, v%d, v%d" % (vT0, vT0, vT1))
    k.e("v_xor_b32 v%d, 2, v%d" % (vT1, vT0))
    k.e("v_lshl_add_u32 v%d, v%d, 5, v%d" % (vBo, vT1, vBe))
    k.e("v_lshl_add_u32 v%d, v%d, 5, v%d" % (vBe, vT0, vBe))
    k.e("v_lshrrev_b32 v%d, 4, v%d" % (vT0, vL))
    k.e("v_bfe_u32 v%d, v%d, 2, 2" % (vT1, vL))
    k.e("v_lshl_add_u32 v%d, v%d, 3, v%d" % (vT2, vT0, vT1))
    k.e("v_lshlrev_b32 v%d, 7, v%d" % (vT2, vT2))
    k.e("v_add_u32 v%d, s%d, v%d" % (vT2, sLB, vT2))
    k.e("v_and_b32 v%d, 3, v%d" % (vTr, vL))
    k.e("v_lshl_add_u32 v%d, v%d, 3, v%d" % (vT2, vTr, vT2))
    k.e("v_bfe_u32 v%d, v%d, 3, 1" % (vT1, vL))
    k.e("v_bfe_u32 v%d, v%d, 4, 1" % (vT0, vL))
    k.e("v_lshl_or_b32 v%d, v%d, 1, v%d" % (vT0, vT0, vT1))
    for j in range(4):
        k.e("v_xor_b32 v%d, %d, v%d" % (vT1, j, vT0))
        k.e("v_lshl_add_u32 v%d, v%d, 5, v%d" % (vTr + j, vT1, vT2))
    k.e("s_waitcnt lgkmcnt(0)")
    nxt = 44
    for d, src, nbytes in ((S_A, a_src, 2048 * lda), (S_R, r_src, 2 << 20), (S_C, c_dst, 2 << 20)):
        if src[0] == 'ka':
            srd(k, d, nxt, nbytes)
            nxt += 2
        else:
            srd(k, d, 4, nbytes, src[1])
    srd(k, S_B, 6, Kdim * 1024)
    if stats:
        srd(k, S_ST, 4, 2048 * 64, WS_HST)

    def issue_a(u):
        if 'A' in skip:
            return
        slot = u % DA
        k.e("s_lshl_b32 s%d, s%d, 7" % (sKb, sK))
        k.e("s_add_u32 s%d, s%d, 1" % (sK, sK))
        k.e("s_cmp_ge_u32 s%d, %d" % (sK, nu))
        k.e("s_cselect_b32 s%d, 0, s%d" % (sK, sK))
        for t in range(4):
            k.e("s_add_u32 s%d, s%d, s%d" % (sAoff, sTile + t, sKb))
            for p in range(2):
                k.e("s_add_u32 m0, s%d, %d" % (sLB, slot * 8192 + t * 2048 + p * 1024))
                k.e("s_nop 0")
                k.vmem("buffer_load_dwordx4 v%d, %s, s%d offen lds" % (vAo if p else vAe, sr(S_A, 4), sAoff), ("a", u))

    def issue_b(s):
        if 'B' in skip:
            return
        slot = s % DB
        if s % 2 == 0:
            k.e("s_lshl_b32 s%d, s%d, 16" % (sBoff, sKB))
            k.e("s_add_u32 s%d, s%d, 1" % (sKB, sKB))
            k.e("s_cmp_ge_u32 s%d, %d" % (sKB, nu))
            k.e("s_cselect_b32 s%d, 0, s%d" % (sKB, sKB))
        for i in range(4):
            k.e("s_add_u32 m0, s%d, %d" % (sLB, BOFF + slot * 4096 + i * 1024))
            k.e("s_nop 0")
            k.vmem("buffer_load_dwordx4 v%d, %s, s%d offen lds" % (vBo if i & 1 else vBe, sr(S_B, 4), sBoff), ("b", s))
            k.e("s_add_u32 s%d, s%d, 8192" % (sBoff, sBoff))

    def rd(s):
        buf = vBf + (s & 1) * 16
        ab = vAf + (s & 1) * 16
        bo = BOFF + (s % DB) * 4096
        ao = ((s // 2) % DA) * 8192
        ops = []
        for j in range(4):
            ops.append("ds_read_b64_tr_b16 %s, v%d offset:%d" % (vr(buf + j * 4, 2), vTr + j, bo))
            ops.append("ds_read_b64_tr_b16 %s, v%d offset:%d" % (vr(buf + j * 4 + 2, 2), vTr + j, bo + 512))
            ops.append("ds_read_b128 %s, v%d offset:%d" % (vr(ab + j * 4, 4), vXa + (s & 1), ao + j * 2048))
        return ops

    def wait_step(s):
        k.wait_vm(("a", s // 2))
        k.wait_vm(("b", s))

    k.stamp(2)
    ia = ib = 0
    issue_a(0); ia = 1
    issue_b(0); issue_b(1); ib = 2
    if nu > 1:
        issue_a(1); ia = 2
    issue_b(2); ib = 3
    for j in range(4):
        k.vmem("buffer_load_dwordx2 %s, v%d, %s, 0 offen offset:%d" % (vr(vRes + 2 * j, 2), vRo, sr(S_R, 4), 32 * j), "res")
    k.stamp(3)
    wait_step(0)
    k.stamp(4)
    for op in rd(0):
        k.e(op)
    for s in range(ns):
        buf = vBf + (s & 1) * 16
        ab = vAf + (s & 1) * 16
        k.e("s_waitcnt lgkmcnt(0)")
        if ib < ns:
            issue_b(ib); ib += 1
        if s % 2 == 0 and ia < nu and (ia < DA or s >= 2 * (ia - DA) + 1):
            issue_a(ia); ia += 1
        fill = []
        if s + 1 < ns:
            wait_step(s + 1)
            fill = rd(s + 1)
            if s + 2 == ns and stats and PREF:
                k.e("s_cmp_ge_u32 s%d, 2" % sW)
                k.e("s_cselect_b32 s6, s54, s52")
                k.e("s_cselect_b32 s7, s55, s53")
                srd(k, S_B, 6, 512 * 3584)
                k.e("s_lshr_b32 s3, s2, 3")
                k.e("s_lshl_b32 s3, s3, 1")
                k.e("s_and_b32 s%d, s%d, 1" % (sT, sW))
                k.e("s_add_u32 s3, s3, s%d" % sT)
                k.e("s_mul_i32 s3, s3, %d" % (8 * 3584))
                k.e("s_and_b32 s%d, s2, 3" % sT)
                k.e("s_mul_i32 s%d, s%d, 896" % (sT, sT))
                k.e("s_add_u32 s3, s3, s%d" % sT)
                k.e("v_lshrrev_b32 v%d, 3, v%d" % (vT0, vL))
                k.e("v_mul_u32_u24 v%d, 3584, v%d" % (vT0, vT0))
                k.e("v_and_b32 v%d, 7, v%d" % (vT1, vL))
                k.e("v_min_u32 v%d, 6, v%d" % (vT1, vT1))
                k.e("v_lshl_add_u32 v%d, v%d, 7, v%d" % (vT0, vT1, vT0))
                k.vmem("buffer_load_dword v152, v%d, %s, s3 offen" % (vT0, sr(S_B, 4)), "pf")
        fi = 0
        for t in range(4):
            for j in range(4):
                a = vAcc + (j * 4 + t) * 4
                cin = "0" if s == 0 else vr(a, 4)
                k.e("v_mfma_f32_16x16x32_bf16 %s, %s, %s, %s" % (vr(a, 4), vr(buf + j * 4, 4), vr(ab + t * 4, 4), cin))
                if fi < len(fill):
                    k.e(fill[fi]); fi += 1
        k.stamp(5 + s)
    assert ia == nu and ib == ns
    k.e("v_lshlrev_b32 v%d, 4, v%d" % (vT0, vL))
    k.e("v_add_u32 v%d, s%d, v%d" % (vT1, sLB, vT0))
    k.e("s_nop 7")
    k.e("s_nop 3")
    for t in range(1, 4):
        for j in range(4):
            k.e("ds_write_b128 v%d, %s offset:%d" % (vT1, vr(vAcc + (j * 4 + t) * 4, 4), (t - 1) * 4096 + j * 1024))
    k.wait_vm("res")
    vP = vBf
    vO = vP + 48
    for j in range(4):
        for h in range(2):
            k.e("v_lshlrev_b32 v%d, 16, v%d" % (vO + j * 4 + 2 * h, vRes + 2 * j + h))
            k.e("v_and_b32 v%d, 0xffff0000, v%d" % (vO + j * 4 + 2 * h + 1, vRes + 2 * j + h))
    for j in range(4):
        for r in range(4):
            k.e("v_add_f32 v%d, v%d, v%d" % (vO + j * 4 + r, vO + j * 4 + r, vAcc + (j * 4) * 4 + r))
    k.e("s_waitcnt lgkmcnt(0)")
    k.e("s_barrier")
    for d in range(1, 4):
        k.e("s_sub_u32 s3, s%d, %d" % (sW, d))
        k.e("s_and_b32 s3, s3, 3")
        k.e("s_mul_i32 s3, s3, %d" % wave_lds)
        k.e("v_add_u32 v%d, s3, v%d" % (vT1, vT0))
        for j in range(4):
            k.e("ds_read_b128 %s, v%d offset:%d" % (vr(vP + ((d - 1) * 4 + j) * 4, 4), vT1, (d - 1) * 4096 + j * 1024))
    for d in range(3):
        k.e("s_waitcnt lgkmcnt(%d)" % (8 - 4 * d))
        for j in range(4):
            for r in range(4):
                k.e("v_add_f32 v%d, v%d, v%d" % (vO + j * 4 + r, vO + j * 4 + r, vP + (d * 4 + j) * 4 + r))
    vPk = vP
    for j in range(4):
        k.e("v_cvt_pk_bf16_f32 v%d, v%d, v%d" % (vPk + 2 * j, vO + 4 * j, vO + 4 * j + 1))
        k.e("v_cvt_pk_bf16_f32 v%d, v%d, v%d" % (vPk + 2 * j + 1, vO + 4 * j + 2, vO + 4 * j + 3))
    for j in range(4):
        k.vmem("buffer_store_dwordx2 %s, v%d, %s, 0 offen offset:%d" % (vr(vPk + 2 * j, 2), vRo, sr(S_C, 4), 32 * j), "st")
    if stats:
        vS, vQ, vX, vY = vPk + 8, vPk + 9, vPk + 10, vPk + 11
        k.e("v_mov_b32 v%d, 0" % vS)
        k.e("v_mov_b32 v%d, 0" % vQ)
        for i in range(8):
            k.e("v_lshlrev_b32 v%d, 16, v%d" % (vX, vPk + i))
            k.e("v_and_b32 v%d, 0xffff0000, v%d" % (vY, vPk + i))
            k.e("v_add_f32 v%d, v%d, v%d" % (vS, vS, vX))
            k.e("v_fmac_f32 v%d, v%d, v%d" % (vQ, vX, vX))
            k.e("v_add_f32 v%d, v%d, v%d" % (vS, vS, vY))
            k.e("v_fmac_f32 v%d, v%d, v%d" % (vQ, vY, vY))
        for op in ("v_permlane32_swap_b32", "v_permlane16_swap_b32"):
            k.e("v_mov_b32 v%d, v%d" % (vX, vS))
            k.e("v_mov_b32 v%d, v%d" % (vY, vQ))
            k.e("s_nop 1")
            k.e("%s v%d, v%d" % (op, vS, vX))
            k.e("%s v%d, v%d" % (op, vQ, vY))
            k.e("v_add_f32 v%d, v%d, v%d" % (vS, vS, vX))
            k.e("v_add_f32 v%d, v%d, v%d" % (vQ, vQ, vY))
        k.e("v_lshrrev_b32 v%d, 10, v%d" % (vX, vRo))
        k.e("v_lshlrev_b32 v%d, 6, v%d" % (vX, vX))
        k.e("s_lshl_b32 s3, s%d, 3" % sCB)
        k.e("v_add_u32 v%d, s3, v%d" % (vX, vX))
        k.e("v_cmp_gt_u32 vcc, 16, v%d" % vL)
        k.e("s_and_saveexec_b64 s[34:35], vcc")
        k.vmem("buffer_store_dwordx2 %s, v%d, %s, 0 offen" % (vr(vS, 2), vX, sr(S_ST, 4)), "st")
        k.e("s_mov_b64 exec, s[34:35]")
    k.stamp(5 + ns)
    if DIAG:
        k.e("s_waitcnt vmcnt(0)")
    k.stamp(6 + ns)
    k.stamp_rt(7 + ns)
    k.dump(kidx, sW, 8 + ns)
    k.lab("%s_end" % name)
    k.e("s_endpgm")
    return k.text(), nv, 4 * wave_lds


K3_A = 16384
K3_NA = 4
K3_UP = 14464
K3_SLOT = 28800
K3_NS = 3
K3_B0 = K3_NA * K3_A


def gen_k3(name):
    k = K()
    header(k, name)
    S_A, S_B, S_C, S_ST = 8, 12, 16, 20
    sW, sRB, sFB, sT = 28, 29, 30, 31
    sOff = 34
    sM = 35
    sMA = 36
    sOffA = 37
    sK = 38
    sKa = 39
    k.e("s_cmp_ge_u32 s2, 256")
    k.e("s_cbranch_scc1 %s_end" % name)
    k.stamp_rt(0)
    k.stamp(1)
    k.e("s_load_dwordx2 s[4:5], s[0:1], %d" % KA_WS)
    k.e("s_load_dwordx4 s[44:47], s[0:1], %d" % KA_WG)
    k.e("s_load_dwordx2 s[48:49], s[0:1], %d" % KA_WD)
    k.e("v_lshrrev_b32 v2, 6, v0")
    k.e("v_and_b32 v1, 63, v0")
    k.e("v_readfirstlane_b32 s%d, v2" % sW)
    k.e("s_and_b32 s3, s2, 7")
    k.e("s_lshr_b32 s%d, s2, 3" % sT)
    k.e("s_lshr_b32 s%d, s3, 2" % sRB)
    k.e("s_lshl_b32 s%d, s%d, 3" % (sRB, sRB))
    k.e("s_lshr_b32 s%d, s%d, 2" % (sFB, sT))
    k.e("s_add_u32 s%d, s%d, s%d" % (sRB, sRB, sFB))
    k.e("s_and_b32 s%d, s3, 3" % sFB)
    k.e("s_lshl_b32 s%d, s%d, 2" % (sFB, sFB))
    k.e("s_and_b32 s%d, s%d, 3" % (sT, sT))
    k.e("s_add_u32 s%d, s%d, s%d" % (sFB, sFB, sT))
    k.e("s_lshr_b32 s3, s2, 5")
    k.e("s_lshl_b32 s%d, s%d, 1" % (sK, sT))
    k.e("s_add_u32 s%d, s%d, s3" % (sK, sK))
    k.e("s_and_b32 s%d, s%d, 7" % (sK, sK))
    if not ROT:
        k.e("s_mov_b32 s%d, 0" % sK)
    k.e("s_cmp_ge_u32 s%d, 4" % sW)
    k.e("s_cbranch_scc1 %s_loader" % name)

    vL = 1
    vO = 3
    vTr = 4
    vRstd, vNmr = 6, 7
    vT0, vT1, vT2, vT3 = 8, 9, 10, 11
    vN = 12
    vW = 24
    vXa = 80
    vCa = 84
    vAr = 208
    vRp = 90
    vAcc = 96
    nv = 216
    k.e("s_lshl_b32 s3, s%d, 7" % sRB)
    k.e("s_lshl_b32 s%d, s%d, 5" % (sT, sW))
    k.e("s_add_u32 s3, s3, s%d" % sT)
    k.e("v_and_b32 v%d, 31, v%d" % (vT3, vL))
    k.e("v_add_u32 v%d, s3, v%d" % (vT0, vT3))
    k.e("v_lshrrev_b32 v%d, 5, v%d" % (vT1, vL))
    k.e("v_lshlrev_b32 v%d, 6, v%d" % (vT2, vT0))
    k.e("s_mov_b32 s3, 3584")
    k.e("v_mul_lo_u32 v%d, v%d, s3" % (vO, vT0))
    k.e("v_lshl_add_u32 v%d, v%d, 4, v%d" % (vO, vT1, vO))
    k.e("s_mul_i32 s3, s%d, 224" % sFB)
    k.e("v_add_u32 v%d, s3, v%d" % (vO, vO))
    k.e("v_bfe_u32 v%d, v%d, 1, 3" % (vT0, vL))
    k.e("v_xor_b32 v%d, v%d, v%d" % (vT0, vT0, vT1))
    k.e("v_add_u32 v%d, s%d, v%d" % (vT3, sT, vT3))
    k.e("v_lshlrev_b32 v%d, 7, v%d" % (vT3, vT3))
    k.e("v_lshl_add_u32 v%d, v%d, 4, v%d" % (vXa, vT0, vT3))
    for u in range(1, 4):
        k.e("v_xor_b32 v%d, %d, v%d" % (vXa + u, 32 * u, vXa))
    k.e("v_bfe_u32 v%d, v%d, 4, 1" % (vT0, vL))
    k.e("v_mul_u32_u24 v%d, %d, v%d" % (vTr, K3_UP, vT0))
    k.e("v_lshrrev_b32 v%d, 5, v%d" % (vT0, vL))
    k.e("v_bfe_u32 v%d, v%d, 2, 2" % (vT1, vL))
    k.e("v_lshl_add_u32 v%d, v%d, 3, v%d" % (vT0, vT0, vT1))
    k.e("v_mul_u32_u24 v%d, 224, v%d" % (vT0, vT0))
    k.e("v_add_u32 v%d, v%d, v%d" % (vTr, vTr, vT0))
    k.e("v_and_b32 v%d, 1, v%d" % (vT0, vL))
    k.e("v_lshl_add_u32 v%d, v%d, 4, v%d" % (vTr, vT0, vTr))
    k.e("v_bfe_u32 v%d, v%d, 1, 1" % (vT0, vL))
    k.e("v_lshl_add_u32 v%d, v%d, 3, v%d" % (vTr, vT0, vTr))
    k.e("v_add_u32 v%d, %d, v%d" % (vTr, K3_B0, vTr))
    k.e("v_add_u32 v%d, %d, v%d" % (vTr + 1, 2 * K3_SLOT, vTr))
    for i in range(2):
        k.e("v_mov_b32 v%d, 0xbdd2d3e8" % (vCa + i))
        k.e("v_mov_b32 v%d, 0xc0135761" % (vCa + 2 + i))
        k.e("v_mov_b32 v%d, 1.0" % (vCa + 4 + i))
    k.e("s_waitcnt lgkmcnt(0)")
    srd(k, S_C, 4, 2048 * 3584, WS_HH)
    srd(k, S_ST, 4, 2048 * 64, WS_HST)
    for i in range(4):
        k.vmem("buffer_load_dwordx4 %s, v%d, %s, 0 offen offset:%d" % (vr(vW + 4 * i, 4), vT2, sr(S_ST, 4), 16 * i), "st")
    k.wait_vm("st")
    k.e("v_add_f32 v%d, v%d, v%d" % (vT0, vW, vW + 2))
    k.e("v_add_f32 v%d, v%d, v%d" % (vT1, vW + 1, vW + 3))
    for i in range(2, 8):
        k.e("v_add_f32 v%d, v%d, v%d" % (vT0, vT0, vW + 2 * i))
        k.e("v_add_f32 v%d, v%d, v%d" % (vT1, vT1, vW + 2 * i + 1))
    k.e("v_mul_f32 v%d, 0x3b000000, v%d" % (vT0, vT0))
    k.e("v_mul_f32 v%d, 0x3b000000, v%d" % (vT1, vT1))
    k.e("v_fma_f32 v%d, -v%d, v%d, v%d" % (vT1, vT0, vT0, vT1))
    k.e("v_max_f32 v%d, 0, v%d" % (vT1, vT1))
    k.e("v_add_f32 v%d, 0x3727c5ac, v%d" % (vT1, vT1))
    k.e("v_rsq_f32 v%d, v%d" % (vRstd, vT1))
    k.e("s_nop 0")
    k.e("v_mul_f32 v%d, v%d, v%d" % (vNmr, vT0, vRstd))
    k.e("v_sub_f32 v%d, 0, v%d" % (vNmr, vNmr))

    k.e("v_mov_b32 v%d, v%d" % (vRp, vRstd))
    k.e("v_mov_b32 v%d, v%d" % (vRp + 1, vRstd))
    k.e("v_mov_b32 v%d, v%d" % (vRp + 2, vNmr))
    k.e("v_mov_b32 v%d, v%d" % (vRp + 3, vNmr))

    def norm_ops(j):
        src = vAr + (j & 1) * 4
        dst = vN + (j & 1) * 4
        ops = []
        for i in range(4):
            a = vT0 if i & 1 == 0 else vT2
            ops.append("v_lshlrev_b32 v%d, 16, v%d" % (a, src + i))
            ops.append("v_and_b32 v%d, 0xffff0000, v%d" % (a + 1, src + i))
            if PKN:
                ops.append("v_pk_fma_f32 %s, %s, %s, %s" % (vr(a, 2), vr(a, 2), vr(vRp, 2), vr(vRp + 2, 2)))
            else:
                ops.append("v_fma_f32 v%d, v%d, v%d, v%d" % (a, a, vRstd, vNmr))
                ops.append("v_fma_f32 v%d, v%d, v%d, v%d" % (a + 1, a + 1, vRstd, vNmr))
            ops.append("v_cvt_pk_bf16_f32 v%d, v%d, v%d" % (dst + i, a, a + 1))
        return ops

    def tr_rd(j, t):
        st, u = j // 4, j % 4
        slot = st % K3_NS
        base = vTr + slot // 2
        off = (slot % 2) * K3_SLOT + u * 3584 + 32 * t
        buf = vW + (j & 1) * 28
        k.lds("ds_read_b64_tr_b16 %s, v%d offset:%d" % (vr(buf + 4 * t, 2), base, off), ("w", j, t))
        k.lds("ds_read_b64_tr_b16 %s, v%d offset:%d" % (vr(buf + 4 * t + 2, 2), base, off + 896), ("w", j, t))

    def a_rd(j):
        st, u = j // 4, j % 4
        k.lds("ds_read_b128 %s, v%d offset:%d" % (vr(vAr + (j & 1) * 4, 4), vXa + u, (st % K3_NA) * K3_A), ("a", j))

    k.stamp(2)
    k.e("s_barrier")
    k.stamp(3)
    a_rd(0)
    a_rd(1)
    for t in range(7):
        tr_rd(0, t)
    k.wait_lds(("a", 0))
    for op in norm_ops(0):
        k.e(op)
    k.e("s_nop 0")
    for j in range(32):
        st, u = j // 4, j % 4
        buf = vW + (j & 1) * 28
        last = j + 1 >= 32
        boundary = (u == 3 and not last)
        nrm = norm_ops(j + 1) if not last else []
        ni = 0
        pend = list(range(7)) if not last else []
        for t in range(7):
            a = vAcc + 16 * t
            cin = "0" if j == 0 else vr(a, 16)
            if V_WAIT == 'all':
                if not k.wait_lds(("w", j, t)) and t == 0:
                    k.e("s_nop 0")
            elif V_WAIT == '2':
                if t % 2 == 0:
                    if not k.wait_lds(("w", j, min(t + 1, 6))) and t == 0:
                        k.e("s_nop 0")
            elif t in (0, 3):
                if not k.wait_lds(("w", j, 2 if t == 0 else 6)) and t == 0:
                    k.e("s_nop 0")
            k.e("v_mfma_f32_32x32x16_bf16 %s, %s, %s, %s" % (vr(a, 16), vr(buf + 4 * t, 4), vr(vN + (j & 1) * 4, 4), cin))
            if t == 0 and not last:
                k.wait_lds(("a", j + 1))
            if boundary and t < 2:
                pass
            else:
                if boundary and t == 2:
                    k.wait_lds_all()
                    k.e("s_barrier")
                    k.stamp(4 + st)
                nrd = 1 if not boundary else 2
                for _ in range(nrd):
                    if pend:
                        tr_rd(j + 1, pend.pop(0))
            if t == 0 and j + 2 < 32 and False:
                pass
            for _ in range(V_NRM[t]):
                if ni < len(nrm):
                    k.e(nrm[ni]); ni += 1
            if t == V_ARD and j + 2 < 32:
                a_rd(j + 2)
        assert not pend and ni == len(nrm), (pend, ni)
        if V_NRM[6] and not last:
            k.e("s_nop 0")
    k.stamp(11)
    k.e("s_nop 7")
    k.e("s_nop 7")
    tmp = vW
    for t in range(7):
        a = vAcc + 16 * t
        o = tmp + 8 * (t & 1) + 32
        for half in range(2):
            prs = [(a + 4 * half + 2 * i, a + 8 + 4 * half + 2 * i, tmp + 8 * i, tmp + 8 * i + 2) for i in range(2)]
            for g, u_, x0, x1 in prs:
                k.e("v_pk_mul_f32 %s, %s, %s" % (vr(x0, 2), vr(g, 2), vr(g, 2)))
            for g, u_, x0, x1 in prs:
                k.e("v_pk_fma_f32 %s, %s, %s, %s" % (vr(x1, 2), vr(x0, 2), vr(vCa, 2), vr(vCa + 2, 2)))
            for g, u_, x0, x1 in prs:
                k.e("v_pk_mul_f32 %s, %s, %s" % (vr(x1, 2), vr(x1, 2), vr(g, 2)))
            for g, u_, x0, x1 in prs:
                k.e("v_exp_f32 v%d, v%d" % (x1, x1))
                k.e("v_exp_f32 v%d, v%d" % (x1 + 1, x1 + 1))
            for g, u_, x0, x1 in prs:
                k.e("v_pk_mul_f32 %s, %s, %s" % (vr(x0, 2), vr(g, 2), vr(u_, 2)))
            for g, u_, x0, x1 in prs:
                k.e("v_pk_add_f32 %s, %s, %s" % (vr(x1, 2), vr(x1, 2), vr(vCa + 4, 2)))
            for g, u_, x0, x1 in prs:
                k.e("v_rcp_f32 v%d, v%d" % (x1, x1))
                k.e("v_rcp_f32 v%d, v%d" % (x1 + 1, x1 + 1))
            k.e("s_nop 0")
            for g, u_, x0, x1 in prs:
                k.e("v_pk_mul_f32 %s, %s, %s" % (vr(x0, 2), vr(x0, 2), vr(x1, 2)))
            for i, (g, u_, x0, x1) in enumerate(prs):
                k.e("v_cvt_pk_bf16_f32 v%d, v%d, v%d" % (o + 2 * half + i, x0, x0 + 1))
        k.vmem("buffer_store_dwordx4 %s, v%d, %s, 0 offen offset:%d" % (vr(o, 4), vO, sr(S_C, 4), 32 * t), "st")
    k.stamp(12)
    if DIAG:
        k.e("s_waitcnt vmcnt(0)")
    k.stamp(13)
    k.stamp_rt(14)
    k.dump(2, sW, 15)
    k.e("s_endpgm")

    k.lab("%s_loader" % name)
    k.vm = []
    k.lq = []
    vOff = 4
    vAo = 12
    sKA = 40
    k.e("s_and_b32 s%d, s%d, 1" % (sT, sW))
    k.e("s_mul_i32 s3, s%d, 448" % sT)
    k.e("s_mul_i32 s%d, s%d, 224" % (sOff, sFB))
    for p in range(7):
        k.e("v_add_u32 v2, s3, v1")
        if p:
            k.e("v_add_u32 v2, %d, v2" % (64 * p))
        k.e("v_mul_u32_u24 v3, 4682, v2")
        k.e("v_lshrrev_b32 v3, 16, v3")
        k.e("v_mul_u32_u24 v11, 14, v3")
        k.e("v_sub_u32 v2, v2, v11")
        k.e("v_mul_u32_u24 v3, 3584, v3")
        k.e("v_lshl_add_u32 v3, v2, 4, v3")
        k.e("v_add_u32 v%d, s%d, v3" % (vOff + p, sOff))
    k.e("s_sub_u32 s3, s%d, 4" % sW)
    k.e("s_lshl_b32 s%d, s3, 12" % sMA)
    k.e("s_lshl_b32 s3, s3, 5")
    k.e("s_lshl_b32 s%d, s%d, 7" % (sOff, sRB))
    k.e("s_add_u32 s3, s3, s%d" % sOff)
    k.e("v_lshrrev_b32 v2, 3, v1")
    k.e("v_add_u32 v2, s3, v2")
    k.e("v_lshlrev_b32 v2, 10, v2")
    k.e("v_and_b32 v3, 7, v1")
    k.e("v_lshrrev_b32 v11, 4, v1")
    k.e("v_xor_b32 v3, v3, v11")
    k.e("v_lshl_add_u32 v%d, v3, 4, v2" % vAo)
    k.e("v_xor_b32 v3, 4, v3")
    k.e("v_lshl_add_u32 v%d, v3, 4, v2" % (vAo + 1))
    k.e("s_mov_b32 s%d, s%d" % (sKA, sK))
    k.e("s_waitcnt lgkmcnt(0)")
    k.e("s_cmp_ge_u32 s%d, 6" % sW)
    k.e("s_cselect_b32 s6, s46, s44")
    k.e("s_cselect_b32 s7, s47, s45")
    k.e("s_cselect_b32 s%d, %d, 0" % (sM, K3_UP))
    k.e("s_add_u32 s%d, s%d, %d" % (sM, sM, K3_B0))
    srd(k, S_B, 6, 512 * 3584)
    srd(k, S_A, 4, 2 << 20, WS_H)
    k.e("s_mul_i32 s3, s%d, 7168" % sT)
    k.e("s_add_u32 s%d, s%d, s3" % (sM, sM))

    def lda(st, tag):
        k.e("s_lshl_b32 s%d, s%d, 7" % (sKa, sKA))
        k.e("s_add_u32 s%d, s%d, 1" % (sKA, sKA))
        k.e("s_and_b32 s%d, s%d, 7" % (sKA, sKA))
        for p in range(4):
            k.e("s_add_u32 m0, s%d, %d" % (sMA, (st % K3_NA) * K3_A + p * 1024))
            k.e("s_add_u32 s%d, s%d, %d" % (sOffA, sKa, p * 8192))
            k.vmem("buffer_load_dwordx4 v%d, %s, s%d offen lds" % (vAo + (p & 1), sr(S_A, 4), sOffA), tag)

    def ld(st):
        slot = st % K3_NS
        k.e("s_mul_i32 s%d, s%d, %d" % (sOff, sK, 64 * 3584))
        k.e("s_add_u32 s%d, s%d, 1" % (sK, sK))
        k.e("s_and_b32 s%d, s%d, 7" % (sK, sK))
        for p in range(7):
            k.e("s_add_u32 m0, s%d, %d" % (sM, slot * K3_SLOT + p * 1024))
            k.e("s_nop 0")
            k.vmem("buffer_load_dwordx4 v%d, %s, s%d offen lds" % (vOff + p, sr(S_B, 4), sOff), ("s", st))
        if st + 1 < 8:
            lda(st + 1, ("s", st))

    k.stamp(2)
    lda(0, ("s", 0))
    ld(0)
    k.stamp(3)
    for i in range(8):
        if i == 0:
            ld(1)
        k.wait_vm(("s", i))
        k.stamp(4 + i)
        k.e("s_barrier")
        if i + 2 < 8:
            ld(i + 2)
        if i == 6 and PREF and MAP48:
            srd(k, S_C, 48, 1792 * 1024)
            k.e("s_lshr_b32 s3, s2, 3")
            k.e("s_mul_i32 s3, s3, 56")
            k.e("s_sub_u32 s%d, s%d, 4" % (sOff, sW))
            k.e("s_mul_i32 s%d, s%d, 14" % (sOff, sOff))
            k.e("s_add_u32 s3, s3, s%d" % sOff)
            k.e("s_lshl_b32 s3, s3, 10")
            k.e("v_lshlrev_b32 v2, 7, v1")
            k.vmem("buffer_load_dword v3, v2, %s, s3 offen" % sr(S_C, 4), "pf")
            k.e("s_add_u32 s3, s3, 8192")
            k.e("v_cmp_gt_u32 vcc, 48, v1")
            k.e("s_and_saveexec_b64 s[40:41], vcc")
            k.vmem("buffer_load_dword v3, v2, %s, s3 offen" % sr(S_C, 4), "pf")
            k.e("s_mov_b64 exec, s[40:41]")
    k.stamp(12)
    k.e("s_waitcnt vmcnt(0)")
    k.stamp(13)
    k.stamp_rt(14)
    k.dump(2, sW, 15)
    k.lab("%s_end" % name)
    k.e("s_endpgm")
    return k.text(), nv, K3_B0 + K3_NS * K3_SLOT


import struct


def f32bits(x):
    return struct.unpack("<I", struct.pack("<f", x))[0]


def main():
    from gen_k1 import gen_k1
    parts = []
    descs = []
    launches = []
    t, nv, lds = gen_k1("k1_kernel")
    parts.append(t); descs.append(descriptor("k1_kernel", nv)); launches.append(("k1_kernel", 512, lds))
    t, nv, lds = gen_t2("k2_kernel", 512, 1024, ('ws', WS_O), KA_WO, ('ka', KA_X), ('ws', WS_H), True, 1)
    parts.append(t); descs.append(descriptor("k2_kernel", nv)); launches.append(("k2_kernel", 256, lds))
    t, nv, lds = gen_k3("k3_kernel")
    c0 = -2.0 * 1.4426950408889634 * 0.7978845608028654
    t = t.replace("0xc0135761", "0x%08x" % f32bits(c0)).replace("0xbdd2d3e8", "0x%08x" % f32bits(c0 * 0.044715))
    parts.append(t); descs.append(descriptor("k3_kernel", nv)); launches.append(("k3_kernel", 512, lds))
    t, nv, lds = gen_t2("k4_kernel", 1792, 3584, ('ws', WS_HH), KA_WD, ('ws', WS_H), ('ka', KA_OUT), False, 3)
    parts.append(t); descs.append(descriptor("k4_kernel", nv)); launches.append(("k4_kernel", 256, lds))
    out = []
    for n, b, lds in launches:
        out.append("; @launch kernel=%s grid=(256,1,1) block=(%d,1,1) lds=%d" % (n, b, lds))
    out.append('.amdgcn_target "amdgcn-amd-amdhsa--gfx950"')
    out.append(".text")
    out += parts
    out.append('.section .rodata,"a"')
    out += descs
    path = sys.argv[1] if len(sys.argv) > 1 else "cdna_kernels/%s.s" % NAME
    open(path, "w").write("\n".join(out))
    print("wrote", path)


if __name__ == "__main__":
    main()
```

```python
from gen import K, vr, sr, srd, header, KA_X, KA_WQKV, KA_WS, WS_O, f32bits, ROT, KA_WO, KA_WG, KA_WD, PREF, DIAG

A_BYTES = 80 * 128
W_SUB = 64 * 128
SLOT = A_BYTES + 3 * W_SUB
NS = 4
ST_BASE = NS * SLOT
LDS = ST_BASE + 6 * 320
NEG = -1.0e30


def gen_k1(name):
    k = K()
    header(k, name)
    S_A, S_B, S_C = 8, 12, 16
    sW, sRB, sHG, sT = 28, 29, 30, 31
    sOff, sM = 34, 35
    sScale = 36
    sK = 40
    sKb = 41
    k.e("s_cmp_ge_u32 s2, 256")
    k.e("s_cbranch_scc1 %s_end" % name)
    if PREF:
        k.e("s_getpc_b64 s[24:25]")
        k.lab("%s_pc" % name)
        k.e("s_sub_u32 s24, s24, %s_pc-%s" % (name, name))
        k.e("s_subb_u32 s25, s25, 0")
        k.e("s_mov_b32 s26, code_end-%s" % name)
        k.e("s_mov_b32 s27, 0x00020000")
        k.e("v_lshlrev_b32 v3, 7, v0")
        k.e("buffer_load_dword v255, v3, s[24:27], 0 offen")
    k.stamp_rt(0)
    k.stamp(1)
    k.e("s_load_dwordx4 s[44:47], s[0:1], %d" % KA_X)
    k.e("s_load_dwordx2 s[4:5], s[0:1], %d" % KA_WS)
    k.e("s_load_dwordx2 s[6:7], s[0:1], %d" % KA_WO)
    k.e("s_load_dwordx4 s[20:23], s[0:1], %d" % KA_WG)
    k.e("v_lshrrev_b32 v2, 6, v0")
    k.e("v_and_b32 v1, 63, v0")
    k.e("v_readfirstlane_b32 s%d, v2" % sW)
    k.e("s_and_b32 s3, s2, 7")
    k.e("s_lshr_b32 s%d, s2, 3" % sT)
    k.e("s_lshr_b32 s%d, s3, 1" % sRB)
    k.e("s_lshl_b32 s%d, s%d, 3" % (sRB, sRB))
    k.e("s_lshr_b32 s%d, s%d, 2" % (sHG, sT))
    k.e("s_add_u32 s%d, s%d, s%d" % (sRB, sRB, sHG))
    k.e("s_and_b32 s%d, s3, 1" % sHG)
    k.e("s_lshl_b32 s%d, s%d, 2" % (sHG, sHG))
    k.e("s_and_b32 s%d, s%d, 3" % (sT, sT))
    k.e("s_add_u32 s%d, s%d, s%d" % (sHG, sHG, sT))
    k.e("s_lshr_b32 s3, s2, 5")
    k.e("s_lshl_b32 s%d, s%d, 1" % (sK, sT))
    k.e("s_add_u32 s%d, s%d, s3" % (sK, sK))
    k.e("s_and_b32 s%d, s%d, 7" % (sK, sK))
    if not ROT:
        k.e("s_mov_b32 s%d, 0" % sK)
    k.e("s_waitcnt lgkmcnt(0)")
    k.e("s_cmp_ge_u32 s%d, 4" % sW)
    k.e("s_cbranch_scc1 %s_loader" % name)

    vL = 1
    vXa = 2
    vWa = 6
    vOnes = 8
    vT0, vT1, vT2, vT3 = 12, 13, 14, 15
    vX = 16
    vWf = 56
    vQ = 80
    vKk = 96
    vV = 116
    vCq, vCk, vCv = 136, 140, 144
    vE = 148
    nv = 256
    srd(k, S_C, 4, 2 << 20, WS_O)
    k.e("v_and_b32 v%d, 15, v%d" % (vT0, vL))
    k.e("v_lshrrev_b32 v%d, 4, v%d" % (vT1, vL))
    k.e("v_lshrrev_b32 v%d, 1, v%d" % (vT2, vT0))
    k.e("v_xor_b32 v%d, v%d, v%d" % (vT2, vT2, vT1))
    k.e("v_lshlrev_b32 v%d, 7, v%d" % (vT3, vT0))
    k.e("v_lshl_add_u32 v%d, v%d, 4, v%d" % (vXa, vT2, vT3))
    k.e("v_xor_b32 v%d, 4, v%d" % (vT2, vT2))
    k.e("v_lshl_add_u32 v%d, v%d, 4, v%d" % (vXa + 1, vT2, vT3))
    k.e("v_add_u32 v%d, %d, v%d" % (vXa + 2, 2 * SLOT, vXa))
    k.e("v_add_u32 v%d, %d, v%d" % (vXa + 3, 2 * SLOT, vXa + 1))
    k.e("v_bfe_u32 v%d, v%d, 2, 2" % (vT2, vL))
    k.e("v_lshl_add_u32 v%d, v%d, 3, v%d" % (vT2, vT1, vT2))
    k.e("v_lshlrev_b32 v%d, 7, v%d" % (vT2, vT2))
    k.e("v_and_b32 v%d, 3, v%d" % (vT3, vL))
    k.e("v_lshl_add_u32 v%d, v%d, 3, v%d" % (vT2, vT3, vT2))
    k.e("v_bfe_u32 v%d, v%d, 3, 1" % (vT3, vL))
    k.e("v_bfe_u32 v%d, v%d, 4, 1" % (vT0, vL))
    k.e("v_lshl_or_b32 v%d, v%d, 1, v%d" % (vT0, vT0, vT3))
    k.e("v_xor_b32 v%d, s%d, v%d" % (vT0, sW, vT0))
    k.e("v_lshl_add_u32 v%d, v%d, 5, v%d" % (vWa, vT0, vT2))
    k.e("v_add_u32 v%d, %d, v%d" % (vWa, A_BYTES, vWa))
    k.e("v_add_u32 v%d, %d, v%d" % (vWa + 1, 2 * SLOT, vWa))
    for i in range(4):
        k.e("v_mov_b32 v%d, 0x3f803f80" % (vOnes + i))

    sSl, sIt = 42, 43

    def rd(j, what):
        kk = j % 2
        xb = vX + (j & 1) * 20
        wb = vWf + (j & 1) * 12
        if what[0] == 'w':
            s_ = what[1]
            base = vWa + (1 if j >= 2 else 0)
            k.lds("ds_read_b64_tr_b16 %s, v%d offset:%d" % (vr(wb + 4 * s_, 2), base, s_ * W_SUB + kk * 4096), (kk, what))
            k.lds("ds_read_b64_tr_b16 %s, v%d offset:%d" % (vr(wb + 4 * s_ + 2, 2), base, s_ * W_SUB + kk * 4096 + 512), (kk, what))
        else:
            t = what[1]
            base = vXa + 2 if j >= 2 else vXa + kk
            k.lds("ds_read_b128 %s, v%d offset:%d" % (vr(xb + 4 * t, 4), base, 2048 * t), (kk, what))

    RD_ORDER = [('w', 1), ('x', 0), ('w', 2), ('x', 1), ('w', 0), ('x', 2), ('x', 3), ('x', 4)]
    k.e("v_add_u32 v%d, %d, v%d" % (vXa + 2, SLOT, vXa))
    k.e("v_add_u32 v%d, %d, v%d" % (vWa + 1, SLOT, vWa))
    k.e("s_mov_b32 s%d, 1" % sSl)
    k.e("s_mov_b32 s%d, 0" % sIt)
    for i in range(vQ, vCv + 4):
        k.e("v_mov_b32 v%d, 0" % i)
    k.stamp(2)
    k.e("s_barrier")
    k.stamp(3)
    for w_ in RD_ORDER:
        rd(0, w_)
    k.lab("%s_loop" % name)
    lq0 = list(k.lq)
    for j in range(2):
        xb = vX + (j & 1) * 20
        wb = vWf + (j & 1) * 12
        boundary = (j == 1)
        pend = list(RD_ORDER)
        mf = []
        for t in range(5):
            mf.append((vKk + 4 * t, wb + 4, xb + 4 * t, [('w', 1), ('x', t)]))
            mf.append((vV + 4 * t, xb + 4 * t, wb + 8, [('w', 2), ('x', t)]))
            if t >= 1:
                mf.append((vQ + 4 * (t - 1), wb, xb + 4 * t, [('w', 0), ('x', t)]))
        mf.append((vCq, wb, vOnes, []))
        mf.append((vCk, wb + 4, vOnes, []))
        mf.append((vCv, vOnes, wb + 8, []))
        for n, (d, a_, b_, deps) in enumerate(mf):
            for dp in deps:
                k.wait_lds((j, dp))
            k.e("v_mfma_f32_16x16x32_bf16 %s, %s, %s, %s" % (vr(d, 4), vr(a_, 4), vr(b_, 4), vr(d, 4)))
            if boundary and n < 5:
                continue
            if boundary and n == 5:
                k.wait_lds_all()
                k.e("s_barrier")
            if pend and (boundary or n % 2 == 0 or n >= 8):
                rd(j + 1, pend.pop(0))
        assert not pend
    k.e("v_mov_b32 v%d, v%d" % (vXa, vXa + 2))
    k.e("v_xor_b32 v%d, 64, v%d" % (vXa + 1, vXa + 2))
    k.e("v_mov_b32 v%d, v%d" % (vWa, vWa + 1))
    k.e("s_add_u32 s%d, s%d, 1" % (sSl, sSl))
    k.e("s_cmp_eq_u32 s%d, %d" % (sSl, NS))
    k.e("s_cselect_b32 s%d, 0, s%d" % (sSl, sSl))
    k.e("s_mov_b32 s3, %d" % SLOT)
    k.e("s_cmov_b32 s3, 0x%x" % ((-(NS - 1) * SLOT) & 0xffffffff))
    k.e("v_add_u32 v%d, s3, v%d" % (vXa + 2, vXa + 2))
    k.e("v_add_u32 v%d, s3, v%d" % (vWa + 1, vWa + 1))
    k.e("s_add_u32 s%d, s%d, 1" % (sIt, sIt))
    k.e("s_cmp_lt_u32 s%d, 8" % sIt)
    k.e("s_cbranch_scc1 %s_loop" % name)
    assert k.lq == lq0[len(lq0) - len(k.lq):] or DIAG, (k.lq, lq0)
    k.wait_lds_all()
    k.stamp(11)
    k.e("s_barrier")
    k.stamp(12)
    vSr = vE
    vSn = vE + 5
    vVr = vE + 12
    vVn = vE + 32
    k.e("v_and_b32 v%d, 15, v%d" % (vT0, vL))
    k.e("v_lshlrev_b32 v%d, 2, v%d" % (vT2, vT0))
    k.e("v_lshrrev_b32 v%d, 4, v%d" % (vT1, vL))
    k.e("v_lshlrev_b32 v%d, 4, v%d" % (vT3, vT1))
    k.e("v_add_u32 v%d, %d, v%d" % (vT2, ST_BASE, vT2))
    k.e("v_add_u32 v%d, %d, v%d" % (vT3, ST_BASE, vT3))
    for t in range(5):
        k.e("ds_read_b32 v%d, v%d offset:%d" % (vSr + t, vT2, 640 + 64 * t))
        k.e("ds_read_b32 v%d, v%d offset:%d" % (vSn + t, vT2, 960 + 64 * t))
        k.e("ds_read_b128 %s, v%d offset:%d" % (vr(vVr + 4 * t, 4), vT3, 640 + 64 * t))
        k.e("ds_read_b128 %s, v%d offset:%d" % (vr(vVn + 4 * t, 4), vT3, 960 + 64 * t))
    vBc = vE + 52
    vBp = vE + 56
    vBp1 = vE + 60
    vNeg = vE + 64
    k.e("v_mov_b32 v%d, 0x%08x" % (vNeg, f32bits(NEG)))
    k.e("v_lshlrev_b32 v%d, 2, v%d" % (vT2, vT1))
    k.e("v_sub_u32 v%d, v%d, v%d" % (vT2, vT0, vT2))
    vSgn = vE + 65
    k.e("v_mov_b32 v%d, 0x80000000" % vSgn)
    for r in range(4):
        k.e("v_subrev_u32 v%d, %d, v%d" % (vT3, r, vT2))
        k.e("v_and_b32 v%d, 0x80000001, v%d" % (vT3, vT3))
        k.e("v_cmp_eq_u32 vcc, 0, v%d" % vT3)
        k.e("v_cmp_eq_u32 s[38:39], v%d, v%d" % (vSgn, vT3))
        k.e("s_nop 1")
        k.e("v_cndmask_b32_e64 v%d, v%d, 0, vcc" % (vBc + r, vNeg))
        k.e("v_cndmask_b32_e64 v%d, v%d, 0, s[38:39]" % (vBp + r, vNeg))
    k.e("s_cmp_eq_u32 s%d, 0" % sRB)
    k.e("s_cselect_b64 s[38:39], -1, 0")
    for r in range(4):
        k.e("v_cndmask_b32_e64 v%d, v%d, v%d, s[38:39]" % (vBp1 + r, vBp + r, vNeg))
    k.e("s_mov_b32 s%d, 0x%08x" % (sScale, f32bits(0.25 * 1.4426950408889634)))
    k.e("s_waitcnt lgkmcnt(0)")
    vQb = vX
    vKb = vX + 8
    vVb = vX + 18
    for t in range(5):
        for (acc, cs, dst, on) in ((vQ + 4 * (t - 1), vCq, vQb + 2 * (t - 1), t >= 1), (vKk + 4 * t, vCk, vKb + 2 * t, True)):
            if not on:
                continue
            for r in range(4):
                k.e("v_mul_f32 v%d, v%d, v%d" % (vT0 + r, vSn + t, cs + r))
            for r in range(4):
                k.e("v_fma_f32 v%d, v%d, v%d, v%d" % (vT0 + r, vSr + t, acc + r, vT0 + r))
            k.e("v_cvt_pk_bf16_f32 v%d, v%d, v%d" % (dst, vT0, vT1))
            k.e("v_cvt_pk_bf16_f32 v%d, v%d, v%d" % (dst + 1, vT2, vT3))
        for r in range(4):
            k.e("v_mul_f32 v%d, v%d, v%d" % (vT0 + r, vVn + 4 * t + r, vCv))
        for r in range(4):
            k.e("v_fma_f32 v%d, v%d, v%d, v%d" % (vT0 + r, vVr + 4 * t + r, vV + 4 * t + r, vT0 + r))
        k.e("v_cvt_pk_bf16_f32 v%d, v%d, v%d" % (vVb + 2 * t, vT0, vT1))
        k.e("v_cvt_pk_bf16_f32 v%d, v%d, v%d" % (vVb + 2 * t + 1, vT2, vT3))
    k.e("s_nop 1")
    vS = vQ
    for t in range(4):
        k.e("v_mfma_f32_16x16x16_bf16 %s, %s, %s, 0" % (vr(vS + 8 * t, 4), vr(vKb + 2 * t, 2), vr(vQb + 2 * t, 2)))
        k.e("v_mfma_f32_16x16x16_bf16 %s, %s, %s, 0" % (vr(vS + 8 * t + 4, 4), vr(vKb + 2 * (t + 1), 2), vr(vQb + 2 * t, 2)))
    k.e("s_nop 7")
    k.e("s_nop 1")
    vMx = vE
    vMy = vE + 4
    vSum = vE + 8
    for t in range(4):
        for r in range(4):
            k.e("v_fma_f32 v%d, v%d, s%d, v%d" % (vS + 8 * t + r, vS + 8 * t + r, sScale, (vBp1 if t == 0 else vBp) + r))
            k.e("v_fma_f32 v%d, v%d, s%d, v%d" % (vS + 8 * t + 4 + r, vS + 8 * t + 4 + r, sScale, vBc + r))
        b = vS + 8 * t
        k.e("v_max3_f32 v%d, v%d, v%d, v%d" % (vMx + t, b, b + 1, b + 2))
        k.e("v_max3_f32 v%d, v%d, v%d, v%d" % (vMx + t, vMx + t, b + 3, b + 4))
        k.e("v_max3_f32 v%d, v%d, v%d, v%d" % (vMx + t, vMx + t, b + 5, b + 6))
        k.e("v_max_f32 v%d, v%d, v%d" % (vMx + t, vMx + t, b + 7))
    for op in ("v_permlane32_swap_b32", "v_permlane16_swap_b32"):
        for t in range(4):
            k.e("v_mov_b32 v%d, v%d" % (vMy + t, vMx + t))
        k.e("s_nop 1")
        for t in range(4):
            k.e("%s v%d, v%d" % (op, vMx + t, vMy + t))
        for t in range(4):
            k.e("v_max_f32 v%d, v%d, v%d" % (vMx + t, vMx + t, vMy + t))
    for t in range(4):
        b = vS + 8 * t
        for i in range(8):
            k.e("v_sub_f32 v%d, v%d, v%d" % (b + i, b + i, vMx + t))
        for i in range(8):
            k.e("v_exp_f32 v%d, v%d" % (b + i, b + i))
        k.e("s_nop 0")
        k.e("v_add_f32 v%d, v%d, v%d" % (vSum + t, b, b + 1))
        for i in range(2, 8):
            k.e("v_add_f32 v%d, v%d, v%d" % (vSum + t, vSum + t, b + i))
    vP = vE + 12
    for t in range(4):
        b = vS + 8 * t
        for i in range(4):
            k.e("v_cvt_pk_bf16_f32 v%d, v%d, v%d" % (vP + 4 * t + i, b + 2 * i, b + 2 * i + 1))
    for op in ("v_permlane32_swap_b32", "v_permlane16_swap_b32"):
        for t in range(4):
            k.e("v_mov_b32 v%d, v%d" % (vMy + t, vSum + t))
        k.e("s_nop 1")
        for t in range(4):
            k.e("%s v%d, v%d" % (op, vSum + t, vMy + t))
        for t in range(4):
            k.e("v_add_f32 v%d, v%d, v%d" % (vSum + t, vSum + t, vMy + t))
    vOa = vE + 28
    for t in range(4):
        k.e("v_mfma_f32_16x16x16_bf16 %s, %s, %s, 0" % (vr(vOa + 4 * t, 4), vr(vVb + 2 * t, 2), vr(vP + 4 * t, 2)))
    for t in range(4):
        k.e("v_mfma_f32_16x16x16_bf16 %s, %s, %s, %s" % (vr(vOa + 4 * t, 4), vr(vVb + 2 * (t + 1), 2), vr(vP + 4 * t + 2, 2), vr(vOa + 4 * t, 4)))
    for t in range(4):
        k.e("v_rcp_f32 v%d, v%d" % (vSum + t, vSum + t))
    k.e("v_and_b32 v%d, 15, v%d" % (vT0, vL))
    k.e("s_lshl_b32 s3, s%d, 6" % sRB)
    k.e("v_add_u32 v%d, s3, v%d" % (vT0, vT0))
    k.e("v_lshlrev_b32 v%d, 10, v%d" % (vT0, vT0))
    k.e("v_lshrrev_b32 v%d, 4, v%d" % (vT1, vL))
    k.e("v_lshl_add_u32 v%d, v%d, 3, v%d" % (vT0, vT1, vT0))
    k.e("s_lshl_b32 s3, s%d, 2" % sHG)
    k.e("s_add_u32 s3, s3, s%d" % sW)
    k.e("s_lshl_b32 s3, s3, 5")
    k.e("v_add_u32 v%d, s3, v%d" % (vT0, vT0))
    k.e("s_nop 3")
    for t in range(4):
        for r in range(4):
            k.e("v_mul_f32 v%d, v%d, v%d" % (vOa + 4 * t + r, vOa + 4 * t + r, vSum + t))
        k.e("v_cvt_pk_bf16_f32 v%d, v%d, v%d" % (vP + 2 * t, vOa + 4 * t, vOa + 4 * t + 1))
        k.e("v_cvt_pk_bf16_f32 v%d, v%d, v%d" % (vP + 2 * t + 1, vOa + 4 * t + 2, vOa + 4 * t + 3))
        k.e("s_mov_b32 s3, %d" % (t * 16384))
        k.vmem("buffer_store_dwordx2 %s, v%d, %s, s3 offen" % (vr(vP + 2 * t, 2), vT0, sr(S_C, 4)), "st")
    k.stamp(13)
    k.stamp_rt(14)
    k.dump(0, sW, 15)
    k.e("s_endpgm")

    k.lab("%s_loader" % name)
    vRa = 10
    vOne = 12
    vF = 16
    vG = 28
    vR = 40
    k.e("s_and_b32 s%d, s%d, 1" % (sT, sW))
    k.e("s_lshl_b32 s3, s%d, 2" % sT)
    k.e("v_and_b32 v2, 15, v1")
    k.e("v_lshrrev_b32 v3, 4, v1")
    k.e("v_lshrrev_b32 v9, 1, v2")
    k.e("v_xor_b32 v9, v9, v3")
    k.e("v_xor_b32 v9, s3, v9")
    k.e("v_lshlrev_b32 v2, 7, v2")
    k.e("v_lshl_add_u32 v%d, v9, 4, v2" % vRa)
    k.e("v_add_u32 v%d, %d, v%d" % (vRa + 1, 2 * SLOT, vRa))
    for i in range(4):
        k.e("v_mov_b32 v%d, 0x3f803f80" % (vOne + i))

    def stats_stage(i, tiles):
        slot = i % NS
        for n, t in enumerate(tiles):
            k.lds("ds_read_b128 %s, v%d offset:%d" % (vr(vF + 4 * n, 4), vRa + slot // 2, (slot % 2) * SLOT + 2048 * t), ("f", n))
        for n, t in enumerate(tiles):
            k.wait_lds(("f", n))
            k.e("v_mfma_f32_16x16x32_bf16 %s, %s, %s, %s" % (vr(vG + 4 * n, 4), vr(vF + 4 * n, 4), vr(vF + 4 * n, 4), "0" if i == 0 else vr(vG + 4 * n, 4)))
            k.e("v_mfma_f32_16x16x32_bf16 %s, %s, %s, %s" % (vr(vR + 4 * n, 4), vr(vF + 4 * n, 4), vr(vOne, 4), "0" if i == 0 else vr(vR + 4 * n, 4)))

    def stats_finish(tiles):
        k.e("v_and_b32 v2, 3, v1")
        k.e("v_cmp_eq_u32 s[48:49], 1, v2")
        k.e("v_cmp_eq_u32 s[50:51], 2, v2")
        k.e("v_cmp_eq_u32 s[52:53], 3, v2")
        k.e("v_bfe_u32 v2, v1, 2, 2")
        k.e("v_lshrrev_b32 v3, 4, v1")
        k.e("v_cmp_eq_u32 vcc, v2, v3")
        k.e("s_mul_i32 s3, s%d, 1280" % sT)
        k.e("s_add_u32 s3, s3, %d" % ST_BASE)
        k.e("v_and_b32 v2, 15, v1")
        k.e("v_lshlrev_b32 v2, 2, v2")
        k.e("v_add_u32 v2, s3, v2")
        k.e("s_nop 3")
        for n, t in enumerate(tiles):
            for base in (vG + 4 * n, vR + 4 * n):
                k.e("v_cndmask_b32_e64 v%d, v%d, v%d, s[48:49]" % (base, base, base + 1))
                k.e("v_cndmask_b32_e64 v%d, v%d, v%d, s[50:51]" % (base, base, base + 2))
                k.e("v_cndmask_b32_e64 v%d, v%d, v%d, s[52:53]" % (base, base, base + 3))
        k.e("s_and_saveexec_b64 s[38:39], vcc")
        for n, t in enumerate(tiles):
            k.e("ds_write_b32 v2, v%d offset:%d" % (vR + 4 * n, 64 * t))
            k.e("ds_write_b32 v2, v%d offset:%d" % (vG + 4 * n, 320 + 64 * t))
        k.e("s_mov_b64 exec, s[38:39]")
        k.e("s_waitcnt lgkmcnt(0)")
        k.e("s_barrier")

    k.e("s_cmp_ge_u32 s%d, 6" % sW)
    k.e("s_cbranch_scc1 %s_loadw" % name)
    k.e("s_cmp_eq_u32 s%d, 5" % sW)
    k.e("s_cbranch_scc1 %s_pref" % name)
    k.vm = []
    k.lq = []
    srd(k, S_A, 44, 2 << 20)
    vOff = 4
    vPo = 56
    k.e("s_lshl_b32 s3, s%d, 6" % sRB)
    k.e("s_sub_u32 s3, s3, 16")
    k.e("v_lshrrev_b32 v2, 3, v1")
    k.e("v_add_u32 v2, s3, v2")
    k.e("v_and_b32 v3, 7, v1")
    k.e("v_lshrrev_b32 v9, 4, v1")
    k.e("v_xor_b32 v3, v3, v9")
    for p in range(10):
        k.e("v_add_u32 v9, %d, v2" % (8 * p))
        k.e("v_max_i32 v9, 0, v9")
        k.e("v_lshlrev_b32 v9, 10, v9")
        if p & 1:
            k.e("v_xor_b32 v%d, 4, v3" % (vPo + p))
            k.e("v_lshl_add_u32 v%d, v%d, 4, v9" % (vPo + p, vPo + p))
        else:
            k.e("v_lshl_add_u32 v%d, v3, 4, v9" % (vPo + p))

    def lda(st):
        slot = st % NS
        k.e("s_lshl_b32 s%d, s%d, 7" % (sOff, sK))
        k.e("s_add_u32 s%d, s%d, 1" % (sK, sK))
        k.e("s_and_b32 s%d, s%d, 7" % (sK, sK))
        for p in range(10):
            k.e("s_mov_b32 m0, %d" % (slot * SLOT + p * 1024))
            k.e("s_nop 0")
            k.vmem("buffer_load_dwordx4 v%d, %s, s%d offen lds" % (vPo + p, sr(S_A, 4), sOff), ("s", st))

    k.stamp(2)
    lda(0)
    lda(1)
    k.stamp(3)
    for i in range(8):
        k.wait_vm(("s", i))
        k.stamp(4 + i)
        k.e("s_barrier")
        if i + 2 < 8:
            lda(i + 2)
        stats_stage(i, [0, 1, 2])
    stats_finish([0, 1, 2])
    k.e("s_branch %s_fin" % name)
    k.lab("%s_pref" % name)
    k.vm = []
    k.lq = []
    k.stamp(2)
    k.stamp(3)
    for i in range(8):
        k.stamp(4 + i)
        k.e("s_barrier")
        if i == 6 and PREF:
            srd(k, S_A, 6, 512 * 1024)
            k.e("v_lshrrev_b32 v4, 2, v1")
            k.e("v_lshlrev_b32 v4, 10, v4")
            k.e("v_and_b32 v3, 3, v1")
            k.e("v_lshl_add_u32 v4, v3, 7, v4")
            k.e("s_lshr_b32 s%d, s2, 3" % sOff)
            k.e("s_lshl_b32 s%d, s%d, 14" % (sOff, sOff))
            k.e("s_and_b32 s%d, s2, 1" % sM)
            k.e("s_lshl_b32 s%d, s%d, 9" % (sM, sM))
            k.e("s_add_u32 s%d, s%d, s%d" % (sOff, sOff, sM))
            k.vmem("buffer_load_dword v56, v4, %s, s%d offen" % (sr(S_A, 4), sOff), "pf")
            k.e("v_lshlrev_b32 v2, 7, v1")
            k.e("s_mul_i32 s3, s2, 7168")
            k.e("v_cmp_gt_u32 vcc, 56, v1")
            k.e("s_and_saveexec_b64 s[38:39], vcc")
            for ptr in (20, 22):
                srd(k, S_B, ptr, 512 * 3584)
                k.vmem("buffer_load_dword v57, v2, %s, s3 offen" % sr(S_B, 4), "pf")
            k.e("s_mov_b64 exec, s[38:39]")
        stats_stage(i, [0, 1, 2])
    stats_finish([0, 1, 2])
    k.lab("%s_fin" % name)
    k.e("s_mul_i32 s3, s%d, 160" % sT)
    k.e("s_add_u32 s3, s3, %d" % ST_BASE)
    k.e("v_lshlrev_b32 v2, 2, v1")
    k.e("v_add_u32 v2, s3, v2")
    k.e("v_cmp_gt_u32 vcc, 40, v1")
    k.e("s_and_saveexec_b64 s[38:39], vcc")
    k.e("ds_read_b32 v3, v2")
    k.e("ds_read_b32 v9, v2 offset:320")
    k.e("ds_read_b32 v4, v2 offset:1280")
    k.e("ds_read_b32 v5, v2 offset:1600")
    k.e("s_waitcnt lgkmcnt(0)")
    k.e("v_add_f32 v3, v3, v4")
    k.e("v_add_f32 v9, v9, v5")
    k.e("v_mul_f32 v3, 0x3b000000, v3")
    k.e("v_mul_f32 v9, 0x3b000000, v9")
    k.e("v_fma_f32 v9, -v3, v3, v9")
    k.e("v_max_f32 v9, 0, v9")
    k.e("v_add_f32 v9, 0x3727c5ac, v9")
    k.e("v_rsq_f32 v9, v9")
    k.e("s_nop 0")
    k.e("v_mul_f32 v3, v3, v9")
    k.e("v_sub_f32 v3, 0, v3")
    k.e("ds_write_b32 v2, v9 offset:640")
    k.e("ds_write_b32 v2, v3 offset:960")
    k.e("s_waitcnt lgkmcnt(0)")
    k.e("s_mov_b64 exec, s[38:39]")
    k.e("s_barrier")
    k.stamp(12)
    k.e("s_waitcnt vmcnt(0)")
    k.stamp(13)
    k.stamp_rt(14)
    k.dump(0, sW, 15)
    k.e("s_endpgm")

    k.lab("%s_loadw" % name)
    k.vm = []
    k.lq = []
    srd(k, S_B, 46, 512 * 3072)
    vWe, vWo = 4, 5
    k.e("v_lshrrev_b32 v2, 3, v1")
    k.e("v_mul_u32_u24 v%d, 3072, v2" % vWe)
    k.e("v_and_b32 v2, 1, v1")
    k.e("v_lshl_add_u32 v%d, v2, 4, v%d" % (vWe, vWe))
    k.e("s_lshl_b32 s3, s%d, 7" % sHG)
    k.e("v_add_u32 v%d, s3, v%d" % (vWe, vWe))
    k.e("v_bfe_u32 v2, v1, 1, 2")
    k.e("v_bfe_u32 v3, v1, 4, 1")
    k.e("v_xor_b32 v2, v2, v3")
    k.e("v_xor_b32 v3, 2, v2")
    k.e("v_lshl_add_u32 v%d, v3, 5, v%d" % (vWo, vWe))
    k.e("v_lshl_add_u32 v%d, v2, 5, v%d" % (vWe, vWe))
    k.e("s_mul_i32 s%d, s%d, %d" % (sM, sT, 12 * 1024))
    k.e("s_add_u32 s%d, s%d, %d" % (sM, sM, A_BYTES))
    sG = 82
    for p in range(12):
        p0, p1 = p, 12 + p
        g0 = (p0 // 8) * 1024 + (p0 % 8) * 8 * 3072
        g1 = (p1 // 8) * 1024 + (p1 % 8) * 8 * 3072
        k.e("s_cmp_eq_u32 s%d, 0" % sT)
        k.e("s_mov_b32 s%d, %d" % (sG + p, g1))
        k.e("s_cmov_b32 s%d, %d" % (sG + p, g0))

    def ldw(st):
        slot = st % NS
        k.e("s_mul_i32 s%d, s%d, %d" % (sKb, sK, 64 * 3072))
        k.e("s_add_u32 s%d, s%d, 1" % (sK, sK))
        k.e("s_and_b32 s%d, s%d, 7" % (sK, sK))
        for p in range(12):
            k.e("s_add_u32 m0, s%d, %d" % (sM, slot * SLOT + p * 1024))
            k.e("s_add_u32 s%d, s%d, s%d" % (sOff, sG + p, sKb))
            k.vmem("buffer_load_dwordx4 v%d, %s, s%d offen lds" % (vWo if p & 1 else vWe, sr(S_B, 4), sOff), ("s", st))

    k.stamp(2)
    ldw(0)
    ldw(1)
    k.stamp(3)
    for i in range(8):
        k.wait_vm(("s", i))
        k.stamp(4 + i)
        k.e("s_barrier")
        stats_stage(i, [3, 4])
        if i + 2 < 8:
            ldw(i + 2)
    stats_finish([3, 4])
    k.e("s_barrier")
    k.stamp(12)
    k.e("s_waitcnt vmcnt(0)")
    k.stamp(13)
    k.stamp_rt(14)
    k.dump(0, sW, 15)
    k.lab("%s_end" % name)
    k.e("s_endpgm")
    return k.text(), nv, LDS
```

```python
import sys

import os
import re
DIAG = bool(os.environ.get("DIAG"))
ROT = not os.environ.get("NOROT")
PREF = not os.environ.get("NOPREF")
PREF2 = bool(os.environ.get("PREF2"))
MAP48 = not os.environ.get("NOMAP48")
PKN = bool(os.environ.get("PKN"))
V_WAIT = os.environ.get("V_WAIT", "2")
V_ARD = int(os.environ.get("V_ARD", "3"))
V_NRM = [int(c) for c in os.environ.get("V_NRM", "3333332")]
NAME = "sequential_preLN__sliding_local_dilated__glu_gated_geglu__prompt"

WS_O = 0
WS_H = 2 << 20
WS_HH = 4 << 20
WS_HST = 12 << 20

KA_X, KA_WQKV, KA_WO, KA_BX, KA_WG, KA_WU, KA_WD, KA_OUT, KA_DBG, KA_WS = [8 * i for i in range(10)]


class K:
    def __init__(self):
        self.lines = []
        self.vm = []
        self.lq = []

    def e(self, s):
        m = re.search(r"offset:(\d+)", s)
        if m:
            lim = 4096 if s.startswith("buffer_") else 65536
            assert int(m.group(1)) < lim, s
        self.lines.append("  " + s)

    def lab(self, s):
        self.lines.append(s + ":")

    def c(self, s):
        self.lines.append("  ; " + s)

    def vmem(self, s, tag):
        self.e(s)
        self.vm.append(tag)

    def wait_vm(self, tag):
        idx = max((i for i, t in enumerate(self.vm) if t == tag), default=None)
        if idx is None:
            return
        n = len(self.vm) - 1 - idx
        assert n <= 63, n
        self.e("s_waitcnt vmcnt(%d)" % n)
        self.vm = self.vm[idx + 1:]

    def lds(self, s, tag):
        self.e(s)
        self.lq.append(tag)

    def wait_lds(self, tag):
        idx = max((i for i, t in enumerate(self.lq) if t == tag), default=None)
        if idx is None:
            return False
        n = len(self.lq) - 1 - idx
        if n > 15:
            n = 15
            idx = len(self.lq) - 1 - n
        self.e("s_waitcnt lgkmcnt(%d)" % n)
        self.lq = self.lq[idx + 1:]
        return True

    def wait_lds_all(self):
        self.e("s_waitcnt lgkmcnt(0)")
        self.lq = []

    def wait_vm_all(self):
        self.e("s_waitcnt vmcnt(0)")
        self.vm = []

    def text(self):
        return "\n".join(self.lines) + "\n"

    def stamp(self, i):
        if not DIAG:
            return
        self.e("s_memtime s[58:59]")
        self.e("s_waitcnt lgkmcnt(0)")
        self.lq = []
        self.e("s_mov_b32 s%d, s58" % (64 + i))

    def stamp_rt(self, i):
        if not DIAG:
            return
        self.e("s_memrealtime s[58:59]")
        self.e("s_waitcnt lgkmcnt(0)")
        self.e("s_mov_b32 s%d, s58" % (64 + i))

    def dump(self, kidx, sW, n):
        if not DIAG:
            return
        self.e("s_add_u32 s60, s4, 0x%x" % ((32 << 20) + (kidx << 20)))
        self.e("s_addc_u32 s61, s5, 0")
        self.e("s_mov_b32 s62, 0x100000")
        self.e("s_mov_b32 s63, 0x00020000")
        self.e("s_lshl_b32 s58, s2, 3")
        self.e("s_add_u32 s58, s58, s%d" % sW)
        self.e("s_lshl_b32 s58, s58, 7")
        self.e("v_mov_b32 v0, s58")
        for i in range(n):
            self.e("v_mov_b32 v1, s%d" % (64 + i))
            self.e("buffer_store_dword v1, v0, s[60:63], 0 offen offset:%d" % (4 * i))
            self.e("s_nop 1")


def vr(a, n=1):
    return "v%d" % a if n == 1 else "v[%d:%d]" % (a, a + n - 1)


def sr(a, n=1):
    return "s%d" % a if n == 1 else "s[%d:%d]" % (a, a + n - 1)


def srd(k, d, ptr, nbytes, off=0):
    if off:
        k.e("s_add_u32 s%d, s%d, 0x%x" % (d, ptr, off))
        k.e("s_addc_u32 s%d, s%d, 0" % (d + 1, ptr + 1))
    else:
        k.e("s_mov_b32 s%d, s%d" % (d, ptr))
        k.e("s_mov_b32 s%d, s%d" % (d + 1, ptr + 1))
    k.e("s_mov_b32 s%d, 0x%x" % (d + 2, nbytes))
    k.e("s_mov_b32 s%d, 0x00020000" % (d + 3))


def header(k, name):
    k.lines.append(".globl %s" % name)
    k.lines.append(".p2align 8")
    k.lines.append(".type %s,@function" % name)
    k.lab(name)


def descriptor(name, nvgpr, nsgpr=96):
    nv = (nvgpr + 7) // 8 * 8
    return """.p2align 6
.amdhsa_kernel %s
  .amdhsa_next_free_vgpr %d
  .amdhsa_next_free_sgpr %d
  .amdhsa_accum_offset %d
  .amdhsa_group_segment_fixed_size 0
  .amdhsa_kernarg_size 80
  .amdhsa_user_sgpr_count 2
  .amdhsa_user_sgpr_kernarg_segment_ptr 1
  .amdhsa_system_sgpr_workgroup_id_x 1
.end_amdhsa_kernel
""" % (name, nv, nsgpr, min(nv, 256))


def gen_t2(name, Kdim, lda, a_src, b_ka, r_src, c_dst, stats, kidx=0, LOOK=3, skip=''):
    k = K()
    header(k, name)
    Kw = Kdim // 4
    ns = Kw // 32
    nu = ns // 2
    DA = min(nu, 3)
    DB = min(ns, 4)
    BOFF = DA * 8192
    S_A, S_B, S_R, S_C, S_ST = 8, 12, 16, 20, 24
    sW, sRB, sCB, sT, sLB = 28, 29, 30, 31, 32
    sTile = 36
    sBoff = 40
    sAoff = 41
    sK = 42
    sKb = 43
    sKB = 50
    vL, vAe, vBe, vBo = 1, 2, 3, 4
    vTr = 5
    vRo = 9
    vT0, vT1, vT2 = 10, 11, 12
    vXa = 13
    vAo = 15
    vRes = 16
    vAcc = 24
    vBf = 88
    vAf = 120
    nv = 160

    k.e("s_cmp_ge_u32 s2, 256")
    k.e("s_cbranch_scc1 %s_end" % name)
    k.stamp_rt(0)
    k.stamp(1)
    k.e("s_load_dwordx2 s[4:5], s[0:1], %d" % KA_WS)
    k.e("s_load_dwordx2 s[6:7], s[0:1], %d" % b_ka)
    if stats:
        k.e("s_load_dwordx4 s[52:55], s[0:1], %d" % KA_WG)
    nxt = 44
    for src in (a_src, r_src, c_dst):
        if src[0] == 'ka':
            k.e("s_load_dwordx2 s[%d:%d], s[0:1], %d" % (nxt, nxt + 1, src[1]))
            nxt += 2
    k.e("v_lshrrev_b32 v%d, 6, v0" % vT0)
    k.e("v_and_b32 v%d, 63, v0" % vL)
    k.e("v_readfirstlane_b32 s%d, v%d" % (sW, vT0))
    if MAP48 and ns == 14:
        k.e("s_and_b32 s3, s2, 7")
        k.e("s_lshl_b32 s%d, s3, 2" % sRB)
        k.e("s_lshr_b32 s3, s2, 6")
        k.e("s_add_u32 s%d, s%d, s3" % (sRB, sRB))
        k.e("s_lshr_b32 s%d, s2, 3" % sT)
        k.e("s_and_b32 s%d, s%d, 7" % (sCB, sT))
        k.e("s_lshl_b32 s%d, s3, 1" % sK)
        k.e("s_add_u32 s%d, s%d, s%d" % (sK, sK, sCB))
        k.e("s_cmp_ge_u32 s%d, 7" % sK)
        k.e("s_cselect_b32 s3, 7, 0")
        k.e("s_sub_u32 s%d, s%d, s3" % (sK, sK))
    else:
        k.e("s_and_b32 s3, s2, 7")
        k.e("s_lshr_b32 s%d, s2, 3" % sT)
        k.e("s_lshr_b32 s%d, s3, 1" % sRB)
        k.e("s_lshl_b32 s%d, s%d, 3" % (sRB, sRB))
        k.e("s_lshr_b32 s%d, s%d, 2" % (sCB, sT))
        k.e("s_add_u32 s%d, s%d, s%d" % (sRB, sRB, sCB))
        k.e("s_and_b32 s%d, s3, 1" % sCB)
        k.e("s_lshl_b32 s%d, s%d, 2" % (sCB, sCB))
        k.e("s_and_b32 s%d, s%d, 3" % (sT, sT))
        k.e("s_add_u32 s%d, s%d, s%d" % (sCB, sCB, sT))
        k.e("s_lshr_b32 s3, s2, 5")
        if nu == 7:
            k.e("s_lshl_b32 s%d, s%d, 1" % (sK, sT))
            k.e("s_add_u32 s%d, s%d, s3" % (sK, sK))
            k.e("s_cmp_ge_u32 s%d, 7" % sK)
            k.e("s_cselect_b32 s3, 7, 0")
            k.e("s_sub_u32 s%d, s%d, s3" % (sK, sK))
        else:
            assert nu == 2
            k.e("s_add_u32 s%d, s%d, s3" % (sK, sT))
            k.e("s_and_b32 s%d, s%d, 1" % (sK, sK))
    if not ROT:
        k.e("s_mov_b32 s%d, 0" % sK)
    k.e("s_mov_b32 s%d, s%d" % (sKB, sK))
    wave_lds = max(BOFF + DB * 4096, 12288)
    k.e("s_mul_i32 s%d, s%d, %d" % (sLB, sW, wave_lds))
    for t in range(4):
        k.e("s_add_u32 s%d, s%d, %d" % (sT, sW, t))
        k.e("s_and_b32 s%d, s%d, 3" % (sT, sT))
        k.e("s_mul_i32 s%d, s%d, %d" % (sTile + t, sT, 16 * lda))
    k.e("s_lshl_b32 s%d, s%d, 6" % (sT, sRB))
    k.e("v_lshrrev_b32 v%d, 3, v%d" % (vT0, vL))
    k.e("v_add_u32 v%d, s%d, v%d" % (vT1, sT, vT0))
    k.e("s_mov_b32 s3, %d" % lda)
    k.e("v_mul_lo_u32 v%d, v%d, s3" % (vAe, vT1))
    k.e("s_mul_i32 s3, s%d, %d" % (sW, Kw * 2))
    k.e("v_add_u32 v%d, s3, v%d" % (vAe, vAe))
    k.e("v_and_b32 v%d, 7, v%d" % (vT0, vL))
    k.e("v_lshrrev_b32 v%d, 4, v%d" % (vT2, vL))
    k.e("v_xor_b32 v%d, v%d, v%d" % (vT0, vT0, vT2))
    k.e("v_xor_b32 v%d, 4, v%d" % (vT1, vT0))
    k.e("v_add_u32 v%d, %d, v%d" % (vAo, 8 * lda, vAe))
    k.e("v_lshl_add_u32 v%d, v%d, 4, v%d" % (vAo, vT1, vAo))
    k.e("v_lshl_add_u32 v%d, v%d, 4, v%d" % (vAe, vT0, vAe))
    k.e("v_and_b32 v%d, 15, v%d" % (vT1, vL))
    k.e("v_lshrrev_b32 v%d, 1, v%d" % (vT0, vT1))
    k.e("v_xor_b32 v%d, v%d, v%d" % (vT0, vT0, vT2))
    k.e("v_lshlrev_b32 v%d, 7, v%d" % (vXa, vT1))
    k.e("v_add_u32 v%d, s%d, v%d" % (vXa, sLB, vXa))
    k.e("v_lshl_add_u32 v%d, v%d, 4, v%d" % (vXa, vT0, vXa))
    k.e("v_xor_b32 v%d, 64, v%d" % (vXa + 1, vXa))
    k.e("s_lshl_b32 s3, s%d, 4" % sW)
    k.e("s_add_u32 s3, s3, s%d" % sT)
    k.e("v_add_u32 v%d, s3, v%d" % (vT1, vT1))
    k.e("v_lshlrev_b32 v%d, 10, v%d" % (vRo, vT1))
    k.e("v_lshl_add_u32 v%d, v%d, 3, v%d" % (vRo, vT2, vRo))
    k.e("s_lshl_b32 s3, s%d, 7" % sCB)
    k.e("v_add_u32 v%d, s3, v%d" % (vRo, vRo))
    k.e("v_lshrrev_b32 v%d, 3, v%d" % (vT0, vL))
    k.e("v_lshlrev_b32 v%d, 10, v%d" % (vBe, vT0))
    k.e("v_and_b32 v%d, 1, v%d" % (vT0, vL))
    k.e("v_lshl_add_u32 v%d, v%d, 4, v%d" % (vBe, vT0, vBe))
    k.e("s_mul_i32 s%d, s%d, %d" % (sT, sW, Kw * 1024))
    k.e("s_add_u32 s3, s3, s%d" % sT)
    k.e("v_add_u32 v%d, s3, v%d" % (vBe, vBe))
    k.e("v_bfe_u32 v%d, v%d, 1, 2" % (vT0, vL))
    k.e("v_bfe_u32 v%d, v%d, 4, 1" % (vT1, vL))
    k.e("v_xor_b32 v%d, v%d, v%d" % (vT0, vT0, vT1))
    k.e("v_xor_b32 v%d, 2, v%d" % (vT1, vT0))
    k.e("v_lshl_add_u32 v%d, v%d, 5, v%d" % (vBo, vT1, vBe))
    k.e("v_lshl_add_u32 v%d, v%d, 5, v%d" % (vBe, vT0, vBe))
    k.e("v_lshrrev_b32 v%d, 4, v%d" % (vT0, vL))
    k.e("v_bfe_u32 v%d, v%d, 2, 2" % (vT1, vL))
    k.e("v_lshl_add_u32 v%d, v%d, 3, v%d" % (vT2, vT0, vT1))
    k.e("v_lshlrev_b32 v%d, 7, v%d" % (vT2, vT2))
    k.e("v_add_u32 v%d, s%d, v%d" % (vT2, sLB, vT2))
    k.e("v_and_b32 v%d, 3, v%d" % (vTr, vL))
    k.e("v_lshl_add_u32 v%d, v%d, 3, v%d" % (vT2, vTr, vT2))
    k.e("v_bfe_u32 v%d, v%d, 3, 1" % (vT1, vL))
    k.e("v_bfe_u32 v%d, v%d, 4, 1" % (vT0, vL))
    k.e("v_lshl_or_b32 v%d, v%d, 1, v%d" % (vT0, vT0, vT1))
    for j in range(4):
        k.e("v_xor_b32 v%d, %d, v%d" % (vT1, j, vT0))
        k.e("v_lshl_add_u32 v%d, v%d, 5, v%d" % (vTr + j, vT1, vT2))
    k.e("s_waitcnt lgkmcnt(0)")
    nxt = 44
    for d, src, nbytes in ((S_A, a_src, 2048 * lda), (S_R, r_src, 2 << 20), (S_C, c_dst, 2 << 20)):
        if src[0] == 'ka':
            srd(k, d, nxt, nbytes)
            nxt += 2
        else:
            srd(k, d, 4, nbytes, src[1])
    srd(k, S_B, 6, Kdim * 1024)
    if stats:
        srd(k, S_ST, 4, 2048 * 64, WS_HST)

    def issue_a(u):
        if 'A' in skip:
            return
        slot = u % DA
        k.e("s_lshl_b32 s%d, s%d, 7" % (sKb, sK))
        k.e("s_add_u32 s%d, s%d, 1" % (sK, sK))
        k.e("s_cmp_ge_u32 s%d, %d" % (sK, nu))
        k.e("s_cselect_b32 s%d, 0, s%d" % (sK, sK))
        for t in range(4):
            k.e("s_add_u32 s%d, s%d, s%d" % (sAoff, sTile + t, sKb))
            for p in range(2):
                k.e("s_add_u32 m0, s%d, %d" % (sLB, slot * 8192 + t * 2048 + p * 1024))
                k.e("s_nop 0")
                k.vmem("buffer_load_dwordx4 v%d, %s, s%d offen lds" % (vAo if p else vAe, sr(S_A, 4), sAoff), ("a", u))

    def issue_b(s):
        if 'B' in skip:
            return
        slot = s % DB
        if s % 2 == 0:
            k.e("s_lshl_b32 s%d, s%d, 16" % (sBoff, sKB))
            k.e("s_add_u32 s%d, s%d, 1" % (sKB, sKB))
            k.e("s_cmp_ge_u32 s%d, %d" % (sKB, nu))
            k.e("s_cselect_b32 s%d, 0, s%d" % (sKB, sKB))
        for i in range(4):
            k.e("s_add_u32 m0, s%d, %d" % (sLB, BOFF + slot * 4096 + i * 1024))
            k.e("s_nop 0")
            k.vmem("buffer_load_dwordx4 v%d, %s, s%d offen lds" % (vBo if i & 1 else vBe, sr(S_B, 4), sBoff), ("b", s))
            k.e("s_add_u32 s%d, s%d, 8192" % (sBoff, sBoff))

    def rd(s):
        buf = vBf + (s & 1) * 16
        ab = vAf + (s & 1) * 16
        bo = BOFF + (s % DB) * 4096
        ao = ((s // 2) % DA) * 8192
        ops = []
        for j in range(4):
            ops.append("ds_read_b64_tr_b16 %s, v%d offset:%d" % (vr(buf + j * 4, 2), vTr + j, bo))
            ops.append("ds_read_b64_tr_b16 %s, v%d offset:%d" % (vr(buf + j * 4 + 2, 2), vTr + j, bo + 512))
            ops.append("ds_read_b128 %s, v%d offset:%d" % (vr(ab + j * 4, 4), vXa + (s & 1), ao + j * 2048))
        return ops

    def wait_step(s):
        k.wait_vm(("a", s // 2))
        k.wait_vm(("b", s))

    k.stamp(2)
    ia = ib = 0
    issue_a(0); ia = 1
    issue_b(0); issue_b(1); ib = 2
    if nu > 1:
        issue_a(1); ia = 2
    issue_b(2); ib = 3
    for j in range(4):
        k.vmem("buffer_load_dwordx2 %s, v%d, %s, 0 offen offset:%d" % (vr(vRes + 2 * j, 2), vRo, sr(S_R, 4), 32 * j), "res")
    k.stamp(3)
    wait_step(0)
    k.stamp(4)
    for op in rd(0):
        k.e(op)
    for s in range(ns):
        buf = vBf + (s & 1) * 16
        ab = vAf + (s & 1) * 16
        k.e("s_waitcnt lgkmcnt(0)")
        if ib < ns:
            issue_b(ib); ib += 1
        if s % 2 == 0 and ia < nu and (ia < DA or s >= 2 * (ia - DA) + 1):
            issue_a(ia); ia += 1
        fill = []
        if s + 1 < ns:
            wait_step(s + 1)
            fill = rd(s + 1)
            if s + 2 == ns and stats and PREF:
                k.e("s_cmp_ge_u32 s%d, 2" % sW)
                k.e("s_cselect_b32 s6, s54, s52")
                k.e("s_cselect_b32 s7, s55, s53")
                srd(k, S_B, 6, 512 * 3584)
                k.e("s_lshr_b32 s3, s2, 3")
                k.e("s_lshl_b32 s3, s3, 1")
                k.e("s_and_b32 s%d, s%d, 1" % (sT, sW))
                k.e("s_add_u32 s3, s3, s%d" % sT)
                k.e("s_mul_i32 s3, s3, %d" % (8 * 3584))
                k.e("s_and_b32 s%d, s2, 3" % sT)
                k.e("s_mul_i32 s%d, s%d, 896" % (sT, sT))
                k.e("s_add_u32 s3, s3, s%d" % sT)
                k.e("v_lshrrev_b32 v%d, 3, v%d" % (vT0, vL))
                k.e("v_mul_u32_u24 v%d, 3584, v%d" % (vT0, vT0))
                k.e("v_and_b32 v%d, 7, v%d" % (vT1, vL))
                k.e("v_min_u32 v%d, 6, v%d" % (vT1, vT1))
                k.e("v_lshl_add_u32 v%d, v%d, 7, v%d" % (vT0, vT1, vT0))
                k.vmem("buffer_load_dword v152, v%d, %s, s3 offen" % (vT0, sr(S_B, 4)), "pf")
        fi = 0
        for t in range(4):
            for j in range(4):
                a = vAcc + (j * 4 + t) * 4
                cin = "0" if s == 0 else vr(a, 4)
                k.e("v_mfma_f32_16x16x32_bf16 %s, %s, %s, %s" % (vr(a, 4), vr(buf + j * 4, 4), vr(ab + t * 4, 4), cin))
                if fi < len(fill):
                    k.e(fill[fi]); fi += 1
        k.stamp(5 + s)
    assert ia == nu and ib == ns
    k.e("v_lshlrev_b32 v%d, 4, v%d" % (vT0, vL))
    k.e("v_add_u32 v%d, s%d, v%d" % (vT1, sLB, vT0))
    k.e("s_nop 7")
    k.e("s_nop 3")
    for t in range(1, 4):
        for j in range(4):
            k.e("ds_write_b128 v%d, %s offset:%d" % (vT1, vr(vAcc + (j * 4 + t) * 4, 4), (t - 1) * 4096 + j * 1024))
    k.wait_vm("res")
    vP = vBf
    vO = vP + 48
    for j in range(4):
        for h in range(2):
            k.e("v_lshlrev_b32 v%d, 16, v%d" % (vO + j * 4 + 2 * h, vRes + 2 * j + h))
            k.e("v_and_b32 v%d, 0xffff0000, v%d" % (vO + j * 4 + 2 * h + 1, vRes + 2 * j + h))
    for j in range(4):
        for r in range(4):
            k.e("v_add_f32 v%d, v%d, v%d" % (vO + j * 4 + r, vO + j * 4 + r, vAcc + (j * 4) * 4 + r))
    k.e("s_waitcnt lgkmcnt(0)")
    k.e("s_barrier")
    for d in range(1, 4):
        k.e("s_sub_u32 s3, s%d, %d" % (sW, d))
        k.e("s_and_b32 s3, s3, 3")
        k.e("s_mul_i32 s3, s3, %d" % wave_lds)
        k.e("v_add_u32 v%d, s3, v%d" % (vT1, vT0))
        for j in range(4):
            k.e("ds_read_b128 %s, v%d offset:%d" % (vr(vP + ((d - 1) * 4 + j) * 4, 4), vT1, (d - 1) * 4096 + j * 1024))
    for d in range(3):
        k.e("s_waitcnt lgkmcnt(%d)" % (8 - 4 * d))
        for j in range(4):
            for r in range(4):
                k.e("v_add_f32 v%d, v%d, v%d" % (vO + j * 4 + r, vO + j * 4 + r, vP + (d * 4 + j) * 4 + r))
    vPk = vP
    for j in range(4):
        k.e("v_cvt_pk_bf16_f32 v%d, v%d, v%d" % (vPk + 2 * j, vO + 4 * j, vO + 4 * j + 1))
        k.e("v_cvt_pk_bf16_f32 v%d, v%d, v%d" % (vPk + 2 * j + 1, vO + 4 * j + 2, vO + 4 * j + 3))
    for j in range(4):
        k.vmem("buffer_store_dwordx2 %s, v%d, %s, 0 offen offset:%d" % (vr(vPk + 2 * j, 2), vRo, sr(S_C, 4), 32 * j), "st")
    if stats:
        vS, vQ, vX, vY = vPk + 8, vPk + 9, vPk + 10, vPk + 11
        k.e("v_mov_b32 v%d, 0" % vS)
        k.e("v_mov_b32 v%d, 0" % vQ)
        for i in range(8):
            k.e("v_lshlrev_b32 v%d, 16, v%d" % (vX, vPk + i))
            k.e("v_and_b32 v%d, 0xffff0000, v%d" % (vY, vPk + i))
            k.e("v_add_f32 v%d, v%d, v%d" % (vS, vS, vX))
            k.e("v_fmac_f32 v%d, v%d, v%d" % (vQ, vX, vX))
            k.e("v_add_f32 v%d, v%d, v%d" % (vS, vS, vY))
            k.e("v_fmac_f32 v%d, v%d, v%d" % (vQ, vY, vY))
        for op in ("v_permlane32_swap_b32", "v_permlane16_swap_b32"):
            k.e("v_mov_b32 v%d, v%d" % (vX, vS))
            k.e("v_mov_b32 v%d, v%d" % (vY, vQ))
            k.e("s_nop 1")
            k.e("%s v%d, v%d" % (op, vS, vX))
            k.e("%s v%d, v%d" % (op, vQ, vY))
            k.e("v_add_f32 v%d, v%d, v%d" % (vS, vS, vX))
            k.e("v_add_f32 v%d, v%d, v%d" % (vQ, vQ, vY))
        k.e("v_lshrrev_b32 v%d, 10, v%d" % (vX, vRo))
        k.e("v_lshlrev_b32 v%d, 6, v%d" % (vX, vX))
        k.e("s_lshl_b32 s3, s%d, 3" % sCB)
        k.e("v_add_u32 v%d, s3, v%d" % (vX, vX))
        k.e("v_cmp_gt_u32 vcc, 16, v%d" % vL)
        k.e("s_and_saveexec_b64 s[34:35], vcc")
        k.vmem("buffer_store_dwordx2 %s, v%d, %s, 0 offen" % (vr(vS, 2), vX, sr(S_ST, 4)), "st")
        k.e("s_mov_b64 exec, s[34:35]")
    k.stamp(5 + ns)
    if DIAG:
        k.e("s_waitcnt vmcnt(0)")
    k.stamp(6 + ns)
    k.stamp_rt(7 + ns)
    k.dump(kidx, sW, 8 + ns)
    k.lab("%s_end" % name)
    k.e("s_endpgm")
    return k.text(), nv, 4 * wave_lds


K3_A = 16384
K3_NA = 4
K3_UP = 14464
K3_SLOT = 28800
K3_NS = 3
K3_B0 = K3_NA * K3_A


def gen_k3(name):
    k = K()
    header(k, name)
    S_A, S_B, S_C, S_ST = 8, 12, 16, 20
    sW, sRB, sFB, sT = 28, 29, 30, 31
    sOff = 34
    sM = 35
    sMA = 36
    sOffA = 37
    sK = 38
    sKa = 39
    k.e("s_cmp_ge_u32 s2, 256")
    k.e("s_cbranch_scc1 %s_end" % name)
    k.stamp_rt(0)
    k.stamp(1)
    k.e("s_load_dwordx2 s[4:5], s[0:1], %d" % KA_WS)
    k.e("s_load_dwordx4 s[44:47], s[0:1], %d" % KA_WG)
    k.e("s_load_dwordx2 s[48:49], s[0:1], %d" % KA_WD)
    k.e("v_lshrrev_b32 v2, 6, v0")
    k.e("v_and_b32 v1, 63, v0")
    k.e("v_readfirstlane_b32 s%d, v2" % sW)
    k.e("s_and_b32 s3, s2, 7")
    k.e("s_lshr_b32 s%d, s2, 3" % sT)
    k.e("s_lshr_b32 s%d, s3, 2" % sRB)
    k.e("s_lshl_b32 s%d, s%d, 3" % (sRB, sRB))
    k.e("s_lshr_b32 s%d, s%d, 2" % (sFB, sT))
    k.e("s_add_u32 s%d, s%d, s%d" % (sRB, sRB, sFB))
    k.e("s_and_b32 s%d, s3, 3" % sFB)
    k.e("s_lshl_b32 s%d, s%d, 2" % (sFB, sFB))
    k.e("s_and_b32 s%d, s%d, 3" % (sT, sT))
    k.e("s_add_u32 s%d, s%d, s%d" % (sFB, sFB, sT))
    k.e("s_lshr_b32 s3, s2, 5")
    k.e("s_lshl_b32 s%d, s%d, 1" % (sK, sT))
    k.e("s_add_u32 s%d, s%d, s3" % (sK, sK))
    k.e("s_and_b32 s%d, s%d, 7" % (sK, sK))
    if not ROT:
        k.e("s_mov_b32 s%d, 0" % sK)
    k.e("s_cmp_ge_u32 s%d, 4" % sW)
    k.e("s_cbranch_scc1 %s_loader" % name)

    vL = 1
    vO = 3
    vTr = 4
    vRstd, vNmr = 6, 7
    vT0, vT1, vT2, vT3 = 8, 9, 10, 11
    vN = 12
    vW = 24
    vXa = 80
    vCa = 84
    vAr = 208
    vRp = 90
    vAcc = 96
    nv = 216
    k.e("s_lshl_b32 s3, s%d, 7" % sRB)
    k.e("s_lshl_b32 s%d, s%d, 5" % (sT, sW))
    k.e("s_add_u32 s3, s3, s%d" % sT)
    k.e("v_and_b32 v%d, 31, v%d" % (vT3, vL))
    k.e("v_add_u32 v%d, s3, v%d" % (vT0, vT3))
    k.e("v_lshrrev_b32 v%d, 5, v%d" % (vT1, vL))
    k.e("v_lshlrev_b32 v%d, 6, v%d" % (vT2, vT0))
    k.e("s_mov_b32 s3, 3584")
    k.e("v_mul_lo_u32 v%d, v%d, s3" % (vO, vT0))
    k.e("v_lshl_add_u32 v%d, v%d, 4, v%d" % (vO, vT1, vO))
    k.e("s_mul_i32 s3, s%d, 224" % sFB)
    k.e("v_add_u32 v%d, s3, v%d" % (vO, vO))
    k.e("v_bfe_u32 v%d, v%d, 1, 3" % (vT0, vL))
    k.e("v_xor_b32 v%d, v%d, v%d" % (vT0, vT0, vT1))
    k.e("v_add_u32 v%d, s%d, v%d" % (vT3, sT, vT3))
    k.e("v_lshlrev_b32 v%d, 7, v%d" % (vT3, vT3))
    k.e("v_lshl_add_u32 v%d, v%d, 4, v%d" % (vXa, vT0, vT3))
    for u in range(1, 4):
        k.e("v_xor_b32 v%d, %d, v%d" % (vXa + u, 32 * u, vXa))
    k.e("v_bfe_u32 v%d, v%d, 4, 1" % (vT0, vL))
    k.e("v_mul_u32_u24 v%d, %d, v%d" % (vTr, K3_UP, vT0))
    k.e("v_lshrrev_b32 v%d, 5, v%d" % (vT0, vL))
    k.e("v_bfe_u32 v%d, v%d, 2, 2" % (vT1, vL))
    k.e("v_lshl_add_u32 v%d, v%d, 3, v%d" % (vT0, vT0, vT1))
    k.e("v_mul_u32_u24 v%d, 224, v%d" % (vT0, vT0))
    k.e("v_add_u32 v%d, v%d, v%d" % (vTr, vTr, vT0))
    k.e("v_and_b32 v%d, 1, v%d" % (vT0, vL))
    k.e("v_lshl_add_u32 v%d, v%d, 4, v%d" % (vTr, vT0, vTr))
    k.e("v_bfe_u32 v%d, v%d, 1, 1" % (vT0, vL))
    k.e("v_lshl_add_u32 v%d, v%d, 3, v%d" % (vTr, vT0, vTr))
    k.e("v_add_u32 v%d, %d, v%d" % (vTr, K3_B0, vTr))
    k.e("v_add_u32 v%d, %d, v%d" % (vTr + 1, 2 * K3_SLOT, vTr))
    for i in range(2):
        k.e("v_mov_b32 v%d, 0xbdd2d3e8" % (vCa + i))
        k.e("v_mov_b32 v%d, 0xc0135761" % (vCa + 2 + i))
        k.e("v_mov_b32 v%d, 1.0" % (vCa + 4 + i))
    k.e("s_waitcnt lgkmcnt(0)")
    srd(k, S_C, 4, 2048 * 3584, WS_HH)
    srd(k, S_ST, 4, 2048 * 64, WS_HST)
    for i in range(4):
        k.vmem("buffer_load_dwordx4 %s, v%d, %s, 0 offen offset:%d" % (vr(vW + 4 * i, 4), vT2, sr(S_ST, 4), 16 * i), "st")
    k.wait_vm("st")
    k.e("v_add_f32 v%d, v%d, v%d" % (vT0, vW, vW + 2))
    k.e("v_add_f32 v%d, v%d, v%d" % (vT1, vW + 1, vW + 3))
    for i in range(2, 8):
        k.e("v_add_f32 v%d, v%d, v%d" % (vT0, vT0, vW + 2 * i))
        k.e("v_add_f32 v%d, v%d, v%d" % (vT1, vT1, vW + 2 * i + 1))
    k.e("v_mul_f32 v%d, 0x3b000000, v%d" % (vT0, vT0))
    k.e("v_mul_f32 v%d, 0x3b000000, v%d" % (vT1, vT1))
    k.e("v_fma_f32 v%d, -v%d, v%d, v%d" % (vT1, vT0, vT0, vT1))
    k.e("v_max_f32 v%d, 0, v%d" % (vT1, vT1))
    k.e("v_add_f32 v%d, 0x3727c5ac, v%d" % (vT1, vT1))
    k.e("v_rsq_f32 v%d, v%d" % (vRstd, vT1))
    k.e("s_nop 0")
    k.e("v_mul_f32 v%d, v%d, v%d" % (vNmr, vT0, vRstd))
    k.e("v_sub_f32 v%d, 0, v%d" % (vNmr, vNmr))

    k.e("v_mov_b32 v%d, v%d" % (vRp, vRstd))
    k.e("v_mov_b32 v%d, v%d" % (vRp + 1, vRstd))
    k.e("v_mov_b32 v%d, v%d" % (vRp + 2, vNmr))
    k.e("v_mov_b32 v%d, v%d" % (vRp + 3, vNmr))

    def norm_ops(j):
        src = vAr + (j & 1) * 4
        dst = vN + (j & 1) * 4
        ops = []
        for i in range(4):
            a = vT0 if i & 1 == 0 else vT2
            ops.append("v_lshlrev_b32 v%d, 16, v%d" % (a, src + i))
            ops.append("v_and_b32 v%d, 0xffff0000, v%d" % (a + 1, src + i))
            if PKN:
                ops.append("v_pk_fma_f32 %s, %s, %s, %s" % (vr(a, 2), vr(a, 2), vr(vRp, 2), vr(vRp + 2, 2)))
            else:
                ops.append("v_fma_f32 v%d, v%d, v%d, v%d" % (a, a, vRstd, vNmr))
                ops.append("v_fma_f32 v%d, v%d, v%d, v%d" % (a + 1, a + 1, vRstd, vNmr))
            ops.append("v_cvt_pk_bf16_f32 v%d, v%d, v%d" % (dst + i, a, a + 1))
        return ops

    vXn = 20
    sBs, sAs, sIt = 40, 41, 42

    def tr_rd(j, t):
        u = j % 4
        base = vTr + (1 if j >= 4 else 0)
        buf = vW + (j & 1) * 28
        k.lds("ds_read_b64_tr_b16 %s, v%d offset:%d" % (vr(buf + 4 * t, 2), base, u * 3584 + 32 * t), ("w", j % 4, t))
        k.lds("ds_read_b64_tr_b16 %s, v%d offset:%d" % (vr(buf + 4 * t + 2, 2), base, u * 3584 + 32 * t + 896), ("w", j % 4, t))

    def a_rd(j):
        u = j % 4
        base = (vXn + u) if j >= 4 else (vXa + u)
        k.lds("ds_read_b128 %s, v%d" % (vr(vAr + (j & 1) * 4, 4), base), ("a", j % 4))

    k.e("v_add_u32 v%d, %d, v%d" % (vTr + 1, K3_SLOT, vTr))
    k.e("v_add_u32 v%d, %d, v%d" % (vXn, K3_A, vXa))
    k.e("v_add_u32 v%d, %d, v%d" % (vXn + 1, K3_A, vXa + 1))
    k.e("s_mov_b32 s%d, 1" % sBs)
    k.e("s_mov_b32 s%d, 1" % sAs)
    k.e("s_mov_b32 s%d, 0" % sIt)
    for i in range(112):
        k.e("v_mov_b32 v%d, 0" % (vAcc + i))
    k.stamp(2)
    k.e("s_barrier")
    k.stamp(3)
    a_rd(0)
    k.wait_lds(("a", 0))
    for t in range(7):
        tr_rd(0, t)
        if t == 3:
            a_rd(1)
    for op in norm_ops(0):
        k.e(op)
    k.e("s_nop 0")
    k.lab("%s_loop" % name)
    body_start = len(k.lines)
    lq0 = list(k.lq)
    for j in range(4):
        u = j
        buf = vW + (j & 1) * 28
        boundary = (u == 3)
        nrm = norm_ops(j + 1)
        ni = 0
        pend = list(range(7))
        for t in range(7):
            a = vAcc + 16 * t
            if t % 2 == 0:
                if not k.wait_lds(("w", j, min(t + 1, 6))) and t == 0:
                    k.e("s_nop 0")
            k.e("v_mfma_f32_32x32x16_bf16 %s, %s, %s, %s" % (vr(a, 16), vr(buf + 4 * t, 4), vr(vN + (j & 1) * 4, 4), vr(a, 16)))
            if t == 0:
                k.wait_lds(("a", (j + 1) % 4))
            if boundary and t < 2:
                pass
            else:
                if boundary and t == 2:
                    k.wait_lds_all()
                    k.e("s_barrier")
                nrd = 1 if not boundary else 2
                for _ in range(nrd):
                    if pend:
                        tr_rd(j + 1, pend.pop(0))
            if t == 3:
                a_rd(j + 2)
            for _ in range(V_NRM[t]):
                if ni < len(nrm):
                    k.e(nrm[ni]); ni += 1
        assert not pend and ni == len(nrm), (pend, ni)
        if j < 3:
            k.e("s_nop 0")
    k.e("v_mov_b32 v%d, v%d" % (vTr, vTr + 1))
    k.e("s_add_u32 s%d, s%d, 1" % (sBs, sBs))
    k.e("s_cmp_eq_u32 s%d, %d" % (sBs, K3_NS))
    k.e("s_cselect_b32 s%d, 0, s%d" % (sBs, sBs))
    k.e("s_cselect_b32 s3, %d, %d" % (-(K3_NS - 1) * K3_SLOT & 0xffffffff, K3_SLOT) if False else "s_mov_b32 s3, %d" % K3_SLOT)
    k.e("s_cmov_b32 s3, 0x%x" % ((-(K3_NS - 1) * K3_SLOT) & 0xffffffff))
    k.e("v_add_u32 v%d, s3, v%d" % (vTr + 1, vTr + 1))
    k.e("v_mov_b32 v%d, v%d" % (vXa, vXn))
    k.e("v_mov_b32 v%d, v%d" % (vXa + 1, vXn + 1))
    k.e("v_xor_b32 v%d, 64, v%d" % (vXa + 2, vXn))
    k.e("v_xor_b32 v%d, 96, v%d" % (vXa + 3, vXn))
    k.e("v_add_u32 v%d, %d, v%d" % (vXn, K3_A, vXn))
    k.e("v_and_b32 v%d, 0x%x, v%d" % (vXn, K3_NA * K3_A - 1, vXn))
    k.e("v_xor_b32 v%d, 32, v%d" % (vXn + 1, vXn))
    k.e("s_add_u32 s%d, s%d, 1" % (sIt, sIt))
    k.e("s_cmp_lt_u32 s%d, 8" % sIt)
    k.e("s_cbranch_scc1 %s_loop" % name)
    assert k.lq == lq0[len(lq0) - len(k.lq):] or DIAG, (k.lq, lq0)
    k.wait_lds_all()
    k.stamp(11)
    k.e("s_nop 7")
    k.e("s_nop 7")
    tmp = vW
    for t in range(7):
        a = vAcc + 16 * t
        o = tmp + 8 * (t & 1) + 32
        for half in range(2):
            prs = [(a + 4 * half + 2 * i, a + 8 + 4 * half + 2 * i, tmp + 8 * i, tmp + 8 * i + 2) for i in range(2)]
            for g, u_, x0, x1 in prs:
                k.e("v_pk_mul_f32 %s, %s, %s" % (vr(x0, 2), vr(g, 2), vr(g, 2)))
            for g, u_, x0, x1 in prs:
                k.e("v_pk_fma_f32 %s, %s, %s, %s" % (vr(x1, 2), vr(x0, 2), vr(vCa, 2), vr(vCa + 2, 2)))
            for g, u_, x0, x1 in prs:
                k.e("v_pk_mul_f32 %s, %s, %s" % (vr(x1, 2), vr(x1, 2), vr(g, 2)))
            for g, u_, x0, x1 in prs:
                k.e("v_exp_f32 v%d, v%d" % (x1, x1))
                k.e("v_exp_f32 v%d, v%d" % (x1 + 1, x1 + 1))
            for g, u_, x0, x1 in prs:
                k.e("v_pk_mul_f32 %s, %s, %s" % (vr(x0, 2), vr(g, 2), vr(u_, 2)))
            for g, u_, x0, x1 in prs:
                k.e("v_pk_add_f32 %s, %s, %s" % (vr(x1, 2), vr(x1, 2), vr(vCa + 4, 2)))
            for g, u_, x0, x1 in prs:
                k.e("v_rcp_f32 v%d, v%d" % (x1, x1))
                k.e("v_rcp_f32 v%d, v%d" % (x1 + 1, x1 + 1))
            k.e("s_nop 0")
            for g, u_, x0, x1 in prs:
                k.e("v_pk_mul_f32 %s, %s, %s" % (vr(x0, 2), vr(x0, 2), vr(x1, 2)))
            for i, (g, u_, x0, x1) in enumerate(prs):
                k.e("v_cvt_pk_bf16_f32 v%d, v%d, v%d" % (o + 2 * half + i, x0, x0 + 1))
        k.vmem("buffer_store_dwordx4 %s, v%d, %s, 0 offen offset:%d" % (vr(o, 4), vO, sr(S_C, 4), 32 * t), "st")
    k.stamp(12)
    if DIAG:
        k.e("s_waitcnt vmcnt(0)")
    k.stamp(13)
    k.stamp_rt(14)
    k.dump(2, sW, 15)
    k.e("s_endpgm")

    k.lab("%s_loader" % name)
    k.vm = []
    k.lq = []
    vOff = 4
    vAo = 12
    sKA = 40
    k.e("s_and_b32 s%d, s%d, 1" % (sT, sW))
    k.e("s_mul_i32 s3, s%d, 448" % sT)
    k.e("s_mul_i32 s%d, s%d, 224" % (sOff, sFB))
    for p in range(7):
        k.e("v_add_u32 v2, s3, v1")
        if p:
            k.e("v_add_u32 v2, %d, v2" % (64 * p))
        k.e("v_mul_u32_u24 v3, 4682, v2")
        k.e("v_lshrrev_b32 v3, 16, v3")
        k.e("v_mul_u32_u24 v11, 14, v3")
        k.e("v_sub_u32 v2, v2, v11")
        k.e("v_mul_u32_u24 v3, 3584, v3")
        k.e("v_lshl_add_u32 v3, v2, 4, v3")
        k.e("v_add_u32 v%d, s%d, v3" % (vOff + p, sOff))
    k.e("s_sub_u32 s3, s%d, 4" % sW)
    k.e("s_lshl_b32 s%d, s3, 12" % sMA)
    k.e("s_lshl_b32 s3, s3, 5")
    k.e("s_lshl_b32 s%d, s%d, 7" % (sOff, sRB))
    k.e("s_add_u32 s3, s3, s%d" % sOff)
    k.e("v_lshrrev_b32 v2, 3, v1")
    k.e("v_add_u32 v2, s3, v2")
    k.e("v_lshlrev_b32 v2, 10, v2")
    k.e("v_and_b32 v3, 7, v1")
    k.e("v_lshrrev_b32 v11, 4, v1")
    k.e("v_xor_b32 v3, v3, v11")
    k.e("v_lshl_add_u32 v%d, v3, 4, v2" % vAo)
    k.e("v_xor_b32 v3, 4, v3")
    k.e("v_lshl_add_u32 v%d, v3, 4, v2" % (vAo + 1))
    k.e("s_mov_b32 s%d, s%d" % (sKA, sK))
    k.e("s_waitcnt lgkmcnt(0)")
    k.e("s_cmp_ge_u32 s%d, 6" % sW)
    k.e("s_cselect_b32 s6, s46, s44")
    k.e("s_cselect_b32 s7, s47, s45")
    k.e("s_cselect_b32 s%d, %d, 0" % (sM, K3_UP))
    k.e("s_add_u32 s%d, s%d, %d" % (sM, sM, K3_B0))
    srd(k, S_B, 6, 512 * 3584)
    srd(k, S_A, 4, 2 << 20, WS_H)
    k.e("s_mul_i32 s3, s%d, 7168" % sT)
    k.e("s_add_u32 s%d, s%d, s3" % (sM, sM))

    def lda(st, tag):
        k.e("s_lshl_b32 s%d, s%d, 7" % (sKa, sKA))
        k.e("s_add_u32 s%d, s%d, 1" % (sKA, sKA))
        k.e("s_and_b32 s%d, s%d, 7" % (sKA, sKA))
        for p in range(4):
            k.e("s_add_u32 m0, s%d, %d" % (sMA, (st % K3_NA) * K3_A + p * 1024))
            k.e("s_add_u32 s%d, s%d, %d" % (sOffA, sKa, p * 8192))
            k.vmem("buffer_load_dwordx4 v%d, %s, s%d offen lds" % (vAo + (p & 1), sr(S_A, 4), sOffA), tag)

    def ld(st):
        slot = st % K3_NS
        k.e("s_mul_i32 s%d, s%d, %d" % (sOff, sK, 64 * 3584))
        k.e("s_add_u32 s%d, s%d, 1" % (sK, sK))
        k.e("s_and_b32 s%d, s%d, 7" % (sK, sK))
        for p in range(7):
            k.e("s_add_u32 m0, s%d, %d" % (sM, slot * K3_SLOT + p * 1024))
            k.e("s_nop 0")
            k.vmem("buffer_load_dwordx4 v%d, %s, s%d offen lds" % (vOff + p, sr(S_B, 4), sOff), ("s", st))
        if st + 1 < 8:
            lda(st + 1, ("s", st))

    k.stamp(2)
    lda(0, ("s", 0))
    ld(0)
    k.stamp(3)
    for i in range(8):
        if i == 0:
            ld(1)
        k.wait_vm(("s", i))
        k.stamp(4 + i)
        k.e("s_barrier")
        if i + 2 < 8:
            ld(i + 2)
        if i == 6 and PREF and MAP48:
            srd(k, S_C, 48, 1792 * 1024)
            k.e("s_lshr_b32 s3, s2, 3")
            k.e("s_mul_i32 s3, s3, 56")
            k.e("s_sub_u32 s%d, s%d, 4" % (sOff, sW))
            k.e("s_mul_i32 s%d, s%d, 14" % (sOff, sOff))
            k.e("s_add_u32 s3, s3, s%d" % sOff)
            k.e("s_lshl_b32 s3, s3, 10")
            k.e("v_lshlrev_b32 v2, 7, v1")
            k.vmem("buffer_load_dword v3, v2, %s, s3 offen" % sr(S_C, 4), "pf")
            k.e("s_add_u32 s3, s3, 8192")
            k.e("v_cmp_gt_u32 vcc, 48, v1")
            k.e("s_and_saveexec_b64 s[40:41], vcc")
            k.vmem("buffer_load_dword v3, v2, %s, s3 offen" % sr(S_C, 4), "pf")
            k.e("s_mov_b64 exec, s[40:41]")
    k.e("s_barrier")
    k.stamp(12)
    k.e("s_waitcnt vmcnt(0)")
    k.stamp(13)
    k.stamp_rt(14)
    k.dump(2, sW, 15)
    k.lab("%s_end" % name)
    k.e("s_endpgm")
    return k.text(), nv, K3_B0 + K3_NS * K3_SLOT


import struct


def f32bits(x):
    return struct.unpack("<I", struct.pack("<f", x))[0]


def main():
    from gen_k1 import gen_k1
    parts = []
    descs = []
    launches = []
    t, nv, lds = gen_k1("k1_kernel")
    parts.append(t); descs.append(descriptor("k1_kernel", nv)); launches.append(("k1_kernel", 512, lds))
    t, nv, lds = gen_t2("k2_kernel", 512, 1024, ('ws', WS_O), KA_WO, ('ka', KA_X), ('ws', WS_H), True, 1)
    parts.append(t); descs.append(descriptor("k2_kernel", nv)); launches.append(("k2_kernel", 256, lds))
    t, nv, lds = gen_k3("k3_kernel")
    c0 = -2.0 * 1.4426950408889634 * 0.7978845608028654
    t = t.replace("0xc0135761", "0x%08x" % f32bits(c0)).replace("0xbdd2d3e8", "0x%08x" % f32bits(c0 * 0.044715))
    parts.append(t); descs.append(descriptor("k3_kernel", nv)); launches.append(("k3_kernel", 512, lds))
    t, nv, lds = gen_t2("k4_kernel", 1792, 3584, ('ws', WS_HH), KA_WD, ('ws', WS_H), ('ka', KA_OUT), False, 3)
    parts.append(t); descs.append(descriptor("k4_kernel", nv)); launches.append(("k4_kernel", 256, lds))
    out = []
    for n, b, lds in launches:
        out.append("; @launch kernel=%s grid=(256,1,1) block=(%d,1,1) lds=%d" % (n, b, lds))
    out.append('.amdgcn_target "amdgcn-amd-amdhsa--gfx950"')
    out.append(".text")
    out += parts
    out.append("code_end:")
    out.append('.section .rodata,"a"')
    out += descs
    path = sys.argv[1] if len(sys.argv) > 1 else "cdna_kernels/%s.s" % NAME
    open(path, "w").write("\n".join(out))
    print("wrote", path)


if __name__ == "__main__":
    main()
```

```python
from gen import K, vr, sr, srd, header, KA_X, KA_WQKV, KA_WS, WS_O, f32bits, ROT, KA_WO, KA_WG, KA_WD, PREF, DIAG, EARLY1

A_BYTES = 80 * 128
W_SUB = 64 * 128
SLOT = A_BYTES + 3 * W_SUB
NS = 4
ST_BASE = NS * SLOT
LDS = ST_BASE + 6 * 320
NEG = -1.0e30


def gen_k1(name):
    k = K()
    header(k, name)
    S_A, S_B, S_C = 8, 12, 16
    sW, sRB, sHG, sT = 28, 29, 30, 31
    sOff, sM = 34, 35
    sScale = 36
    sK = 40
    sKb = 41
    k.e("s_cmp_ge_u32 s2, 256")
    k.e("s_cbranch_scc1 %s_end" % name)
    if PREF:
        k.e("s_getpc_b64 s[24:25]")
        k.lab("%s_pc" % name)
        k.e("s_sub_u32 s24, s24, %s_pc-%s" % (name, name))
        k.e("s_subb_u32 s25, s25, 0")
        k.e("s_mov_b32 s26, code_end-%s" % name)
        k.e("s_mov_b32 s27, 0x00020000")
        k.e("v_lshlrev_b32 v3, 7, v0")
        k.e("buffer_load_dword v255, v3, s[24:27], 0 offen")
    k.stamp_rt(0)
    k.stamp(1)
    k.e("s_load_dwordx4 s[44:47], s[0:1], %d" % KA_X)
    k.e("s_load_dwordx2 s[4:5], s[0:1], %d" % KA_WS)
    k.e("s_load_dwordx2 s[6:7], s[0:1], %d" % KA_WO)
    k.e("s_load_dwordx4 s[20:23], s[0:1], %d" % KA_WG)
    k.e("v_lshrrev_b32 v2, 6, v0")
    k.e("v_and_b32 v1, 63, v0")
    k.e("v_readfirstlane_b32 s%d, v2" % sW)
    k.e("s_and_b32 s3, s2, 7")
    k.e("s_lshr_b32 s%d, s2, 3" % sT)
    k.e("s_lshr_b32 s%d, s3, 1" % sRB)
    k.e("s_lshl_b32 s%d, s%d, 3" % (sRB, sRB))
    k.e("s_lshr_b32 s%d, s%d, 2" % (sHG, sT))
    k.e("s_add_u32 s%d, s%d, s%d" % (sRB, sRB, sHG))
    k.e("s_and_b32 s%d, s3, 1" % sHG)
    k.e("s_lshl_b32 s%d, s%d, 2" % (sHG, sHG))
    k.e("s_and_b32 s%d, s%d, 3" % (sT, sT))
    k.e("s_add_u32 s%d, s%d, s%d" % (sHG, sHG, sT))
    k.e("s_lshr_b32 s3, s2, 5")
    k.e("s_lshl_b32 s%d, s%d, 1" % (sK, sT))
    k.e("s_add_u32 s%d, s%d, s3" % (sK, sK))
    k.e("s_and_b32 s%d, s%d, 7" % (sK, sK))
    if not ROT:
        k.e("s_mov_b32 s%d, 0" % sK)
    k.e("s_waitcnt lgkmcnt(0)")
    k.e("s_cmp_ge_u32 s%d, 4" % sW)
    k.e("s_cbranch_scc1 %s_loader" % name)

    vL = 1
    vXa = 2
    vWa = 6
    vOnes = 8
    vT0, vT1, vT2, vT3 = 12, 13, 14, 15
    vX = 16
    vWf = 56
    vQ = 80
    vKk = 96
    vV = 116
    vCq, vCk, vCv = 136, 140, 144
    vE = 148
    nv = 256
    srd(k, S_C, 4, 2 << 20, WS_O)
    k.e("v_and_b32 v%d, 15, v%d" % (vT0, vL))
    k.e("v_lshrrev_b32 v%d, 4, v%d" % (vT1, vL))
    k.e("v_lshrrev_b32 v%d, 1, v%d" % (vT2, vT0))
    k.e("v_xor_b32 v%d, v%d, v%d" % (vT2, vT2, vT1))
    k.e("v_lshlrev_b32 v%d, 7, v%d" % (vT3, vT0))
    k.e("v_lshl_add_u32 v%d, v%d, 4, v%d" % (vXa, vT2, vT3))
    k.e("v_xor_b32 v%d, 4, v%d" % (vT2, vT2))
    k.e("v_lshl_add_u32 v%d, v%d, 4, v%d" % (vXa + 1, vT2, vT3))
    k.e("v_add_u32 v%d, %d, v%d" % (vXa + 2, 2 * SLOT, vXa))
    k.e("v_add_u32 v%d, %d, v%d" % (vXa + 3, 2 * SLOT, vXa + 1))
    k.e("v_bfe_u32 v%d, v%d, 2, 2" % (vT2, vL))
    k.e("v_lshl_add_u32 v%d, v%d, 3, v%d" % (vT2, vT1, vT2))
    k.e("v_lshlrev_b32 v%d, 7, v%d" % (vT2, vT2))
    k.e("v_and_b32 v%d, 3, v%d" % (vT3, vL))
    k.e("v_lshl_add_u32 v%d, v%d, 3, v%d" % (vT2, vT3, vT2))
    k.e("v_bfe_u32 v%d, v%d, 3, 1" % (vT3, vL))
    k.e("v_bfe_u32 v%d, v%d, 4, 1" % (vT0, vL))
    k.e("v_lshl_or_b32 v%d, v%d, 1, v%d" % (vT0, vT0, vT3))
    k.e("v_xor_b32 v%d, s%d, v%d" % (vT0, sW, vT0))
    k.e("v_lshl_add_u32 v%d, v%d, 5, v%d" % (vWa, vT0, vT2))
    k.e("v_add_u32 v%d, %d, v%d" % (vWa, A_BYTES, vWa))
    k.e("v_add_u32 v%d, %d, v%d" % (vWa + 1, 2 * SLOT, vWa))
    for i in range(4):
        k.e("v_mov_b32 v%d, 0x3f803f80" % (vOnes + i))

    sSl, sIt = 42, 43

    def rd(j, what):
        kk = j % 2
        xb = vX + (j & 1) * 20
        wb = vWf + (j & 1) * 12
        if what[0] == 'w':
            s_ = what[1]
            base = vWa + (1 if j >= 2 else 0)
            k.lds("ds_read_b64_tr_b16 %s, v%d offset:%d" % (vr(wb + 4 * s_, 2), base, s_ * W_SUB + kk * 4096), (kk, what))
            k.lds("ds_read_b64_tr_b16 %s, v%d offset:%d" % (vr(wb + 4 * s_ + 2, 2), base, s_ * W_SUB + kk * 4096 + 512), (kk, what))
        else:
            t = what[1]
            base = vXa + 2 if j >= 2 else vXa + kk
            k.lds("ds_read_b128 %s, v%d offset:%d" % (vr(xb + 4 * t, 4), base, 2048 * t), (kk, what))

    RD_ORDER = [('w', 1), ('x', 0), ('w', 2), ('x', 1), ('w', 0), ('x', 2), ('x', 3), ('x', 4)]
    k.e("v_add_u32 v%d, %d, v%d" % (vXa + 2, SLOT, vXa))
    k.e("v_add_u32 v%d, %d, v%d" % (vWa + 1, SLOT, vWa))
    k.e("s_mov_b32 s%d, 1" % sSl)
    k.e("s_mov_b32 s%d, 0" % sIt)
    for i in range(vQ, vCv + 4):
        k.e("v_mov_b32 v%d, 0" % i)
    k.stamp(2)
    k.e("s_barrier")
    k.stamp(3)
    for w_ in RD_ORDER:
        rd(0, w_)
    k.lab("%s_loop" % name)
    lq0 = list(k.lq)
    for j in range(2):
        xb = vX + (j & 1) * 20
        wb = vWf + (j & 1) * 12
        boundary = (j == 1)
        pend = list(RD_ORDER)
        mf = []
        for t in range(5):
            mf.append((vKk + 4 * t, wb + 4, xb + 4 * t, [('w', 1), ('x', t)]))
            mf.append((vV + 4 * t, xb + 4 * t, wb + 8, [('w', 2), ('x', t)]))
            if t >= 1:
                mf.append((vQ + 4 * (t - 1), wb, xb + 4 * t, [('w', 0), ('x', t)]))
        mf.append((vCq, wb, vOnes, []))
        mf.append((vCk, wb + 4, vOnes, []))
        mf.append((vCv, vOnes, wb + 8, []))
        for n, (d, a_, b_, deps) in enumerate(mf):
            for dp in deps:
                k.wait_lds((j, dp))
            k.e("v_mfma_f32_16x16x32_bf16 %s, %s, %s, %s" % (vr(d, 4), vr(a_, 4), vr(b_, 4), vr(d, 4)))
            if boundary and n < 5:
                continue
            if boundary and n == 5:
                k.wait_lds_all()
                k.e("s_barrier")
            if pend and (boundary or n % 2 == 0 or n >= 8):
                rd(j + 1, pend.pop(0))
        assert not pend
    k.e("v_mov_b32 v%d, v%d" % (vXa, vXa + 2))
    k.e("v_xor_b32 v%d, 64, v%d" % (vXa + 1, vXa + 2))
    k.e("v_mov_b32 v%d, v%d" % (vWa, vWa + 1))
    k.e("s_add_u32 s%d, s%d, 1" % (sSl, sSl))
    k.e("s_cmp_eq_u32 s%d, %d" % (sSl, NS))
    k.e("s_cselect_b32 s%d, 0, s%d" % (sSl, sSl))
    k.e("s_mov_b32 s3, %d" % SLOT)
    k.e("s_cmov_b32 s3, 0x%x" % ((-(NS - 1) * SLOT) & 0xffffffff))
    k.e("v_add_u32 v%d, s3, v%d" % (vXa + 2, vXa + 2))
    k.e("v_add_u32 v%d, s3, v%d" % (vWa + 1, vWa + 1))
    k.e("s_add_u32 s%d, s%d, 1" % (sIt, sIt))
    k.e("s_cmp_lt_u32 s%d, 8" % sIt)
    k.e("s_cbranch_scc1 %s_loop" % name)
    assert k.lq == lq0[len(lq0) - len(k.lq):] or DIAG, (k.lq, lq0)
    k.wait_lds_all()
    k.stamp(11)
    k.e("s_barrier")
    k.stamp(12)
    vSr = vE
    vSn = vE + 5
    vVr = vE + 12
    vVn = vE + 32
    k.e("v_and_b32 v%d, 15, v%d" % (vT0, vL))
    k.e("v_lshlrev_b32 v%d, 2, v%d" % (vT2, vT0))
    k.e("v_lshrrev_b32 v%d, 4, v%d" % (vT1, vL))
    k.e("v_lshlrev_b32 v%d, 4, v%d" % (vT3, vT1))
    k.e("v_add_u32 v%d, %d, v%d" % (vT2, ST_BASE, vT2))
    k.e("v_add_u32 v%d, %d, v%d" % (vT3, ST_BASE, vT3))
    for t in range(5):
        k.e("ds_read_b32 v%d, v%d offset:%d" % (vSr + t, vT2, 640 + 64 * t))
        k.e("ds_read_b32 v%d, v%d offset:%d" % (vSn + t, vT2, 960 + 64 * t))
        k.e("ds_read_b128 %s, v%d offset:%d" % (vr(vVr + 4 * t, 4), vT3, 640 + 64 * t))
        k.e("ds_read_b128 %s, v%d offset:%d" % (vr(vVn + 4 * t, 4), vT3, 960 + 64 * t))
    vBc = vE + 52
    vBp = vE + 56
    vBp1 = vE + 60
    vNeg = vE + 64
    k.e("v_mov_b32 v%d, 0x%08x" % (vNeg, f32bits(NEG)))
    k.e("v_lshlrev_b32 v%d, 2, v%d" % (vT2, vT1))
    k.e("v_sub_u32 v%d, v%d, v%d" % (vT2, vT0, vT2))
    vSgn = vE + 65
    k.e("v_mov_b32 v%d, 0x80000000" % vSgn)
    for r in range(4):
        k.e("v_subrev_u32 v%d, %d, v%d" % (vT3, r, vT2))
        k.e("v_and_b32 v%d, 0x80000001, v%d" % (vT3, vT3))
        k.e("v_cmp_eq_u32 vcc, 0, v%d" % vT3)
        k.e("v_cmp_eq_u32 s[38:39], v%d, v%d" % (vSgn, vT3))
        k.e("s_nop 1")
        k.e("v_cndmask_b32_e64 v%d, v%d, 0, vcc" % (vBc + r, vNeg))
        k.e("v_cndmask_b32_e64 v%d, v%d, 0, s[38:39]" % (vBp + r, vNeg))
    k.e("s_cmp_eq_u32 s%d, 0" % sRB)
    k.e("s_cselect_b64 s[38:39], -1, 0")
    for r in range(4):
        k.e("v_cndmask_b32_e64 v%d, v%d, v%d, s[38:39]" % (vBp1 + r, vBp + r, vNeg))
    k.e("s_mov_b32 s%d, 0x%08x" % (sScale, f32bits(0.25 * 1.4426950408889634)))
    k.e("s_waitcnt lgkmcnt(0)")
    vQb = vX
    vKb = vX + 8
    vVb = vX + 18
    for t in range(5):
        for (acc, cs, dst, on) in ((vQ + 4 * (t - 1), vCq, vQb + 2 * (t - 1), t >= 1), (vKk + 4 * t, vCk, vKb + 2 * t, True)):
            if not on:
                continue
            for r in range(4):
                k.e("v_mul_f32 v%d, v%d, v%d" % (vT0 + r, vSn + t, cs + r))
            for r in range(4):
                k.e("v_fma_f32 v%d, v%d, v%d, v%d" % (vT0 + r, vSr + t, acc + r, vT0 + r))
            k.e("v_cvt_pk_bf16_f32 v%d, v%d, v%d" % (dst, vT0, vT1))
            k.e("v_cvt_pk_bf16_f32 v%d, v%d, v%d" % (dst + 1, vT2, vT3))
        for r in range(4):
            k.e("v_mul_f32 v%d, v%d, v%d" % (vT0 + r, vVn + 4 * t + r, vCv))
        for r in range(4):
            k.e("v_fma_f32 v%d, v%d, v%d, v%d" % (vT0 + r, vVr + 4 * t + r, vV + 4 * t + r, vT0 + r))
        k.e("v_cvt_pk_bf16_f32 v%d, v%d, v%d" % (vVb + 2 * t, vT0, vT1))
        k.e("v_cvt_pk_bf16_f32 v%d, v%d, v%d" % (vVb + 2 * t + 1, vT2, vT3))
    k.e("s_nop 1")
    vS = vQ
    for t in range(4):
        k.e("v_mfma_f32_16x16x16_bf16 %s, %s, %s, 0" % (vr(vS + 8 * t, 4), vr(vKb + 2 * t, 2), vr(vQb + 2 * t, 2)))
        k.e("v_mfma_f32_16x16x16_bf16 %s, %s, %s, 0" % (vr(vS + 8 * t + 4, 4), vr(vKb + 2 * (t + 1), 2), vr(vQb + 2 * t, 2)))
    k.e("s_nop 7")
    k.e("s_nop 1")
    vMx = vE
    vMy = vE + 4
    vSum = vE + 8
    for t in range(4):
        for r in range(4):
            k.e("v_fma_f32 v%d, v%d, s%d, v%d" % (vS + 8 * t + r, vS + 8 * t + r, sScale, (vBp1 if t == 0 else vBp) + r))
            k.e("v_fma_f32 v%d, v%d, s%d, v%d" % (vS + 8 * t + 4 + r, vS + 8 * t + 4 + r, sScale, vBc + r))
        b = vS + 8 * t
        k.e("v_max3_f32 v%d, v%d, v%d, v%d" % (vMx + t, b, b + 1, b + 2))
        k.e("v_max3_f32 v%d, v%d, v%d, v%d" % (vMx + t, vMx + t, b + 3, b + 4))
        k.e("v_max3_f32 v%d, v%d, v%d, v%d" % (vMx + t, vMx + t, b + 5, b + 6))
        k.e("v_max_f32 v%d, v%d, v%d" % (vMx + t, vMx + t, b + 7))
    for op in ("v_permlane32_swap_b32", "v_permlane16_swap_b32"):
        for t in range(4):
            k.e("v_mov_b32 v%d, v%d" % (vMy + t, vMx + t))
        k.e("s_nop 1")
        for t in range(4):
            k.e("%s v%d, v%d" % (op, vMx + t, vMy + t))
        for t in range(4):
            k.e("v_max_f32 v%d, v%d, v%d" % (vMx + t, vMx + t, vMy + t))
    for t in range(4):
        b = vS + 8 * t
        for i in range(8):
            k.e("v_sub_f32 v%d, v%d, v%d" % (b + i, b + i, vMx + t))
        for i in range(8):
            k.e("v_exp_f32 v%d, v%d" % (b + i, b + i))
        k.e("s_nop 0")
        k.e("v_add_f32 v%d, v%d, v%d" % (vSum + t, b, b + 1))
        for i in range(2, 8):
            k.e("v_add_f32 v%d, v%d, v%d" % (vSum + t, vSum + t, b + i))
    vP = vE + 12
    for t in range(4):
        b = vS + 8 * t
        for i in range(4):
            k.e("v_cvt_pk_bf16_f32 v%d, v%d, v%d" % (vP + 4 * t + i, b + 2 * i, b + 2 * i + 1))
    for op in ("v_permlane32_swap_b32", "v_permlane16_swap_b32"):
        for t in range(4):
            k.e("v_mov_b32 v%d, v%d" % (vMy + t, vSum + t))
        k.e("s_nop 1")
        for t in range(4):
            k.e("%s v%d, v%d" % (op, vSum + t, vMy + t))
        for t in range(4):
            k.e("v_add_f32 v%d, v%d, v%d" % (vSum + t, vSum + t, vMy + t))
    vOa = vE + 28
    for t in range(4):
        k.e("v_mfma_f32_16x16x16_bf16 %s, %s, %s, 0" % (vr(vOa + 4 * t, 4), vr(vVb + 2 * t, 2), vr(vP + 4 * t, 2)))
    for t in range(4):
        k.e("v_mfma_f32_16x16x16_bf16 %s, %s, %s, %s" % (vr(vOa + 4 * t, 4), vr(vVb + 2 * (t + 1), 2), vr(vP + 4 * t + 2, 2), vr(vOa + 4 * t, 4)))
    for t in range(4):
        k.e("v_rcp_f32 v%d, v%d" % (vSum + t, vSum + t))
    k.e("v_and_b32 v%d, 15, v%d" % (vT0, vL))
    k.e("s_lshl_b32 s3, s%d, 6" % sRB)
    k.e("v_add_u32 v%d, s3, v%d" % (vT0, vT0))
    k.e("v_lshlrev_b32 v%d, 10, v%d" % (vT0, vT0))
    k.e("v_lshrrev_b32 v%d, 4, v%d" % (vT1, vL))
    k.e("v_lshl_add_u32 v%d, v%d, 3, v%d" % (vT0, vT1, vT0))
    k.e("s_lshl_b32 s3, s%d, 2" % sHG)
    k.e("s_add_u32 s3, s3, s%d" % sW)
    k.e("s_lshl_b32 s3, s3, 5")
    k.e("v_add_u32 v%d, s3, v%d" % (vT0, vT0))
    k.e("s_nop 3")
    for t in range(4):
        for r in range(4):
            k.e("v_mul_f32 v%d, v%d, v%d" % (vOa + 4 * t + r, vOa + 4 * t + r, vSum + t))
        k.e("v_cvt_pk_bf16_f32 v%d, v%d, v%d" % (vP + 2 * t, vOa + 4 * t, vOa + 4 * t + 1))
        k.e("v_cvt_pk_bf16_f32 v%d, v%d, v%d" % (vP + 2 * t + 1, vOa + 4 * t + 2, vOa + 4 * t + 3))
        k.e("s_mov_b32 s3, %d" % (t * 16384))
        k.vmem("buffer_store_dwordx2 %s, v%d, %s, s3 offen" % (vr(vP + 2 * t, 2), vT0, sr(S_C, 4)), "st")
    k.stamp(13)
    k.stamp_rt(14)
    k.dump(0, sW, 15)
    k.e("s_endpgm")

    k.lab("%s_loader" % name)
    vRa = 10
    vOne = 12
    vF = 16
    vG = 28
    vR = 40
    k.e("s_and_b32 s%d, s%d, 1" % (sT, sW))
    k.e("s_lshl_b32 s3, s%d, 2" % sT)
    k.e("v_and_b32 v2, 15, v1")
    k.e("v_lshrrev_b32 v3, 4, v1")
    k.e("v_lshrrev_b32 v9, 1, v2")
    k.e("v_xor_b32 v9, v9, v3")
    k.e("v_xor_b32 v9, s3, v9")
    k.e("v_lshlrev_b32 v2, 7, v2")
    k.e("v_lshl_add_u32 v%d, v9, 4, v2" % vRa)
    k.e("v_add_u32 v%d, %d, v%d" % (vRa + 1, 2 * SLOT, vRa))
    for i in range(4):
        k.e("v_mov_b32 v%d, 0x3f803f80" % (vOne + i))

    def stats_stage(i, tiles):
        slot = i % NS
        for n, t in enumerate(tiles):
            k.lds("ds_read_b128 %s, v%d offset:%d" % (vr(vF + 4 * n, 4), vRa + slot // 2, (slot % 2) * SLOT + 2048 * t), ("f", n))
        for n, t in enumerate(tiles):
            k.wait_lds(("f", n))
            k.e("v_mfma_f32_16x16x32_bf16 %s, %s, %s, %s" % (vr(vG + 4 * n, 4), vr(vF + 4 * n, 4), vr(vF + 4 * n, 4), "0" if i == 0 else vr(vG + 4 * n, 4)))
            k.e("v_mfma_f32_16x16x32_bf16 %s, %s, %s, %s" % (vr(vR + 4 * n, 4), vr(vF + 4 * n, 4), vr(vOne, 4), "0" if i == 0 else vr(vR + 4 * n, 4)))

    def stats_finish(tiles):
        k.e("v_and_b32 v2, 3, v1")
        k.e("v_cmp_eq_u32 s[48:49], 1, v2")
        k.e("v_cmp_eq_u32 s[50:51], 2, v2")
        k.e("v_cmp_eq_u32 s[52:53], 3, v2")
        k.e("v_bfe_u32 v2, v1, 2, 2")
        k.e("v_lshrrev_b32 v3, 4, v1")
        k.e("v_cmp_eq_u32 vcc, v2, v3")
        k.e("s_mul_i32 s3, s%d, 1280" % sT)
        k.e("s_add_u32 s3, s3, %d" % ST_BASE)
        k.e("v_and_b32 v2, 15, v1")
        k.e("v_lshlrev_b32 v2, 2, v2")
        k.e("v_add_u32 v2, s3, v2")
        k.e("s_nop 3")
        for n, t in enumerate(tiles):
            for base in (vG + 4 * n, vR + 4 * n):
                k.e("v_cndmask_b32_e64 v%d, v%d, v%d, s[48:49]" % (base, base, base + 1))
                k.e("v_cndmask_b32_e64 v%d, v%d, v%d, s[50:51]" % (base, base, base + 2))
                k.e("v_cndmask_b32_e64 v%d, v%d, v%d, s[52:53]" % (base, base, base + 3))
        k.e("s_and_saveexec_b64 s[38:39], vcc")
        for n, t in enumerate(tiles):
            k.e("ds_write_b32 v2, v%d offset:%d" % (vR + 4 * n, 64 * t))
            k.e("ds_write_b32 v2, v%d offset:%d" % (vG + 4 * n, 320 + 64 * t))
        k.e("s_mov_b64 exec, s[38:39]")
        k.e("s_waitcnt lgkmcnt(0)")
        k.e("s_barrier")

    k.e("s_cmp_ge_u32 s%d, 6" % sW)
    k.e("s_cbranch_scc1 %s_loadw" % name)
    k.e("s_cmp_eq_u32 s%d, 5" % sW)
    k.e("s_cbranch_scc1 %s_pref" % name)
    k.vm = []
    k.lq = []
    srd(k, S_A, 44, 2 << 20)
    vOff = 4
    vPo = 56
    k.e("s_lshl_b32 s3, s%d, 6" % sRB)
    k.e("s_sub_u32 s3, s3, 16")
    k.e("v_lshrrev_b32 v2, 3, v1")
    k.e("v_add_u32 v2, s3, v2")
    k.e("v_and_b32 v3, 7, v1")
    k.e("v_lshrrev_b32 v9, 4, v1")
    k.e("v_xor_b32 v3, v3, v9")
    for p in range(10):
        k.e("v_add_u32 v9, %d, v2" % (8 * p))
        k.e("v_max_i32 v9, 0, v9")
        k.e("v_lshlrev_b32 v9, 10, v9")
        if p & 1:
            k.e("v_xor_b32 v%d, 4, v3" % (vPo + p))
            k.e("v_lshl_add_u32 v%d, v%d, 4, v9" % (vPo + p, vPo + p))
        else:
            k.e("v_lshl_add_u32 v%d, v3, 4, v9" % (vPo + p))

    def lda(st):
        slot = st % NS
        k.e("s_lshl_b32 s%d, s%d, 7" % (sOff, sK))
        k.e("s_add_u32 s%d, s%d, 1" % (sK, sK))
        k.e("s_and_b32 s%d, s%d, 7" % (sK, sK))
        for p in range(10):
            k.e("s_mov_b32 m0, %d" % (slot * SLOT + p * 1024))
            k.e("s_nop 0")
            k.vmem("buffer_load_dwordx4 v%d, %s, s%d offen lds" % (vPo + p, sr(S_A, 4), sOff), ("s", st))

    k.stamp(2)
    lda(0)
    if not EARLY1:
        lda(1)
    k.stamp(3)
    for i in range(8):
        k.wait_vm(("s", i))
        k.stamp(4 + i)
        k.e("s_barrier")
        if i == 0 and EARLY1:
            lda(1)
        if i + 2 < 8:
            lda(i + 2)
        stats_stage(i, [0, 1, 2])
    stats_finish([0, 1, 2])
    k.e("s_branch %s_fin" % name)
    k.lab("%s_pref" % name)
    k.vm = []
    k.lq = []
    k.stamp(2)
    k.stamp(3)
    for i in range(8):
        k.stamp(4 + i)
        k.e("s_barrier")
        if i == 6 and PREF:
            srd(k, S_A, 6, 512 * 1024)
            k.e("v_lshrrev_b32 v4, 2, v1")
            k.e("v_lshlrev_b32 v4, 10, v4")
            k.e("v_and_b32 v3, 3, v1")
            k.e("v_lshl_add_u32 v4, v3, 7, v4")
            k.e("s_lshr_b32 s%d, s2, 3" % sOff)
            k.e("s_lshl_b32 s%d, s%d, 14" % (sOff, sOff))
            k.e("s_and_b32 s%d, s2, 1" % sM)
            k.e("s_lshl_b32 s%d, s%d, 9" % (sM, sM))
            k.e("s_add_u32 s%d, s%d, s%d" % (sOff, sOff, sM))
            k.vmem("buffer_load_dword v56, v4, %s, s%d offen" % (sr(S_A, 4), sOff), "pf")
            k.e("v_lshlrev_b32 v2, 7, v1")
            k.e("s_mul_i32 s3, s2, 7168")
            k.e("v_cmp_gt_u32 vcc, 56, v1")
            k.e("s_and_saveexec_b64 s[38:39], vcc")
            for ptr in (20, 22):
                srd(k, S_B, ptr, 512 * 3584)
                k.vmem("buffer_load_dword v57, v2, %s, s3 offen" % sr(S_B, 4), "pf")
            k.e("s_mov_b64 exec, s[38:39]")
        stats_stage(i, [0, 1, 2])
    stats_finish([0, 1, 2])
    k.lab("%s_fin" % name)
    k.e("s_mul_i32 s3, s%d, 160" % sT)
    k.e("s_add_u32 s3, s3, %d" % ST_BASE)
    k.e("v_lshlrev_b32 v2, 2, v1")
    k.e("v_add_u32 v2, s3, v2")
    k.e("v_cmp_gt_u32 vcc, 40, v1")
    k.e("s_and_saveexec_b64 s[38:39], vcc")
    k.e("ds_read_b32 v3, v2")
    k.e("ds_read_b32 v9, v2 offset:320")
    k.e("ds_read_b32 v4, v2 offset:1280")
    k.e("ds_read_b32 v5, v2 offset:1600")
    k.e("s_waitcnt lgkmcnt(0)")
    k.e("v_add_f32 v3, v3, v4")
    k.e("v_add_f32 v9, v9, v5")
    k.e("v_mul_f32 v3, 0x3b000000, v3")
    k.e("v_mul_f32 v9, 0x3b000000, v9")
    k.e("v_fma_f32 v9, -v3, v3, v9")
    k.e("v_max_f32 v9, 0, v9")
    k.e("v_add_f32 v9, 0x3727c5ac, v9")
    k.e("v_rsq_f32 v9, v9")
    k.e("s_nop 0")
    k.e("v_mul_f32 v3, v3, v9")
    k.e("v_sub_f32 v3, 0, v3")
    k.e("ds_write_b32 v2, v9 offset:640")
    k.e("ds_write_b32 v2, v3 offset:960")
    k.e("s_waitcnt lgkmcnt(0)")
    k.e("s_mov_b64 exec, s[38:39]")
    k.e("s_barrier")
    k.stamp(12)
    k.e("s_waitcnt vmcnt(0)")
    k.stamp(13)
    k.stamp_rt(14)
    k.dump(0, sW, 15)
    k.e("s_endpgm")

    k.lab("%s_loadw" % name)
    k.vm = []
    k.lq = []
    srd(k, S_B, 46, 512 * 3072)
    vWe, vWo = 4, 5
    k.e("v_lshrrev_b32 v2, 3, v1")
    k.e("v_mul_u32_u24 v%d, 3072, v2" % vWe)
    k.e("v_and_b32 v2, 1, v1")
    k.e("v_lshl_add_u32 v%d, v2, 4, v%d" % (vWe, vWe))
    k.e("s_lshl_b32 s3, s%d, 7" % sHG)
    k.e("v_add_u32 v%d, s3, v%d" % (vWe, vWe))
    k.e("v_bfe_u32 v2, v1, 1, 2")
    k.e("v_bfe_u32 v3, v1, 4, 1")
    k.e("v_xor_b32 v2, v2, v3")
    k.e("v_xor_b32 v3, 2, v2")
    k.e("v_lshl_add_u32 v%d, v3, 5, v%d" % (vWo, vWe))
    k.e("v_lshl_add_u32 v%d, v2, 5, v%d" % (vWe, vWe))
    k.e("s_mul_i32 s%d, s%d, %d" % (sM, sT, 12 * 1024))
    k.e("s_add_u32 s%d, s%d, %d" % (sM, sM, A_BYTES))
    sG = 82
    for p in range(12):
        p0, p1 = p, 12 + p
        g0 = (p0 // 8) * 1024 + (p0 % 8) * 8 * 3072
        g1 = (p1 // 8) * 1024 + (p1 % 8) * 8 * 3072
        k.e("s_cmp_eq_u32 s%d, 0" % sT)
        k.e("s_mov_b32 s%d, %d" % (sG + p, g1))
        k.e("s_cmov_b32 s%d, %d" % (sG + p, g0))

    def ldw(st):
        slot = st % NS
        k.e("s_mul_i32 s%d, s%d, %d" % (sKb, sK, 64 * 3072))
        k.e("s_add_u32 s%d, s%d, 1" % (sK, sK))
        k.e("s_and_b32 s%d, s%d, 7" % (sK, sK))
        for p in range(12):
            k.e("s_add_u32 m0, s%d, %d" % (sM, slot * SLOT + p * 1024))
            k.e("s_add_u32 s%d, s%d, s%d" % (sOff, sG + p, sKb))
            k.vmem("buffer_load_dwordx4 v%d, %s, s%d offen lds" % (vWo if p & 1 else vWe, sr(S_B, 4), sOff), ("s", st))

    k.stamp(2)
    ldw(0)
    if not EARLY1:
        ldw(1)
    k.stamp(3)
    for i in range(8):
        k.wait_vm(("s", i))
        k.stamp(4 + i)
        k.e("s_barrier")
        if i == 0 and EARLY1:
            ldw(1)
        stats_stage(i, [3, 4])
        if i + 2 < 8:
            ldw(i + 2)
    stats_finish([3, 4])
    k.e("s_barrier")
    k.stamp(12)
    k.e("s_waitcnt vmcnt(0)")
    k.stamp(13)
    k.stamp_rt(14)
    k.dump(0, sW, 15)
    k.lab("%s_end" % name)
    k.e("s_endpgm")
    return k.text(), nv, LDS
```

```python
import sys

import os
import re
DIAG = bool(os.environ.get("DIAG"))
ROT = not os.environ.get("NOROT")
PREF = not os.environ.get("NOPREF")
PREF2 = bool(os.environ.get("PREF2"))
MAP48 = not os.environ.get("NOMAP48")
PKN = bool(os.environ.get("PKN"))
EARLY = bool(os.environ.get("EARLY"))
EARLY1 = bool(os.environ.get("EARLY1"))
STF = os.environ.get("STF", "")
STF2 = os.environ.get("STF2", "")
V_WAIT = os.environ.get("V_WAIT", "2")
V_ARD = int(os.environ.get("V_ARD", "3"))
V_NRM = [int(c) for c in os.environ.get("V_NRM", "3333332")]
NAME = "sequential_preLN__sliding_local_dilated__glu_gated_geglu__prompt"

WS_O = 0
WS_H = 2 << 20
WS_HH = 4 << 20
WS_HST = 12 << 20

KA_X, KA_WQKV, KA_WO, KA_BX, KA_WG, KA_WU, KA_WD, KA_OUT, KA_DBG, KA_WS = [8 * i for i in range(10)]


class K:
    def __init__(self):
        self.lines = []
        self.vm = []
        self.lq = []

    def e(self, s):
        m = re.search(r"offset:(\d+)", s)
        if m:
            lim = 4096 if s.startswith("buffer_") else 65536
            assert int(m.group(1)) < lim, s
        self.lines.append("  " + s)

    def lab(self, s):
        self.lines.append(s + ":")

    def c(self, s):
        self.lines.append("  ; " + s)

    def vmem(self, s, tag):
        self.e(s)
        self.vm.append(tag)

    def wait_vm(self, tag):
        idx = max((i for i, t in enumerate(self.vm) if t == tag), default=None)
        if idx is None:
            return
        n = len(self.vm) - 1 - idx
        assert n <= 63, n
        self.e("s_waitcnt vmcnt(%d)" % n)
        self.vm = self.vm[idx + 1:]

    def lds(self, s, tag):
        self.e(s)
        self.lq.append(tag)

    def wait_lds(self, tag):
        idx = max((i for i, t in enumerate(self.lq) if t == tag), default=None)
        if idx is None:
            return False
        n = len(self.lq) - 1 - idx
        if n > 15:
            n = 15
            idx = len(self.lq) - 1 - n
        self.e("s_waitcnt lgkmcnt(%d)" % n)
        self.lq = self.lq[idx + 1:]
        return True

    def wait_lds_all(self):
        self.e("s_waitcnt lgkmcnt(0)")
        self.lq = []

    def wait_vm_all(self):
        self.e("s_waitcnt vmcnt(0)")
        self.vm = []

    def text(self):
        return "\n".join(self.lines) + "\n"

    def stamp(self, i):
        if not DIAG:
            return
        self.e("s_memtime s[58:59]")
        self.e("s_waitcnt lgkmcnt(0)")
        self.lq = []
        self.e("s_mov_b32 s%d, s58" % (64 + i))

    def stamp_rt(self, i):
        if not DIAG:
            return
        self.e("s_memrealtime s[58:59]")
        self.e("s_waitcnt lgkmcnt(0)")
        self.e("s_mov_b32 s%d, s58" % (64 + i))

    def dump(self, kidx, sW, n):
        if not DIAG:
            return
        self.e("s_add_u32 s60, s4, 0x%x" % ((32 << 20) + (kidx << 20)))
        self.e("s_addc_u32 s61, s5, 0")
        self.e("s_mov_b32 s62, 0x100000")
        self.e("s_mov_b32 s63, 0x00020000")
        self.e("s_lshl_b32 s58, s2, 3")
        self.e("s_add_u32 s58, s58, s%d" % sW)
        self.e("s_lshl_b32 s58, s58, 7")
        self.e("v_mov_b32 v0, s58")
        for i in range(n):
            self.e("v_mov_b32 v1, s%d" % (64 + i))
            self.e("buffer_store_dword v1, v0, s[60:63], 0 offen offset:%d" % (4 * i))
            self.e("s_nop 1")


def vr(a, n=1):
    return "v%d" % a if n == 1 else "v[%d:%d]" % (a, a + n - 1)


def sr(a, n=1):
    return "s%d" % a if n == 1 else "s[%d:%d]" % (a, a + n - 1)


def srd(k, d, ptr, nbytes, off=0):
    if off:
        k.e("s_add_u32 s%d, s%d, 0x%x" % (d, ptr, off))
        k.e("s_addc_u32 s%d, s%d, 0" % (d + 1, ptr + 1))
    else:
        k.e("s_mov_b32 s%d, s%d" % (d, ptr))
        k.e("s_mov_b32 s%d, s%d" % (d + 1, ptr + 1))
    k.e("s_mov_b32 s%d, 0x%x" % (d + 2, nbytes))
    k.e("s_mov_b32 s%d, 0x00020000" % (d + 3))


def header(k, name):
    k.lines.append(".globl %s" % name)
    k.lines.append(".p2align 8")
    k.lines.append(".type %s,@function" % name)
    k.lab(name)


def descriptor(name, nvgpr, nsgpr=96):
    nv = (nvgpr + 7) // 8 * 8
    return """.p2align 6
.amdhsa_kernel %s
  .amdhsa_next_free_vgpr %d
  .amdhsa_next_free_sgpr %d
  .amdhsa_accum_offset %d
  .amdhsa_group_segment_fixed_size 0
  .amdhsa_kernarg_size 80
  .amdhsa_user_sgpr_count 2
  .amdhsa_user_sgpr_kernarg_segment_ptr 1
  .amdhsa_system_sgpr_workgroup_id_x 1
.end_amdhsa_kernel
""" % (name, nv, nsgpr, min(nv, 256))


def gen_t2(name, Kdim, lda, a_src, b_ka, r_src, c_dst, stats, kidx=0, LOOK=3, skip=''):
    k = K()
    header(k, name)
    Kw = Kdim // 4
    ns = Kw // 32
    nu = ns // 2
    DA = min(nu, 3)
    DB = min(ns, 4)
    BOFF = DA * 8192
    S_A, S_B, S_R, S_C, S_ST = 8, 12, 16, 20, 24
    sW, sRB, sCB, sT, sLB = 28, 29, 30, 31, 32
    sTile = 36
    sBoff = 40
    sAoff = 41
    sK = 42
    sKb = 43
    sKB = 50
    vL, vAe, vBe, vBo = 1, 2, 3, 4
    vTr = 5
    vRo = 9
    vT0, vT1, vT2 = 10, 11, 12
    vXa = 13
    vAo = 15
    vRes = 16
    vAcc = 24
    vBf = 88
    vAf = 120
    nv = 160

    k.e("s_cmp_ge_u32 s2, 256")
    k.e("s_cbranch_scc1 %s_end" % name)
    k.stamp_rt(0)
    k.stamp(1)
    k.e("s_load_dwordx2 s[4:5], s[0:1], %d" % KA_WS)
    k.e("s_load_dwordx2 s[6:7], s[0:1], %d" % b_ka)
    if stats:
        k.e("s_load_dwordx4 s[52:55], s[0:1], %d" % KA_WG)
    nxt = 44
    for src in (a_src, r_src, c_dst):
        if src[0] == 'ka':
            k.e("s_load_dwordx2 s[%d:%d], s[0:1], %d" % (nxt, nxt + 1, src[1]))
            nxt += 2
    k.e("v_lshrrev_b32 v%d, 6, v0" % vT0)
    k.e("v_and_b32 v%d, 63, v0" % vL)
    k.e("v_readfirstlane_b32 s%d, v%d" % (sW, vT0))
    if MAP48 and ns == 14:
        k.e("s_and_b32 s3, s2, 7")
        k.e("s_lshl_b32 s%d, s3, 2" % sRB)
        k.e("s_lshr_b32 s3, s2, 6")
        k.e("s_add_u32 s%d, s%d, s3" % (sRB, sRB))
        k.e("s_lshr_b32 s%d, s2, 3" % sT)
        k.e("s_and_b32 s%d, s%d, 7" % (sCB, sT))
        k.e("s_lshl_b32 s%d, s3, 1" % sK)
        k.e("s_add_u32 s%d, s%d, s%d" % (sK, sK, sCB))
        k.e("s_cmp_ge_u32 s%d, 7" % sK)
        k.e("s_cselect_b32 s3, 7, 0")
        k.e("s_sub_u32 s%d, s%d, s3" % (sK, sK))
    else:
        k.e("s_and_b32 s3, s2, 7")
        k.e("s_lshr_b32 s%d, s2, 3" % sT)
        k.e("s_lshr_b32 s%d, s3, 1" % sRB)
        k.e("s_lshl_b32 s%d, s%d, 3" % (sRB, sRB))
        k.e("s_lshr_b32 s%d, s%d, 2" % (sCB, sT))
        k.e("s_add_u32 s%d, s%d, s%d" % (sRB, sRB, sCB))
        k.e("s_and_b32 s%d, s3, 1" % sCB)
        k.e("s_lshl_b32 s%d, s%d, 2" % (sCB, sCB))
        k.e("s_and_b32 s%d, s%d, 3" % (sT, sT))
        k.e("s_add_u32 s%d, s%d, s%d" % (sCB, sCB, sT))
        k.e("s_lshr_b32 s3, s2, 5")
        if nu == 7:
            k.e("s_lshl_b32 s%d, s%d, 1" % (sK, sT))
            k.e("s_add_u32 s%d, s%d, s3" % (sK, sK))
            k.e("s_cmp_ge_u32 s%d, 7" % sK)
            k.e("s_cselect_b32 s3, 7, 0")
            k.e("s_sub_u32 s%d, s%d, s3" % (sK, sK))
        else:
            assert nu == 2
            k.e("s_add_u32 s%d, s%d, s3" % (sK, sT))
            k.e("s_and_b32 s%d, s%d, 1" % (sK, sK))
    if not ROT:
        k.e("s_mov_b32 s%d, 0" % sK)
    k.e("s_mov_b32 s%d, s%d" % (sKB, sK))
    wave_lds = max(BOFF + DB * 4096, 12288)
    k.e("s_mul_i32 s%d, s%d, %d" % (sLB, sW, wave_lds))
    for t in range(4):
        k.e("s_add_u32 s%d, s%d, %d" % (sT, sW, t))
        k.e("s_and_b32 s%d, s%d, 3" % (sT, sT))
        k.e("s_mul_i32 s%d, s%d, %d" % (sTile + t, sT, 16 * lda))
    k.e("s_lshl_b32 s%d, s%d, 6" % (sT, sRB))
    k.e("v_lshrrev_b32 v%d, 3, v%d" % (vT0, vL))
    k.e("v_add_u32 v%d, s%d, v%d" % (vT1, sT, vT0))
    k.e("s_mov_b32 s3, %d" % lda)
    k.e("v_mul_lo_u32 v%d, v%d, s3" % (vAe, vT1))
    k.e("s_mul_i32 s3, s%d, %d" % (sW, Kw * 2))
    k.e("v_add_u32 v%d, s3, v%d" % (vAe, vAe))
    k.e("v_and_b32 v%d, 7, v%d" % (vT0, vL))
    k.e("v_lshrrev_b32 v%d, 4, v%d" % (vT2, vL))
    k.e("v_xor_b32 v%d, v%d, v%d" % (vT0, vT0, vT2))
    k.e("v_xor_b32 v%d, 4, v%d" % (vT1, vT0))
    k.e("v_add_u32 v%d, %d, v%d" % (vAo, 8 * lda, vAe))
    k.e("v_lshl_add_u32 v%d, v%d, 4, v%d" % (vAo, vT1, vAo))
    k.e("v_lshl_add_u32 v%d, v%d, 4, v%d" % (vAe, vT0, vAe))
    k.e("v_and_b32 v%d, 15, v%d" % (vT1, vL))
    k.e("v_lshrrev_b32 v%d, 1, v%d" % (vT0, vT1))
    k.e("v_xor_b32 v%d, v%d, v%d" % (vT0, vT0, vT2))
    k.e("v_lshlrev_b32 v%d, 7, v%d" % (vXa, vT1))
    k.e("v_add_u32 v%d, s%d, v%d" % (vXa, sLB, vXa))
    k.e("v_lshl_add_u32 v%d, v%d, 4, v%d" % (vXa, vT0, vXa))
    k.e("v_xor_b32 v%d, 64, v%d" % (vXa + 1, vXa))
    k.e("s_lshl_b32 s3, s%d, 4" % sW)
    k.e("s_add_u32 s3, s3, s%d" % sT)
    k.e("v_add_u32 v%d, s3, v%d" % (vT1, vT1))
    k.e("v_lshlrev_b32 v%d, 10, v%d" % (vRo, vT1))
    k.e("v_lshl_add_u32 v%d, v%d, 3, v%d" % (vRo, vT2, vRo))
    k.e("s_lshl_b32 s3, s%d, 7" % sCB)
    k.e("v_add_u32 v%d, s3, v%d" % (vRo, vRo))
    k.e("v_lshrrev_b32 v%d, 3, v%d" % (vT0, vL))
    k.e("v_lshlrev_b32 v%d, 10, v%d" % (vBe, vT0))
    k.e("v_and_b32 v%d, 1, v%d" % (vT0, vL))
    k.e("v_lshl_add_u32 v%d, v%d, 4, v%d" % (vBe, vT0, vBe))
    k.e("s_mul_i32 s%d, s%d, %d" % (sT, sW, Kw * 1024))
    k.e("s_add_u32 s3, s3, s%d" % sT)
    k.e("v_add_u32 v%d, s3, v%d" % (vBe, vBe))
    k.e("v_bfe_u32 v%d, v%d, 1, 2" % (vT0, vL))
    k.e("v_bfe_u32 v%d, v%d, 4, 1" % (vT1, vL))
    k.e("v_xor_b32 v%d, v%d, v%d" % (vT0, vT0, vT1))
    k.e("v_xor_b32 v%d, 2, v%d" % (vT1, vT0))
    k.e("v_lshl_add_u32 v%d, v%d, 5, v%d" % (vBo, vT1, vBe))
    k.e("v_lshl_add_u32 v%d, v%d, 5, v%d" % (vBe, vT0, vBe))
    k.e("v_lshrrev_b32 v%d, 4, v%d" % (vT0, vL))
    k.e("v_bfe_u32 v%d, v%d, 2, 2" % (vT1, vL))
    k.e("v_lshl_add_u32 v%d, v%d, 3, v%d" % (vT2, vT0, vT1))
    k.e("v_lshlrev_b32 v%d, 7, v%d" % (vT2, vT2))
    k.e("v_add_u32 v%d, s%d, v%d" % (vT2, sLB, vT2))
    k.e("v_and_b32 v%d, 3, v%d" % (vTr, vL))
    k.e("v_lshl_add_u32 v%d, v%d, 3, v%d" % (vT2, vTr, vT2))
    k.e("v_bfe_u32 v%d, v%d, 3, 1" % (vT1, vL))
    k.e("v_bfe_u32 v%d, v%d, 4, 1" % (vT0, vL))
    k.e("v_lshl_or_b32 v%d, v%d, 1, v%d" % (vT0, vT0, vT1))
    for j in range(4):
        k.e("v_xor_b32 v%d, %d, v%d" % (vT1, j, vT0))
        k.e("v_lshl_add_u32 v%d, v%d, 5, v%d" % (vTr + j, vT1, vT2))
    k.e("s_waitcnt lgkmcnt(0)")
    nxt = 44
    for d, src, nbytes in ((S_A, a_src, 2048 * lda), (S_R, r_src, 2 << 20), (S_C, c_dst, 2 << 20)):
        if src[0] == 'ka':
            srd(k, d, nxt, nbytes)
            nxt += 2
        else:
            srd(k, d, 4, nbytes, src[1])
    srd(k, S_B, 6, Kdim * 1024)
    if stats:
        srd(k, S_ST, 4, 2048 * 64, WS_HST)

    def issue_a(u):
        if 'A' in skip:
            return
        slot = u % DA
        k.e("s_lshl_b32 s%d, s%d, 7" % (sKb, sK))
        k.e("s_add_u32 s%d, s%d, 1" % (sK, sK))
        k.e("s_cmp_ge_u32 s%d, %d" % (sK, nu))
        k.e("s_cselect_b32 s%d, 0, s%d" % (sK, sK))
        for t in range(4):
            k.e("s_add_u32 s%d, s%d, s%d" % (sAoff, sTile + t, sKb))
            for p in range(2):
                k.e("s_add_u32 m0, s%d, %d" % (sLB, slot * 8192 + t * 2048 + p * 1024))
                k.e("s_nop 0")
                k.vmem("buffer_load_dwordx4 v%d, %s, s%d offen lds" % (vAo if p else vAe, sr(S_A, 4), sAoff), ("a", u))

    def issue_b(s):
        if 'B' in skip:
            return
        slot = s % DB
        if s % 2 == 0:
            k.e("s_lshl_b32 s%d, s%d, 16" % (sBoff, sKB))
            k.e("s_add_u32 s%d, s%d, 1" % (sKB, sKB))
            k.e("s_cmp_ge_u32 s%d, %d" % (sKB, nu))
            k.e("s_cselect_b32 s%d, 0, s%d" % (sKB, sKB))
        for i in range(4):
            k.e("s_add_u32 m0, s%d, %d" % (sLB, BOFF + slot * 4096 + i * 1024))
            k.e("s_nop 0")
            k.vmem("buffer_load_dwordx4 v%d, %s, s%d offen lds" % (vBo if i & 1 else vBe, sr(S_B, 4), sBoff), ("b", s))
            k.e("s_add_u32 s%d, s%d, 8192" % (sBoff, sBoff))

    def rd(s):
        buf = vBf + (s & 1) * 16
        ab = vAf + (s & 1) * 16
        bo = BOFF + (s % DB) * 4096
        ao = ((s // 2) % DA) * 8192
        ops = []
        for j in range(4):
            ops.append("ds_read_b64_tr_b16 %s, v%d offset:%d" % (vr(buf + j * 4, 2), vTr + j, bo))
            ops.append("ds_read_b64_tr_b16 %s, v%d offset:%d" % (vr(buf + j * 4 + 2, 2), vTr + j, bo + 512))
            ops.append("ds_read_b128 %s, v%d offset:%d" % (vr(ab + j * 4, 4), vXa + (s & 1), ao + j * 2048))
        return ops

    def wait_step(s):
        k.wait_vm(("a", s // 2))
        k.wait_vm(("b", s))

    k.stamp(2)
    ia = ib = 0
    issue_a(0); ia = 1
    issue_b(0); issue_b(1); ib = 2
    if nu > 1:
        issue_a(1); ia = 2
    issue_b(2); ib = 3
    for j in range(4):
        k.vmem("buffer_load_dwordx2 %s, v%d, %s, 0 offen offset:%d" % (vr(vRes + 2 * j, 2), vRo, sr(S_R, 4), 32 * j), "res")
    k.stamp(3)
    wait_step(0)
    k.stamp(4)
    for op in rd(0):
        k.e(op)
    for s in range(ns):
        buf = vBf + (s & 1) * 16
        ab = vAf + (s & 1) * 16
        k.e("s_waitcnt lgkmcnt(0)")
        if ib < ns:
            issue_b(ib); ib += 1
        if s % 2 == 0 and ia < nu and (ia < DA or s >= 2 * (ia - DA) + 1):
            issue_a(ia); ia += 1
        fill = []
        if s + 1 < ns:
            wait_step(s + 1)
            fill = rd(s + 1)
            if s + 2 == ns and stats and PREF:
                k.e("s_cmp_ge_u32 s%d, 2" % sW)
                k.e("s_cselect_b32 s6, s54, s52")
                k.e("s_cselect_b32 s7, s55, s53")
                srd(k, S_B, 6, 512 * 3584)
                k.e("s_lshr_b32 s3, s2, 3")
                k.e("s_lshl_b32 s3, s3, 1")
                k.e("s_and_b32 s%d, s%d, 1" % (sT, sW))
                k.e("s_add_u32 s3, s3, s%d" % sT)
                k.e("s_mul_i32 s3, s3, %d" % (8 * 3584))
                k.e("s_and_b32 s%d, s2, 3" % sT)
                k.e("s_mul_i32 s%d, s%d, 896" % (sT, sT))
                k.e("s_add_u32 s3, s3, s%d" % sT)
                k.e("v_lshrrev_b32 v%d, 3, v%d" % (vT0, vL))
                k.e("v_mul_u32_u24 v%d, 3584, v%d" % (vT0, vT0))
                k.e("v_and_b32 v%d, 7, v%d" % (vT1, vL))
                k.e("v_min_u32 v%d, 6, v%d" % (vT1, vT1))
                k.e("v_lshl_add_u32 v%d, v%d, 7, v%d" % (vT0, vT1, vT0))
                k.vmem("buffer_load_dword v152, v%d, %s, s3 offen" % (vT0, sr(S_B, 4)), "pf")
        fi = 0
        for t in range(4):
            for j in range(4):
                a = vAcc + (j * 4 + t) * 4
                cin = "0" if s == 0 else vr(a, 4)
                k.e("v_mfma_f32_16x16x32_bf16 %s, %s, %s, %s" % (vr(a, 4), vr(buf + j * 4, 4), vr(ab + t * 4, 4), cin))
                if fi < len(fill):
                    k.e(fill[fi]); fi += 1
        k.stamp(5 + s)
    assert ia == nu and ib == ns
    k.e("v_lshlrev_b32 v%d, 4, v%d" % (vT0, vL))
    k.e("v_add_u32 v%d, s%d, v%d" % (vT1, sLB, vT0))
    k.e("s_nop 7")
    k.e("s_nop 3")
    for t in range(1, 4):
        for j in range(4):
            k.e("ds_write_b128 v%d, %s offset:%d" % (vT1, vr(vAcc + (j * 4 + t) * 4, 4), (t - 1) * 4096 + j * 1024))
    k.wait_vm("res")
    vP = vBf
    vO = vP + 48
    for j in range(4):
        for h in range(2):
            k.e("v_lshlrev_b32 v%d, 16, v%d" % (vO + j * 4 + 2 * h, vRes + 2 * j + h))
            k.e("v_and_b32 v%d, 0xffff0000, v%d" % (vO + j * 4 + 2 * h + 1, vRes + 2 * j + h))
    for j in range(4):
        for r in range(4):
            k.e("v_add_f32 v%d, v%d, v%d" % (vO + j * 4 + r, vO + j * 4 + r, vAcc + (j * 4) * 4 + r))
    k.e("s_waitcnt lgkmcnt(0)")
    k.e("s_barrier")
    for d in range(1, 4):
        k.e("s_sub_u32 s3, s%d, %d" % (sW, d))
        k.e("s_and_b32 s3, s3, 3")
        k.e("s_mul_i32 s3, s3, %d" % wave_lds)
        k.e("v_add_u32 v%d, s3, v%d" % (vT1, vT0))
        for j in range(4):
            k.e("ds_read_b128 %s, v%d offset:%d" % (vr(vP + ((d - 1) * 4 + j) * 4, 4), vT1, (d - 1) * 4096 + j * 1024))
    for d in range(3):
        k.e("s_waitcnt lgkmcnt(%d)" % (8 - 4 * d))
        for j in range(4):
            for r in range(4):
                k.e("v_add_f32 v%d, v%d, v%d" % (vO + j * 4 + r, vO + j * 4 + r, vP + (d * 4 + j) * 4 + r))
    vPk = vP
    for j in range(4):
        k.e("v_cvt_pk_bf16_f32 v%d, v%d, v%d" % (vPk + 2 * j, vO + 4 * j, vO + 4 * j + 1))
        k.e("v_cvt_pk_bf16_f32 v%d, v%d, v%d" % (vPk + 2 * j + 1, vO + 4 * j + 2, vO + 4 * j + 3))
    for j in range(4):
        k.vmem("buffer_store_dwordx2 %s, v%d, %s, 0 offen offset:%d%s" % (vr(vPk + 2 * j, 2), vRo, sr(S_C, 4), 32 * j, STF2), "st")
    if stats:
        vS, vQ, vX, vY = vPk + 8, vPk + 9, vPk + 10, vPk + 11
        k.e("v_mov_b32 v%d, 0" % vS)
        k.e("v_mov_b32 v%d, 0" % vQ)
        for i in range(8):
            k.e("v_lshlrev_b32 v%d, 16, v%d" % (vX, vPk + i))
            k.e("v_and_b32 v%d, 0xffff0000, v%d" % (vY, vPk + i))
            k.e("v_add_f32 v%d, v%d, v%d" % (vS, vS, vX))
            k.e("v_fmac_f32 v%d, v%d, v%d" % (vQ, vX, vX))
            k.e("v_add_f32 v%d, v%d, v%d" % (vS, vS, vY))
            k.e("v_fmac_f32 v%d, v%d, v%d" % (vQ, vY, vY))
        for op in ("v_permlane32_swap_b32", "v_permlane16_swap_b32"):
            k.e("v_mov_b32 v%d, v%d" % (vX, vS))
            k.e("v_mov_b32 v%d, v%d" % (vY, vQ))
            k.e("s_nop 1")
            k.e("%s v%d, v%d" % (op, vS, vX))
            k.e("%s v%d, v%d" % (op, vQ, vY))
            k.e("v_add_f32 v%d, v%d, v%d" % (vS, vS, vX))
            k.e("v_add_f32 v%d, v%d, v%d" % (vQ, vQ, vY))
        k.e("v_lshrrev_b32 v%d, 10, v%d" % (vX, vRo))
        k.e("v_lshlrev_b32 v%d, 6, v%d" % (vX, vX))
        k.e("s_lshl_b32 s3, s%d, 3" % sCB)
        k.e("v_add_u32 v%d, s3, v%d" % (vX, vX))
        k.e("v_cmp_gt_u32 vcc, 16, v%d" % vL)
        k.e("s_and_saveexec_b64 s[34:35], vcc")
        k.vmem("buffer_store_dwordx2 %s, v%d, %s, 0 offen" % (vr(vS, 2), vX, sr(S_ST, 4)), "st")
        k.e("s_mov_b64 exec, s[34:35]")
    k.stamp(5 + ns)
    if DIAG:
        k.e("s_waitcnt vmcnt(0)")
    k.stamp(6 + ns)
    k.stamp_rt(7 + ns)
    k.dump(kidx, sW, 8 + ns)
    k.lab("%s_end" % name)
    k.e("s_endpgm")
    return k.text(), nv, 4 * wave_lds


K3_A = 16384
K3_NA = 4
K3_UP = 14464
K3_SLOT = 28800
K3_NS = 3
K3_B0 = K3_NA * K3_A


def gen_k3(name):
    k = K()
    header(k, name)
    S_A, S_B, S_C, S_ST = 8, 12, 16, 20
    sW, sRB, sFB, sT = 28, 29, 30, 31
    sOff = 34
    sM = 35
    sMA = 36
    sOffA = 37
    sK = 38
    sKa = 39
    k.e("s_cmp_ge_u32 s2, 256")
    k.e("s_cbranch_scc1 %s_end" % name)
    k.stamp_rt(0)
    k.stamp(1)
    k.e("s_load_dwordx2 s[4:5], s[0:1], %d" % KA_WS)
    k.e("s_load_dwordx4 s[44:47], s[0:1], %d" % KA_WG)
    k.e("s_load_dwordx2 s[48:49], s[0:1], %d" % KA_WD)
    k.e("v_lshrrev_b32 v2, 6, v0")
    k.e("v_and_b32 v1, 63, v0")
    k.e("v_readfirstlane_b32 s%d, v2" % sW)
    k.e("s_and_b32 s3, s2, 7")
    k.e("s_lshr_b32 s%d, s2, 3" % sT)
    k.e("s_lshr_b32 s%d, s3, 2" % sRB)
    k.e("s_lshl_b32 s%d, s%d, 3" % (sRB, sRB))
    k.e("s_lshr_b32 s%d, s%d, 2" % (sFB, sT))
    k.e("s_add_u32 s%d, s%d, s%d" % (sRB, sRB, sFB))
    k.e("s_and_b32 s%d, s3, 3" % sFB)
    k.e("s_lshl_b32 s%d, s%d, 2" % (sFB, sFB))
    k.e("s_and_b32 s%d, s%d, 3" % (sT, sT))
    k.e("s_add_u32 s%d, s%d, s%d" % (sFB, sFB, sT))
    k.e("s_lshr_b32 s3, s2, 5")
    k.e("s_lshl_b32 s%d, s%d, 1" % (sK, sT))
    k.e("s_add_u32 s%d, s%d, s3" % (sK, sK))
    k.e("s_and_b32 s%d, s%d, 7" % (sK, sK))
    if not ROT:
        k.e("s_mov_b32 s%d, 0" % sK)
    k.e("s_cmp_ge_u32 s%d, 4" % sW)
    k.e("s_cbranch_scc1 %s_loader" % name)

    vL = 1
    vO = 3
    vTr = 4
    vRstd, vNmr = 6, 7
    vT0, vT1, vT2, vT3 = 8, 9, 10, 11
    vN = 12
    vW = 24
    vXa = 80
    vCa = 84
    vAr = 208
    vRp = 90
    vAcc = 96
    nv = 216
    k.e("s_lshl_b32 s3, s%d, 7" % sRB)
    k.e("s_lshl_b32 s%d, s%d, 5" % (sT, sW))
    k.e("s_add_u32 s3, s3, s%d" % sT)
    k.e("v_and_b32 v%d, 31, v%d" % (vT3, vL))
    k.e("v_add_u32 v%d, s3, v%d" % (vT0, vT3))
    k.e("v_lshrrev_b32 v%d, 5, v%d" % (vT1, vL))
    k.e("v_lshlrev_b32 v%d, 6, v%d" % (vT2, vT0))
    k.e("s_mov_b32 s3, 3584")
    k.e("v_mul_lo_u32 v%d, v%d, s3" % (vO, vT0))
    k.e("v_lshl_add_u32 v%d, v%d, 4, v%d" % (vO, vT1, vO))
    k.e("s_mul_i32 s3, s%d, 224" % sFB)
    k.e("v_add_u32 v%d, s3, v%d" % (vO, vO))
    k.e("v_bfe_u32 v%d, v%d, 1, 3" % (vT0, vL))
    k.e("v_xor_b32 v%d, v%d, v%d" % (vT0, vT0, vT1))
    k.e("v_add_u32 v%d, s%d, v%d" % (vT3, sT, vT3))
    k.e("v_lshlrev_b32 v%d, 7, v%d" % (vT3, vT3))
    k.e("v_lshl_add_u32 v%d, v%d, 4, v%d" % (vXa, vT0, vT3))
    for u in range(1, 4):
        k.e("v_xor_b32 v%d, %d, v%d" % (vXa + u, 32 * u, vXa))
    k.e("v_bfe_u32 v%d, v%d, 4, 1" % (vT0, vL))
    k.e("v_mul_u32_u24 v%d, %d, v%d" % (vTr, K3_UP, vT0))
    k.e("v_lshrrev_b32 v%d, 5, v%d" % (vT0, vL))
    k.e("v_bfe_u32 v%d, v%d, 2, 2" % (vT1, vL))
    k.e("v_lshl_add_u32 v%d, v%d, 3, v%d" % (vT0, vT0, vT1))
    k.e("v_mul_u32_u24 v%d, 224, v%d" % (vT0, vT0))
    k.e("v_add_u32 v%d, v%d, v%d" % (vTr, vTr, vT0))
    k.e("v_and_b32 v%d, 1, v%d" % (vT0, vL))
    k.e("v_lshl_add_u32 v%d, v%d, 4, v%d" % (vTr, vT0, vTr))
    k.e("v_bfe_u32 v%d, v%d, 1, 1" % (vT0, vL))
    k.e("v_lshl_add_u32 v%d, v%d, 3, v%d" % (vTr, vT0, vTr))
    k.e("v_add_u32 v%d, %d, v%d" % (vTr, K3_B0, vTr))
    k.e("v_add_u32 v%d, %d, v%d" % (vTr + 1, 2 * K3_SLOT, vTr))
    for i in range(2):
        k.e("v_mov_b32 v%d, 0xbdd2d3e8" % (vCa + i))
        k.e("v_mov_b32 v%d, 0xc0135761" % (vCa + 2 + i))
        k.e("v_mov_b32 v%d, 1.0" % (vCa + 4 + i))
    k.e("s_waitcnt lgkmcnt(0)")
    srd(k, S_C, 4, 2048 * 3584, WS_HH)
    srd(k, S_ST, 4, 2048 * 64, WS_HST)
    for i in range(4):
        k.vmem("buffer_load_dwordx4 %s, v%d, %s, 0 offen offset:%d" % (vr(vW + 4 * i, 4), vT2, sr(S_ST, 4), 16 * i), "st")
    k.wait_vm("st")
    k.e("v_add_f32 v%d, v%d, v%d" % (vT0, vW, vW + 2))
    k.e("v_add_f32 v%d, v%d, v%d" % (vT1, vW + 1, vW + 3))
    for i in range(2, 8):
        k.e("v_add_f32 v%d, v%d, v%d" % (vT0, vT0, vW + 2 * i))
        k.e("v_add_f32 v%d, v%d, v%d" % (vT1, vT1, vW + 2 * i + 1))
    k.e("v_mul_f32 v%d, 0x3b000000, v%d" % (vT0, vT0))
    k.e("v_mul_f32 v%d, 0x3b000000, v%d" % (vT1, vT1))
    k.e("v_fma_f32 v%d, -v%d, v%d, v%d" % (vT1, vT0, vT0, vT1))
    k.e("v_max_f32 v%d, 0, v%d" % (vT1, vT1))
    k.e("v_add_f32 v%d, 0x3727c5ac, v%d" % (vT1, vT1))
    k.e("v_rsq_f32 v%d, v%d" % (vRstd, vT1))
    k.e("s_nop 0")
    k.e("v_mul_f32 v%d, v%d, v%d" % (vNmr, vT0, vRstd))
    k.e("v_sub_f32 v%d, 0, v%d" % (vNmr, vNmr))

    k.e("v_mov_b32 v%d, v%d" % (vRp, vRstd))
    k.e("v_mov_b32 v%d, v%d" % (vRp + 1, vRstd))
    k.e("v_mov_b32 v%d, v%d" % (vRp + 2, vNmr))
    k.e("v_mov_b32 v%d, v%d" % (vRp + 3, vNmr))

    def norm_ops(j):
        src = vAr + (j & 1) * 4
        dst = vN + (j & 1) * 4
        ops = []
        for i in range(4):
            a = vT0 if i & 1 == 0 else vT2
            ops.append("v_lshlrev_b32 v%d, 16, v%d" % (a, src + i))
            ops.append("v_and_b32 v%d, 0xffff0000, v%d" % (a + 1, src + i))
            if PKN:
                ops.append("v_pk_fma_f32 %s, %s, %s, %s" % (vr(a, 2), vr(a, 2), vr(vRp, 2), vr(vRp + 2, 2)))
            else:
                ops.append("v_fma_f32 v%d, v%d, v%d, v%d" % (a, a, vRstd, vNmr))
                ops.append("v_fma_f32 v%d, v%d, v%d, v%d" % (a + 1, a + 1, vRstd, vNmr))
            ops.append("v_cvt_pk_bf16_f32 v%d, v%d, v%d" % (dst + i, a, a + 1))
        return ops

    vXn = 20
    sBs, sAs, sIt = 40, 41, 42

    def tr_rd(j, t):
        u = j % 4
        base = vTr + (1 if j >= 4 else 0)
        buf = vW + (j & 1) * 28
        k.lds("ds_read_b64_tr_b16 %s, v%d offset:%d" % (vr(buf + 4 * t, 2), base, u * 3584 + 32 * t), ("w", j % 4, t))
        k.lds("ds_read_b64_tr_b16 %s, v%d offset:%d" % (vr(buf + 4 * t + 2, 2), base, u * 3584 + 32 * t + 896), ("w", j % 4, t))

    def a_rd(j):
        u = j % 4
        base = (vXn + u) if j >= 4 else (vXa + u)
        k.lds("ds_read_b128 %s, v%d" % (vr(vAr + (j & 1) * 4, 4), base), ("a", j % 4))

    k.e("v_add_u32 v%d, %d, v%d" % (vTr + 1, K3_SLOT, vTr))
    k.e("v_add_u32 v%d, %d, v%d" % (vXn, K3_A, vXa))
    k.e("v_add_u32 v%d, %d, v%d" % (vXn + 1, K3_A, vXa + 1))
    k.e("s_mov_b32 s%d, 1" % sBs)
    k.e("s_mov_b32 s%d, 1" % sAs)
    k.e("s_mov_b32 s%d, 0" % sIt)
    for i in range(112):
        k.e("v_mov_b32 v%d, 0" % (vAcc + i))
    k.stamp(2)
    k.e("s_barrier")
    k.stamp(3)
    a_rd(0)
    k.wait_lds(("a", 0))
    for t in range(7):
        tr_rd(0, t)
        if t == 3:
            a_rd(1)
    for op in norm_ops(0):
        k.e(op)
    k.e("s_nop 0")
    k.lab("%s_loop" % name)
    body_start = len(k.lines)
    lq0 = list(k.lq)
    for j in range(4):
        u = j
        buf = vW + (j & 1) * 28
        boundary = (u == 3)
        nrm = norm_ops(j + 1)
        ni = 0
        pend = list(range(7))
        for t in range(7):
            a = vAcc + 16 * t
            if t % 2 == 0:
                if not k.wait_lds(("w", j, min(t + 1, 6))) and t == 0:
                    k.e("s_nop 0")
            k.e("v_mfma_f32_32x32x16_bf16 %s, %s, %s, %s" % (vr(a, 16), vr(buf + 4 * t, 4), vr(vN + (j & 1) * 4, 4), vr(a, 16)))
            if t == 0:
                k.wait_lds(("a", (j + 1) % 4))
            if boundary and t < 2:
                pass
            else:
                if boundary and t == 2:
                    k.wait_lds_all()
                    k.e("s_barrier")
                nrd = 1 if not boundary else 2
                for _ in range(nrd):
                    if pend:
                        tr_rd(j + 1, pend.pop(0))
            if t == 3:
                a_rd(j + 2)
            for _ in range(V_NRM[t]):
                if ni < len(nrm):
                    k.e(nrm[ni]); ni += 1
        assert not pend and ni == len(nrm), (pend, ni)
        if j < 3:
            k.e("s_nop 0")
    k.e("v_mov_b32 v%d, v%d" % (vTr, vTr + 1))
    k.e("s_add_u32 s%d, s%d, 1" % (sBs, sBs))
    k.e("s_cmp_eq_u32 s%d, %d" % (sBs, K3_NS))
    k.e("s_cselect_b32 s%d, 0, s%d" % (sBs, sBs))
    k.e("s_cselect_b32 s3, %d, %d" % (-(K3_NS - 1) * K3_SLOT & 0xffffffff, K3_SLOT) if False else "s_mov_b32 s3, %d" % K3_SLOT)
    k.e("s_cmov_b32 s3, 0x%x" % ((-(K3_NS - 1) * K3_SLOT) & 0xffffffff))
    k.e("v_add_u32 v%d, s3, v%d" % (vTr + 1, vTr + 1))
    k.e("v_mov_b32 v%d, v%d" % (vXa, vXn))
    k.e("v_mov_b32 v%d, v%d" % (vXa + 1, vXn + 1))
    k.e("v_xor_b32 v%d, 64, v%d" % (vXa + 2, vXn))
    k.e("v_xor_b32 v%d, 96, v%d" % (vXa + 3, vXn))
    k.e("v_add_u32 v%d, %d, v%d" % (vXn, K3_A, vXn))
    k.e("v_and_b32 v%d, 0x%x, v%d" % (vXn, K3_NA * K3_A - 1, vXn))
    k.e("v_xor_b32 v%d, 32, v%d" % (vXn + 1, vXn))
    k.e("s_add_u32 s%d, s%d, 1" % (sIt, sIt))
    k.e("s_cmp_lt_u32 s%d, 8" % sIt)
    k.e("s_cbranch_scc1 %s_loop" % name)
    assert k.lq == lq0[len(lq0) - len(k.lq):] or DIAG, (k.lq, lq0)
    k.wait_lds_all()
    k.stamp(11)
    k.e("s_nop 7")
    k.e("s_nop 7")
    tmp = vW
    for t in range(7):
        a = vAcc + 16 * t
        o = tmp + 8 * (t & 1) + 32
        for half in range(2):
            prs = [(a + 4 * half + 2 * i, a + 8 + 4 * half + 2 * i, tmp + 8 * i, tmp + 8 * i + 2) for i in range(2)]
            for g, u_, x0, x1 in prs:
                k.e("v_pk_mul_f32 %s, %s, %s" % (vr(x0, 2), vr(g, 2), vr(g, 2)))
            for g, u_, x0, x1 in prs:
                k.e("v_pk_fma_f32 %s, %s, %s, %s" % (vr(x1, 2), vr(x0, 2), vr(vCa, 2), vr(vCa + 2, 2)))
            for g, u_, x0, x1 in prs:
                k.e("v_pk_mul_f32 %s, %s, %s" % (vr(x1, 2), vr(x1, 2), vr(g, 2)))
            for g, u_, x0, x1 in prs:
                k.e("v_exp_f32 v%d, v%d" % (x1, x1))
                k.e("v_exp_f32 v%d, v%d" % (x1 + 1, x1 + 1))
            for g, u_, x0, x1 in prs:
                k.e("v_pk_mul_f32 %s, %s, %s" % (vr(x0, 2), vr(g, 2), vr(u_, 2)))
            for g, u_, x0, x1 in prs:
                k.e("v_pk_add_f32 %s, %s, %s" % (vr(x1, 2), vr(x1, 2), vr(vCa + 4, 2)))
            for g, u_, x0, x1 in prs:
                k.e("v_rcp_f32 v%d, v%d" % (x1, x1))
                k.e("v_rcp_f32 v%d, v%d" % (x1 + 1, x1 + 1))
            k.e("s_nop 0")
            for g, u_, x0, x1 in prs:
                k.e("v_pk_mul_f32 %s, %s, %s" % (vr(x0, 2), vr(x0, 2), vr(x1, 2)))
            for i, (g, u_, x0, x1) in enumerate(prs):
                k.e("v_cvt_pk_bf16_f32 v%d, v%d, v%d" % (o + 2 * half + i, x0, x0 + 1))
        k.vmem("buffer_store_dwordx4 %s, v%d, %s, 0 offen offset:%d%s" % (vr(o, 4), vO, sr(S_C, 4), 32 * t, STF), "st")
    k.stamp(12)
    if DIAG:
        k.e("s_waitcnt vmcnt(0)")
    k.stamp(13)
    k.stamp_rt(14)
    k.dump(2, sW, 15)
    k.e("s_endpgm")

    k.lab("%s_loader" % name)
    k.vm = []
    k.lq = []
    vOff = 4
    vAo = 12
    sKA = 40
    k.e("s_and_b32 s%d, s%d, 1" % (sT, sW))
    k.e("s_mul_i32 s3, s%d, 448" % sT)
    k.e("s_mul_i32 s%d, s%d, 224" % (sOff, sFB))
    for p in range(7):
        k.e("v_add_u32 v2, s3, v1")
        if p:
            k.e("v_add_u32 v2, %d, v2" % (64 * p))
        k.e("v_mul_u32_u24 v3, 4682, v2")
        k.e("v_lshrrev_b32 v3, 16, v3")
        k.e("v_mul_u32_u24 v11, 14, v3")
        k.e("v_sub_u32 v2, v2, v11")
        k.e("v_mul_u32_u24 v3, 3584, v3")
        k.e("v_lshl_add_u32 v3, v2, 4, v3")
        k.e("v_add_u32 v%d, s%d, v3" % (vOff + p, sOff))
    k.e("s_sub_u32 s3, s%d, 4" % sW)
    k.e("s_lshl_b32 s%d, s3, 12" % sMA)
    k.e("s_lshl_b32 s3, s3, 5")
    k.e("s_lshl_b32 s%d, s%d, 7" % (sOff, sRB))
    k.e("s_add_u32 s3, s3, s%d" % sOff)
    k.e("v_lshrrev_b32 v2, 3, v1")
    k.e("v_add_u32 v2, s3, v2")
    k.e("v_lshlrev_b32 v2, 10, v2")
    k.e("v_and_b32 v3, 7, v1")
    k.e("v_lshrrev_b32 v11, 4, v1")
    k.e("v_xor_b32 v3, v3, v11")
    k.e("v_lshl_add_u32 v%d, v3, 4, v2" % vAo)
    k.e("v_xor_b32 v3, 4, v3")
    k.e("v_lshl_add_u32 v%d, v3, 4, v2" % (vAo + 1))
    k.e("s_mov_b32 s%d, s%d" % (sKA, sK))
    k.e("s_waitcnt lgkmcnt(0)")
    k.e("s_cmp_ge_u32 s%d, 6" % sW)
    k.e("s_cselect_b32 s6, s46, s44")
    k.e("s_cselect_b32 s7, s47, s45")
    k.e("s_cselect_b32 s%d, %d, 0" % (sM, K3_UP))
    k.e("s_add_u32 s%d, s%d, %d" % (sM, sM, K3_B0))
    srd(k, S_B, 6, 512 * 3584)
    srd(k, S_A, 4, 2 << 20, WS_H)
    k.e("s_mul_i32 s3, s%d, 7168" % sT)
    k.e("s_add_u32 s%d, s%d, s3" % (sM, sM))

    def lda(st, tag):
        k.e("s_lshl_b32 s%d, s%d, 7" % (sKa, sKA))
        k.e("s_add_u32 s%d, s%d, 1" % (sKA, sKA))
        k.e("s_and_b32 s%d, s%d, 7" % (sKA, sKA))
        for p in range(4):
            k.e("s_add_u32 m0, s%d, %d" % (sMA, (st % K3_NA) * K3_A + p * 1024))
            k.e("s_add_u32 s%d, s%d, %d" % (sOffA, sKa, p * 8192))
            k.vmem("buffer_load_dwordx4 v%d, %s, s%d offen lds" % (vAo + (p & 1), sr(S_A, 4), sOffA), tag)

    def ld(st):
        slot = st % K3_NS
        k.e("s_mul_i32 s%d, s%d, %d" % (sOff, sK, 64 * 3584))
        k.e("s_add_u32 s%d, s%d, 1" % (sK, sK))
        k.e("s_and_b32 s%d, s%d, 7" % (sK, sK))
        for p in range(7):
            k.e("s_add_u32 m0, s%d, %d" % (sM, slot * K3_SLOT + p * 1024))
            k.e("s_nop 0")
            k.vmem("buffer_load_dwordx4 v%d, %s, s%d offen lds" % (vOff + p, sr(S_B, 4), sOff), ("s", st))
        if st + 1 < 8:
            lda(st + 1, ("s", st))

    k.stamp(2)
    lda(0, ("s", 0))
    ld(0)
    k.stamp(3)
    for i in range(8):
        if i == 0 and not EARLY:
            ld(1)
        k.wait_vm(("s", i))
        k.stamp(4 + i)
        k.e("s_barrier")
        if i == 0 and EARLY:
            ld(1)
        if i + 2 < 8:
            ld(i + 2)
        if i == 6 and PREF and MAP48:
            srd(k, S_C, 48, 1792 * 1024)
            k.e("s_lshr_b32 s3, s2, 3")
            k.e("s_mul_i32 s3, s3, 56")
            k.e("s_sub_u32 s%d, s%d, 4" % (sOff, sW))
            k.e("s_mul_i32 s%d, s%d, 14" % (sOff, sOff))
            k.e("s_add_u32 s3, s3, s%d" % sOff)
            k.e("s_lshl_b32 s3, s3, 10")
            k.e("v_lshlrev_b32 v2, 7, v1")
            k.vmem("buffer_load_dword v3, v2, %s, s3 offen" % sr(S_C, 4), "pf")
            k.e("s_add_u32 s3, s3, 8192")
            k.e("v_cmp_gt_u32 vcc, 48, v1")
            k.e("s_and_saveexec_b64 s[40:41], vcc")
            k.vmem("buffer_load_dword v3, v2, %s, s3 offen" % sr(S_C, 4), "pf")
            k.e("s_mov_b64 exec, s[40:41]")
    k.e("s_barrier")
    k.stamp(12)
    k.e("s_waitcnt vmcnt(0)")
    k.stamp(13)
    k.stamp_rt(14)
    k.dump(2, sW, 15)
    k.lab("%s_end" % name)
    k.e("s_endpgm")
    return k.text(), nv, K3_B0 + K3_NS * K3_SLOT


import struct


def f32bits(x):
    return struct.unpack("<I", struct.pack("<f", x))[0]


def main():
    from gen_k1 import gen_k1
    parts = []
    descs = []
    launches = []
    t, nv, lds = gen_k1("k1_kernel")
    parts.append(t); descs.append(descriptor("k1_kernel", nv)); launches.append(("k1_kernel", 512, lds))
    t, nv, lds = gen_t2("k2_kernel", 512, 1024, ('ws', WS_O), KA_WO, ('ka', KA_X), ('ws', WS_H), True, 1)
    parts.append(t); descs.append(descriptor("k2_kernel", nv)); launches.append(("k2_kernel", 256, lds))
    t, nv, lds = gen_k3("k3_kernel")
    c0 = -2.0 * 1.4426950408889634 * 0.7978845608028654
    t = t.replace("0xc0135761", "0x%08x" % f32bits(c0)).replace("0xbdd2d3e8", "0x%08x" % f32bits(c0 * 0.044715))
    parts.append(t); descs.append(descriptor("k3_kernel", nv)); launches.append(("k3_kernel", 512, lds))
    t, nv, lds = gen_t2("k4_kernel", 1792, 3584, ('ws', WS_HH), KA_WD, ('ws', WS_H), ('ka', KA_OUT), False, 3)
    parts.append(t); descs.append(descriptor("k4_kernel", nv)); launches.append(("k4_kernel", 256, lds))
    out = []
    for n, b, lds in launches:
        out.append("; @launch kernel=%s grid=(256,1,1) block=(%d,1,1) lds=%d" % (n, b, lds))
    out.append('.amdgcn_target "amdgcn-amd-amdhsa--gfx950"')
    out.append(".text")
    out += parts
    out.append("code_end:")
    out.append('.section .rodata,"a"')
    out += descs
    path = sys.argv[1] if len(sys.argv) > 1 else "cdna_kernels/%s.s" % NAME
    open(path, "w").write("\n".join(out))
    print("wrote", path)


if __name__ == "__main__":
    main()
```

```python
from gen import K, vr, sr, srd, header, KA_X, KA_WQKV, KA_WS, WS_O, f32bits, ROT, KA_WO, KA_WG, KA_WD, PREF, DIAG, EARLY1, WS_H, WS_HST, WS_FLAG, MERGE

A_BYTES = 80 * 128
W_SUB = 64 * 128
SLOT = A_BYTES + 3 * W_SUB
NS = 4
ST_BASE = NS * SLOT
LDS = ST_BASE + 6 * 320
NEG = -1.0e30


def phase2(k, name, sW, sRB, sHG):
    S_A, S_B, S_R, S_C, S_ST = 8, 12, 16, 84, 88
    sT, sLB, sAoff = 31, 32, 33
    sTile = 48
    vL, vAe, vAo, vRo = 1, 2, 3, 4
    vTr = 5
    vT0, vT1, vT2 = 10, 11, 12
    vXa = 13
    vRes = 16
    vAcc = 24
    vBf = 88
    vAf = 120
    k.vm = ["st"] * 4
    k.lq = []
    srd(k, S_A, 4, 2 << 20, WS_O)
    srd(k, S_R, 44, 2 << 20)
    srd(k, S_C, 4, 2 << 20, WS_H)
    srd(k, S_ST, 4, 2048 * 64, WS_HST)
    k.e("s_lshl_b32 s%d, s%d, 15" % (sLB, sW))
    for t in range(4):
        k.e("s_add_u32 s%d, s%d, %d" % (sT, sW, t))
        k.e("s_and_b32 s%d, s%d, 3" % (sT, sT))
        k.e("s_lshl_b32 s%d, s%d, 14" % (sTile + t, sT))
    k.e("s_lshl_b32 s%d, s%d, 6" % (sT, sRB))
    k.e("v_lshrrev_b32 v%d, 3, v%d" % (vT0, vL))
    k.e("v_add_u32 v%d, s%d, v%d" % (vT1, sT, vT0))
    k.e("v_lshlrev_b32 v%d, 10, v%d" % (vAe, vT1))
    k.e("s_lshl_b32 s3, s%d, 8" % sW)
    k.e("v_add_u32 v%d, s3, v%d" % (vAe, vAe))
    k.e("v_and_b32 v%d, 7, v%d" % (vT0, vL))
    k.e("v_lshrrev_b32 v%d, 4, v%d" % (vT2, vL))
    k.e("v_xor_b32 v%d, v%d, v%d" % (vT0, vT0, vT2))
    k.e("v_xor_b32 v%d, 4, v%d" % (vT1, vT0))
    k.e("v_add_u32 v%d, 8192, v%d" % (vAo, vAe))
    k.e("v_lshl_add_u32 v%d, v%d, 4, v%d" % (vAo, vT1, vAo))
    k.e("v_lshl_add_u32 v%d, v%d, 4, v%d" % (vAe, vT0, vAe))
    k.e("v_and_b32 v%d, 15, v%d" % (vT1, vL))
    k.e("v_lshrrev_b32 v%d, 1, v%d" % (vT0, vT1))
    k.e("v_xor_b32 v%d, v%d, v%d" % (vT0, vT0, vT2))
    k.e("v_lshlrev_b32 v%d, 7, v%d" % (vXa, vT1))
    k.e("v_add_u32 v%d, s%d, v%d" % (vXa, sLB, vXa))
    k.e("v_lshl_add_u32 v%d, v%d, 4, v%d" % (vXa, vT0, vXa))
    k.e("v_xor_b32 v%d, 64, v%d" % (vXa + 1, vXa))
    k.e("s_lshl_b32 s3, s%d, 4" % sW)
    k.e("s_add_u32 s3, s3, s%d" % sT)
    k.e("v_add_u32 v%d, s3, v%d" % (vT1, vT1))
    k.e("v_lshlrev_b32 v%d, 10, v%d" % (vRo, vT1))
    k.e("v_lshl_add_u32 v%d, v%d, 3, v%d" % (vRo, vT2, vRo))
    k.e("s_lshl_b32 s3, s%d, 7" % sHG)
    k.e("v_add_u32 v%d, s3, v%d" % (vRo, vRo))
    for j in range(4):
        k.vmem("buffer_load_dwordx2 %s, v%d, %s, 0 offen offset:%d" % (vr(vRes + 2 * j, 2), vRo, sr(S_R, 4), 32 * j), "res")
    k.e("v_lshrrev_b32 v%d, 4, v%d" % (vT0, vL))
    k.e("v_bfe_u32 v%d, v%d, 2, 2" % (vT1, vL))
    k.e("v_lshl_add_u32 v%d, v%d, 3, v%d" % (vT2, vT0, vT1))
    k.e("v_lshlrev_b32 v%d, 7, v%d" % (vT2, vT2))
    k.e("v_add_u32 v%d, s%d, v%d" % (vT2, sLB, vT2))
    k.e("v_and_b32 v%d, 3, v%d" % (vTr, vL))
    k.e("v_lshl_add_u32 v%d, v%d, 3, v%d" % (vT2, vTr, vT2))
    k.e("v_bfe_u32 v%d, v%d, 3, 1" % (vT1, vL))
    k.e("v_bfe_u32 v%d, v%d, 4, 1" % (vT0, vL))
    k.e("v_lshl_or_b32 v%d, v%d, 1, v%d" % (vT0, vT0, vT1))
    for j in range(4):
        k.e("v_xor_b32 v%d, %d, v%d" % (vT1, j, vT0))
        k.e("v_lshl_add_u32 v%d, v%d, 5, v%d" % (vTr + j, vT1, vT2))
    k.wait_vm_all()
    k.e("s_barrier")
    k.stamp(15)
    k.e("s_barrier")
    k.stamp(16)
    for u in range(2):
        for t in range(4):
            k.e("s_add_u32 s%d, s%d, %d" % (sAoff, sTile + t, 128 * u))
            for p in range(2):
                k.e("s_add_u32 m0, s%d, %d" % (sLB, u * 8192 + t * 2048 + p * 1024))
                k.e("s_nop 0")
                k.vmem("buffer_load_dwordx4 v%d, %s, s%d offen sc1 lds" % (vAo if p else vAe, sr(S_A, 4), sAoff), ("a", u))

    def rd(s):
        buf = vBf + (s & 1) * 16
        ab = vAf + (s & 1) * 16
        bo = 16384 + s * 4096
        ao = (s // 2) * 8192
        ops = []
        for j in range(4):
            ops.append("ds_read_b64_tr_b16 %s, v%d offset:%d" % (vr(buf + j * 4, 2), vTr + j, bo))
            ops.append("ds_read_b64_tr_b16 %s, v%d offset:%d" % (vr(buf + j * 4 + 2, 2), vTr + j, bo + 512))
            ops.append("ds_read_b128 %s, v%d offset:%d" % (vr(ab + j * 4, 4), vXa + (s & 1), ao + j * 2048))
        return ops

    k.wait_vm(("a", 0))
    for op in rd(0):
        k.e(op)
    for s in range(4):
        buf = vBf + (s & 1) * 16
        ab = vAf + (s & 1) * 16
        k.e("s_waitcnt lgkmcnt(0)")
        fill = []
        if s + 1 < 4:
            k.wait_vm(("a", (s + 1) // 2))
            fill = rd(s + 1)
            if s == 1 and PREF:
                k.e("s_cmp_ge_u32 s%d, 2" % sW)
                k.e("s_cselect_b32 s6, s22, s20")
                k.e("s_cselect_b32 s7, s23, s21")
                srd(k, S_B, 6, 512 * 3584)
                k.e("s_lshr_b32 s3, s2, 3")
                k.e("s_lshl_b32 s3, s3, 1")
                k.e("s_and_b32 s%d, s%d, 1" % (sT, sW))
                k.e("s_add_u32 s3, s3, s%d" % sT)
                k.e("s_mul_i32 s3, s3, %d" % (8 * 3584))
                k.e("s_and_b32 s%d, s2, 3" % sT)
                k.e("s_mul_i32 s%d, s%d, 896" % (sT, sT))
                k.e("s_add_u32 s3, s3, s%d" % sT)
                k.e("v_lshrrev_b32 v%d, 3, v%d" % (vT0, vL))
                k.e("v_mul_u32_u24 v%d, 3584, v%d" % (vT0, vT0))
                k.e("v_and_b32 v%d, 7, v%d" % (vT1, vL))
                k.e("v_min_u32 v%d, 6, v%d" % (vT1, vT1))
                k.e("v_lshl_add_u32 v%d, v%d, 7, v%d" % (vT0, vT1, vT0))
                k.vmem("buffer_load_dword v200, v%d, %s, s3 offen" % (vT0, sr(S_B, 4)), "pf")
        fi = 0
        for t in range(4):
            for j in range(4):
                a = vAcc + (j * 4 + t) * 4
                cin = "0" if s == 0 else vr(a, 4)
                k.e("v_mfma_f32_16x16x32_bf16 %s, %s, %s, %s" % (vr(a, 4), vr(buf + j * 4, 4), vr(ab + t * 4, 4), cin))
                if fi < len(fill):
                    k.e(fill[fi]); fi += 1
    k.stamp(17)
    k.e("v_lshlrev_b32 v%d, 4, v%d" % (vT0, vL))
    k.e("v_add_u32 v%d, s%d, v%d" % (vT1, sLB, vT0))
    k.e("s_nop 7")
    k.e("s_nop 3")
    for t in range(1, 4):
        for j in range(4):
            k.e("ds_write_b128 v%d, %s offset:%d" % (vT1, vr(vAcc + (j * 4 + t) * 4, 4), (t - 1) * 4096 + j * 1024))
    vP = vBf
    vO = vP + 48
    for j in range(4):
        for h in range(2):
            k.e("v_lshlrev_b32 v%d, 16, v%d" % (vO + j * 4 + 2 * h, vRes + 2 * j + h))
            k.e("v_and_b32 v%d, 0xffff0000, v%d" % (vO + j * 4 + 2 * h + 1, vRes + 2 * j + h))
    for j in range(4):
        for r in range(4):
            k.e("v_add_f32 v%d, v%d, v%d" % (vO + j * 4 + r, vO + j * 4 + r, vAcc + (j * 4) * 4 + r))
    k.e("s_waitcnt lgkmcnt(0)")
    k.e("s_barrier")
    for d in range(1, 4):
        k.e("s_sub_u32 s3, s%d, %d" % (sW, d))
        k.e("s_and_b32 s3, s3, 3")
        k.e("s_lshl_b32 s3, s3, 15")
        k.e("v_add_u32 v%d, s3, v%d" % (vT1, vT0))
        for j in range(4):
            k.e("ds_read_b128 %s, v%d offset:%d" % (vr(vP + ((d - 1) * 4 + j) * 4, 4), vT1, (d - 1) * 4096 + j * 1024))
    for d in range(3):
        k.e("s_waitcnt lgkmcnt(%d)" % (8 - 4 * d))
        for j in range(4):
            for r in range(4):
                k.e("v_add_f32 v%d, v%d, v%d" % (vO + j * 4 + r, vO + j * 4 + r, vP + (d * 4 + j) * 4 + r))
    vPk = vP
    for j in range(4):
        k.e("v_cvt_pk_bf16_f32 v%d, v%d, v%d" % (vPk + 2 * j, vO + 4 * j, vO + 4 * j + 1))
        k.e("v_cvt_pk_bf16_f32 v%d, v%d, v%d" % (vPk + 2 * j + 1, vO + 4 * j + 2, vO + 4 * j + 3))
    for j in range(4):
        k.vmem("buffer_store_dwordx2 %s, v%d, %s, 0 offen offset:%d" % (vr(vPk + 2 * j, 2), vRo, sr(S_C, 4), 32 * j), "st")
    vS, vQ, vX, vY = vPk + 8, vPk + 9, vPk + 10, vPk + 11
    k.e("v_mov_b32 v%d, 0" % vS)
    k.e("v_mov_b32 v%d, 0" % vQ)
    for i in range(8):
        k.e("v_lshlrev_b32 v%d, 16, v%d" % (vX, vPk + i))
        k.e("v_and_b32 v%d, 0xffff0000, v%d" % (vY, vPk + i))
        k.e("v_add_f32 v%d, v%d, v%d" % (vS, vS, vX))
        k.e("v_fmac_f32 v%d, v%d, v%d" % (vQ, vX, vX))
        k.e("v_add_f32 v%d, v%d, v%d" % (vS, vS, vY))
        k.e("v_fmac_f32 v%d, v%d, v%d" % (vQ, vY, vY))
    for op in ("v_permlane32_swap_b32", "v_permlane16_swap_b32"):
        k.e("v_mov_b32 v%d, v%d" % (vX, vS))
        k.e("v_mov_b32 v%d, v%d" % (vY, vQ))
        k.e("s_nop 1")
        k.e("%s v%d, v%d" % (op, vS, vX))
        k.e("%s v%d, v%d" % (op, vQ, vY))
        k.e("v_add_f32 v%d, v%d, v%d" % (vS, vS, vX))
        k.e("v_add_f32 v%d, v%d, v%d" % (vQ, vQ, vY))
    k.e("v_lshrrev_b32 v%d, 10, v%d" % (vX, vRo))
    k.e("v_lshlrev_b32 v%d, 6, v%d" % (vX, vX))
    k.e("s_lshl_b32 s3, s%d, 3" % sHG)
    k.e("v_add_u32 v%d, s3, v%d" % (vX, vX))
    k.e("v_cmp_gt_u32 vcc, 16, v%d" % vL)
    k.e("s_and_saveexec_b64 s[34:35], vcc")
    k.vmem("buffer_store_dwordx2 %s, v%d, %s, 0 offen" % (vr(vS, 2), vX, sr(S_ST, 4)), "st")
    k.e("s_mov_b64 exec, s[34:35]")
    k.stamp(18)
    if DIAG:
        k.e("s_waitcnt vmcnt(0)")
    k.stamp(19)


def gen_k1(name):
    k = K()
    header(k, name)
    S_A, S_B, S_C = 8, 12, 16
    sW, sRB, sHG, sT = 28, 29, 30, 31
    sOff, sM = 34, 35
    sScale = 36
    sK = 40
    sKb = 41
    k.e("s_cmp_ge_u32 s2, 256")
    k.e("s_cbranch_scc1 %s_end" % name)
    if PREF:
        k.e("s_getpc_b64 s[24:25]")
        k.lab("%s_pc" % name)
        k.e("s_sub_u32 s24, s24, %s_pc-%s" % (name, name))
        k.e("s_subb_u32 s25, s25, 0")
        k.e("s_mov_b32 s26, code_end-%s" % name)
        k.e("s_mov_b32 s27, 0x00020000")
        k.e("v_lshlrev_b32 v3, 7, v0")
        k.e("buffer_load_dword v255, v3, s[24:27], 0 offen")
    k.stamp_rt(0)
    k.stamp(1)
    if MERGE:
        k.e("s_memrealtime s[54:55]")
    k.e("s_load_dwordx4 s[44:47], s[0:1], %d" % KA_X)
    k.e("s_load_dwordx2 s[4:5], s[0:1], %d" % KA_WS)
    k.e("s_load_dwordx2 s[6:7], s[0:1], %d" % KA_WO)
    k.e("s_load_dwordx4 s[20:23], s[0:1], %d" % KA_WG)
    k.e("v_lshrrev_b32 v2, 6, v0")
    k.e("v_and_b32 v1, 63, v0")
    k.e("v_readfirstlane_b32 s%d, v2" % sW)
    k.e("s_and_b32 s3, s2, 7")
    k.e("s_lshr_b32 s%d, s2, 3" % sT)
    k.e("s_lshr_b32 s%d, s3, 1" % sRB)
    k.e("s_lshl_b32 s%d, s%d, 3" % (sRB, sRB))
    k.e("s_lshr_b32 s%d, s%d, 2" % (sHG, sT))
    k.e("s_add_u32 s%d, s%d, s%d" % (sRB, sRB, sHG))
    k.e("s_and_b32 s%d, s3, 1" % sHG)
    k.e("s_lshl_b32 s%d, s%d, 2" % (sHG, sHG))
    k.e("s_and_b32 s%d, s%d, 3" % (sT, sT))
    k.e("s_add_u32 s%d, s%d, s%d" % (sHG, sHG, sT))
    k.e("s_lshr_b32 s3, s2, 5")
    k.e("s_lshl_b32 s%d, s%d, 1" % (sK, sT))
    k.e("s_add_u32 s%d, s%d, s3" % (sK, sK))
    k.e("s_and_b32 s%d, s%d, 7" % (sK, sK))
    if not ROT:
        k.e("s_mov_b32 s%d, 0" % sK)
    k.e("s_waitcnt lgkmcnt(0)")
    k.e("s_cmp_ge_u32 s%d, 4" % sW)
    k.e("s_cbranch_scc1 %s_loader" % name)

    vL = 1
    vXa = 2
    vWa = 6
    vOnes = 8
    vT0, vT1, vT2, vT3 = 12, 13, 14, 15
    vX = 16
    vWf = 56
    vQ = 80
    vKk = 96
    vV = 116
    vCq, vCk, vCv = 136, 140, 144
    vE = 148
    nv = 256
    srd(k, S_C, 4, 2 << 20, WS_O)
    k.e("v_and_b32 v%d, 15, v%d" % (vT0, vL))
    k.e("v_lshrrev_b32 v%d, 4, v%d" % (vT1, vL))
    k.e("v_lshrrev_b32 v%d, 1, v%d" % (vT2, vT0))
    k.e("v_xor_b32 v%d, v%d, v%d" % (vT2, vT2, vT1))
    k.e("v_lshlrev_b32 v%d, 7, v%d" % (vT3, vT0))
    k.e("v_lshl_add_u32 v%d, v%d, 4, v%d" % (vXa, vT2, vT3))
    k.e("v_xor_b32 v%d, 4, v%d" % (vT2, vT2))
    k.e("v_lshl_add_u32 v%d, v%d, 4, v%d" % (vXa + 1, vT2, vT3))
    k.e("v_add_u32 v%d, %d, v%d" % (vXa + 2, 2 * SLOT, vXa))
    k.e("v_add_u32 v%d, %d, v%d" % (vXa + 3, 2 * SLOT, vXa + 1))
    k.e("v_bfe_u32 v%d, v%d, 2, 2" % (vT2, vL))
    k.e("v_lshl_add_u32 v%d, v%d, 3, v%d" % (vT2, vT1, vT2))
    k.e("v_lshlrev_b32 v%d, 7, v%d" % (vT2, vT2))
    k.e("v_and_b32 v%d, 3, v%d" % (vT3, vL))
    k.e("v_lshl_add_u32 v%d, v%d, 3, v%d" % (vT2, vT3, vT2))
    k.e("v_bfe_u32 v%d, v%d, 3, 1" % (vT3, vL))
    k.e("v_bfe_u32 v%d, v%d, 4, 1" % (vT0, vL))
    k.e("v_lshl_or_b32 v%d, v%d, 1, v%d" % (vT0, vT0, vT3))
    k.e("v_xor_b32 v%d, s%d, v%d" % (vT0, sW, vT0))
    k.e("v_lshl_add_u32 v%d, v%d, 5, v%d" % (vWa, vT0, vT2))
    k.e("v_add_u32 v%d, %d, v%d" % (vWa, A_BYTES, vWa))
    k.e("v_add_u32 v%d, %d, v%d" % (vWa + 1, 2 * SLOT, vWa))
    for i in range(4):
        k.e("v_mov_b32 v%d, 0x3f803f80" % (vOnes + i))

    sSl, sIt = 42, 43

    def rd(j, what):
        kk = j % 2
        xb = vX + (j & 1) * 20
        wb = vWf + (j & 1) * 12
        if what[0] == 'w':
            s_ = what[1]
            base = vWa + (1 if j >= 2 else 0)
            k.lds("ds_read_b64_tr_b16 %s, v%d offset:%d" % (vr(wb + 4 * s_, 2), base, s_ * W_SUB + kk * 4096), (kk, what))
            k.lds("ds_read_b64_tr_b16 %s, v%d offset:%d" % (vr(wb + 4 * s_ + 2, 2), base, s_ * W_SUB + kk * 4096 + 512), (kk, what))
        else:
            t = what[1]
            base = vXa + 2 if j >= 2 else vXa + kk
            k.lds("ds_read_b128 %s, v%d offset:%d" % (vr(xb + 4 * t, 4), base, 2048 * t), (kk, what))

    RD_ORDER = [('w', 1), ('x', 0), ('w', 2), ('x', 1), ('w', 0), ('x', 2), ('x', 3), ('x', 4)]
    k.e("v_add_u32 v%d, %d, v%d" % (vXa + 2, SLOT, vXa))
    k.e("v_add_u32 v%d, %d, v%d" % (vWa + 1, SLOT, vWa))
    k.e("s_mov_b32 s%d, 1" % sSl)
    k.e("s_mov_b32 s%d, 0" % sIt)
    for i in range(vQ, vCv + 4):
        k.e("v_mov_b32 v%d, 0" % i)
    k.stamp(2)
    k.e("s_barrier")
    k.stamp(3)
    for w_ in RD_ORDER:
        rd(0, w_)
    k.lab("%s_loop" % name)
    lq0 = list(k.lq)
    for j in range(2):
        xb = vX + (j & 1) * 20
        wb = vWf + (j & 1) * 12
        boundary = (j == 1)
        pend = list(RD_ORDER)
        mf = []
        for t in range(5):
            mf.append((vKk + 4 * t, wb + 4, xb + 4 * t, [('w', 1), ('x', t)]))
            mf.append((vV + 4 * t, xb + 4 * t, wb + 8, [('w', 2), ('x', t)]))
            if t >= 1:
                mf.append((vQ + 4 * (t - 1), wb, xb + 4 * t, [('w', 0), ('x', t)]))
        mf.append((vCq, wb, vOnes, []))
        mf.append((vCk, wb + 4, vOnes, []))
        mf.append((vCv, vOnes, wb + 8, []))
        for n, (d, a_, b_, deps) in enumerate(mf):
            for dp in deps:
                k.wait_lds((j, dp))
            k.e("v_mfma_f32_16x16x32_bf16 %s, %s, %s, %s" % (vr(d, 4), vr(a_, 4), vr(b_, 4), vr(d, 4)))
            if boundary and n < 5:
                continue
            if boundary and n == 5:
                k.wait_lds_all()
                k.e("s_barrier")
            if pend and (boundary or n % 2 == 0 or n >= 8):
                rd(j + 1, pend.pop(0))
        assert not pend
    k.e("v_mov_b32 v%d, v%d" % (vXa, vXa + 2))
    k.e("v_xor_b32 v%d, 64, v%d" % (vXa + 1, vXa + 2))
    k.e("v_mov_b32 v%d, v%d" % (vWa, vWa + 1))
    k.e("s_add_u32 s%d, s%d, 1" % (sSl, sSl))
    k.e("s_cmp_eq_u32 s%d, %d" % (sSl, NS))
    k.e("s_cselect_b32 s%d, 0, s%d" % (sSl, sSl))
    k.e("s_mov_b32 s3, %d" % SLOT)
    k.e("s_cmov_b32 s3, 0x%x" % ((-(NS - 1) * SLOT) & 0xffffffff))
    k.e("v_add_u32 v%d, s3, v%d" % (vXa + 2, vXa + 2))
    k.e("v_add_u32 v%d, s3, v%d" % (vWa + 1, vWa + 1))
    k.e("s_add_u32 s%d, s%d, 1" % (sIt, sIt))
    k.e("s_cmp_lt_u32 s%d, 8" % sIt)
    k.e("s_cbranch_scc1 %s_loop" % name)
    assert k.lq == lq0[len(lq0) - len(k.lq):] or DIAG, (k.lq, lq0)
    k.wait_lds_all()
    k.stamp(11)
    k.e("s_barrier")
    k.stamp(12)
    vSr = vE
    vSn = vE + 5
    vVr = vE + 12
    vVn = vE + 32
    k.e("v_and_b32 v%d, 15, v%d" % (vT0, vL))
    k.e("v_lshlrev_b32 v%d, 2, v%d" % (vT2, vT0))
    k.e("v_lshrrev_b32 v%d, 4, v%d" % (vT1, vL))
    k.e("v_lshlrev_b32 v%d, 4, v%d" % (vT3, vT1))
    k.e("v_add_u32 v%d, %d, v%d" % (vT2, ST_BASE, vT2))
    k.e("v_add_u32 v%d, %d, v%d" % (vT3, ST_BASE, vT3))
    for t in range(5):
        k.e("ds_read_b32 v%d, v%d offset:%d" % (vSr + t, vT2, 640 + 64 * t))
        k.e("ds_read_b32 v%d, v%d offset:%d" % (vSn + t, vT2, 960 + 64 * t))
        k.e("ds_read_b128 %s, v%d offset:%d" % (vr(vVr + 4 * t, 4), vT3, 640 + 64 * t))
        k.e("ds_read_b128 %s, v%d offset:%d" % (vr(vVn + 4 * t, 4), vT3, 960 + 64 * t))
    vBc = vE + 52
    vBp = vE + 56
    vBp1 = vE + 60
    vNeg = vE + 64
    k.e("v_mov_b32 v%d, 0x%08x" % (vNeg, f32bits(NEG)))
    k.e("v_lshlrev_b32 v%d, 2, v%d" % (vT2, vT1))
    k.e("v_sub_u32 v%d, v%d, v%d" % (vT2, vT0, vT2))
    vSgn = vE + 65
    k.e("v_mov_b32 v%d, 0x80000000" % vSgn)
    for r in range(4):
        k.e("v_subrev_u32 v%d, %d, v%d" % (vT3, r, vT2))
        k.e("v_and_b32 v%d, 0x80000001, v%d" % (vT3, vT3))
        k.e("v_cmp_eq_u32 vcc, 0, v%d" % vT3)
        k.e("v_cmp_eq_u32 s[38:39], v%d, v%d" % (vSgn, vT3))
        k.e("s_nop 1")
        k.e("v_cndmask_b32_e64 v%d, v%d, 0, vcc" % (vBc + r, vNeg))
        k.e("v_cndmask_b32_e64 v%d, v%d, 0, s[38:39]" % (vBp + r, vNeg))
    k.e("s_cmp_eq_u32 s%d, 0" % sRB)
    k.e("s_cselect_b64 s[38:39], -1, 0")
    for r in range(4):
        k.e("v_cndmask_b32_e64 v%d, v%d, v%d, s[38:39]" % (vBp1 + r, vBp + r, vNeg))
    k.e("s_mov_b32 s%d, 0x%08x" % (sScale, f32bits(0.25 * 1.4426950408889634)))
    k.e("s_waitcnt lgkmcnt(0)")
    vQb = vX
    vKb = vX + 8
    vVb = vX + 18
    for t in range(5):
        for (acc, cs, dst, on) in ((vQ + 4 * (t - 1), vCq, vQb + 2 * (t - 1), t >= 1), (vKk + 4 * t, vCk, vKb + 2 * t, True)):
            if not on:
                continue
            for r in range(4):
                k.e("v_mul_f32 v%d, v%d, v%d" % (vT0 + r, vSn + t, cs + r))
            for r in range(4):
                k.e("v_fma_f32 v%d, v%d, v%d, v%d" % (vT0 + r, vSr + t, acc + r, vT0 + r))
            k.e("v_cvt_pk_bf16_f32 v%d, v%d, v%d" % (dst, vT0, vT1))
            k.e("v_cvt_pk_bf16_f32 v%d, v%d, v%d" % (dst + 1, vT2, vT3))
        for r in range(4):
            k.e("v_mul_f32 v%d, v%d, v%d" % (vT0 + r, vVn + 4 * t + r, vCv))
        for r in range(4):
            k.e("v_fma_f32 v%d, v%d, v%d, v%d" % (vT0 + r, vVr + 4 * t + r, vV + 4 * t + r, vT0 + r))
        k.e("v_cvt_pk_bf16_f32 v%d, v%d, v%d" % (vVb + 2 * t, vT0, vT1))
        k.e("v_cvt_pk_bf16_f32 v%d, v%d, v%d" % (vVb + 2 * t + 1, vT2, vT3))
    k.e("s_nop 1")
    vS = vQ
    for t in range(4):
        k.e("v_mfma_f32_16x16x16_bf16 %s, %s, %s, 0" % (vr(vS + 8 * t, 4), vr(vKb + 2 * t, 2), vr(vQb + 2 * t, 2)))
        k.e("v_mfma_f32_16x16x16_bf16 %s, %s, %s, 0" % (vr(vS + 8 * t + 4, 4), vr(vKb + 2 * (t + 1), 2), vr(vQb + 2 * t, 2)))
    k.e("s_nop 7")
    k.e("s_nop 1")
    vMx = vE
    vMy = vE + 4
    vSum = vE + 8
    for t in range(4):
        for r in range(4):
            k.e("v_fma_f32 v%d, v%d, s%d, v%d" % (vS + 8 * t + r, vS + 8 * t + r, sScale, (vBp1 if t == 0 else vBp) + r))
            k.e("v_fma_f32 v%d, v%d, s%d, v%d" % (vS + 8 * t + 4 + r, vS + 8 * t + 4 + r, sScale, vBc + r))
        b = vS + 8 * t
        k.e("v_max3_f32 v%d, v%d, v%d, v%d" % (vMx + t, b, b + 1, b + 2))
        k.e("v_max3_f32 v%d, v%d, v%d, v%d" % (vMx + t, vMx + t, b + 3, b + 4))
        k.e("v_max3_f32 v%d, v%d, v%d, v%d" % (vMx + t, vMx + t, b + 5, b + 6))
        k.e("v_max_f32 v%d, v%d, v%d" % (vMx + t, vMx + t, b + 7))
    for op in ("v_permlane32_swap_b32", "v_permlane16_swap_b32"):
        for t in range(4):
            k.e("v_mov_b32 v%d, v%d" % (vMy + t, vMx + t))
        k.e("s_nop 1")
        for t in range(4):
            k.e("%s v%d, v%d" % (op, vMx + t, vMy + t))
        for t in range(4):
            k.e("v_max_f32 v%d, v%d, v%d" % (vMx + t, vMx + t, vMy + t))
    for t in range(4):
        b = vS + 8 * t
        for i in range(8):
            k.e("v_sub_f32 v%d, v%d, v%d" % (b + i, b + i, vMx + t))
        for i in range(8):
            k.e("v_exp_f32 v%d, v%d" % (b + i, b + i))
        k.e("s_nop 0")
        k.e("v_add_f32 v%d, v%d, v%d" % (vSum + t, b, b + 1))
        for i in range(2, 8):
            k.e("v_add_f32 v%d, v%d, v%d" % (vSum + t, vSum + t, b + i))
    vP = vE + 12
    for t in range(4):
        b = vS + 8 * t
        for i in range(4):
            k.e("v_cvt_pk_bf16_f32 v%d, v%d, v%d" % (vP + 4 * t + i, b + 2 * i, b + 2 * i + 1))
    for op in ("v_permlane32_swap_b32", "v_permlane16_swap_b32"):
        for t in range(4):
            k.e("v_mov_b32 v%d, v%d" % (vMy + t, vSum + t))
        k.e("s_nop 1")
        for t in range(4):
            k.e("%s v%d, v%d" % (op, vSum + t, vMy + t))
        for t in range(4):
            k.e("v_add_f32 v%d, v%d, v%d" % (vSum + t, vSum + t, vMy + t))
    vOa = vE + 28
    for t in range(4):
        k.e("v_mfma_f32_16x16x16_bf16 %s, %s, %s, 0" % (vr(vOa + 4 * t, 4), vr(vVb + 2 * t, 2), vr(vP + 4 * t, 2)))
    for t in range(4):
        k.e("v_mfma_f32_16x16x16_bf16 %s, %s, %s, %s" % (vr(vOa + 4 * t, 4), vr(vVb + 2 * (t + 1), 2), vr(vP + 4 * t + 2, 2), vr(vOa + 4 * t, 4)))
    for t in range(4):
        k.e("v_rcp_f32 v%d, v%d" % (vSum + t, vSum + t))
    k.e("v_and_b32 v%d, 15, v%d" % (vT0, vL))
    k.e("s_lshl_b32 s3, s%d, 6" % sRB)
    k.e("v_add_u32 v%d, s3, v%d" % (vT0, vT0))
    k.e("v_lshlrev_b32 v%d, 10, v%d" % (vT0, vT0))
    k.e("v_lshrrev_b32 v%d, 4, v%d" % (vT1, vL))
    k.e("v_lshl_add_u32 v%d, v%d, 3, v%d" % (vT0, vT1, vT0))
    k.e("s_lshl_b32 s3, s%d, 2" % sHG)
    k.e("s_add_u32 s3, s3, s%d" % sW)
    k.e("s_lshl_b32 s3, s3, 5")
    k.e("v_add_u32 v%d, s3, v%d" % (vT0, vT0))
    k.e("s_nop 3")
    for t in range(4):
        for r in range(4):
            k.e("v_mul_f32 v%d, v%d, v%d" % (vOa + 4 * t + r, vOa + 4 * t + r, vSum + t))
        k.e("v_cvt_pk_bf16_f32 v%d, v%d, v%d" % (vP + 2 * t, vOa + 4 * t, vOa + 4 * t + 1))
        k.e("v_cvt_pk_bf16_f32 v%d, v%d, v%d" % (vP + 2 * t + 1, vOa + 4 * t + 2, vOa + 4 * t + 3))
        k.e("s_mov_b32 s3, %d" % (t * 16384))
        k.vmem("buffer_store_dwordx2 %s, v%d, %s, s3 offen%s" % (vr(vP + 2 * t, 2), vT0, sr(S_C, 4), " sc1" if MERGE else ""), "st")
    k.stamp(13)
    if MERGE:
        phase2(k, name, sW, sRB, sHG)
    k.stamp_rt(14)
    k.dump(0, sW, 15 if not MERGE else 20)
    k.e("s_endpgm")

    k.lab("%s_loader" % name)
    vRa = 10
    vOne = 12
    vF = 16
    vG = 28
    vR = 40
    k.e("s_and_b32 s%d, s%d, 1" % (sT, sW))
    k.e("s_lshl_b32 s3, s%d, 2" % sT)
    k.e("v_and_b32 v2, 15, v1")
    k.e("v_lshrrev_b32 v3, 4, v1")
    k.e("v_lshrrev_b32 v9, 1, v2")
    k.e("v_xor_b32 v9, v9, v3")
    k.e("v_xor_b32 v9, s3, v9")
    k.e("v_lshlrev_b32 v2, 7, v2")
    k.e("v_lshl_add_u32 v%d, v9, 4, v2" % vRa)
    k.e("v_add_u32 v%d, %d, v%d" % (vRa + 1, 2 * SLOT, vRa))
    for i in range(4):
        k.e("v_mov_b32 v%d, 0x3f803f80" % (vOne + i))

    def stats_stage(i, tiles):
        slot = i % NS
        for n, t in enumerate(tiles):
            k.lds("ds_read_b128 %s, v%d offset:%d" % (vr(vF + 4 * n, 4), vRa + slot // 2, (slot % 2) * SLOT + 2048 * t), ("f", n))
        for n, t in enumerate(tiles):
            k.wait_lds(("f", n))
            k.e("v_mfma_f32_16x16x32_bf16 %s, %s, %s, %s" % (vr(vG + 4 * n, 4), vr(vF + 4 * n, 4), vr(vF + 4 * n, 4), "0" if i == 0 else vr(vG + 4 * n, 4)))
            k.e("v_mfma_f32_16x16x32_bf16 %s, %s, %s, %s" % (vr(vR + 4 * n, 4), vr(vF + 4 * n, 4), vr(vOne, 4), "0" if i == 0 else vr(vR + 4 * n, 4)))

    def stats_finish(tiles):
        k.e("v_and_b32 v2, 3, v1")
        k.e("v_cmp_eq_u32 s[48:49], 1, v2")
        k.e("v_cmp_eq_u32 s[50:51], 2, v2")
        k.e("v_cmp_eq_u32 s[52:53], 3, v2")
        k.e("v_bfe_u32 v2, v1, 2, 2")
        k.e("v_lshrrev_b32 v3, 4, v1")
        k.e("v_cmp_eq_u32 vcc, v2, v3")
        k.e("s_mul_i32 s3, s%d, 1280" % sT)
        k.e("s_add_u32 s3, s3, %d" % ST_BASE)
        k.e("v_and_b32 v2, 15, v1")
        k.e("v_lshlrev_b32 v2, 2, v2")
        k.e("v_add_u32 v2, s3, v2")
        k.e("s_nop 3")
        for n, t in enumerate(tiles):
            for base in (vG + 4 * n, vR + 4 * n):
                k.e("v_cndmask_b32_e64 v%d, v%d, v%d, s[48:49]" % (base, base, base + 1))
                k.e("v_cndmask_b32_e64 v%d, v%d, v%d, s[50:51]" % (base, base, base + 2))
                k.e("v_cndmask_b32_e64 v%d, v%d, v%d, s[52:53]" % (base, base, base + 3))
        k.e("s_and_saveexec_b64 s[38:39], vcc")
        for n, t in enumerate(tiles):
            k.e("ds_write_b32 v2, v%d offset:%d" % (vR + 4 * n, 64 * t))
            k.e("ds_write_b32 v2, v%d offset:%d" % (vG + 4 * n, 320 + 64 * t))
        k.e("s_mov_b64 exec, s[38:39]")
        k.e("s_waitcnt lgkmcnt(0)")
        k.e("s_barrier")

    k.e("s_cmp_ge_u32 s%d, 6" % sW)
    k.e("s_cbranch_scc1 %s_loadw" % name)
    k.e("s_cmp_eq_u32 s%d, 5" % sW)
    k.e("s_cbranch_scc1 %s_pref" % name)
    k.vm = []
    k.lq = []
    srd(k, S_A, 44, 2 << 20)
    vOff = 4
    vPo = 56
    k.e("s_lshl_b32 s3, s%d, 6" % sRB)
    k.e("s_sub_u32 s3, s3, 16")
    k.e("v_lshrrev_b32 v2, 3, v1")
    k.e("v_add_u32 v2, s3, v2")
    k.e("v_and_b32 v3, 7, v1")
    k.e("v_lshrrev_b32 v9, 4, v1")
    k.e("v_xor_b32 v3, v3, v9")
    for p in range(10):
        k.e("v_add_u32 v9, %d, v2" % (8 * p))
        k.e("v_max_i32 v9, 0, v9")
        k.e("v_lshlrev_b32 v9, 10, v9")
        if p & 1:
            k.e("v_xor_b32 v%d, 4, v3" % (vPo + p))
            k.e("v_lshl_add_u32 v%d, v%d, 4, v9" % (vPo + p, vPo + p))
        else:
            k.e("v_lshl_add_u32 v%d, v3, 4, v9" % (vPo + p))

    def lda(st):
        slot = st % NS
        k.e("s_lshl_b32 s%d, s%d, 7" % (sOff, sK))
        k.e("s_add_u32 s%d, s%d, 1" % (sK, sK))
        k.e("s_and_b32 s%d, s%d, 7" % (sK, sK))
        for p in range(10):
            k.e("s_mov_b32 m0, %d" % (slot * SLOT + p * 1024))
            k.e("s_nop 0")
            k.vmem("buffer_load_dwordx4 v%d, %s, s%d offen lds" % (vPo + p, sr(S_A, 4), sOff), ("s", st))

    k.stamp(2)
    lda(0)
    if not EARLY1:
        lda(1)
    k.stamp(3)
    for i in range(8):
        k.wait_vm(("s", i))
        k.stamp(4 + i)
        k.e("s_barrier")
        if i == 0 and EARLY1:
            lda(1)
        if i + 2 < 8:
            lda(i + 2)
        stats_stage(i, [0, 1, 2])
    stats_finish([0, 1, 2])
    k.e("s_branch %s_fin" % name)
    k.lab("%s_pref" % name)
    k.vm = []
    k.lq = []
    k.stamp(2)
    k.stamp(3)
    for i in range(8):
        k.stamp(4 + i)
        k.e("s_barrier")
        if i == 6 and PREF:
            srd(k, S_A, 6, 512 * 1024)
            k.e("v_lshrrev_b32 v4, 2, v1")
            k.e("v_lshlrev_b32 v4, 10, v4")
            k.e("v_and_b32 v3, 3, v1")
            k.e("v_lshl_add_u32 v4, v3, 7, v4")
            k.e("s_lshr_b32 s%d, s2, 3" % sOff)
            k.e("s_lshl_b32 s%d, s%d, 14" % (sOff, sOff))
            k.e("s_and_b32 s%d, s2, 1" % sM)
            k.e("s_lshl_b32 s%d, s%d, 9" % (sM, sM))
            k.e("s_add_u32 s%d, s%d, s%d" % (sOff, sOff, sM))
            k.vmem("buffer_load_dword v56, v4, %s, s%d offen" % (sr(S_A, 4), sOff), "pf")
            k.e("v_lshlrev_b32 v2, 7, v1")
            k.e("s_mul_i32 s3, s2, 7168")
            k.e("v_cmp_gt_u32 vcc, 56, v1")
            k.e("s_and_saveexec_b64 s[38:39], vcc")
            for ptr in (20, 22):
                srd(k, S_B, ptr, 512 * 3584)
                k.vmem("buffer_load_dword v57, v2, %s, s3 offen" % sr(S_B, 4), "pf")
            k.e("s_mov_b64 exec, s[38:39]")
        stats_stage(i, [0, 1, 2])
    stats_finish([0, 1, 2])
    k.lab("%s_fin" % name)
    k.e("s_mul_i32 s3, s%d, 160" % sT)
    k.e("s_add_u32 s3, s3, %d" % ST_BASE)
    k.e("v_lshlrev_b32 v2, 2, v1")
    k.e("v_add_u32 v2, s3, v2")
    k.e("v_cmp_gt_u32 vcc, 40, v1")
    k.e("s_and_saveexec_b64 s[38:39], vcc")
    k.e("ds_read_b32 v3, v2")
    k.e("ds_read_b32 v9, v2 offset:320")
    k.e("ds_read_b32 v4, v2 offset:1280")
    k.e("ds_read_b32 v5, v2 offset:1600")
    k.e("s_waitcnt lgkmcnt(0)")
    k.e("v_add_f32 v3, v3, v4")
    k.e("v_add_f32 v9, v9, v5")
    k.e("v_mul_f32 v3, 0x3b000000, v3")
    k.e("v_mul_f32 v9, 0x3b000000, v9")
    k.e("v_fma_f32 v9, -v3, v3, v9")
    k.e("v_max_f32 v9, 0, v9")
    k.e("v_add_f32 v9, 0x3727c5ac, v9")
    k.e("v_rsq_f32 v9, v9")
    k.e("s_nop 0")
    k.e("v_mul_f32 v3, v3, v9")
    k.e("v_sub_f32 v3, 0, v3")
    k.e("ds_write_b32 v2, v9 offset:640")
    k.e("ds_write_b32 v2, v3 offset:960")
    k.e("s_waitcnt lgkmcnt(0)")
    k.e("s_mov_b64 exec, s[38:39]")
    k.e("s_barrier")
    k.stamp(12)
    if MERGE:
        k.e("s_waitcnt vmcnt(0)")
        k.e("s_barrier")
        k.e("s_cmp_eq_u32 s%d, 4" % sW)
        k.e("s_cbranch_scc1 %s_nopoll" % name)
        srd(k, S_A, 4, 256 * 128, WS_FLAG)
        k.e("s_memrealtime s[56:57]")
        k.e("s_lshl_b32 s3, s%d, 3" % sRB)
        k.e("s_add_u32 s%d, s3, s%d" % (sOff, sHG))
        k.e("s_lshl_b32 s%d, s%d, 7" % (sOff, sOff))
        k.e("v_mov_b32 v2, s%d" % sOff)
        k.e("s_lshl_b32 s3, s3, 7")
        k.e("v_and_b32 v3, 7, v1")
        k.e("v_lshlrev_b32 v3, 7, v3")
        k.e("v_add_u32 v3, s3, v3")
        k.e("s_waitcnt lgkmcnt(0)")
        k.e("v_mov_b32 v4, s56")
        k.e("v_mov_b32 v5, s57")
        k.e("v_xor_b32 v6, 0x5bd1e995, v4")
        k.e("v_xor_b32 v7, 0x9e3779b9, v5")
        k.e("v_cmp_eq_u32 vcc, 0, v1")
        k.e("s_and_saveexec_b64 s[38:39], vcc")
        k.e("buffer_store_dwordx4 v[4:7], v2, %s, 0 offen sc1" % sr(S_A, 4))
        k.e("s_mov_b64 exec, s[38:39]")
        k.e("s_sub_u32 s54, s54, 200")
        k.e("s_subb_u32 s55, s55, 0")
        k.e("s_mov_b32 s%d, 0" % sM)
        k.lab("%s_poll" % name)
        k.e("buffer_load_dwordx4 v[8:11], v3, %s, 0 offen sc1" % sr(S_A, 4))
        k.e("s_waitcnt vmcnt(0)")
        k.e("v_xor_b32 v10, v10, v8")
        k.e("v_xor_b32 v11, v11, v9")
        k.e("v_subrev_co_u32 v8, vcc, s54, v8")
        k.e("v_mov_b32 v12, s55")
        k.e("s_nop 0")
        k.e("v_subb_co_u32 v9, vcc, v9, v12, vcc")
        k.e("v_xor_b32 v10, 0x5bd1e995, v10")
        k.e("v_xor_b32 v11, 0x9e3779b9, v11")
        k.e("v_lshrrev_b32 v8, 20, v8")
        k.e("v_or_b32 v8, v8, v9")
        k.e("v_or3_b32 v8, v8, v10, v11")
        k.e("v_cmp_eq_u32 vcc, 0, v8")
        k.e("s_add_u32 s%d, s%d, 1" % (sM, sM))
        k.e("s_cmp_eq_u64 vcc, exec")
        k.e("s_cbranch_scc1 %s_nopoll" % name)
        k.e("s_cmp_lt_u32 s%d, 0x10000" % sM)
        k.e("s_cbranch_scc1 %s_poll" % name)
        k.lab("%s_nopoll" % name)
        k.e("s_barrier")
        k.e("s_barrier")
    k.e("s_waitcnt vmcnt(0)")
    k.stamp(13)
    k.stamp_rt(14)
    k.dump(0, sW, 15)
    k.e("s_endpgm")

    k.lab("%s_loadw" % name)
    k.vm = []
    k.lq = []
    srd(k, S_B, 46, 512 * 3072)
    vWe, vWo = 4, 5
    k.e("v_lshrrev_b32 v2, 3, v1")
    k.e("v_mul_u32_u24 v%d, 3072, v2" % vWe)
    k.e("v_and_b32 v2, 1, v1")
    k.e("v_lshl_add_u32 v%d, v2, 4, v%d" % (vWe, vWe))
    k.e("s_lshl_b32 s3, s%d, 7" % sHG)
    k.e("v_add_u32 v%d, s3, v%d" % (vWe, vWe))
    k.e("v_bfe_u32 v2, v1, 1, 2")
    k.e("v_bfe_u32 v3, v1, 4, 1")
    k.e("v_xor_b32 v2, v2, v3")
    k.e("v_xor_b32 v3, 2, v2")
    k.e("v_lshl_add_u32 v%d, v3, 5, v%d" % (vWo, vWe))
    k.e("v_lshl_add_u32 v%d, v2, 5, v%d" % (vWe, vWe))
    k.e("s_mul_i32 s%d, s%d, %d" % (sM, sT, 12 * 1024))
    k.e("s_add_u32 s%d, s%d, %d" % (sM, sM, A_BYTES))
    sG = 82
    for p in range(12):
        p0, p1 = p, 12 + p
        g0 = (p0 // 8) * 1024 + (p0 % 8) * 8 * 3072
        g1 = (p1 // 8) * 1024 + (p1 % 8) * 8 * 3072
        k.e("s_cmp_eq_u32 s%d, 0" % sT)
        k.e("s_mov_b32 s%d, %d" % (sG + p, g1))
        k.e("s_cmov_b32 s%d, %d" % (sG + p, g0))

    def ldw(st):
        slot = st % NS
        k.e("s_mul_i32 s%d, s%d, %d" % (sKb, sK, 64 * 3072))
        k.e("s_add_u32 s%d, s%d, 1" % (sK, sK))
        k.e("s_and_b32 s%d, s%d, 7" % (sK, sK))
        for p in range(12):
            k.e("s_add_u32 m0, s%d, %d" % (sM, slot * SLOT + p * 1024))
            k.e("s_add_u32 s%d, s%d, s%d" % (sOff, sG + p, sKb))
            k.vmem("buffer_load_dwordx4 v%d, %s, s%d offen lds" % (vWo if p & 1 else vWe, sr(S_B, 4), sOff), ("s", st))

    k.stamp(2)
    ldw(0)
    if not EARLY1:
        ldw(1)
    k.stamp(3)
    for i in range(8):
        k.wait_vm(("s", i))
        k.stamp(4 + i)
        k.e("s_barrier")
        if i == 0 and EARLY1:
            ldw(1)
        stats_stage(i, [3, 4])
        if i + 2 < 8:
            ldw(i + 2)
    stats_finish([3, 4])
    k.e("s_barrier")
    k.stamp(12)
    if MERGE:
        srd(k, S_B, 6, 512 * 1024)
        k.e("v_lshrrev_b32 v2, 3, v1")
        k.e("v_lshlrev_b32 v%d, 10, v2" % vWe)
        k.e("v_and_b32 v2, 1, v1")
        k.e("v_lshl_add_u32 v%d, v2, 4, v%d" % (vWe, vWe))
        k.e("s_lshl_b32 s3, s%d, 7" % sHG)
        k.e("v_add_u32 v%d, s3, v%d" % (vWe, vWe))
        k.e("v_bfe_u32 v2, v1, 1, 2")
        k.e("v_bfe_u32 v3, v1, 4, 1")
        k.e("v_xor_b32 v2, v2, v3")
        k.e("v_xor_b32 v3, 2, v2")
        k.e("v_lshl_add_u32 v%d, v3, 5, v%d" % (vWo, vWe))
        k.e("v_lshl_add_u32 v%d, v2, 5, v%d" % (vWe, vWe))
        k.e("s_lshl_b32 s%d, s%d, 18" % (sOff, sT))
        k.e("s_lshl_b32 s%d, s%d, 16" % (sM, sT))
        for ww in range(2):
            for pc in range(16):
                k.e("s_add_u32 m0, s%d, %d" % (sM, ww * 32768 + 16384 + pc * 1024))
                k.e("s_nop 0")
                k.vmem("buffer_load_dwordx4 v%d, %s, s%d offen lds" % (vWo if pc & 1 else vWe, sr(S_B, 4), sOff), "wo")
                k.e("s_add_u32 s%d, s%d, 8192" % (sOff, sOff))
        k.e("s_waitcnt vmcnt(0)")
        k.e("s_barrier")
        k.e("s_barrier")
        k.e("s_barrier")
    k.e("s_waitcnt vmcnt(0)")
    k.stamp(13)
    k.stamp_rt(14)
    k.dump(0, sW, 15)
    k.lab("%s_end" % name)
    k.e("s_endpgm")
    return k.text(), nv, LDS
```

```python
import sys

import os
import re
DIAG = bool(os.environ.get("DIAG"))
ROT = not os.environ.get("NOROT")
PREF = not os.environ.get("NOPREF")
PREF2 = bool(os.environ.get("PREF2"))
MAP48 = not os.environ.get("NOMAP48")
PKN = bool(os.environ.get("PKN"))
MERGE = not os.environ.get("NOMERGE")
EARLY = bool(os.environ.get("EARLY"))
EARLY1 = bool(os.environ.get("EARLY1"))
STF = os.environ.get("STF", "")
STF2 = os.environ.get("STF2", "")
V_WAIT = os.environ.get("V_WAIT", "2")
V_ARD = int(os.environ.get("V_ARD", "3"))
V_NRM = [int(c) for c in os.environ.get("V_NRM", "3333332")]
NAME = "sequential_preLN__sliding_local_dilated__glu_gated_geglu__prompt"

WS_O = 0
WS_H = 2 << 20
WS_HH = 4 << 20
WS_HST = 12 << 20
WS_FLAG = 13 << 20

KA_X, KA_WQKV, KA_WO, KA_BX, KA_WG, KA_WU, KA_WD, KA_OUT, KA_DBG, KA_WS = [8 * i for i in range(10)]


class K:
    def __init__(self):
        self.lines = []
        self.vm = []
        self.lq = []

    def e(self, s):
        m = re.search(r"offset:(\d+)", s)
        if m:
            lim = 4096 if s.startswith("buffer_") else 65536
            assert int(m.group(1)) < lim, s
        self.lines.append("  " + s)

    def lab(self, s):
        self.lines.append(s + ":")

    def c(self, s):
        self.lines.append("  ; " + s)

    def vmem(self, s, tag):
        self.e(s)
        self.vm.append(tag)

    def wait_vm(self, tag):
        idx = max((i for i, t in enumerate(self.vm) if t == tag), default=None)
        if idx is None:
            return
        n = len(self.vm) - 1 - idx
        assert n <= 63, n
        self.e("s_waitcnt vmcnt(%d)" % n)
        self.vm = self.vm[idx + 1:]

    def lds(self, s, tag):
        self.e(s)
        self.lq.append(tag)

    def wait_lds(self, tag):
        idx = max((i for i, t in enumerate(self.lq) if t == tag), default=None)
        if idx is None:
            return False
        n = len(self.lq) - 1 - idx
        if n > 15:
            n = 15
            idx = len(self.lq) - 1 - n
        self.e("s_waitcnt lgkmcnt(%d)" % n)
        self.lq = self.lq[idx + 1:]
        return True

    def wait_lds_all(self):
        self.e("s_waitcnt lgkmcnt(0)")
        self.lq = []

    def wait_vm_all(self):
        self.e("s_waitcnt vmcnt(0)")
        self.vm = []

    def text(self):
        return "\n".join(self.lines) + "\n"

    def stamp(self, i):
        if not DIAG:
            return
        self.e("s_memtime s[58:59]")
        self.e("s_waitcnt lgkmcnt(0)")
        self.lq = []
        self.e("s_mov_b32 s%d, s58" % (64 + i))

    def stamp_rt(self, i):
        if not DIAG:
            return
        self.e("s_memrealtime s[58:59]")
        self.e("s_waitcnt lgkmcnt(0)")
        self.e("s_mov_b32 s%d, s58" % (64 + i))

    def dump(self, kidx, sW, n):
        if not DIAG:
            return
        self.e("s_add_u32 s60, s4, 0x%x" % ((32 << 20) + (kidx << 20)))
        self.e("s_addc_u32 s61, s5, 0")
        self.e("s_mov_b32 s62, 0x100000")
        self.e("s_mov_b32 s63, 0x00020000")
        self.e("s_lshl_b32 s58, s2, 3")
        self.e("s_add_u32 s58, s58, s%d" % sW)
        self.e("s_lshl_b32 s58, s58, 7")
        self.e("v_mov_b32 v0, s58")
        for i in range(n):
            self.e("v_mov_b32 v1, s%d" % (64 + i))
            self.e("buffer_store_dword v1, v0, s[60:63], 0 offen offset:%d" % (4 * i))
            self.e("s_nop 1")


def vr(a, n=1):
    return "v%d" % a if n == 1 else "v[%d:%d]" % (a, a + n - 1)


def sr(a, n=1):
    return "s%d" % a if n == 1 else "s[%d:%d]" % (a, a + n - 1)


def srd(k, d, ptr, nbytes, off=0):
    if off:
        k.e("s_add_u32 s%d, s%d, 0x%x" % (d, ptr, off))
        k.e("s_addc_u32 s%d, s%d, 0" % (d + 1, ptr + 1))
    else:
        k.e("s_mov_b32 s%d, s%d" % (d, ptr))
        k.e("s_mov_b32 s%d, s%d" % (d + 1, ptr + 1))
    k.e("s_mov_b32 s%d, 0x%x" % (d + 2, nbytes))
    k.e("s_mov_b32 s%d, 0x00020000" % (d + 3))


def header(k, name):
    k.lines.append(".globl %s" % name)
    k.lines.append(".p2align 8")
    k.lines.append(".type %s,@function" % name)
    k.lab(name)


def descriptor(name, nvgpr, nsgpr=96):
    nv = (nvgpr + 7) // 8 * 8
    return """.p2align 6
.amdhsa_kernel %s
  .amdhsa_next_free_vgpr %d
  .amdhsa_next_free_sgpr %d
  .amdhsa_accum_offset %d
  .amdhsa_group_segment_fixed_size 0
  .amdhsa_kernarg_size 80
  .amdhsa_user_sgpr_count 2
  .amdhsa_user_sgpr_kernarg_segment_ptr 1
  .amdhsa_system_sgpr_workgroup_id_x 1
.end_amdhsa_kernel
""" % (name, nv, nsgpr, min(nv, 256))


def gen_t2(name, Kdim, lda, a_src, b_ka, r_src, c_dst, stats, kidx=0, LOOK=3, skip=''):
    k = K()
    header(k, name)
    Kw = Kdim // 4
    ns = Kw // 32
    nu = ns // 2
    DA = min(nu, 3)
    DB = min(ns, 4)
    BOFF = DA * 8192
    S_A, S_B, S_R, S_C, S_ST = 8, 12, 16, 20, 24
    sW, sRB, sCB, sT, sLB = 28, 29, 30, 31, 32
    sTile = 36
    sBoff = 40
    sAoff = 41
    sK = 42
    sKb = 43
    sKB = 50
    vL, vAe, vBe, vBo = 1, 2, 3, 4
    vTr = 5
    vRo = 9
    vT0, vT1, vT2 = 10, 11, 12
    vXa = 13
    vAo = 15
    vRes = 16
    vAcc = 24
    vBf = 88
    vAf = 120
    nv = 160

    k.e("s_cmp_ge_u32 s2, 256")
    k.e("s_cbranch_scc1 %s_end" % name)
    k.stamp_rt(0)
    k.stamp(1)
    k.e("s_load_dwordx2 s[4:5], s[0:1], %d" % KA_WS)
    k.e("s_load_dwordx2 s[6:7], s[0:1], %d" % b_ka)
    if stats:
        k.e("s_load_dwordx4 s[52:55], s[0:1], %d" % KA_WG)
    nxt = 44
    for src in (a_src, r_src, c_dst):
        if src[0] == 'ka':
            k.e("s_load_dwordx2 s[%d:%d], s[0:1], %d" % (nxt, nxt + 1, src[1]))
            nxt += 2
    k.e("v_lshrrev_b32 v%d, 6, v0" % vT0)
    k.e("v_and_b32 v%d, 63, v0" % vL)
    k.e("v_readfirstlane_b32 s%d, v%d" % (sW, vT0))
    if MAP48 and ns == 14:
        k.e("s_and_b32 s3, s2, 7")
        k.e("s_lshl_b32 s%d, s3, 2" % sRB)
        k.e("s_lshr_b32 s3, s2, 6")
        k.e("s_add_u32 s%d, s%d, s3" % (sRB, sRB))
        k.e("s_lshr_b32 s%d, s2, 3" % sT)
        k.e("s_and_b32 s%d, s%d, 7" % (sCB, sT))
        k.e("s_lshl_b32 s%d, s3, 1" % sK)
        k.e("s_add_u32 s%d, s%d, s%d" % (sK, sK, sCB))
        k.e("s_cmp_ge_u32 s%d, 7" % sK)
        k.e("s_cselect_b32 s3, 7, 0")
        k.e("s_sub_u32 s%d, s%d, s3" % (sK, sK))
    else:
        k.e("s_and_b32 s3, s2, 7")
        k.e("s_lshr_b32 s%d, s2, 3" % sT)
        k.e("s_lshr_b32 s%d, s3, 1" % sRB)
        k.e("s_lshl_b32 s%d, s%d, 3" % (sRB, sRB))
        k.e("s_lshr_b32 s%d, s%d, 2" % (sCB, sT))
        k.e("s_add_u32 s%d, s%d, s%d" % (sRB, sRB, sCB))
        k.e("s_and_b32 s%d, s3, 1" % sCB)
        k.e("s_lshl_b32 s%d, s%d, 2" % (sCB, sCB))
        k.e("s_and_b32 s%d, s%d, 3" % (sT, sT))
        k.e("s_add_u32 s%d, s%d, s%d" % (sCB, sCB, sT))
        k.e("s_lshr_b32 s3, s2, 5")
        if nu == 7:
            k.e("s_lshl_b32 s%d, s%d, 1" % (sK, sT))
            k.e("s_add_u32 s%d, s%d, s3" % (sK, sK))
            k.e("s_cmp_ge_u32 s%d, 7" % sK)
            k.e("s_cselect_b32 s3, 7, 0")
            k.e("s_sub_u32 s%d, s%d, s3" % (sK, sK))
        else:
            assert nu == 2
            k.e("s_add_u32 s%d, s%d, s3" % (sK, sT))
            k.e("s_and_b32 s%d, s%d, 1" % (sK, sK))
    if not ROT:
        k.e("s_mov_b32 s%d, 0" % sK)
    k.e("s_mov_b32 s%d, s%d" % (sKB, sK))
    wave_lds = max(BOFF + DB * 4096, 12288)
    k.e("s_mul_i32 s%d, s%d, %d" % (sLB, sW, wave_lds))
    for t in range(4):
        k.e("s_add_u32 s%d, s%d, %d" % (sT, sW, t))
        k.e("s_and_b32 s%d, s%d, 3" % (sT, sT))
        k.e("s_mul_i32 s%d, s%d, %d" % (sTile + t, sT, 16 * lda))
    k.e("s_lshl_b32 s%d, s%d, 6" % (sT, sRB))
    k.e("v_lshrrev_b32 v%d, 3, v%d" % (vT0, vL))
    k.e("v_add_u32 v%d, s%d, v%d" % (vT1, sT, vT0))
    k.e("s_mov_b32 s3, %d" % lda)
    k.e("v_mul_lo_u32 v%d, v%d, s3" % (vAe, vT1))
    k.e("s_mul_i32 s3, s%d, %d" % (sW, Kw * 2))
    k.e("v_add_u32 v%d, s3, v%d" % (vAe, vAe))
    k.e("v_and_b32 v%d, 7, v%d" % (vT0, vL))
    k.e("v_lshrrev_b32 v%d, 4, v%d" % (vT2, vL))
    k.e("v_xor_b32 v%d, v%d, v%d" % (vT0, vT0, vT2))
    k.e("v_xor_b32 v%d, 4, v%d" % (vT1, vT0))
    k.e("v_add_u32 v%d, %d, v%d" % (vAo, 8 * lda, vAe))
    k.e("v_lshl_add_u32 v%d, v%d, 4, v%d" % (vAo, vT1, vAo))
    k.e("v_lshl_add_u32 v%d, v%d, 4, v%d" % (vAe, vT0, vAe))
    k.e("v_and_b32 v%d, 15, v%d" % (vT1, vL))
    k.e("v_lshrrev_b32 v%d, 1, v%d" % (vT0, vT1))
    k.e("v_xor_b32 v%d, v%d, v%d" % (vT0, vT0, vT2))
    k.e("v_lshlrev_b32 v%d, 7, v%d" % (vXa, vT1))
    k.e("v_add_u32 v%d, s%d, v%d" % (vXa, sLB, vXa))
    k.e("v_lshl_add_u32 v%d, v%d, 4, v%d" % (vXa, vT0, vXa))
    k.e("v_xor_b32 v%d, 64, v%d" % (vXa + 1, vXa))
    k.e("s_lshl_b32 s3, s%d, 4" % sW)
    k.e("s_add_u32 s3, s3, s%d" % sT)
    k.e("v_add_u32 v%d, s3, v%d" % (vT1, vT1))
    k.e("v_lshlrev_b32 v%d, 10, v%d" % (vRo, vT1))
    k.e("v_lshl_add_u32 v%d, v%d, 3, v%d" % (vRo, vT2, vRo))
    k.e("s_lshl_b32 s3, s%d, 7" % sCB)
    k.e("v_add_u32 v%d, s3, v%d" % (vRo, vRo))
    k.e("v_lshrrev_b32 v%d, 3, v%d" % (vT0, vL))
    k.e("v_lshlrev_b32 v%d, 10, v%d" % (vBe, vT0))
    k.e("v_and_b32 v%d, 1, v%d" % (vT0, vL))
    k.e("v_lshl_add_u32 v%d, v%d, 4, v%d" % (vBe, vT0, vBe))
    k.e("s_mul_i32 s%d, s%d, %d" % (sT, sW, Kw * 1024))
    k.e("s_add_u32 s3, s3, s%d" % sT)
    k.e("v_add_u32 v%d, s3, v%d" % (vBe, vBe))
    k.e("v_bfe_u32 v%d, v%d, 1, 2" % (vT0, vL))
    k.e("v_bfe_u32 v%d, v%d, 4, 1" % (vT1, vL))
    k.e("v_xor_b32 v%d, v%d, v%d" % (vT0, vT0, vT1))
    k.e("v_xor_b32 v%d, 2, v%d" % (vT1, vT0))
    k.e("v_lshl_add_u32 v%d, v%d, 5, v%d" % (vBo, vT1, vBe))
    k.e("v_lshl_add_u32 v%d, v%d, 5, v%d" % (vBe, vT0, vBe))
    k.e("v_lshrrev_b32 v%d, 4, v%d" % (vT0, vL))
    k.e("v_bfe_u32 v%d, v%d, 2, 2" % (vT1, vL))
    k.e("v_lshl_add_u32 v%d, v%d, 3, v%d" % (vT2, vT0, vT1))
    k.e("v_lshlrev_b32 v%d, 7, v%d" % (vT2, vT2))
    k.e("v_add_u32 v%d, s%d, v%d" % (vT2, sLB, vT2))
    k.e("v_and_b32 v%d, 3, v%d" % (vTr, vL))
    k.e("v_lshl_add_u32 v%d, v%d, 3, v%d" % (vT2, vTr, vT2))
    k.e("v_bfe_u32 v%d, v%d, 3, 1" % (vT1, vL))
    k.e("v_bfe_u32 v%d, v%d, 4, 1" % (vT0, vL))
    k.e("v_lshl_or_b32 v%d, v%d, 1, v%d" % (vT0, vT0, vT1))
    for j in range(4):
        k.e("v_xor_b32 v%d, %d, v%d" % (vT1, j, vT0))
        k.e("v_lshl_add_u32 v%d, v%d, 5, v%d" % (vTr + j, vT1, vT2))
    k.e("s_waitcnt lgkmcnt(0)")
    nxt = 44
    for d, src, nbytes in ((S_A, a_src, 2048 * lda), (S_R, r_src, 2 << 20), (S_C, c_dst, 2 << 20)):
        if src[0] == 'ka':
            srd(k, d, nxt, nbytes)
            nxt += 2
        else:
            srd(k, d, 4, nbytes, src[1])
    srd(k, S_B, 6, Kdim * 1024)
    if stats:
        srd(k, S_ST, 4, 2048 * 64, WS_HST)

    def issue_a(u):
        if 'A' in skip:
            return
        slot = u % DA
        k.e("s_lshl_b32 s%d, s%d, 7" % (sKb, sK))
        k.e("s_add_u32 s%d, s%d, 1" % (sK, sK))
        k.e("s_cmp_ge_u32 s%d, %d" % (sK, nu))
        k.e("s_cselect_b32 s%d, 0, s%d" % (sK, sK))
        for t in range(4):
            k.e("s_add_u32 s%d, s%d, s%d" % (sAoff, sTile + t, sKb))
            for p in range(2):
                k.e("s_add_u32 m0, s%d, %d" % (sLB, slot * 8192 + t * 2048 + p * 1024))
                k.e("s_nop 0")
                k.vmem("buffer_load_dwordx4 v%d, %s, s%d offen lds" % (vAo if p else vAe, sr(S_A, 4), sAoff), ("a", u))

    def issue_b(s):
        if 'B' in skip:
            return
        slot = s % DB
        if s % 2 == 0:
            k.e("s_lshl_b32 s%d, s%d, 16" % (sBoff, sKB))
            k.e("s_add_u32 s%d, s%d, 1" % (sKB, sKB))
            k.e("s_cmp_ge_u32 s%d, %d" % (sKB, nu))
            k.e("s_cselect_b32 s%d, 0, s%d" % (sKB, sKB))
        for i in range(4):
            k.e("s_add_u32 m0, s%d, %d" % (sLB, BOFF + slot * 4096 + i * 1024))
            k.e("s_nop 0")
            k.vmem("buffer_load_dwordx4 v%d, %s, s%d offen lds" % (vBo if i & 1 else vBe, sr(S_B, 4), sBoff), ("b", s))
            k.e("s_add_u32 s%d, s%d, 8192" % (sBoff, sBoff))

    def rd(s):
        buf = vBf + (s & 1) * 16
        ab = vAf + (s & 1) * 16
        bo = BOFF + (s % DB) * 4096
        ao = ((s // 2) % DA) * 8192
        ops = []
        for j in range(4):
            ops.append("ds_read_b64_tr_b16 %s, v%d offset:%d" % (vr(buf + j * 4, 2), vTr + j, bo))
            ops.append("ds_read_b64_tr_b16 %s, v%d offset:%d" % (vr(buf + j * 4 + 2, 2), vTr + j, bo + 512))
            ops.append("ds_read_b128 %s, v%d offset:%d" % (vr(ab + j * 4, 4), vXa + (s & 1), ao + j * 2048))
        return ops

    def wait_step(s):
        k.wait_vm(("a", s // 2))
        k.wait_vm(("b", s))

    k.stamp(2)
    ia = ib = 0
    issue_a(0); ia = 1
    issue_b(0); issue_b(1); ib = 2
    if nu > 1:
        issue_a(1); ia = 2
    issue_b(2); ib = 3
    for j in range(4):
        k.vmem("buffer_load_dwordx2 %s, v%d, %s, 0 offen offset:%d" % (vr(vRes + 2 * j, 2), vRo, sr(S_R, 4), 32 * j), "res")
    k.stamp(3)
    wait_step(0)
    k.stamp(4)
    for op in rd(0):
        k.e(op)
    for s in range(ns):
        buf = vBf + (s & 1) * 16
        ab = vAf + (s & 1) * 16
        k.e("s_waitcnt lgkmcnt(0)")
        if ib < ns:
            issue_b(ib); ib += 1
        if s % 2 == 0 and ia < nu and (ia < DA or s >= 2 * (ia - DA) + 1):
            issue_a(ia); ia += 1
        fill = []
        if s + 1 < ns:
            wait_step(s + 1)
            fill = rd(s + 1)
            if s + 2 == ns and stats and PREF:
                k.e("s_cmp_ge_u32 s%d, 2" % sW)
                k.e("s_cselect_b32 s6, s54, s52")
                k.e("s_cselect_b32 s7, s55, s53")
                srd(k, S_B, 6, 512 * 3584)
                k.e("s_lshr_b32 s3, s2, 3")
                k.e("s_lshl_b32 s3, s3, 1")
                k.e("s_and_b32 s%d, s%d, 1" % (sT, sW))
                k.e("s_add_u32 s3, s3, s%d" % sT)
                k.e("s_mul_i32 s3, s3, %d" % (8 * 3584))
                k.e("s_and_b32 s%d, s2, 3" % sT)
                k.e("s_mul_i32 s%d, s%d, 896" % (sT, sT))
                k.e("s_add_u32 s3, s3, s%d" % sT)
                k.e("v_lshrrev_b32 v%d, 3, v%d" % (vT0, vL))
                k.e("v_mul_u32_u24 v%d, 3584, v%d" % (vT0, vT0))
                k.e("v_and_b32 v%d, 7, v%d" % (vT1, vL))
                k.e("v_min_u32 v%d, 6, v%d" % (vT1, vT1))
                k.e("v_lshl_add_u32 v%d, v%d, 7, v%d" % (vT0, vT1, vT0))
                k.vmem("buffer_load_dword v152, v%d, %s, s3 offen" % (vT0, sr(S_B, 4)), "pf")
        fi = 0
        for t in range(4):
            for j in range(4):
                a = vAcc + (j * 4 + t) * 4
                cin = "0" if s == 0 else vr(a, 4)
                k.e("v_mfma_f32_16x16x32_bf16 %s, %s, %s, %s" % (vr(a, 4), vr(buf + j * 4, 4), vr(ab + t * 4, 4), cin))
                if fi < len(fill):
                    k.e(fill[fi]); fi += 1
        k.stamp(5 + s)
    assert ia == nu and ib == ns
    k.e("v_lshlrev_b32 v%d, 4, v%d" % (vT0, vL))
    k.e("v_add_u32 v%d, s%d, v%d" % (vT1, sLB, vT0))
    k.e("s_nop 7")
    k.e("s_nop 3")
    for t in range(1, 4):
        for j in range(4):
            k.e("ds_write_b128 v%d, %s offset:%d" % (vT1, vr(vAcc + (j * 4 + t) * 4, 4), (t - 1) * 4096 + j * 1024))
    k.wait_vm("res")
    vP = vBf
    vO = vP + 48
    for j in range(4):
        for h in range(2):
            k.e("v_lshlrev_b32 v%d, 16, v%d" % (vO + j * 4 + 2 * h, vRes + 2 * j + h))
            k.e("v_and_b32 v%d, 0xffff0000, v%d" % (vO + j * 4 + 2 * h + 1, vRes + 2 * j + h))
    for j in range(4):
        for r in range(4):
            k.e("v_add_f32 v%d, v%d, v%d" % (vO + j * 4 + r, vO + j * 4 + r, vAcc + (j * 4) * 4 + r))
    k.e("s_waitcnt lgkmcnt(0)")
    k.e("s_barrier")
    for d in range(1, 4):
        k.e("s_sub_u32 s3, s%d, %d" % (sW, d))
        k.e("s_and_b32 s3, s3, 3")
        k.e("s_mul_i32 s3, s3, %d" % wave_lds)
        k.e("v_add_u32 v%d, s3, v%d" % (vT1, vT0))
        for j in range(4):
            k.e("ds_read_b128 %s, v%d offset:%d" % (vr(vP + ((d - 1) * 4 + j) * 4, 4), vT1, (d - 1) * 4096 + j * 1024))
    for d in range(3):
        k.e("s_waitcnt lgkmcnt(%d)" % (8 - 4 * d))
        for j in range(4):
            for r in range(4):
                k.e("v_add_f32 v%d, v%d, v%d" % (vO + j * 4 + r, vO + j * 4 + r, vP + (d * 4 + j) * 4 + r))
    vPk = vP
    for j in range(4):
        k.e("v_cvt_pk_bf16_f32 v%d, v%d, v%d" % (vPk + 2 * j, vO + 4 * j, vO + 4 * j + 1))
        k.e("v_cvt_pk_bf16_f32 v%d, v%d, v%d" % (vPk + 2 * j + 1, vO + 4 * j + 2, vO + 4 * j + 3))
    for j in range(4):
        k.vmem("buffer_store_dwordx2 %s, v%d, %s, 0 offen offset:%d%s" % (vr(vPk + 2 * j, 2), vRo, sr(S_C, 4), 32 * j, STF2), "st")
    if stats:
        vS, vQ, vX, vY = vPk + 8, vPk + 9, vPk + 10, vPk + 11
        k.e("v_mov_b32 v%d, 0" % vS)
        k.e("v_mov_b32 v%d, 0" % vQ)
        for i in range(8):
            k.e("v_lshlrev_b32 v%d, 16, v%d" % (vX, vPk + i))
            k.e("v_and_b32 v%d, 0xffff0000, v%d" % (vY, vPk + i))
            k.e("v_add_f32 v%d, v%d, v%d" % (vS, vS, vX))
            k.e("v_fmac_f32 v%d, v%d, v%d" % (vQ, vX, vX))
            k.e("v_add_f32 v%d, v%d, v%d" % (vS, vS, vY))
            k.e("v_fmac_f32 v%d, v%d, v%d" % (vQ, vY, vY))
        for op in ("v_permlane32_swap_b32", "v_permlane16_swap_b32"):
            k.e("v_mov_b32 v%d, v%d" % (vX, vS))
            k.e("v_mov_b32 v%d, v%d" % (vY, vQ))
            k.e("s_nop 1")
            k.e("%s v%d, v%d" % (op, vS, vX))
            k.e("%s v%d, v%d" % (op, vQ, vY))
            k.e("v_add_f32 v%d, v%d, v%d" % (vS, vS, vX))
            k.e("v_add_f32 v%d, v%d, v%d" % (vQ, vQ, vY))
        k.e("v_lshrrev_b32 v%d, 10, v%d" % (vX, vRo))
        k.e("v_lshlrev_b32 v%d, 6, v%d" % (vX, vX))
        k.e("s_lshl_b32 s3, s%d, 3" % sCB)
        k.e("v_add_u32 v%d, s3, v%d" % (vX, vX))
        k.e("v_cmp_gt_u32 vcc, 16, v%d" % vL)
        k.e("s_and_saveexec_b64 s[34:35], vcc")
        k.vmem("buffer_store_dwordx2 %s, v%d, %s, 0 offen" % (vr(vS, 2), vX, sr(S_ST, 4)), "st")
        k.e("s_mov_b64 exec, s[34:35]")
    k.stamp(5 + ns)
    if DIAG:
        k.e("s_waitcnt vmcnt(0)")
    k.stamp(6 + ns)
    k.stamp_rt(7 + ns)
    k.dump(kidx, sW, 8 + ns)
    k.lab("%s_end" % name)
    k.e("s_endpgm")
    return k.text(), nv, 4 * wave_lds


K3_A = 16384
K3_NA = 4
K3_UP = 14464
K3_SLOT = 28800
K3_NS = 3
K3_B0 = K3_NA * K3_A


def gen_k3(name):
    k = K()
    header(k, name)
    S_A, S_B, S_C, S_ST = 8, 12, 16, 20
    sW, sRB, sFB, sT = 28, 29, 30, 31
    sOff = 34
    sM = 35
    sMA = 36
    sOffA = 37
    sK = 38
    sKa = 39
    k.e("s_cmp_ge_u32 s2, 256")
    k.e("s_cbranch_scc1 %s_end" % name)
    k.stamp_rt(0)
    k.stamp(1)
    k.e("s_load_dwordx2 s[4:5], s[0:1], %d" % KA_WS)
    k.e("s_load_dwordx4 s[44:47], s[0:1], %d" % KA_WG)
    k.e("s_load_dwordx2 s[48:49], s[0:1], %d" % KA_WD)
    k.e("v_lshrrev_b32 v2, 6, v0")
    k.e("v_and_b32 v1, 63, v0")
    k.e("v_readfirstlane_b32 s%d, v2" % sW)
    k.e("s_and_b32 s3, s2, 7")
    k.e("s_lshr_b32 s%d, s2, 3" % sT)
    k.e("s_lshr_b32 s%d, s3, 2" % sRB)
    k.e("s_lshl_b32 s%d, s%d, 3" % (sRB, sRB))
    k.e("s_lshr_b32 s%d, s%d, 2" % (sFB, sT))
    k.e("s_add_u32 s%d, s%d, s%d" % (sRB, sRB, sFB))
    k.e("s_and_b32 s%d, s3, 3" % sFB)
    k.e("s_lshl_b32 s%d, s%d, 2" % (sFB, sFB))
    k.e("s_and_b32 s%d, s%d, 3" % (sT, sT))
    k.e("s_add_u32 s%d, s%d, s%d" % (sFB, sFB, sT))
    k.e("s_lshr_b32 s3, s2, 5")
    k.e("s_lshl_b32 s%d, s%d, 1" % (sK, sT))
    k.e("s_add_u32 s%d, s%d, s3" % (sK, sK))
    k.e("s_and_b32 s%d, s%d, 7" % (sK, sK))
    if not ROT:
        k.e("s_mov_b32 s%d, 0" % sK)
    k.e("s_cmp_ge_u32 s%d, 4" % sW)
    k.e("s_cbranch_scc1 %s_loader" % name)

    vL = 1
    vO = 3
    vTr = 4
    vRstd, vNmr = 6, 7
    vT0, vT1, vT2, vT3 = 8, 9, 10, 11
    vN = 12
    vW = 24
    vXa = 80
    vCa = 84
    vAr = 208
    vRp = 90
    vAcc = 96
    nv = 216
    k.e("s_lshl_b32 s3, s%d, 7" % sRB)
    k.e("s_lshl_b32 s%d, s%d, 5" % (sT, sW))
    k.e("s_add_u32 s3, s3, s%d" % sT)
    k.e("v_and_b32 v%d, 31, v%d" % (vT3, vL))
    k.e("v_add_u32 v%d, s3, v%d" % (vT0, vT3))
    k.e("v_lshrrev_b32 v%d, 5, v%d" % (vT1, vL))
    k.e("v_lshlrev_b32 v%d, 6, v%d" % (vT2, vT0))
    k.e("s_mov_b32 s3, 3584")
    k.e("v_mul_lo_u32 v%d, v%d, s3" % (vO, vT0))
    k.e("v_lshl_add_u32 v%d, v%d, 4, v%d" % (vO, vT1, vO))
    k.e("s_mul_i32 s3, s%d, 224" % sFB)
    k.e("v_add_u32 v%d, s3, v%d" % (vO, vO))
    k.e("v_bfe_u32 v%d, v%d, 1, 3" % (vT0, vL))
    k.e("v_xor_b32 v%d, v%d, v%d" % (vT0, vT0, vT1))
    k.e("v_add_u32 v%d, s%d, v%d" % (vT3, sT, vT3))
    k.e("v_lshlrev_b32 v%d, 7, v%d" % (vT3, vT3))
    k.e("v_lshl_add_u32 v%d, v%d, 4, v%d" % (vXa, vT0, vT3))
    for u in range(1, 4):
        k.e("v_xor_b32 v%d, %d, v%d" % (vXa + u, 32 * u, vXa))
    k.e("v_bfe_u32 v%d, v%d, 4, 1" % (vT0, vL))
    k.e("v_mul_u32_u24 v%d, %d, v%d" % (vTr, K3_UP, vT0))
    k.e("v_lshrrev_b32 v%d, 5, v%d" % (vT0, vL))
    k.e("v_bfe_u32 v%d, v%d, 2, 2" % (vT1, vL))
    k.e("v_lshl_add_u32 v%d, v%d, 3, v%d" % (vT0, vT0, vT1))
    k.e("v_mul_u32_u24 v%d, 224, v%d" % (vT0, vT0))
    k.e("v_add_u32 v%d, v%d, v%d" % (vTr, vTr, vT0))
    k.e("v_and_b32 v%d, 1, v%d" % (vT0, vL))
    k.e("v_lshl_add_u32 v%d, v%d, 4, v%d" % (vTr, vT0, vTr))
    k.e("v_bfe_u32 v%d, v%d, 1, 1" % (vT0, vL))
    k.e("v_lshl_add_u32 v%d, v%d, 3, v%d" % (vTr, vT0, vTr))
    k.e("v_add_u32 v%d, %d, v%d" % (vTr, K3_B0, vTr))
    k.e("v_add_u32 v%d, %d, v%d" % (vTr + 1, 2 * K3_SLOT, vTr))
    for i in range(2):
        k.e("v_mov_b32 v%d, 0xbdd2d3e8" % (vCa + i))
        k.e("v_mov_b32 v%d, 0xc0135761" % (vCa + 2 + i))
        k.e("v_mov_b32 v%d, 1.0" % (vCa + 4 + i))
    k.e("s_waitcnt lgkmcnt(0)")
    srd(k, S_C, 4, 2048 * 3584, WS_HH)
    srd(k, S_ST, 4, 2048 * 64, WS_HST)
    for i in range(4):
        k.vmem("buffer_load_dwordx4 %s, v%d, %s, 0 offen offset:%d" % (vr(vW + 4 * i, 4), vT2, sr(S_ST, 4), 16 * i), "st")
    k.wait_vm("st")
    k.e("v_add_f32 v%d, v%d, v%d" % (vT0, vW, vW + 2))
    k.e("v_add_f32 v%d, v%d, v%d" % (vT1, vW + 1, vW + 3))
    for i in range(2, 8):
        k.e("v_add_f32 v%d, v%d, v%d" % (vT0, vT0, vW + 2 * i))
        k.e("v_add_f32 v%d, v%d, v%d" % (vT1, vT1, vW + 2 * i + 1))
    k.e("v_mul_f32 v%d, 0x3b000000, v%d" % (vT0, vT0))
    k.e("v_mul_f32 v%d, 0x3b000000, v%d" % (vT1, vT1))
    k.e("v_fma_f32 v%d, -v%d, v%d, v%d" % (vT1, vT0, vT0, vT1))
    k.e("v_max_f32 v%d, 0, v%d" % (vT1, vT1))
    k.e("v_add_f32 v%d, 0x3727c5ac, v%d" % (vT1, vT1))
    k.e("v_rsq_f32 v%d, v%d" % (vRstd, vT1))
    k.e("s_nop 0")
    k.e("v_mul_f32 v%d, v%d, v%d" % (vNmr, vT0, vRstd))
    k.e("v_sub_f32 v%d, 0, v%d" % (vNmr, vNmr))

    k.e("v_mov_b32 v%d, v%d" % (vRp, vRstd))
    k.e("v_mov_b32 v%d, v%d" % (vRp + 1, vRstd))
    k.e("v_mov_b32 v%d, v%d" % (vRp + 2, vNmr))
    k.e("v_mov_b32 v%d, v%d" % (vRp + 3, vNmr))

    def norm_ops(j):
        src = vAr + (j & 1) * 4
        dst = vN + (j & 1) * 4
        ops = []
        for i in range(4):
            a = vT0 if i & 1 == 0 else vT2
            ops.append("v_lshlrev_b32 v%d, 16, v%d" % (a, src + i))
            ops.append("v_and_b32 v%d, 0xffff0000, v%d" % (a + 1, src + i))
            if PKN:
                ops.append("v_pk_fma_f32 %s, %s, %s, %s" % (vr(a, 2), vr(a, 2), vr(vRp, 2), vr(vRp + 2, 2)))
            else:
                ops.append("v_fma_f32 v%d, v%d, v%d, v%d" % (a, a, vRstd, vNmr))
                ops.append("v_fma_f32 v%d, v%d, v%d, v%d" % (a + 1, a + 1, vRstd, vNmr))
            ops.append("v_cvt_pk_bf16_f32 v%d, v%d, v%d" % (dst + i, a, a + 1))
        return ops

    vXn = 20
    sBs, sAs, sIt = 40, 41, 42

    def tr_rd(j, t):
        u = j % 4
        base = vTr + (1 if j >= 4 else 0)
        buf = vW + (j & 1) * 28
        k.lds("ds_read_b64_tr_b16 %s, v%d offset:%d" % (vr(buf + 4 * t, 2), base, u * 3584 + 32 * t), ("w", j % 4, t))
        k.lds("ds_read_b64_tr_b16 %s, v%d offset:%d" % (vr(buf + 4 * t + 2, 2), base, u * 3584 + 32 * t + 896), ("w", j % 4, t))

    def a_rd(j):
        u = j % 4
        base = (vXn + u) if j >= 4 else (vXa + u)
        k.lds("ds_read_b128 %s, v%d" % (vr(vAr + (j & 1) * 4, 4), base), ("a", j % 4))

    k.e("v_add_u32 v%d, %d, v%d" % (vTr + 1, K3_SLOT, vTr))
    k.e("v_add_u32 v%d, %d, v%d" % (vXn, K3_A, vXa))
    k.e("v_add_u32 v%d, %d, v%d" % (vXn + 1, K3_A, vXa + 1))
    k.e("s_mov_b32 s%d, 1" % sBs)
    k.e("s_mov_b32 s%d, 1" % sAs)
    k.e("s_mov_b32 s%d, 0" % sIt)
    for i in range(112):
        k.e("v_mov_b32 v%d, 0" % (vAcc + i))
    k.stamp(2)
    k.e("s_barrier")
    k.stamp(3)
    a_rd(0)
    k.wait_lds(("a", 0))
    for t in range(7):
        tr_rd(0, t)
        if t == 3:
            a_rd(1)
    for op in norm_ops(0):
        k.e(op)
    k.e("s_nop 0")
    k.lab("%s_loop" % name)
    body_start = len(k.lines)
    lq0 = list(k.lq)
    for j in range(4):
        u = j
        buf = vW + (j & 1) * 28
        boundary = (u == 3)
        nrm = norm_ops(j + 1)
        ni = 0
        pend = list(range(7))
        for t in range(7):
            a = vAcc + 16 * t
            if t % 2 == 0:
                if not k.wait_lds(("w", j, min(t + 1, 6))) and t == 0:
                    k.e("s_nop 0")
            k.e("v_mfma_f32_32x32x16_bf16 %s, %s, %s, %s" % (vr(a, 16), vr(buf + 4 * t, 4), vr(vN + (j & 1) * 4, 4), vr(a, 16)))
            if t == 0:
                k.wait_lds(("a", (j + 1) % 4))
            if boundary and t < 2:
                pass
            else:
                if boundary and t == 2:
                    k.wait_lds_all()
                    k.e("s_barrier")
                nrd = 1 if not boundary else 2
                for _ in range(nrd):
                    if pend:
                        tr_rd(j + 1, pend.pop(0))
            if t == 3:
                a_rd(j + 2)
            for _ in range(V_NRM[t]):
                if ni < len(nrm):
                    k.e(nrm[ni]); ni += 1
        assert not pend and ni == len(nrm), (pend, ni)
        if j < 3:
            k.e("s_nop 0")
    k.e("v_mov_b32 v%d, v%d" % (vTr, vTr + 1))
    k.e("s_add_u32 s%d, s%d, 1" % (sBs, sBs))
    k.e("s_cmp_eq_u32 s%d, %d" % (sBs, K3_NS))
    k.e("s_cselect_b32 s%d, 0, s%d" % (sBs, sBs))
    k.e("s_cselect_b32 s3, %d, %d" % (-(K3_NS - 1) * K3_SLOT & 0xffffffff, K3_SLOT) if False else "s_mov_b32 s3, %d" % K3_SLOT)
    k.e("s_cmov_b32 s3, 0x%x" % ((-(K3_NS - 1) * K3_SLOT) & 0xffffffff))
    k.e("v_add_u32 v%d, s3, v%d" % (vTr + 1, vTr + 1))
    k.e("v_mov_b32 v%d, v%d" % (vXa, vXn))
    k.e("v_mov_b32 v%d, v%d" % (vXa + 1, vXn + 1))
    k.e("v_xor_b32 v%d, 64, v%d" % (vXa + 2, vXn))
    k.e("v_xor_b32 v%d, 96, v%d" % (vXa + 3, vXn))
    k.e("v_add_u32 v%d, %d, v%d" % (vXn, K3_A, vXn))
    k.e("v_and_b32 v%d, 0x%x, v%d" % (vXn, K3_NA * K3_A - 1, vXn))
    k.e("v_xor_b32 v%d, 32, v%d" % (vXn + 1, vXn))
    k.e("s_add_u32 s%d, s%d, 1" % (sIt, sIt))
    k.e("s_cmp_lt_u32 s%d, 8" % sIt)
    k.e("s_cbranch_scc1 %s_loop" % name)
    assert k.lq == lq0[len(lq0) - len(k.lq):] or DIAG, (k.lq, lq0)
    k.wait_lds_all()
    k.stamp(11)
    k.e("s_nop 7")
    k.e("s_nop 7")
    tmp = vW
    for t in range(7):
        a = vAcc + 16 * t
        o = tmp + 8 * (t & 1) + 32
        for half in range(2):
            prs = [(a + 4 * half + 2 * i, a + 8 + 4 * half + 2 * i, tmp + 8 * i, tmp + 8 * i + 2) for i in range(2)]
            for g, u_, x0, x1 in prs:
                k.e("v_pk_mul_f32 %s, %s, %s" % (vr(x0, 2), vr(g, 2), vr(g, 2)))
            for g, u_, x0, x1 in prs:
                k.e("v_pk_fma_f32 %s, %s, %s, %s" % (vr(x1, 2), vr(x0, 2), vr(vCa, 2), vr(vCa + 2, 2)))
            for g, u_, x0, x1 in prs:
                k.e("v_pk_mul_f32 %s, %s, %s" % (vr(x1, 2), vr(x1, 2), vr(g, 2)))
            for g, u_, x0, x1 in prs:
                k.e("v_exp_f32 v%d, v%d" % (x1, x1))
                k.e("v_exp_f32 v%d, v%d" % (x1 + 1, x1 + 1))
            for g, u_, x0, x1 in prs:
                k.e("v_pk_mul_f32 %s, %s, %s" % (vr(x0, 2), vr(g, 2), vr(u_, 2)))
            for g, u_, x0, x1 in prs:
                k.e("v_pk_add_f32 %s, %s, %s" % (vr(x1, 2), vr(x1, 2), vr(vCa + 4, 2)))
            for g, u_, x0, x1 in prs:
                k.e("v_rcp_f32 v%d, v%d" % (x1, x1))
                k.e("v_rcp_f32 v%d, v%d" % (x1 + 1, x1 + 1))
            k.e("s_nop 0")
            for g, u_, x0, x1 in prs:
                k.e("v_pk_mul_f32 %s, %s, %s" % (vr(x0, 2), vr(x0, 2), vr(x1, 2)))
            for i, (g, u_, x0, x1) in enumerate(prs):
                k.e("v_cvt_pk_bf16_f32 v%d, v%d, v%d" % (o + 2 * half + i, x0, x0 + 1))
        k.vmem("buffer_store_dwordx4 %s, v%d, %s, 0 offen offset:%d%s" % (vr(o, 4), vO, sr(S_C, 4), 32 * t, STF), "st")
    k.stamp(12)
    if DIAG:
        k.e("s_waitcnt vmcnt(0)")
    k.stamp(13)
    k.stamp_rt(14)
    k.dump(2, sW, 15)
    k.e("s_endpgm")

    k.lab("%s_loader" % name)
    k.vm = []
    k.lq = []
    vOff = 4
    vAo = 12
    sKA = 40
    k.e("s_and_b32 s%d, s%d, 1" % (sT, sW))
    k.e("s_mul_i32 s3, s%d, 448" % sT)
    k.e("s_mul_i32 s%d, s%d, 224" % (sOff, sFB))
    for p in range(7):
        k.e("v_add_u32 v2, s3, v1")
        if p:
            k.e("v_add_u32 v2, %d, v2" % (64 * p))
        k.e("v_mul_u32_u24 v3, 4682, v2")
        k.e("v_lshrrev_b32 v3, 16, v3")
        k.e("v_mul_u32_u24 v11, 14, v3")
        k.e("v_sub_u32 v2, v2, v11")
        k.e("v_mul_u32_u24 v3, 3584, v3")
        k.e("v_lshl_add_u32 v3, v2, 4, v3")
        k.e("v_add_u32 v%d, s%d, v3" % (vOff + p, sOff))
    k.e("s_sub_u32 s3, s%d, 4" % sW)
    k.e("s_lshl_b32 s%d, s3, 12" % sMA)
    k.e("s_lshl_b32 s3, s3, 5")
    k.e("s_lshl_b32 s%d, s%d, 7" % (sOff, sRB))
    k.e("s_add_u32 s3, s3, s%d" % sOff)
    k.e("v_lshrrev_b32 v2, 3, v1")
    k.e("v_add_u32 v2, s3, v2")
    k.e("v_lshlrev_b32 v2, 10, v2")
    k.e("v_and_b32 v3, 7, v1")
    k.e("v_lshrrev_b32 v11, 4, v1")
    k.e("v_xor_b32 v3, v3, v11")
    k.e("v_lshl_add_u32 v%d, v3, 4, v2" % vAo)
    k.e("v_xor_b32 v3, 4, v3")
    k.e("v_lshl_add_u32 v%d, v3, 4, v2" % (vAo + 1))
    k.e("s_mov_b32 s%d, s%d" % (sKA, sK))
    k.e("s_waitcnt lgkmcnt(0)")
    k.e("s_cmp_ge_u32 s%d, 6" % sW)
    k.e("s_cselect_b32 s6, s46, s44")
    k.e("s_cselect_b32 s7, s47, s45")
    k.e("s_cselect_b32 s%d, %d, 0" % (sM, K3_UP))
    k.e("s_add_u32 s%d, s%d, %d" % (sM, sM, K3_B0))
    srd(k, S_B, 6, 512 * 3584)
    srd(k, S_A, 4, 2 << 20, WS_H)
    k.e("s_mul_i32 s3, s%d, 7168" % sT)
    k.e("s_add_u32 s%d, s%d, s3" % (sM, sM))

    def lda(st, tag):
        k.e("s_lshl_b32 s%d, s%d, 7" % (sKa, sKA))
        k.e("s_add_u32 s%d, s%d, 1" % (sKA, sKA))
        k.e("s_and_b32 s%d, s%d, 7" % (sKA, sKA))
        for p in range(4):
            k.e("s_add_u32 m0, s%d, %d" % (sMA, (st % K3_NA) * K3_A + p * 1024))
            k.e("s_add_u32 s%d, s%d, %d" % (sOffA, sKa, p * 8192))
            k.vmem("buffer_load_dwordx4 v%d, %s, s%d offen lds" % (vAo + (p & 1), sr(S_A, 4), sOffA), tag)

    def ld(st):
        slot = st % K3_NS
        k.e("s_mul_i32 s%d, s%d, %d" % (sOff, sK, 64 * 3584))
        k.e("s_add_u32 s%d, s%d, 1" % (sK, sK))
        k.e("s_and_b32 s%d, s%d, 7" % (sK, sK))
        for p in range(7):
            k.e("s_add_u32 m0, s%d, %d" % (sM, slot * K3_SLOT + p * 1024))
            k.e("s_nop 0")
            k.vmem("buffer_load_dwordx4 v%d, %s, s%d offen lds" % (vOff + p, sr(S_B, 4), sOff), ("s", st))
        if st + 1 < 8:
            lda(st + 1, ("s", st))

    k.stamp(2)
    lda(0, ("s", 0))
    ld(0)
    k.stamp(3)
    for i in range(8):
        if i == 0 and not EARLY:
            ld(1)
        k.wait_vm(("s", i))
        k.stamp(4 + i)
        k.e("s_barrier")
        if i == 0 and EARLY:
            ld(1)
        if i + 2 < 8:
            ld(i + 2)
        if i == 6 and PREF and MAP48:
            srd(k, S_C, 48, 1792 * 1024)
            k.e("s_lshr_b32 s3, s2, 3")
            k.e("s_mul_i32 s3, s3, 56")
            k.e("s_sub_u32 s%d, s%d, 4" % (sOff, sW))
            k.e("s_mul_i32 s%d, s%d, 14" % (sOff, sOff))
            k.e("s_add_u32 s3, s3, s%d" % sOff)
            k.e("s_lshl_b32 s3, s3, 10")
            k.e("v_lshlrev_b32 v2, 7, v1")
            k.vmem("buffer_load_dword v3, v2, %s, s3 offen" % sr(S_C, 4), "pf")
            k.e("s_add_u32 s3, s3, 8192")
            k.e("v_cmp_gt_u32 vcc, 48, v1")
            k.e("s_and_saveexec_b64 s[40:41], vcc")
            k.vmem("buffer_load_dword v3, v2, %s, s3 offen" % sr(S_C, 4), "pf")
            k.e("s_mov_b64 exec, s[40:41]")
    k.e("s_barrier")
    k.stamp(12)
    k.e("s_waitcnt vmcnt(0)")
    k.stamp(13)
    k.stamp_rt(14)
    k.dump(2, sW, 15)
    k.lab("%s_end" % name)
    k.e("s_endpgm")
    return k.text(), nv, K3_B0 + K3_NS * K3_SLOT


import struct


def f32bits(x):
    return struct.unpack("<I", struct.pack("<f", x))[0]


def main():
    from gen_k1 import gen_k1
    parts = []
    descs = []
    launches = []
    t, nv, lds = gen_k1("k1_kernel")
    parts.append(t); descs.append(descriptor("k1_kernel", nv)); launches.append(("k1_kernel", 512, lds))
    if not MERGE:
        t, nv, lds = gen_t2("k2_kernel", 512, 1024, ('ws', WS_O), KA_WO, ('ka', KA_X), ('ws', WS_H), True, 1)
        parts.append(t); descs.append(descriptor("k2_kernel", nv)); launches.append(("k2_kernel", 256, lds))
    t, nv, lds = gen_k3("k3_kernel")
    c0 = -2.0 * 1.4426950408889634 * 0.7978845608028654
    t = t.replace("0xc0135761", "0x%08x" % f32bits(c0)).replace("0xbdd2d3e8", "0x%08x" % f32bits(c0 * 0.044715))
    parts.append(t); descs.append(descriptor("k3_kernel", nv)); launches.append(("k3_kernel", 512, lds))
    t, nv, lds = gen_t2("k4_kernel", 1792, 3584, ('ws', WS_HH), KA_WD, ('ws', WS_H), ('ka', KA_OUT), False, 3)
    parts.append(t); descs.append(descriptor("k4_kernel", nv)); launches.append(("k4_kernel", 256, lds))
    out = []
    for n, b, lds in launches:
        out.append("; @launch kernel=%s grid=(256,1,1) block=(%d,1,1) lds=%d" % (n, b, lds))
    out.append('.amdgcn_target "amdgcn-amd-amdhsa--gfx950"')
    out.append(".text")
    out += parts
    out.append("code_end:")
    out.append('.section .rodata,"a"')
    out += descs
    path = sys.argv[1] if len(sys.argv) > 1 else "cdna_kernels/%s.s" % NAME
    open(path, "w").write("\n".join(out))
    print("wrote", path)


if __name__ == "__main__":
    main()
```

```python
import os
from gen import K, vr, sr, srd, header, KA_X, KA_WQKV, KA_WS, WS_O, f32bits, ROT, KA_WO, KA_WG, KA_WD, PREF, DIAG, EARLY1, WS_H, WS_HST, WS_FLAG, MERGE

A_BYTES = 80 * 128
W_SUB = 64 * 128
SLOT = A_BYTES + 3 * W_SUB
NS = 4
ST_BASE = NS * SLOT
LDS = ST_BASE + 6 * 320
NEG = -1.0e30


def phase2(k, name, sW, sRB, sHG):
    S_A, S_B, S_R, S_C, S_ST = 8, 12, 16, 84, 88
    sT, sLB, sAoff = 31, 32, 33
    sTile = 48
    vL, vAe, vAo, vRo = 1, 2, 3, 4
    vTr = 5
    vT0, vT1, vT2 = 10, 11, 12
    vXa = 13
    vRes = 16
    vAcc = 24
    vBf = 88
    vAf = 120
    k.vm = ["st"] * 4
    k.lq = []
    srd(k, S_A, 4, 2 << 20, WS_O)
    srd(k, S_R, 44, 2 << 20)
    srd(k, S_C, 4, 2 << 20, WS_H)
    srd(k, S_ST, 4, 2048 * 64, WS_HST)
    k.e("s_lshl_b32 s%d, s%d, 15" % (sLB, sW))
    for t in range(4):
        k.e("s_add_u32 s%d, s%d, %d" % (sT, sW, t))
        k.e("s_and_b32 s%d, s%d, 3" % (sT, sT))
        k.e("s_lshl_b32 s%d, s%d, 14" % (sTile + t, sT))
    k.e("s_lshl_b32 s%d, s%d, 6" % (sT, sRB))
    k.e("v_lshrrev_b32 v%d, 3, v%d" % (vT0, vL))
    k.e("v_add_u32 v%d, s%d, v%d" % (vT1, sT, vT0))
    k.e("v_lshlrev_b32 v%d, 10, v%d" % (vAe, vT1))
    k.e("s_lshl_b32 s3, s%d, 8" % sW)
    k.e("v_add_u32 v%d, s3, v%d" % (vAe, vAe))
    k.e("v_and_b32 v%d, 7, v%d" % (vT0, vL))
    k.e("v_lshrrev_b32 v%d, 4, v%d" % (vT2, vL))
    k.e("v_xor_b32 v%d, v%d, v%d" % (vT0, vT0, vT2))
    k.e("v_xor_b32 v%d, 4, v%d" % (vT1, vT0))
    k.e("v_add_u32 v%d, 8192, v%d" % (vAo, vAe))
    k.e("v_lshl_add_u32 v%d, v%d, 4, v%d" % (vAo, vT1, vAo))
    k.e("v_lshl_add_u32 v%d, v%d, 4, v%d" % (vAe, vT0, vAe))
    k.e("v_and_b32 v%d, 15, v%d" % (vT1, vL))
    k.e("v_lshrrev_b32 v%d, 1, v%d" % (vT0, vT1))
    k.e("v_xor_b32 v%d, v%d, v%d" % (vT0, vT0, vT2))
    k.e("v_lshlrev_b32 v%d, 7, v%d" % (vXa, vT1))
    k.e("v_add_u32 v%d, s%d, v%d" % (vXa, sLB, vXa))
    k.e("v_lshl_add_u32 v%d, v%d, 4, v%d" % (vXa, vT0, vXa))
    k.e("v_xor_b32 v%d, 64, v%d" % (vXa + 1, vXa))
    k.e("s_lshl_b32 s3, s%d, 4" % sW)
    k.e("s_add_u32 s3, s3, s%d" % sT)
    k.e("v_add_u32 v%d, s3, v%d" % (vT1, vT1))
    k.e("v_lshlrev_b32 v%d, 10, v%d" % (vRo, vT1))
    k.e("v_lshl_add_u32 v%d, v%d, 3, v%d" % (vRo, vT2, vRo))
    k.e("s_lshl_b32 s3, s%d, 7" % sHG)
    k.e("v_add_u32 v%d, s3, v%d" % (vRo, vRo))
    for j in range(4):
        k.vmem("buffer_load_dwordx2 %s, v%d, %s, 0 offen offset:%d" % (vr(vRes + 2 * j, 2), vRo, sr(S_R, 4), 32 * j), "res")
    k.e("v_lshrrev_b32 v%d, 4, v%d" % (vT0, vL))
    k.e("v_bfe_u32 v%d, v%d, 2, 2" % (vT1, vL))
    k.e("v_lshl_add_u32 v%d, v%d, 3, v%d" % (vT2, vT0, vT1))
    k.e("v_lshlrev_b32 v%d, 7, v%d" % (vT2, vT2))
    k.e("v_add_u32 v%d, s%d, v%d" % (vT2, sLB, vT2))
    k.e("v_and_b32 v%d, 3, v%d" % (vTr, vL))
    k.e("v_lshl_add_u32 v%d, v%d, 3, v%d" % (vT2, vTr, vT2))
    k.e("v_bfe_u32 v%d, v%d, 3, 1" % (vT1, vL))
    k.e("v_bfe_u32 v%d, v%d, 4, 1" % (vT0, vL))
    k.e("v_lshl_or_b32 v%d, v%d, 1, v%d" % (vT0, vT0, vT1))
    for j in range(4):
        k.e("v_xor_b32 v%d, %d, v%d" % (vT1, j, vT0))
        k.e("v_lshl_add_u32 v%d, v%d, 5, v%d" % (vTr + j, vT1, vT2))
    k.wait_vm_all()
    k.e("s_barrier")
    k.stamp(15)
    k.e("s_barrier")
    k.stamp(16)
    for u in range(2):
        for t in range(4):
            k.e("s_add_u32 s%d, s%d, %d" % (sAoff, sTile + t, 128 * u))
            for p in range(2):
                k.e("s_add_u32 m0, s%d, %d" % (sLB, u * 8192 + t * 2048 + p * 1024))
                k.e("s_nop 0")
                k.vmem("buffer_load_dwordx4 v%d, %s, s%d offen sc1 lds" % (vAo if p else vAe, sr(S_A, 4), sAoff), ("a", u))

    def rd(s):
        buf = vBf + (s & 1) * 16
        ab = vAf + (s & 1) * 16
        bo = 16384 + s * 4096
        ao = (s // 2) * 8192
        ops = []
        for j in range(4):
            ops.append("ds_read_b64_tr_b16 %s, v%d offset:%d" % (vr(buf + j * 4, 2), vTr + j, bo))
            ops.append("ds_read_b64_tr_b16 %s, v%d offset:%d" % (vr(buf + j * 4 + 2, 2), vTr + j, bo + 512))
            ops.append("ds_read_b128 %s, v%d offset:%d" % (vr(ab + j * 4, 4), vXa + (s & 1), ao + j * 2048))
        return ops

    k.wait_vm(("a", 0))
    for op in rd(0):
        k.e(op)
    for s in range(4):
        buf = vBf + (s & 1) * 16
        ab = vAf + (s & 1) * 16
        k.e("s_waitcnt lgkmcnt(0)")
        fill = []
        if s + 1 < 4:
            k.wait_vm(("a", (s + 1) // 2))
            fill = rd(s + 1)
            if s == 1 and PREF:
                k.e("s_cmp_ge_u32 s%d, 2" % sW)
                k.e("s_cselect_b32 s6, s22, s20")
                k.e("s_cselect_b32 s7, s23, s21")
                srd(k, S_B, 6, 512 * 3584)
                k.e("s_lshr_b32 s3, s2, 3")
                k.e("s_lshl_b32 s3, s3, 1")
                k.e("s_and_b32 s%d, s%d, 1" % (sT, sW))
                k.e("s_add_u32 s3, s3, s%d" % sT)
                k.e("s_mul_i32 s3, s3, %d" % (8 * 3584))
                k.e("s_and_b32 s%d, s2, 3" % sT)
                k.e("s_mul_i32 s%d, s%d, 896" % (sT, sT))
                k.e("s_add_u32 s3, s3, s%d" % sT)
                k.e("v_lshrrev_b32 v%d, 3, v%d" % (vT0, vL))
                k.e("v_mul_u32_u24 v%d, 3584, v%d" % (vT0, vT0))
                k.e("v_and_b32 v%d, 7, v%d" % (vT1, vL))
                k.e("v_min_u32 v%d, 6, v%d" % (vT1, vT1))
                k.e("v_lshl_add_u32 v%d, v%d, 7, v%d" % (vT0, vT1, vT0))
                k.vmem("buffer_load_dword v200, v%d, %s, s3 offen" % (vT0, sr(S_B, 4)), "pf")
        fi = 0
        for t in range(4):
            for j in range(4):
                a = vAcc + (j * 4 + t) * 4
                cin = "0" if s == 0 else vr(a, 4)
                k.e("v_mfma_f32_16x16x32_bf16 %s, %s, %s, %s" % (vr(a, 4), vr(buf + j * 4, 4), vr(ab + t * 4, 4), cin))
                if fi < len(fill):
                    k.e(fill[fi]); fi += 1
    k.stamp(17)
    k.e("v_lshlrev_b32 v%d, 4, v%d" % (vT0, vL))
    k.e("v_add_u32 v%d, s%d, v%d" % (vT1, sLB, vT0))
    k.e("s_nop 7")
    k.e("s_nop 3")
    for t in range(1, 4):
        for j in range(4):
            k.e("ds_write_b128 v%d, %s offset:%d" % (vT1, vr(vAcc + (j * 4 + t) * 4, 4), (t - 1) * 4096 + j * 1024))
    vP = vBf
    vO = vP + 48
    for j in range(4):
        for h in range(2):
            k.e("v_lshlrev_b32 v%d, 16, v%d" % (vO + j * 4 + 2 * h, vRes + 2 * j + h))
            k.e("v_and_b32 v%d, 0xffff0000, v%d" % (vO + j * 4 + 2 * h + 1, vRes + 2 * j + h))
    for j in range(4):
        for r in range(4):
            k.e("v_add_f32 v%d, v%d, v%d" % (vO + j * 4 + r, vO + j * 4 + r, vAcc + (j * 4) * 4 + r))
    k.e("s_waitcnt lgkmcnt(0)")
    k.e("s_barrier")
    for d in range(1, 4):
        k.e("s_sub_u32 s3, s%d, %d" % (sW, d))
        k.e("s_and_b32 s3, s3, 3")
        k.e("s_lshl_b32 s3, s3, 15")
        k.e("v_add_u32 v%d, s3, v%d" % (vT1, vT0))
        for j in range(4):
            k.e("ds_read_b128 %s, v%d offset:%d" % (vr(vP + ((d - 1) * 4 + j) * 4, 4), vT1, (d - 1) * 4096 + j * 1024))
    for d in range(3):
        k.e("s_waitcnt lgkmcnt(%d)" % (8 - 4 * d))
        for j in range(4):
            for r in range(4):
                k.e("v_add_f32 v%d, v%d, v%d" % (vO + j * 4 + r, vO + j * 4 + r, vP + (d * 4 + j) * 4 + r))
    vPk = vP
    for j in range(4):
        k.e("v_cvt_pk_bf16_f32 v%d, v%d, v%d" % (vPk + 2 * j, vO + 4 * j, vO + 4 * j + 1))
        k.e("v_cvt_pk_bf16_f32 v%d, v%d, v%d" % (vPk + 2 * j + 1, vO + 4 * j + 2, vO + 4 * j + 3))
    for j in range(4):
        k.vmem("buffer_store_dwordx2 %s, v%d, %s, 0 offen offset:%d" % (vr(vPk + 2 * j, 2), vRo, sr(S_C, 4), 32 * j), "st")
    vS, vQ, vX, vY = vPk + 8, vPk + 9, vPk + 10, vPk + 11
    k.e("v_mov_b32 v%d, 0" % vS)
    k.e("v_mov_b32 v%d, 0" % vQ)
    for i in range(8):
        k.e("v_lshlrev_b32 v%d, 16, v%d" % (vX, vPk + i))
        k.e("v_and_b32 v%d, 0xffff0000, v%d" % (vY, vPk + i))
        k.e("v_add_f32 v%d, v%d, v%d" % (vS, vS, vX))
        k.e("v_fmac_f32 v%d, v%d, v%d" % (vQ, vX, vX))
        k.e("v_add_f32 v%d, v%d, v%d" % (vS, vS, vY))
        k.e("v_fmac_f32 v%d, v%d, v%d" % (vQ, vY, vY))
    for op in ("v_permlane32_swap_b32", "v_permlane16_swap_b32"):
        k.e("v_mov_b32 v%d, v%d" % (vX, vS))
        k.e("v_mov_b32 v%d, v%d" % (vY, vQ))
        k.e("s_nop 1")
        k.e("%s v%d, v%d" % (op, vS, vX))
        k.e("%s v%d, v%d" % (op, vQ, vY))
        k.e("v_add_f32 v%d, v%d, v%d" % (vS, vS, vX))
        k.e("v_add_f32 v%d, v%d, v%d" % (vQ, vQ, vY))
    k.e("v_lshrrev_b32 v%d, 10, v%d" % (vX, vRo))
    k.e("v_lshlrev_b32 v%d, 6, v%d" % (vX, vX))
    k.e("s_lshl_b32 s3, s%d, 3" % sHG)
    k.e("v_add_u32 v%d, s3, v%d" % (vX, vX))
    k.e("v_cmp_gt_u32 vcc, 16, v%d" % vL)
    k.e("s_and_saveexec_b64 s[34:35], vcc")
    k.vmem("buffer_store_dwordx2 %s, v%d, %s, 0 offen" % (vr(vS, 2), vX, sr(S_ST, 4)), "st")
    k.e("s_mov_b64 exec, s[34:35]")
    k.stamp(18)
    if DIAG:
        k.e("s_waitcnt vmcnt(0)")
    k.stamp(19)


def gen_k1(name):
    k = K()
    header(k, name)
    S_A, S_B, S_C = 8, 12, 16
    sW, sRB, sHG, sT = 28, 29, 30, 31
    sOff, sM = 34, 35
    sScale = 36
    sK = 40
    sKb = 41
    k.e("s_cmp_ge_u32 s2, 256")
    k.e("s_cbranch_scc1 %s_end" % name)
    if PREF:
        k.e("s_getpc_b64 s[24:25]")
        k.lab("%s_pc" % name)
        k.e("s_sub_u32 s24, s24, %s_pc-%s" % (name, name))
        k.e("s_subb_u32 s25, s25, 0")
        k.e("s_mov_b32 s26, code_end-%s" % name)
        k.e("s_mov_b32 s27, 0x00020000")
        k.e("v_lshlrev_b32 v3, 7, v0")
        k.e("buffer_load_dword v255, v3, s[24:27], 0 offen")
    k.stamp_rt(0)
    k.stamp(1)
    if MERGE:
        k.e("s_memrealtime s[54:55]")
    k.e("s_load_dwordx4 s[44:47], s[0:1], %d" % KA_X)
    k.e("s_load_dwordx2 s[4:5], s[0:1], %d" % KA_WS)
    k.e("s_load_dwordx2 s[6:7], s[0:1], %d" % KA_WO)
    k.e("s_load_dwordx4 s[20:23], s[0:1], %d" % KA_WG)
    k.e("v_lshrrev_b32 v2, 6, v0")
    k.e("v_and_b32 v1, 63, v0")
    k.e("v_readfirstlane_b32 s%d, v2" % sW)
    k.e("s_and_b32 s3, s2, 7")
    k.e("s_lshr_b32 s%d, s2, 3" % sT)
    k.e("s_lshr_b32 s%d, s3, 1" % sRB)
    k.e("s_lshl_b32 s%d, s%d, 3" % (sRB, sRB))
    k.e("s_lshr_b32 s%d, s%d, 2" % (sHG, sT))
    k.e("s_add_u32 s%d, s%d, s%d" % (sRB, sRB, sHG))
    k.e("s_and_b32 s%d, s3, 1" % sHG)
    k.e("s_lshl_b32 s%d, s%d, 2" % (sHG, sHG))
    k.e("s_and_b32 s%d, s%d, 3" % (sT, sT))
    k.e("s_add_u32 s%d, s%d, s%d" % (sHG, sHG, sT))
    k.e("s_lshr_b32 s3, s2, 5")
    k.e("s_lshl_b32 s%d, s%d, 1" % (sK, sT))
    k.e("s_add_u32 s%d, s%d, s3" % (sK, sK))
    k.e("s_and_b32 s%d, s%d, 7" % (sK, sK))
    if not ROT:
        k.e("s_mov_b32 s%d, 0" % sK)
    k.e("s_waitcnt lgkmcnt(0)")
    k.e("s_cmp_ge_u32 s%d, 4" % sW)
    k.e("s_cbranch_scc1 %s_loader" % name)

    vL = 1
    vXa = 2
    vWa = 6
    vOnes = 8
    vT0, vT1, vT2, vT3 = 12, 13, 14, 15
    vX = 16
    vWf = 56
    vQ = 80
    vKk = 96
    vV = 116
    vCq, vCk, vCv = 136, 140, 144
    vE = 148
    nv = 256
    srd(k, S_C, 4, 2 << 20, WS_O)
    k.e("v_and_b32 v%d, 15, v%d" % (vT0, vL))
    k.e("v_lshrrev_b32 v%d, 4, v%d" % (vT1, vL))
    k.e("v_lshrrev_b32 v%d, 1, v%d" % (vT2, vT0))
    k.e("v_xor_b32 v%d, v%d, v%d" % (vT2, vT2, vT1))
    k.e("v_lshlrev_b32 v%d, 7, v%d" % (vT3, vT0))
    k.e("v_lshl_add_u32 v%d, v%d, 4, v%d" % (vXa, vT2, vT3))
    k.e("v_xor_b32 v%d, 4, v%d" % (vT2, vT2))
    k.e("v_lshl_add_u32 v%d, v%d, 4, v%d" % (vXa + 1, vT2, vT3))
    k.e("v_add_u32 v%d, %d, v%d" % (vXa + 2, 2 * SLOT, vXa))
    k.e("v_add_u32 v%d, %d, v%d" % (vXa + 3, 2 * SLOT, vXa + 1))
    k.e("v_bfe_u32 v%d, v%d, 2, 2" % (vT2, vL))
    k.e("v_lshl_add_u32 v%d, v%d, 3, v%d" % (vT2, vT1, vT2))
    k.e("v_lshlrev_b32 v%d, 7, v%d" % (vT2, vT2))
    k.e("v_and_b32 v%d, 3, v%d" % (vT3, vL))
    k.e("v_lshl_add_u32 v%d, v%d, 3, v%d" % (vT2, vT3, vT2))
    k.e("v_bfe_u32 v%d, v%d, 3, 1" % (vT3, vL))
    k.e("v_bfe_u32 v%d, v%d, 4, 1" % (vT0, vL))
    k.e("v_lshl_or_b32 v%d, v%d, 1, v%d" % (vT0, vT0, vT3))
    k.e("v_xor_b32 v%d, s%d, v%d" % (vT0, sW, vT0))
    k.e("v_lshl_add_u32 v%d, v%d, 5, v%d" % (vWa, vT0, vT2))
    k.e("v_add_u32 v%d, %d, v%d" % (vWa, A_BYTES, vWa))
    k.e("v_add_u32 v%d, %d, v%d" % (vWa + 1, 2 * SLOT, vWa))
    for i in range(4):
        k.e("v_mov_b32 v%d, 0x3f803f80" % (vOnes + i))

    sSl, sIt = 42, 43

    def rd(j, what):
        kk = j % 2
        xb = vX + (j & 1) * 20
        wb = vWf + (j & 1) * 12
        if what[0] == 'w':
            s_ = what[1]
            base = vWa + (1 if j >= 2 else 0)
            k.lds("ds_read_b64_tr_b16 %s, v%d offset:%d" % (vr(wb + 4 * s_, 2), base, s_ * W_SUB + kk * 4096), (kk, what))
            k.lds("ds_read_b64_tr_b16 %s, v%d offset:%d" % (vr(wb + 4 * s_ + 2, 2), base, s_ * W_SUB + kk * 4096 + 512), (kk, what))
        else:
            t = what[1]
            base = vXa + 2 if j >= 2 else vXa + kk
            k.lds("ds_read_b128 %s, v%d offset:%d" % (vr(xb + 4 * t, 4), base, 2048 * t), (kk, what))

    RD_ORDER = [('w', 1), ('x', 0), ('w', 2), ('x', 1), ('w', 0), ('x', 2), ('x', 3), ('x', 4)]
    k.e("v_add_u32 v%d, %d, v%d" % (vXa + 2, SLOT, vXa))
    k.e("v_add_u32 v%d, %d, v%d" % (vWa + 1, SLOT, vWa))
    k.e("s_mov_b32 s%d, 1" % sSl)
    k.e("s_mov_b32 s%d, 0" % sIt)
    for i in range(vQ, vCv + 4):
        k.e("v_mov_b32 v%d, 0" % i)
    k.stamp(2)
    k.e("s_barrier")
    k.stamp(3)
    for w_ in RD_ORDER:
        rd(0, w_)
    k.lab("%s_loop" % name)
    lq0 = list(k.lq)
    for j in range(2):
        xb = vX + (j & 1) * 20
        wb = vWf + (j & 1) * 12
        boundary = (j == 1)
        pend = list(RD_ORDER)
        mf = []
        for t in range(5):
            mf.append((vKk + 4 * t, wb + 4, xb + 4 * t, [('w', 1), ('x', t)]))
            mf.append((vV + 4 * t, xb + 4 * t, wb + 8, [('w', 2), ('x', t)]))
            if t >= 1:
                mf.append((vQ + 4 * (t - 1), wb, xb + 4 * t, [('w', 0), ('x', t)]))
        mf.append((vCq, wb, vOnes, []))
        mf.append((vCk, wb + 4, vOnes, []))
        mf.append((vCv, vOnes, wb + 8, []))
        for n, (d, a_, b_, deps) in enumerate(mf):
            for dp in deps:
                k.wait_lds((j, dp))
            k.e("v_mfma_f32_16x16x32_bf16 %s, %s, %s, %s" % (vr(d, 4), vr(a_, 4), vr(b_, 4), vr(d, 4)))
            if boundary and n < 5:
                continue
            if boundary and n == 5:
                k.wait_lds_all()
                k.e("s_barrier")
            if pend and (boundary or n % 2 == 0 or n >= 8):
                rd(j + 1, pend.pop(0))
        assert not pend
    k.e("v_mov_b32 v%d, v%d" % (vXa, vXa + 2))
    k.e("v_xor_b32 v%d, 64, v%d" % (vXa + 1, vXa + 2))
    k.e("v_mov_b32 v%d, v%d" % (vWa, vWa + 1))
    k.e("s_add_u32 s%d, s%d, 1" % (sSl, sSl))
    k.e("s_cmp_eq_u32 s%d, %d" % (sSl, NS))
    k.e("s_cselect_b32 s%d, 0, s%d" % (sSl, sSl))
    k.e("s_mov_b32 s3, %d" % SLOT)
    k.e("s_cmov_b32 s3, 0x%x" % ((-(NS - 1) * SLOT) & 0xffffffff))
    k.e("v_add_u32 v%d, s3, v%d" % (vXa + 2, vXa + 2))
    k.e("v_add_u32 v%d, s3, v%d" % (vWa + 1, vWa + 1))
    k.e("s_add_u32 s%d, s%d, 1" % (sIt, sIt))
    k.e("s_cmp_lt_u32 s%d, 8" % sIt)
    k.e("s_cbranch_scc1 %s_loop" % name)
    assert k.lq == lq0[len(lq0) - len(k.lq):] or DIAG, (k.lq, lq0)
    k.wait_lds_all()
    k.stamp(11)
    k.e("s_barrier")
    k.stamp(12)
    vSr = vE
    vSn = vE + 5
    vVr = vE + 12
    vVn = vE + 32
    k.e("v_and_b32 v%d, 15, v%d" % (vT0, vL))
    k.e("v_lshlrev_b32 v%d, 2, v%d" % (vT2, vT0))
    k.e("v_lshrrev_b32 v%d, 4, v%d" % (vT1, vL))
    k.e("v_lshlrev_b32 v%d, 4, v%d" % (vT3, vT1))
    k.e("v_add_u32 v%d, %d, v%d" % (vT2, ST_BASE, vT2))
    k.e("v_add_u32 v%d, %d, v%d" % (vT3, ST_BASE, vT3))
    for t in range(5):
        k.e("ds_read_b32 v%d, v%d offset:%d" % (vSr + t, vT2, 640 + 64 * t))
        k.e("ds_read_b32 v%d, v%d offset:%d" % (vSn + t, vT2, 960 + 64 * t))
        k.e("ds_read_b128 %s, v%d offset:%d" % (vr(vVr + 4 * t, 4), vT3, 640 + 64 * t))
        k.e("ds_read_b128 %s, v%d offset:%d" % (vr(vVn + 4 * t, 4), vT3, 960 + 64 * t))
    vBc = vE + 52
    vBp = vE + 56
    vBp1 = vE + 60
    vNeg = vE + 64
    k.e("v_mov_b32 v%d, 0x%08x" % (vNeg, f32bits(NEG)))
    k.e("v_lshlrev_b32 v%d, 2, v%d" % (vT2, vT1))
    k.e("v_sub_u32 v%d, v%d, v%d" % (vT2, vT0, vT2))
    vSgn = vE + 65
    k.e("v_mov_b32 v%d, 0x80000000" % vSgn)
    for r in range(4):
        k.e("v_subrev_u32 v%d, %d, v%d" % (vT3, r, vT2))
        k.e("v_and_b32 v%d, 0x80000001, v%d" % (vT3, vT3))
        k.e("v_cmp_eq_u32 vcc, 0, v%d" % vT3)
        k.e("v_cmp_eq_u32 s[38:39], v%d, v%d" % (vSgn, vT3))
        k.e("s_nop 1")
        k.e("v_cndmask_b32_e64 v%d, v%d, 0, vcc" % (vBc + r, vNeg))
        k.e("v_cndmask_b32_e64 v%d, v%d, 0, s[38:39]" % (vBp + r, vNeg))
    k.e("s_cmp_eq_u32 s%d, 0" % sRB)
    k.e("s_cselect_b64 s[38:39], -1, 0")
    for r in range(4):
        k.e("v_cndmask_b32_e64 v%d, v%d, v%d, s[38:39]" % (vBp1 + r, vBp + r, vNeg))
    k.e("s_mov_b32 s%d, 0x%08x" % (sScale, f32bits(0.25 * 1.4426950408889634)))
    k.e("s_waitcnt lgkmcnt(0)")
    vQb = vX
    vKb = vX + 8
    vVb = vX + 18
    for t in range(5):
        for (acc, cs, dst, on) in ((vQ + 4 * (t - 1), vCq, vQb + 2 * (t - 1), t >= 1), (vKk + 4 * t, vCk, vKb + 2 * t, True)):
            if not on:
                continue
            for r in range(4):
                k.e("v_mul_f32 v%d, v%d, v%d" % (vT0 + r, vSn + t, cs + r))
            for r in range(4):
                k.e("v_fma_f32 v%d, v%d, v%d, v%d" % (vT0 + r, vSr + t, acc + r, vT0 + r))
            k.e("v_cvt_pk_bf16_f32 v%d, v%d, v%d" % (dst, vT0, vT1))
            k.e("v_cvt_pk_bf16_f32 v%d, v%d, v%d" % (dst + 1, vT2, vT3))
        for r in range(4):
            k.e("v_mul_f32 v%d, v%d, v%d" % (vT0 + r, vVn + 4 * t + r, vCv))
        for r in range(4):
            k.e("v_fma_f32 v%d, v%d, v%d, v%d" % (vT0 + r, vVr + 4 * t + r, vV + 4 * t + r, vT0 + r))
        k.e("v_cvt_pk_bf16_f32 v%d, v%d, v%d" % (vVb + 2 * t, vT0, vT1))
        k.e("v_cvt_pk_bf16_f32 v%d, v%d, v%d" % (vVb + 2 * t + 1, vT2, vT3))
    k.e("s_nop 1")
    vS = vQ
    for t in range(4):
        k.e("v_mfma_f32_16x16x16_bf16 %s, %s, %s, 0" % (vr(vS + 8 * t, 4), vr(vKb + 2 * t, 2), vr(vQb + 2 * t, 2)))
        k.e("v_mfma_f32_16x16x16_bf16 %s, %s, %s, 0" % (vr(vS + 8 * t + 4, 4), vr(vKb + 2 * (t + 1), 2), vr(vQb + 2 * t, 2)))
    k.e("s_nop 7")
    k.e("s_nop 1")
    vMx = vE
    vMy = vE + 4
    vSum = vE + 8
    for t in range(4):
        for r in range(4):
            k.e("v_fma_f32 v%d, v%d, s%d, v%d" % (vS + 8 * t + r, vS + 8 * t + r, sScale, (vBp1 if t == 0 else vBp) + r))
            k.e("v_fma_f32 v%d, v%d, s%d, v%d" % (vS + 8 * t + 4 + r, vS + 8 * t + 4 + r, sScale, vBc + r))
        b = vS + 8 * t
        k.e("v_max3_f32 v%d, v%d, v%d, v%d" % (vMx + t, b, b + 1, b + 2))
        k.e("v_max3_f32 v%d, v%d, v%d, v%d" % (vMx + t, vMx + t, b + 3, b + 4))
        k.e("v_max3_f32 v%d, v%d, v%d, v%d" % (vMx + t, vMx + t, b + 5, b + 6))
        k.e("v_max_f32 v%d, v%d, v%d" % (vMx + t, vMx + t, b + 7))
    for op in ("v_permlane32_swap_b32", "v_permlane16_swap_b32"):
        for t in range(4):
            k.e("v_mov_b32 v%d, v%d" % (vMy + t, vMx + t))
        k.e("s_nop 1")
        for t in range(4):
            k.e("%s v%d, v%d" % (op, vMx + t, vMy + t))
        for t in range(4):
            k.e("v_max_f32 v%d, v%d, v%d" % (vMx + t, vMx + t, vMy + t))
    for t in range(4):
        b = vS + 8 * t
        for i in range(8):
            k.e("v_sub_f32 v%d, v%d, v%d" % (b + i, b + i, vMx + t))
        for i in range(8):
            k.e("v_exp_f32 v%d, v%d" % (b + i, b + i))
        k.e("s_nop 0")
        k.e("v_add_f32 v%d, v%d, v%d" % (vSum + t, b, b + 1))
        for i in range(2, 8):
            k.e("v_add_f32 v%d, v%d, v%d" % (vSum + t, vSum + t, b + i))
    vP = vE + 12
    for t in range(4):
        b = vS + 8 * t
        for i in range(4):
            k.e("v_cvt_pk_bf16_f32 v%d, v%d, v%d" % (vP + 4 * t + i, b + 2 * i, b + 2 * i + 1))
    for op in ("v_permlane32_swap_b32", "v_permlane16_swap_b32"):
        for t in range(4):
            k.e("v_mov_b32 v%d, v%d" % (vMy + t, vSum + t))
        k.e("s_nop 1")
        for t in range(4):
            k.e("%s v%d, v%d" % (op, vSum + t, vMy + t))
        for t in range(4):
            k.e("v_add_f32 v%d, v%d, v%d" % (vSum + t, vSum + t, vMy + t))
    vOa = vE + 28
    for t in range(4):
        k.e("v_mfma_f32_16x16x16_bf16 %s, %s, %s, 0" % (vr(vOa + 4 * t, 4), vr(vVb + 2 * t, 2), vr(vP + 4 * t, 2)))
    for t in range(4):
        k.e("v_mfma_f32_16x16x16_bf16 %s, %s, %s, %s" % (vr(vOa + 4 * t, 4), vr(vVb + 2 * (t + 1), 2), vr(vP + 4 * t + 2, 2), vr(vOa + 4 * t, 4)))
    for t in range(4):
        k.e("v_rcp_f32 v%d, v%d" % (vSum + t, vSum + t))
    if MERGE:
        k.e("v_and_b32 v%d, 15, v%d" % (vT0, vL))
        k.e("v_lshlrev_b32 v%d, 7, v%d" % (vT0, vT0))
        k.e("v_lshrrev_b32 v%d, 4, v%d" % (vT1, vL))
        k.e("v_lshl_add_u32 v%d, v%d, 3, v%d" % (vT0, vT1, vT0))
        k.e("s_lshl_b32 s3, s%d, 5" % sW)
        k.e("v_add_u32 v%d, s3, v%d" % (vT0, vT0))
        k.e("s_nop 7")
        for t in range(4):
            for r in range(4):
                k.e("v_mul_f32 v%d, v%d, v%d" % (vOa + 4 * t + r, vOa + 4 * t + r, vSum + t))
            k.e("v_cvt_pk_bf16_f32 v%d, v%d, v%d" % (vP + 2 * t, vOa + 4 * t, vOa + 4 * t + 1))
            k.e("v_cvt_pk_bf16_f32 v%d, v%d, v%d" % (vP + 2 * t + 1, vOa + 4 * t + 2, vOa + 4 * t + 3))
            k.e("ds_write_b64 v%d, %s offset:%d" % (vT0, vr(vP + 2 * t, 2), 2048 * t))
        k.e("v_lshlrev_b32 v%d, 4, v%d" % (vT1, vL))
        k.e("s_lshl_b32 s3, s%d, 11" % sW)
        k.e("v_add_u32 v%d, s3, v%d" % (vT1, vT1))
        k.e("v_lshrrev_b32 v%d, 3, v%d" % (vT2, vL))
        k.e("s_lshl_b32 s3, s%d, 6" % sRB)
        k.e("s_lshl_b32 s%d, s%d, 4" % (sT, sW))
        k.e("s_add_u32 s3, s3, s%d" % sT)
        k.e("v_add_u32 v%d, s3, v%d" % (vT2, vT2))
        k.e("v_lshlrev_b32 v%d, 10, v%d" % (vT2, vT2))
        k.e("v_and_b32 v%d, 7, v%d" % (vT3, vL))
        k.e("v_lshl_add_u32 v%d, v%d, 4, v%d" % (vT2, vT3, vT2))
        k.e("s_lshl_b32 s3, s%d, 7" % sHG)
        k.e("v_add_u32 v%d, s3, v%d" % (vT2, vT2))
        k.e("s_waitcnt lgkmcnt(0)")
        k.e("s_barrier")
        k.e("ds_read_b128 %s, v%d" % (vr(vOa, 4), vT1))
        k.e("ds_read_b128 %s, v%d offset:1024" % (vr(vOa + 4, 4), vT1))
        k.e("s_mov_b32 s3, 8192")
        k.e("s_waitcnt lgkmcnt(1)")
        k.vmem("buffer_store_dwordx4 %s, v%d, %s, 0 offen sc1" % (vr(vOa, 4), vT2, sr(S_C, 4)), "st")
        k.e("s_waitcnt lgkmcnt(0)")
        k.vmem("buffer_store_dwordx4 %s, v%d, %s, s3 offen sc1" % (vr(vOa + 4, 4), vT2, sr(S_C, 4)), "st")
    else:
        k.e("v_and_b32 v%d, 15, v%d" % (vT0, vL))
        k.e("s_lshl_b32 s3, s%d, 6" % sRB)
        k.e("v_add_u32 v%d, s3, v%d" % (vT0, vT0))
        k.e("v_lshlrev_b32 v%d, 10, v%d" % (vT0, vT0))
        k.e("v_lshrrev_b32 v%d, 4, v%d" % (vT1, vL))
        k.e("v_lshl_add_u32 v%d, v%d, 3, v%d" % (vT0, vT1, vT0))
        k.e("s_lshl_b32 s3, s%d, 2" % sHG)
        k.e("s_add_u32 s3, s3, s%d" % sW)
        k.e("s_lshl_b32 s3, s3, 5")
        k.e("v_add_u32 v%d, s3, v%d" % (vT0, vT0))
        k.e("s_nop 3")
        for t in range(4):
            for r in range(4):
                k.e("v_mul_f32 v%d, v%d, v%d" % (vOa + 4 * t + r, vOa + 4 * t + r, vSum + t))
            k.e("v_cvt_pk_bf16_f32 v%d, v%d, v%d" % (vP + 2 * t, vOa + 4 * t, vOa + 4 * t + 1))
            k.e("v_cvt_pk_bf16_f32 v%d, v%d, v%d" % (vP + 2 * t + 1, vOa + 4 * t + 2, vOa + 4 * t + 3))
            k.e("s_mov_b32 s3, %d" % (t * 16384))
            k.vmem("buffer_store_dwordx2 %s, v%d, %s, s3 offen%s" % (vr(vP + 2 * t, 2), vT0, sr(S_C, 4), " sc1" if MERGE else ""), "st")
    k.stamp(13)
    if MERGE:
        phase2(k, name, sW, sRB, sHG)
    k.stamp_rt(14)
    k.dump(0, sW, 15 if not MERGE else 20)
    k.e("s_endpgm")

    k.lab("%s_loader" % name)
    vRa = 10
    vOne = 12
    vF = 16
    vG = 28
    vR = 40
    k.e("s_and_b32 s%d, s%d, 1" % (sT, sW))
    k.e("s_lshl_b32 s3, s%d, 2" % sT)
    k.e("v_and_b32 v2, 15, v1")
    k.e("v_lshrrev_b32 v3, 4, v1")
    k.e("v_lshrrev_b32 v9, 1, v2")
    k.e("v_xor_b32 v9, v9, v3")
    k.e("v_xor_b32 v9, s3, v9")
    k.e("v_lshlrev_b32 v2, 7, v2")
    k.e("v_lshl_add_u32 v%d, v9, 4, v2" % vRa)
    k.e("v_add_u32 v%d, %d, v%d" % (vRa + 1, 2 * SLOT, vRa))
    for i in range(4):
        k.e("v_mov_b32 v%d, 0x3f803f80" % (vOne + i))

    def stats_stage(i, tiles):
        slot = i % NS
        for n, t in enumerate(tiles):
            k.lds("ds_read_b128 %s, v%d offset:%d" % (vr(vF + 4 * n, 4), vRa + slot // 2, (slot % 2) * SLOT + 2048 * t), ("f", n))
        for n, t in enumerate(tiles):
            k.wait_lds(("f", n))
            k.e("v_mfma_f32_16x16x32_bf16 %s, %s, %s, %s" % (vr(vG + 4 * n, 4), vr(vF + 4 * n, 4), vr(vF + 4 * n, 4), "0" if i == 0 else vr(vG + 4 * n, 4)))
            k.e("v_mfma_f32_16x16x32_bf16 %s, %s, %s, %s" % (vr(vR + 4 * n, 4), vr(vF + 4 * n, 4), vr(vOne, 4), "0" if i == 0 else vr(vR + 4 * n, 4)))

    def stats_finish(tiles):
        k.e("v_and_b32 v2, 3, v1")
        k.e("v_cmp_eq_u32 s[48:49], 1, v2")
        k.e("v_cmp_eq_u32 s[50:51], 2, v2")
        k.e("v_cmp_eq_u32 s[52:53], 3, v2")
        k.e("v_bfe_u32 v2, v1, 2, 2")
        k.e("v_lshrrev_b32 v3, 4, v1")
        k.e("v_cmp_eq_u32 vcc, v2, v3")
        k.e("s_mul_i32 s3, s%d, 1280" % sT)
        k.e("s_add_u32 s3, s3, %d" % ST_BASE)
        k.e("v_and_b32 v2, 15, v1")
        k.e("v_lshlrev_b32 v2, 2, v2")
        k.e("v_add_u32 v2, s3, v2")
        k.e("s_nop 3")
        for n, t in enumerate(tiles):
            for base in (vG + 4 * n, vR + 4 * n):
                k.e("v_cndmask_b32_e64 v%d, v%d, v%d, s[48:49]" % (base, base, base + 1))
                k.e("v_cndmask_b32_e64 v%d, v%d, v%d, s[50:51]" % (base, base, base + 2))
                k.e("v_cndmask_b32_e64 v%d, v%d, v%d, s[52:53]" % (base, base, base + 3))
        k.e("s_and_saveexec_b64 s[38:39], vcc")
        for n, t in enumerate(tiles):
            k.e("ds_write_b32 v2, v%d offset:%d" % (vR + 4 * n, 64 * t))
            k.e("ds_write_b32 v2, v%d offset:%d" % (vG + 4 * n, 320 + 64 * t))
        k.e("s_mov_b64 exec, s[38:39]")
        k.e("s_waitcnt lgkmcnt(0)")
        k.e("s_barrier")

    k.e("s_cmp_ge_u32 s%d, 6" % sW)
    k.e("s_cbranch_scc1 %s_loadw" % name)
    k.e("s_cmp_eq_u32 s%d, 5" % sW)
    k.e("s_cbranch_scc1 %s_pref" % name)
    k.vm = []
    k.lq = []
    srd(k, S_A, 44, 2 << 20)
    vOff = 4
    vPo = 56
    k.e("s_lshl_b32 s3, s%d, 6" % sRB)
    k.e("s_sub_u32 s3, s3, 16")
    k.e("v_lshrrev_b32 v2, 3, v1")
    k.e("v_add_u32 v2, s3, v2")
    k.e("v_and_b32 v3, 7, v1")
    k.e("v_lshrrev_b32 v9, 4, v1")
    k.e("v_xor_b32 v3, v3, v9")
    for p in range(10):
        k.e("v_add_u32 v9, %d, v2" % (8 * p))
        k.e("v_max_i32 v9, 0, v9")
        k.e("v_lshlrev_b32 v9, 10, v9")
        if p & 1:
            k.e("v_xor_b32 v%d, 4, v3" % (vPo + p))
            k.e("v_lshl_add_u32 v%d, v%d, 4, v9" % (vPo + p, vPo + p))
        else:
            k.e("v_lshl_add_u32 v%d, v3, 4, v9" % (vPo + p))

    def lda(st):
        slot = st % NS
        k.e("s_lshl_b32 s%d, s%d, 7" % (sOff, sK))
        k.e("s_add_u32 s%d, s%d, 1" % (sK, sK))
        k.e("s_and_b32 s%d, s%d, 7" % (sK, sK))
        for p in range(10):
            k.e("s_mov_b32 m0, %d" % (slot * SLOT + p * 1024))
            k.e("s_nop 0")
            k.vmem("buffer_load_dwordx4 v%d, %s, s%d offen lds" % (vPo + p, sr(S_A, 4), sOff), ("s", st))

    k.stamp(2)
    lda(0)
    if not EARLY1:
        lda(1)
    k.stamp(3)
    for i in range(8):
        k.wait_vm(("s", i))
        k.stamp(4 + i)
        k.e("s_barrier")
        if i == 0 and EARLY1:
            lda(1)
        if i + 2 < 8:
            lda(i + 2)
        stats_stage(i, [0, 1, 2])
    stats_finish([0, 1, 2])
    k.e("s_branch %s_fin" % name)
    k.lab("%s_pref" % name)
    k.vm = []
    k.lq = []
    k.stamp(2)
    k.stamp(3)
    for i in range(8):
        k.stamp(4 + i)
        k.e("s_barrier")
        if i == int(os.environ.get("PFI", "6")) and PREF:
            srd(k, S_A, 6, 512 * 1024)
            k.e("v_lshrrev_b32 v4, 2, v1")
            k.e("v_lshlrev_b32 v4, 10, v4")
            k.e("v_and_b32 v3, 3, v1")
            k.e("v_lshl_add_u32 v4, v3, 7, v4")
            k.e("s_lshr_b32 s%d, s2, 3" % sOff)
            k.e("s_lshl_b32 s%d, s%d, 14" % (sOff, sOff))
            k.e("s_and_b32 s%d, s2, 1" % sM)
            k.e("s_lshl_b32 s%d, s%d, 9" % (sM, sM))
            k.e("s_add_u32 s%d, s%d, s%d" % (sOff, sOff, sM))
            k.vmem("buffer_load_dword v56, v4, %s, s%d offen" % (sr(S_A, 4), sOff), "pf")
            k.e("v_lshlrev_b32 v2, 7, v1")
            k.e("s_mul_i32 s3, s2, 7168")
            k.e("v_cmp_gt_u32 vcc, 56, v1")
            k.e("s_and_saveexec_b64 s[38:39], vcc")
            for ptr in ((20, 22) if not os.environ.get("NOCOLDGU") else ()):
                srd(k, S_B, ptr, 512 * 3584)
                k.vmem("buffer_load_dword v57, v2, %s, s3 offen" % sr(S_B, 4), "pf")
            k.e("s_mov_b64 exec, s[38:39]")
        stats_stage(i, [0, 1, 2])
    stats_finish([0, 1, 2])
    k.lab("%s_fin" % name)
    k.e("s_mul_i32 s3, s%d, 160" % sT)
    k.e("s_add_u32 s3, s3, %d" % ST_BASE)
    k.e("v_lshlrev_b32 v2, 2, v1")
    k.e("v_add_u32 v2, s3, v2")
    k.e("v_cmp_gt_u32 vcc, 40, v1")
    k.e("s_and_saveexec_b64 s[38:39], vcc")
    k.e("ds_read_b32 v3, v2")
    k.e("ds_read_b32 v9, v2 offset:320")
    k.e("ds_read_b32 v4, v2 offset:1280")
    k.e("ds_read_b32 v5, v2 offset:1600")
    k.e("s_waitcnt lgkmcnt(0)")
    k.e("v_add_f32 v3, v3, v4")
    k.e("v_add_f32 v9, v9, v5")
    k.e("v_mul_f32 v3, 0x3b000000, v3")
    k.e("v_mul_f32 v9, 0x3b000000, v9")
    k.e("v_fma_f32 v9, -v3, v3, v9")
    k.e("v_max_f32 v9, 0, v9")
    k.e("v_add_f32 v9, 0x3727c5ac, v9")
    k.e("v_rsq_f32 v9, v9")
    k.e("s_nop 0")
    k.e("v_mul_f32 v3, v3, v9")
    k.e("v_sub_f32 v3, 0, v3")
    k.e("ds_write_b32 v2, v9 offset:640")
    k.e("ds_write_b32 v2, v3 offset:960")
    k.e("s_waitcnt lgkmcnt(0)")
    k.e("s_mov_b64 exec, s[38:39]")
    k.e("s_barrier")
    k.stamp(12)
    if MERGE:
        k.e("s_barrier")
        k.e("s_barrier")
        k.e("s_cmp_eq_u32 s%d, 4" % sW)
        k.e("s_cbranch_scc1 %s_nopoll" % name)
        srd(k, S_A, 4, 256 * 128, WS_FLAG)
        k.e("s_memrealtime s[56:57]")
        k.e("s_lshl_b32 s3, s%d, 3" % sRB)
        k.e("s_add_u32 s%d, s3, s%d" % (sOff, sHG))
        k.e("s_lshl_b32 s%d, s%d, 7" % (sOff, sOff))
        k.e("v_mov_b32 v2, s%d" % sOff)
        k.e("s_lshl_b32 s3, s3, 7")
        k.e("v_and_b32 v3, 7, v1")
        k.e("v_lshlrev_b32 v3, 7, v3")
        k.e("v_add_u32 v3, s3, v3")
        k.e("s_waitcnt lgkmcnt(0)")
        k.e("v_mov_b32 v4, s56")
        k.e("v_mov_b32 v5, s57")
        k.e("v_xor_b32 v6, 0x5bd1e995, v4")
        k.e("v_xor_b32 v7, 0x9e3779b9, v5")
        k.e("v_cmp_eq_u32 vcc, 0, v1")
        k.e("s_and_saveexec_b64 s[38:39], vcc")
        k.e("buffer_store_dwordx4 v[4:7], v2, %s, 0 offen sc1" % sr(S_A, 4))
        k.e("s_mov_b64 exec, s[38:39]")
        k.e("s_sub_u32 s54, s54, 200")
        k.e("s_subb_u32 s55, s55, 0")
        k.e("s_mov_b32 s%d, 0" % sM)
        k.lab("%s_poll" % name)
        k.e("buffer_load_dwordx4 v[8:11], v3, %s, 0 offen sc1" % sr(S_A, 4))
        k.e("s_waitcnt vmcnt(0)")
        k.e("v_xor_b32 v10, v10, v8")
        k.e("v_xor_b32 v11, v11, v9")
        k.e("v_subrev_co_u32 v8, vcc, s54, v8")
        k.e("v_mov_b32 v12, s55")
        k.e("s_nop 0")
        k.e("v_subb_co_u32 v9, vcc, v9, v12, vcc")
        k.e("v_xor_b32 v10, 0x5bd1e995, v10")
        k.e("v_xor_b32 v11, 0x9e3779b9, v11")
        k.e("v_lshrrev_b32 v8, 20, v8")
        k.e("v_or_b32 v8, v8, v9")
        k.e("v_or3_b32 v8, v8, v10, v11")
        k.e("v_cmp_eq_u32 vcc, 0, v8")
        k.e("s_add_u32 s%d, s%d, 1" % (sM, sM))
        k.e("s_cmp_eq_u64 vcc, exec")
        k.e("s_cbranch_scc1 %s_nopoll" % name)
        k.e("s_cmp_lt_u32 s%d, 0x10000" % sM)
        k.e("s_cbranch_scc1 %s_poll" % name)
        k.lab("%s_nopoll" % name)
        k.e("s_barrier")
        k.e("s_barrier")
    k.e("s_waitcnt vmcnt(0)")
    k.stamp(13)
    k.stamp_rt(14)
    k.dump(0, sW, 15)
    k.e("s_endpgm")

    k.lab("%s_loadw" % name)
    k.vm = []
    k.lq = []
    srd(k, S_B, 46, 512 * 3072)
    vWe, vWo = 4, 5
    k.e("v_lshrrev_b32 v2, 3, v1")
    k.e("v_mul_u32_u24 v%d, 3072, v2" % vWe)
    k.e("v_and_b32 v2, 1, v1")
    k.e("v_lshl_add_u32 v%d, v2, 4, v%d" % (vWe, vWe))
    k.e("s_lshl_b32 s3, s%d, 7" % sHG)
    k.e("v_add_u32 v%d, s3, v%d" % (vWe, vWe))
    k.e("v_bfe_u32 v2, v1, 1, 2")
    k.e("v_bfe_u32 v3, v1, 4, 1")
    k.e("v_xor_b32 v2, v2, v3")
    k.e("v_xor_b32 v3, 2, v2")
    k.e("v_lshl_add_u32 v%d, v3, 5, v%d" % (vWo, vWe))
    k.e("v_lshl_add_u32 v%d, v2, 5, v%d" % (vWe, vWe))
    k.e("s_mul_i32 s%d, s%d, %d" % (sM, sT, 12 * 1024))
    k.e("s_add_u32 s%d, s%d, %d" % (sM, sM, A_BYTES))
    sG = 82
    for p in range(12):
        p0, p1 = p, 12 + p
        g0 = (p0 // 8) * 1024 + (p0 % 8) * 8 * 3072
        g1 = (p1 // 8) * 1024 + (p1 % 8) * 8 * 3072
        k.e("s_cmp_eq_u32 s%d, 0" % sT)
        k.e("s_mov_b32 s%d, %d" % (sG + p, g1))
        k.e("s_cmov_b32 s%d, %d" % (sG + p, g0))

    def ldw(st):
        slot = st % NS
        k.e("s_mul_i32 s%d, s%d, %d" % (sKb, sK, 64 * 3072))
        k.e("s_add_u32 s%d, s%d, 1" % (sK, sK))
        k.e("s_and_b32 s%d, s%d, 7" % (sK, sK))
        for p in range(12):
            k.e("s_add_u32 m0, s%d, %d" % (sM, slot * SLOT + p * 1024))
            k.e("s_add_u32 s%d, s%d, s%d" % (sOff, sG + p, sKb))
            k.vmem("buffer_load_dwordx4 v%d, %s, s%d offen lds" % (vWo if p & 1 else vWe, sr(S_B, 4), sOff), ("s", st))

    k.stamp(2)
    ldw(0)
    if not EARLY1:
        ldw(1)
    k.stamp(3)
    for i in range(8):
        k.wait_vm(("s", i))
        k.stamp(4 + i)
        k.e("s_barrier")
        if i == 0 and EARLY1:
            ldw(1)
        stats_stage(i, [3, 4])
        if i + 2 < 8:
            ldw(i + 2)
    stats_finish([3, 4])
    k.e("s_barrier")
    k.stamp(12)
    if MERGE:
        srd(k, S_B, 6, 512 * 1024)
        k.e("v_lshrrev_b32 v2, 3, v1")
        k.e("v_lshlrev_b32 v%d, 10, v2" % vWe)
        k.e("v_and_b32 v2, 1, v1")
        k.e("v_lshl_add_u32 v%d, v2, 4, v%d" % (vWe, vWe))
        k.e("s_lshl_b32 s3, s%d, 7" % sHG)
        k.e("v_add_u32 v%d, s3, v%d" % (vWe, vWe))
        k.e("v_bfe_u32 v2, v1, 1, 2")
        k.e("v_bfe_u32 v3, v1, 4, 1")
        k.e("v_xor_b32 v2, v2, v3")
        k.e("v_xor_b32 v3, 2, v2")
        k.e("v_lshl_add_u32 v%d, v3, 5, v%d" % (vWo, vWe))
        k.e("v_lshl_add_u32 v%d, v2, 5, v%d" % (vWe, vWe))
        k.e("s_lshl_b32 s%d, s%d, 18" % (sOff, sT))
        k.e("s_lshl_b32 s%d, s%d, 16" % (sM, sT))
        k.e("s_barrier")
        k.e("s_barrier")
        for ww in range(2):
            for pc in range(16):
                k.e("s_add_u32 m0, s%d, %d" % (sM, ww * 32768 + 16384 + pc * 1024))
                k.e("s_nop 0")
                k.vmem("buffer_load_dwordx4 v%d, %s, s%d offen lds" % (vWo if pc & 1 else vWe, sr(S_B, 4), sOff), "wo")
                k.e("s_add_u32 s%d, s%d, 8192" % (sOff, sOff))
        k.e("s_waitcnt vmcnt(0)")
        k.e("s_barrier")
        k.e("s_barrier")
    k.e("s_waitcnt vmcnt(0)")
    k.stamp(13)
    k.stamp_rt(14)
    k.dump(0, sW, 15)
    k.lab("%s_end" % name)
    k.e("s_endpgm")
    return k.text(), nv, LDS
```

```python
import os
from gen import K, vr, sr, srd, header, KA_X, KA_WQKV, KA_WS, WS_O, f32bits, ROT, KA_WO, KA_WG, KA_WD, PREF, DIAG, EARLY1, WS_H, WS_HST, WS_FLAG, MERGE, KA_OUT

A_BYTES = 80 * 128
W_SUB = 64 * 128
SLOT = A_BYTES + 3 * W_SUB
NS = 4
ST_BASE = NS * SLOT
LDS = ST_BASE + 6 * 320
NEG = -1.0e30


def phase2(k, name, sW, sRB, sHG):
    S_A, S_B, S_R, S_C, S_ST = 8, 12, 16, 84, 88
    sT, sLB, sAoff = 31, 32, 33
    sTile = 48
    vL, vAe, vAo, vRo = 1, 2, 3, 4
    vTr = 5
    vT0, vT1, vT2 = 10, 11, 12
    vXa = 13
    vRes = 16
    vAcc = 24
    vBf = 88
    vAf = 120
    k.vm = ["st"] * 4
    k.lq = []
    srd(k, S_A, 4, 2 << 20, WS_O)
    srd(k, S_R, 44, 2 << 20)
    srd(k, S_C, 4, 2 << 20, WS_H)
    srd(k, S_ST, 4, 2048 * 64, WS_HST)
    k.e("s_lshl_b32 s%d, s%d, 15" % (sLB, sW))
    for t in range(4):
        k.e("s_add_u32 s%d, s%d, %d" % (sT, sW, t))
        k.e("s_and_b32 s%d, s%d, 3" % (sT, sT))
        k.e("s_lshl_b32 s%d, s%d, 14" % (sTile + t, sT))
    k.e("s_lshl_b32 s%d, s%d, 6" % (sT, sRB))
    k.e("v_lshrrev_b32 v%d, 3, v%d" % (vT0, vL))
    k.e("v_add_u32 v%d, s%d, v%d" % (vT1, sT, vT0))
    k.e("v_lshlrev_b32 v%d, 10, v%d" % (vAe, vT1))
    k.e("s_lshl_b32 s3, s%d, 8" % sW)
    k.e("v_add_u32 v%d, s3, v%d" % (vAe, vAe))
    k.e("v_and_b32 v%d, 7, v%d" % (vT0, vL))
    k.e("v_lshrrev_b32 v%d, 4, v%d" % (vT2, vL))
    k.e("v_xor_b32 v%d, v%d, v%d" % (vT0, vT0, vT2))
    k.e("v_xor_b32 v%d, 4, v%d" % (vT1, vT0))
    k.e("v_add_u32 v%d, 8192, v%d" % (vAo, vAe))
    k.e("v_lshl_add_u32 v%d, v%d, 4, v%d" % (vAo, vT1, vAo))
    k.e("v_lshl_add_u32 v%d, v%d, 4, v%d" % (vAe, vT0, vAe))
    k.e("v_and_b32 v%d, 15, v%d" % (vT1, vL))
    k.e("v_lshrrev_b32 v%d, 1, v%d" % (vT0, vT1))
    k.e("v_xor_b32 v%d, v%d, v%d" % (vT0, vT0, vT2))
    k.e("v_lshlrev_b32 v%d, 7, v%d" % (vXa, vT1))
    k.e("v_add_u32 v%d, s%d, v%d" % (vXa, sLB, vXa))
    k.e("v_lshl_add_u32 v%d, v%d, 4, v%d" % (vXa, vT0, vXa))
    k.e("v_xor_b32 v%d, 64, v%d" % (vXa + 1, vXa))
    k.e("s_lshl_b32 s3, s%d, 4" % sW)
    k.e("s_add_u32 s3, s3, s%d" % sT)
    k.e("v_add_u32 v%d, s3, v%d" % (vT1, vT1))
    k.e("v_lshlrev_b32 v%d, 10, v%d" % (vRo, vT1))
    k.e("v_lshl_add_u32 v%d, v%d, 3, v%d" % (vRo, vT2, vRo))
    k.e("s_lshl_b32 s3, s%d, 7" % sHG)
    k.e("v_add_u32 v%d, s3, v%d" % (vRo, vRo))
    for j in range(4):
        k.vmem("buffer_load_dwordx2 %s, v%d, %s, 0 offen offset:%d" % (vr(vRes + 2 * j, 2), vRo, sr(S_R, 4), 32 * j), "res")
    k.e("v_lshrrev_b32 v%d, 4, v%d" % (vT0, vL))
    k.e("v_bfe_u32 v%d, v%d, 2, 2" % (vT1, vL))
    k.e("v_lshl_add_u32 v%d, v%d, 3, v%d" % (vT2, vT0, vT1))
    k.e("v_lshlrev_b32 v%d, 7, v%d" % (vT2, vT2))
    k.e("v_add_u32 v%d, s%d, v%d" % (vT2, sLB, vT2))
    k.e("v_and_b32 v%d, 3, v%d" % (vTr, vL))
    k.e("v_lshl_add_u32 v%d, v%d, 3, v%d" % (vT2, vTr, vT2))
    k.e("v_bfe_u32 v%d, v%d, 3, 1" % (vT1, vL))
    k.e("v_bfe_u32 v%d, v%d, 4, 1" % (vT0, vL))
    k.e("v_lshl_or_b32 v%d, v%d, 1, v%d" % (vT0, vT0, vT1))
    for j in range(4):
        k.e("v_xor_b32 v%d, %d, v%d" % (vT1, j, vT0))
        k.e("v_lshl_add_u32 v%d, v%d, 5, v%d" % (vTr + j, vT1, vT2))
    k.wait_vm_all()
    k.e("s_barrier")
    k.stamp(15)
    k.e("s_barrier")
    k.stamp(16)
    for u in range(2):
        for t in range(4):
            k.e("s_add_u32 s%d, s%d, %d" % (sAoff, sTile + t, 128 * u))
            for p in range(2):
                k.e("s_add_u32 m0, s%d, %d" % (sLB, u * 8192 + t * 2048 + p * 1024))
                k.e("s_nop 0")
                k.vmem("buffer_load_dwordx4 v%d, %s, s%d offen sc1 lds" % (vAo if p else vAe, sr(S_A, 4), sAoff), ("a", u))

    def rd(s):
        buf = vBf + (s & 1) * 16
        ab = vAf + (s & 1) * 16
        bo = 16384 + s * 4096
        ao = (s // 2) * 8192
        ops = []
        for j in range(4):
            ops.append("ds_read_b64_tr_b16 %s, v%d offset:%d" % (vr(buf + j * 4, 2), vTr + j, bo))
            ops.append("ds_read_b64_tr_b16 %s, v%d offset:%d" % (vr(buf + j * 4 + 2, 2), vTr + j, bo + 512))
            ops.append("ds_read_b128 %s, v%d offset:%d" % (vr(ab + j * 4, 4), vXa + (s & 1), ao + j * 2048))
        return ops

    k.wait_vm(("a", 0))
    for op in rd(0):
        k.e(op)
    for s in range(4):
        buf = vBf + (s & 1) * 16
        ab = vAf + (s & 1) * 16
        k.e("s_waitcnt lgkmcnt(0)")
        fill = []
        if s + 1 < 4:
            k.wait_vm(("a", (s + 1) // 2))
            fill = rd(s + 1)
            if s == 1 and PREF:
                k.e("s_cmp_ge_u32 s%d, 2" % sW)
                k.e("s_cselect_b32 s6, s22, s20")
                k.e("s_cselect_b32 s7, s23, s21")
                srd(k, S_B, 6, 512 * 3584)
                k.e("s_lshr_b32 s3, s2, 3")
                k.e("s_lshl_b32 s3, s3, 1")
                k.e("s_and_b32 s%d, s%d, 1" % (sT, sW))
                k.e("s_add_u32 s3, s3, s%d" % sT)
                k.e("s_mul_i32 s3, s3, %d" % (8 * 3584))
                k.e("s_and_b32 s%d, s2, 3" % sT)
                k.e("s_mul_i32 s%d, s%d, 896" % (sT, sT))
                k.e("s_add_u32 s3, s3, s%d" % sT)
                k.e("v_lshrrev_b32 v%d, 3, v%d" % (vT0, vL))
                k.e("v_mul_u32_u24 v%d, 3584, v%d" % (vT0, vT0))
                k.e("v_and_b32 v%d, 7, v%d" % (vT1, vL))
                k.e("v_min_u32 v%d, 6, v%d" % (vT1, vT1))
                k.e("v_lshl_add_u32 v%d, v%d, 7, v%d" % (vT0, vT1, vT0))
                k.vmem("buffer_load_dword v200, v%d, %s, s3 offen" % (vT0, sr(S_B, 4)), "pf")
        fi = 0
        for t in range(4):
            for j in range(4):
                a = vAcc + (j * 4 + t) * 4
                cin = "0" if s == 0 else vr(a, 4)
                k.e("v_mfma_f32_16x16x32_bf16 %s, %s, %s, %s" % (vr(a, 4), vr(buf + j * 4, 4), vr(ab + t * 4, 4), cin))
                if fi < len(fill):
                    k.e(fill[fi]); fi += 1
    k.stamp(17)
    k.e("v_lshlrev_b32 v%d, 4, v%d" % (vT0, vL))
    k.e("v_add_u32 v%d, s%d, v%d" % (vT1, sLB, vT0))
    k.e("s_nop 7")
    k.e("s_nop 3")
    for t in range(1, 4):
        for j in range(4):
            k.e("ds_write_b128 v%d, %s offset:%d" % (vT1, vr(vAcc + (j * 4 + t) * 4, 4), (t - 1) * 4096 + j * 1024))
    vP = vBf
    vO = vP + 48
    for j in range(4):
        for h in range(2):
            k.e("v_lshlrev_b32 v%d, 16, v%d" % (vO + j * 4 + 2 * h, vRes + 2 * j + h))
            k.e("v_and_b32 v%d, 0xffff0000, v%d" % (vO + j * 4 + 2 * h + 1, vRes + 2 * j + h))
    for j in range(4):
        for r in range(4):
            k.e("v_add_f32 v%d, v%d, v%d" % (vO + j * 4 + r, vO + j * 4 + r, vAcc + (j * 4) * 4 + r))
    k.e("s_waitcnt lgkmcnt(0)")
    k.e("s_barrier")
    for d in range(1, 4):
        k.e("s_sub_u32 s3, s%d, %d" % (sW, d))
        k.e("s_and_b32 s3, s3, 3")
        k.e("s_lshl_b32 s3, s3, 15")
        k.e("v_add_u32 v%d, s3, v%d" % (vT1, vT0))
        for j in range(4):
            k.e("ds_read_b128 %s, v%d offset:%d" % (vr(vP + ((d - 1) * 4 + j) * 4, 4), vT1, (d - 1) * 4096 + j * 1024))
    for d in range(3):
        k.e("s_waitcnt lgkmcnt(%d)" % (8 - 4 * d))
        for j in range(4):
            for r in range(4):
                k.e("v_add_f32 v%d, v%d, v%d" % (vO + j * 4 + r, vO + j * 4 + r, vP + (d * 4 + j) * 4 + r))
    vPk = vP
    for j in range(4):
        k.e("v_cvt_pk_bf16_f32 v%d, v%d, v%d" % (vPk + 2 * j, vO + 4 * j, vO + 4 * j + 1))
        k.e("v_cvt_pk_bf16_f32 v%d, v%d, v%d" % (vPk + 2 * j + 1, vO + 4 * j + 2, vO + 4 * j + 3))
    for j in range(4):
        k.vmem("buffer_store_dwordx2 %s, v%d, %s, 0 offen offset:%d" % (vr(vPk + 2 * j, 2), vRo, sr(S_C, 4), 32 * j), "st")
    vS, vQ, vX, vY = vPk + 8, vPk + 9, vPk + 10, vPk + 11
    k.e("v_mov_b32 v%d, 0" % vS)
    k.e("v_mov_b32 v%d, 0" % vQ)
    for i in range(8):
        k.e("v_lshlrev_b32 v%d, 16, v%d" % (vX, vPk + i))
        k.e("v_and_b32 v%d, 0xffff0000, v%d" % (vY, vPk + i))
        k.e("v_add_f32 v%d, v%d, v%d" % (vS, vS, vX))
        k.e("v_fmac_f32 v%d, v%d, v%d" % (vQ, vX, vX))
        k.e("v_add_f32 v%d, v%d, v%d" % (vS, vS, vY))
        k.e("v_fmac_f32 v%d, v%d, v%d" % (vQ, vY, vY))
    for op in ("v_permlane32_swap_b32", "v_permlane16_swap_b32"):
        k.e("v_mov_b32 v%d, v%d" % (vX, vS))
        k.e("v_mov_b32 v%d, v%d" % (vY, vQ))
        k.e("s_nop 1")
        k.e("%s v%d, v%d" % (op, vS, vX))
        k.e("%s v%d, v%d" % (op, vQ, vY))
        k.e("v_add_f32 v%d, v%d, v%d" % (vS, vS, vX))
        k.e("v_add_f32 v%d, v%d, v%d" % (vQ, vQ, vY))
    k.e("v_lshrrev_b32 v%d, 10, v%d" % (vX, vRo))
    k.e("v_lshlrev_b32 v%d, 6, v%d" % (vX, vX))
    k.e("s_lshl_b32 s3, s%d, 3" % sHG)
    k.e("v_add_u32 v%d, s3, v%d" % (vX, vX))
    k.e("v_cmp_gt_u32 vcc, 16, v%d" % vL)
    k.e("s_and_saveexec_b64 s[34:35], vcc")
    k.vmem("buffer_store_dwordx2 %s, v%d, %s, 0 offen" % (vr(vS, 2), vX, sr(S_ST, 4)), "st")
    k.e("s_mov_b64 exec, s[34:35]")
    k.stamp(18)
    if DIAG:
        k.e("s_waitcnt vmcnt(0)")
    k.stamp(19)


def gen_k1(name):
    k = K()
    header(k, name)
    S_A, S_B, S_C = 8, 12, 16
    sW, sRB, sHG, sT = 28, 29, 30, 31
    sOff, sM = 34, 35
    sScale = 36
    sK = 40
    sKb = 41
    k.e("s_cmp_ge_u32 s2, 256")
    k.e("s_cbranch_scc1 %s_end" % name)
    if PREF:
        k.e("s_getpc_b64 s[24:25]")
        k.lab("%s_pc" % name)
        k.e("s_sub_u32 s24, s24, %s_pc-%s" % (name, name))
        k.e("s_subb_u32 s25, s25, 0")
        k.e("s_mov_b32 s26, code_end-%s" % name)
        k.e("s_mov_b32 s27, 0x00020000")
        k.e("v_lshlrev_b32 v3, 7, v0")
        k.e("buffer_load_dword v255, v3, s[24:27], 0 offen")
    k.stamp_rt(0)
    k.stamp(1)
    if MERGE:
        k.e("s_memrealtime s[54:55]")
    k.e("s_load_dwordx4 s[44:47], s[0:1], %d" % KA_X)
    k.e("s_load_dwordx2 s[4:5], s[0:1], %d" % KA_WS)
    k.e("s_load_dwordx2 s[6:7], s[0:1], %d" % KA_WO)
    k.e("s_load_dwordx4 s[20:23], s[0:1], %d" % KA_WG)
    k.e("v_lshrrev_b32 v2, 6, v0")
    k.e("v_and_b32 v1, 63, v0")
    k.e("v_readfirstlane_b32 s%d, v2" % sW)
    k.e("s_and_b32 s3, s2, 7")
    k.e("s_lshr_b32 s%d, s2, 3" % sT)
    k.e("s_lshr_b32 s%d, s3, 1" % sRB)
    k.e("s_lshl_b32 s%d, s%d, 3" % (sRB, sRB))
    k.e("s_lshr_b32 s%d, s%d, 2" % (sHG, sT))
    k.e("s_add_u32 s%d, s%d, s%d" % (sRB, sRB, sHG))
    k.e("s_and_b32 s%d, s3, 1" % sHG)
    k.e("s_lshl_b32 s%d, s%d, 2" % (sHG, sHG))
    k.e("s_and_b32 s%d, s%d, 3" % (sT, sT))
    k.e("s_add_u32 s%d, s%d, s%d" % (sHG, sHG, sT))
    k.e("s_lshr_b32 s3, s2, 5")
    k.e("s_lshl_b32 s%d, s%d, 1" % (sK, sT))
    k.e("s_add_u32 s%d, s%d, s3" % (sK, sK))
    k.e("s_and_b32 s%d, s%d, 7" % (sK, sK))
    if not ROT:
        k.e("s_mov_b32 s%d, 0" % sK)
    k.e("s_waitcnt lgkmcnt(0)")
    k.e("s_cmp_ge_u32 s%d, 4" % sW)
    k.e("s_cbranch_scc1 %s_loader" % name)

    vL = 1
    vXa = 2
    vWa = 6
    vOnes = 8
    vT0, vT1, vT2, vT3 = 12, 13, 14, 15
    vX = 16
    vWf = 56
    vQ = 80
    vKk = 96
    vV = 116
    vCq, vCk, vCv = 136, 140, 144
    vE = 148
    nv = 256
    srd(k, S_C, 4, 2 << 20, WS_O)
    k.e("v_and_b32 v%d, 15, v%d" % (vT0, vL))
    k.e("v_lshrrev_b32 v%d, 4, v%d" % (vT1, vL))
    k.e("v_lshrrev_b32 v%d, 1, v%d" % (vT2, vT0))
    k.e("v_xor_b32 v%d, v%d, v%d" % (vT2, vT2, vT1))
    k.e("v_lshlrev_b32 v%d, 7, v%d" % (vT3, vT0))
    k.e("v_lshl_add_u32 v%d, v%d, 4, v%d" % (vXa, vT2, vT3))
    k.e("v_xor_b32 v%d, 4, v%d" % (vT2, vT2))
    k.e("v_lshl_add_u32 v%d, v%d, 4, v%d" % (vXa + 1, vT2, vT3))
    k.e("v_add_u32 v%d, %d, v%d" % (vXa + 2, 2 * SLOT, vXa))
    k.e("v_add_u32 v%d, %d, v%d" % (vXa + 3, 2 * SLOT, vXa + 1))
    k.e("v_bfe_u32 v%d, v%d, 2, 2" % (vT2, vL))
    k.e("v_lshl_add_u32 v%d, v%d, 3, v%d" % (vT2, vT1, vT2))
    k.e("v_lshlrev_b32 v%d, 7, v%d" % (vT2, vT2))
    k.e("v_and_b32 v%d, 3, v%d" % (vT3, vL))
    k.e("v_lshl_add_u32 v%d, v%d, 3, v%d" % (vT2, vT3, vT2))
    k.e("v_bfe_u32 v%d, v%d, 3, 1" % (vT3, vL))
    k.e("v_bfe_u32 v%d, v%d, 4, 1" % (vT0, vL))
    k.e("v_lshl_or_b32 v%d, v%d, 1, v%d" % (vT0, vT0, vT3))
    k.e("v_xor_b32 v%d, s%d, v%d" % (vT0, sW, vT0))
    k.e("v_lshl_add_u32 v%d, v%d, 5, v%d" % (vWa, vT0, vT2))
    k.e("v_add_u32 v%d, %d, v%d" % (vWa, A_BYTES, vWa))
    k.e("v_add_u32 v%d, %d, v%d" % (vWa + 1, 2 * SLOT, vWa))
    for i in range(4):
        k.e("v_mov_b32 v%d, 0x3f803f80" % (vOnes + i))

    sSl, sIt = 42, 43

    def rd(j, what):
        kk = j % 2
        xb = vX + (j & 1) * 20
        wb = vWf + (j & 1) * 12
        if what[0] == 'w':
            s_ = what[1]
            base = vWa + (1 if j >= 2 else 0)
            k.lds("ds_read_b64_tr_b16 %s, v%d offset:%d" % (vr(wb + 4 * s_, 2), base, s_ * W_SUB + kk * 4096), (kk, what))
            k.lds("ds_read_b64_tr_b16 %s, v%d offset:%d" % (vr(wb + 4 * s_ + 2, 2), base, s_ * W_SUB + kk * 4096 + 512), (kk, what))
        else:
            t = what[1]
            base = vXa + 2 if j >= 2 else vXa + kk
            k.lds("ds_read_b128 %s, v%d offset:%d" % (vr(xb + 4 * t, 4), base, 2048 * t), (kk, what))

    RD_ORDER = [('w', 1), ('x', 0), ('w', 2), ('x', 1), ('w', 0), ('x', 2), ('x', 3), ('x', 4)]
    k.e("v_add_u32 v%d, %d, v%d" % (vXa + 2, SLOT, vXa))
    k.e("v_add_u32 v%d, %d, v%d" % (vWa + 1, SLOT, vWa))
    k.e("s_mov_b32 s%d, 1" % sSl)
    k.e("s_mov_b32 s%d, 0" % sIt)
    for i in range(vQ, vCv + 4):
        k.e("v_mov_b32 v%d, 0" % i)
    k.stamp(2)
    k.e("s_barrier")
    k.stamp(3)
    for w_ in RD_ORDER:
        rd(0, w_)
    k.lab("%s_loop" % name)
    lq0 = list(k.lq)
    for j in range(2):
        xb = vX + (j & 1) * 20
        wb = vWf + (j & 1) * 12
        boundary = (j == 1)
        pend = list(RD_ORDER)
        mf = []
        for t in range(5):
            mf.append((vKk + 4 * t, wb + 4, xb + 4 * t, [('w', 1), ('x', t)]))
            mf.append((vV + 4 * t, xb + 4 * t, wb + 8, [('w', 2), ('x', t)]))
            if t >= 1:
                mf.append((vQ + 4 * (t - 1), wb, xb + 4 * t, [('w', 0), ('x', t)]))
        mf.append((vCq, wb, vOnes, []))
        mf.append((vCk, wb + 4, vOnes, []))
        mf.append((vCv, vOnes, wb + 8, []))
        for n, (d, a_, b_, deps) in enumerate(mf):
            for dp in deps:
                k.wait_lds((j, dp))
            k.e("v_mfma_f32_16x16x32_bf16 %s, %s, %s, %s" % (vr(d, 4), vr(a_, 4), vr(b_, 4), vr(d, 4)))
            if boundary and n < 5:
                continue
            if boundary and n == 5:
                k.wait_lds_all()
                k.e("s_barrier")
            if pend and (boundary or n % 2 == 0 or n >= 8):
                rd(j + 1, pend.pop(0))
        assert not pend
    k.e("v_mov_b32 v%d, v%d" % (vXa, vXa + 2))
    k.e("v_xor_b32 v%d, 64, v%d" % (vXa + 1, vXa + 2))
    k.e("v_mov_b32 v%d, v%d" % (vWa, vWa + 1))
    k.e("s_add_u32 s%d, s%d, 1" % (sSl, sSl))
    k.e("s_cmp_eq_u32 s%d, %d" % (sSl, NS))
    k.e("s_cselect_b32 s%d, 0, s%d" % (sSl, sSl))
    k.e("s_mov_b32 s3, %d" % SLOT)
    k.e("s_cmov_b32 s3, 0x%x" % ((-(NS - 1) * SLOT) & 0xffffffff))
    k.e("v_add_u32 v%d, s3, v%d" % (vXa + 2, vXa + 2))
    k.e("v_add_u32 v%d, s3, v%d" % (vWa + 1, vWa + 1))
    k.e("s_add_u32 s%d, s%d, 1" % (sIt, sIt))
    k.e("s_cmp_lt_u32 s%d, 8" % sIt)
    k.e("s_cbranch_scc1 %s_loop" % name)
    assert k.lq == lq0[len(lq0) - len(k.lq):] or DIAG, (k.lq, lq0)
    k.wait_lds_all()
    k.stamp(11)
    k.e("s_barrier")
    k.stamp(12)
    vSr = vE
    vSn = vE + 5
    vVr = vE + 12
    vVn = vE + 32
    k.e("v_and_b32 v%d, 15, v%d" % (vT0, vL))
    k.e("v_lshlrev_b32 v%d, 2, v%d" % (vT2, vT0))
    k.e("v_lshrrev_b32 v%d, 4, v%d" % (vT1, vL))
    k.e("v_lshlrev_b32 v%d, 4, v%d" % (vT3, vT1))
    k.e("v_add_u32 v%d, %d, v%d" % (vT2, ST_BASE, vT2))
    k.e("v_add_u32 v%d, %d, v%d" % (vT3, ST_BASE, vT3))
    for t in range(5):
        k.e("ds_read_b32 v%d, v%d offset:%d" % (vSr + t, vT2, 640 + 64 * t))
        k.e("ds_read_b32 v%d, v%d offset:%d" % (vSn + t, vT2, 960 + 64 * t))
        k.e("ds_read_b128 %s, v%d offset:%d" % (vr(vVr + 4 * t, 4), vT3, 640 + 64 * t))
        k.e("ds_read_b128 %s, v%d offset:%d" % (vr(vVn + 4 * t, 4), vT3, 960 + 64 * t))
    vBc = vE + 52
    vBp = vE + 56
    vBp1 = vE + 60
    vNeg = vE + 64
    k.e("v_mov_b32 v%d, 0x%08x" % (vNeg, f32bits(NEG)))
    k.e("v_lshlrev_b32 v%d, 2, v%d" % (vT2, vT1))
    k.e("v_sub_u32 v%d, v%d, v%d" % (vT2, vT0, vT2))
    vSgn = vE + 65
    k.e("v_mov_b32 v%d, 0x80000000" % vSgn)
    for r in range(4):
        k.e("v_subrev_u32 v%d, %d, v%d" % (vT3, r, vT2))
        k.e("v_and_b32 v%d, 0x80000001, v%d" % (vT3, vT3))
        k.e("v_cmp_eq_u32 vcc, 0, v%d" % vT3)
        k.e("v_cmp_eq_u32 s[38:39], v%d, v%d" % (vSgn, vT3))
        k.e("s_nop 1")
        k.e("v_cndmask_b32_e64 v%d, v%d, 0, vcc" % (vBc + r, vNeg))
        k.e("v_cndmask_b32_e64 v%d, v%d, 0, s[38:39]" % (vBp + r, vNeg))
    k.e("s_cmp_eq_u32 s%d, 0" % sRB)
    k.e("s_cselect_b64 s[38:39], -1, 0")
    for r in range(4):
        k.e("v_cndmask_b32_e64 v%d, v%d, v%d, s[38:39]" % (vBp1 + r, vBp + r, vNeg))
    k.e("s_mov_b32 s%d, 0x%08x" % (sScale, f32bits(0.25 * 1.4426950408889634)))
    k.e("s_waitcnt lgkmcnt(0)")
    vQb = vX
    vKb = vX + 8
    vVb = vX + 18
    for t in range(5):
        for (acc, cs, dst, on) in ((vQ + 4 * (t - 1), vCq, vQb + 2 * (t - 1), t >= 1), (vKk + 4 * t, vCk, vKb + 2 * t, True)):
            if not on:
                continue
            for r in range(4):
                k.e("v_mul_f32 v%d, v%d, v%d" % (vT0 + r, vSn + t, cs + r))
            for r in range(4):
                k.e("v_fma_f32 v%d, v%d, v%d, v%d" % (vT0 + r, vSr + t, acc + r, vT0 + r))
            k.e("v_cvt_pk_bf16_f32 v%d, v%d, v%d" % (dst, vT0, vT1))
            k.e("v_cvt_pk_bf16_f32 v%d, v%d, v%d" % (dst + 1, vT2, vT3))
        for r in range(4):
            k.e("v_mul_f32 v%d, v%d, v%d" % (vT0 + r, vVn + 4 * t + r, vCv))
        for r in range(4):
            k.e("v_fma_f32 v%d, v%d, v%d, v%d" % (vT0 + r, vVr + 4 * t + r, vV + 4 * t + r, vT0 + r))
        k.e("v_cvt_pk_bf16_f32 v%d, v%d, v%d" % (vVb + 2 * t, vT0, vT1))
        k.e("v_cvt_pk_bf16_f32 v%d, v%d, v%d" % (vVb + 2 * t + 1, vT2, vT3))
    k.e("s_nop 1")
    vS = vQ
    for t in range(4):
        k.e("v_mfma_f32_16x16x16_bf16 %s, %s, %s, 0" % (vr(vS + 8 * t, 4), vr(vKb + 2 * t, 2), vr(vQb + 2 * t, 2)))
        k.e("v_mfma_f32_16x16x16_bf16 %s, %s, %s, 0" % (vr(vS + 8 * t + 4, 4), vr(vKb + 2 * (t + 1), 2), vr(vQb + 2 * t, 2)))
    k.e("s_nop 7")
    k.e("s_nop 1")
    vMx = vE
    vMy = vE + 4
    vSum = vE + 8
    for t in range(4):
        for r in range(4):
            k.e("v_fma_f32 v%d, v%d, s%d, v%d" % (vS + 8 * t + r, vS + 8 * t + r, sScale, (vBp1 if t == 0 else vBp) + r))
            k.e("v_fma_f32 v%d, v%d, s%d, v%d" % (vS + 8 * t + 4 + r, vS + 8 * t + 4 + r, sScale, vBc + r))
        b = vS + 8 * t
        k.e("v_max3_f32 v%d, v%d, v%d, v%d" % (vMx + t, b, b + 1, b + 2))
        k.e("v_max3_f32 v%d, v%d, v%d, v%d" % (vMx + t, vMx + t, b + 3, b + 4))
        k.e("v_max3_f32 v%d, v%d, v%d, v%d" % (vMx + t, vMx + t, b + 5, b + 6))
        k.e("v_max_f32 v%d, v%d, v%d" % (vMx + t, vMx + t, b + 7))
    for op in ("v_permlane32_swap_b32", "v_permlane16_swap_b32"):
        for t in range(4):
            k.e("v_mov_b32 v%d, v%d" % (vMy + t, vMx + t))
        k.e("s_nop 1")
        for t in range(4):
            k.e("%s v%d, v%d" % (op, vMx + t, vMy + t))
        for t in range(4):
            k.e("v_max_f32 v%d, v%d, v%d" % (vMx + t, vMx + t, vMy + t))
    for t in range(4):
        b = vS + 8 * t
        for i in range(8):
            k.e("v_sub_f32 v%d, v%d, v%d" % (b + i, b + i, vMx + t))
        for i in range(8):
            k.e("v_exp_f32 v%d, v%d" % (b + i, b + i))
        k.e("s_nop 0")
        k.e("v_add_f32 v%d, v%d, v%d" % (vSum + t, b, b + 1))
        for i in range(2, 8):
            k.e("v_add_f32 v%d, v%d, v%d" % (vSum + t, vSum + t, b + i))
    vP = vE + 12
    for t in range(4):
        b = vS + 8 * t
        for i in range(4):
            k.e("v_cvt_pk_bf16_f32 v%d, v%d, v%d" % (vP + 4 * t + i, b + 2 * i, b + 2 * i + 1))
    for op in ("v_permlane32_swap_b32", "v_permlane16_swap_b32"):
        for t in range(4):
            k.e("v_mov_b32 v%d, v%d" % (vMy + t, vSum + t))
        k.e("s_nop 1")
        for t in range(4):
            k.e("%s v%d, v%d" % (op, vSum + t, vMy + t))
        for t in range(4):
            k.e("v_add_f32 v%d, v%d, v%d" % (vSum + t, vSum + t, vMy + t))
    vOa = vE + 28
    for t in range(4):
        k.e("v_mfma_f32_16x16x16_bf16 %s, %s, %s, 0" % (vr(vOa + 4 * t, 4), vr(vVb + 2 * t, 2), vr(vP + 4 * t, 2)))
    for t in range(4):
        k.e("v_mfma_f32_16x16x16_bf16 %s, %s, %s, %s" % (vr(vOa + 4 * t, 4), vr(vVb + 2 * (t + 1), 2), vr(vP + 4 * t + 2, 2), vr(vOa + 4 * t, 4)))
    for t in range(4):
        k.e("v_rcp_f32 v%d, v%d" % (vSum + t, vSum + t))
    if MERGE:
        k.e("v_and_b32 v%d, 15, v%d" % (vT0, vL))
        k.e("v_lshlrev_b32 v%d, 7, v%d" % (vT0, vT0))
        k.e("v_lshrrev_b32 v%d, 4, v%d" % (vT1, vL))
        k.e("v_lshl_add_u32 v%d, v%d, 3, v%d" % (vT0, vT1, vT0))
        k.e("s_lshl_b32 s3, s%d, 5" % sW)
        k.e("v_add_u32 v%d, s3, v%d" % (vT0, vT0))
        k.e("s_nop 7")
        for t in range(4):
            for r in range(4):
                k.e("v_mul_f32 v%d, v%d, v%d" % (vOa + 4 * t + r, vOa + 4 * t + r, vSum + t))
            k.e("v_cvt_pk_bf16_f32 v%d, v%d, v%d" % (vP + 2 * t, vOa + 4 * t, vOa + 4 * t + 1))
            k.e("v_cvt_pk_bf16_f32 v%d, v%d, v%d" % (vP + 2 * t + 1, vOa + 4 * t + 2, vOa + 4 * t + 3))
            k.e("ds_write_b64 v%d, %s offset:%d" % (vT0, vr(vP + 2 * t, 2), 2048 * t))
        k.e("v_lshlrev_b32 v%d, 4, v%d" % (vT1, vL))
        k.e("s_lshl_b32 s3, s%d, 11" % sW)
        k.e("v_add_u32 v%d, s3, v%d" % (vT1, vT1))
        k.e("v_lshrrev_b32 v%d, 3, v%d" % (vT2, vL))
        k.e("s_lshl_b32 s3, s%d, 6" % sRB)
        k.e("s_lshl_b32 s%d, s%d, 4" % (sT, sW))
        k.e("s_add_u32 s3, s3, s%d" % sT)
        k.e("v_add_u32 v%d, s3, v%d" % (vT2, vT2))
        k.e("v_lshlrev_b32 v%d, 10, v%d" % (vT2, vT2))
        k.e("v_and_b32 v%d, 7, v%d" % (vT3, vL))
        k.e("v_lshl_add_u32 v%d, v%d, 4, v%d" % (vT2, vT3, vT2))
        k.e("s_lshl_b32 s3, s%d, 7" % sHG)
        k.e("v_add_u32 v%d, s3, v%d" % (vT2, vT2))
        k.e("s_waitcnt lgkmcnt(0)")
        k.e("s_barrier")
        k.e("ds_read_b128 %s, v%d" % (vr(vOa, 4), vT1))
        k.e("ds_read_b128 %s, v%d offset:1024" % (vr(vOa + 4, 4), vT1))
        k.e("s_mov_b32 s3, 8192")
        k.e("s_waitcnt lgkmcnt(1)")
        k.vmem("buffer_store_dwordx4 %s, v%d, %s, 0 offen sc1" % (vr(vOa, 4), vT2, sr(S_C, 4)), "st")
        k.e("s_waitcnt lgkmcnt(0)")
        k.vmem("buffer_store_dwordx4 %s, v%d, %s, s3 offen sc1" % (vr(vOa + 4, 4), vT2, sr(S_C, 4)), "st")
    else:
        k.e("v_and_b32 v%d, 15, v%d" % (vT0, vL))
        k.e("s_lshl_b32 s3, s%d, 6" % sRB)
        k.e("v_add_u32 v%d, s3, v%d" % (vT0, vT0))
        k.e("v_lshlrev_b32 v%d, 10, v%d" % (vT0, vT0))
        k.e("v_lshrrev_b32 v%d, 4, v%d" % (vT1, vL))
        k.e("v_lshl_add_u32 v%d, v%d, 3, v%d" % (vT0, vT1, vT0))
        k.e("s_lshl_b32 s3, s%d, 2" % sHG)
        k.e("s_add_u32 s3, s3, s%d" % sW)
        k.e("s_lshl_b32 s3, s3, 5")
        k.e("v_add_u32 v%d, s3, v%d" % (vT0, vT0))
        k.e("s_nop 3")
        for t in range(4):
            for r in range(4):
                k.e("v_mul_f32 v%d, v%d, v%d" % (vOa + 4 * t + r, vOa + 4 * t + r, vSum + t))
            k.e("v_cvt_pk_bf16_f32 v%d, v%d, v%d" % (vP + 2 * t, vOa + 4 * t, vOa + 4 * t + 1))
            k.e("v_cvt_pk_bf16_f32 v%d, v%d, v%d" % (vP + 2 * t + 1, vOa + 4 * t + 2, vOa + 4 * t + 3))
            k.e("s_mov_b32 s3, %d" % (t * 16384))
            k.vmem("buffer_store_dwordx2 %s, v%d, %s, s3 offen%s" % (vr(vP + 2 * t, 2), vT0, sr(S_C, 4), " sc1" if MERGE else ""), "st")
    k.stamp(13)
    if MERGE:
        phase2(k, name, sW, sRB, sHG)
    k.stamp_rt(14)
    k.dump(0, sW, 15 if not MERGE else 20)
    k.e("s_endpgm")

    k.lab("%s_loader" % name)
    vRa = 10
    vOne = 12
    vF = 16
    vG = 28
    vR = 40
    k.e("s_and_b32 s%d, s%d, 1" % (sT, sW))
    k.e("s_lshl_b32 s3, s%d, 2" % sT)
    k.e("v_and_b32 v2, 15, v1")
    k.e("v_lshrrev_b32 v3, 4, v1")
    k.e("v_lshrrev_b32 v9, 1, v2")
    k.e("v_xor_b32 v9, v9, v3")
    k.e("v_xor_b32 v9, s3, v9")
    k.e("v_lshlrev_b32 v2, 7, v2")
    k.e("v_lshl_add_u32 v%d, v9, 4, v2" % vRa)
    k.e("v_add_u32 v%d, %d, v%d" % (vRa + 1, 2 * SLOT, vRa))
    for i in range(4):
        k.e("v_mov_b32 v%d, 0x3f803f80" % (vOne + i))

    def stats_stage(i, tiles):
        slot = i % NS
        for n, t in enumerate(tiles):
            k.lds("ds_read_b128 %s, v%d offset:%d" % (vr(vF + 4 * n, 4), vRa + slot // 2, (slot % 2) * SLOT + 2048 * t), ("f", n))
        for n, t in enumerate(tiles):
            k.wait_lds(("f", n))
            k.e("v_mfma_f32_16x16x32_bf16 %s, %s, %s, %s" % (vr(vG + 4 * n, 4), vr(vF + 4 * n, 4), vr(vF + 4 * n, 4), "0" if i == 0 else vr(vG + 4 * n, 4)))
            k.e("v_mfma_f32_16x16x32_bf16 %s, %s, %s, %s" % (vr(vR + 4 * n, 4), vr(vF + 4 * n, 4), vr(vOne, 4), "0" if i == 0 else vr(vR + 4 * n, 4)))

    def stats_finish(tiles):
        k.e("v_and_b32 v2, 3, v1")
        k.e("v_cmp_eq_u32 s[48:49], 1, v2")
        k.e("v_cmp_eq_u32 s[50:51], 2, v2")
        k.e("v_cmp_eq_u32 s[52:53], 3, v2")
        k.e("v_bfe_u32 v2, v1, 2, 2")
        k.e("v_lshrrev_b32 v3, 4, v1")
        k.e("v_cmp_eq_u32 vcc, v2, v3")
        k.e("s_mul_i32 s3, s%d, 1280" % sT)
        k.e("s_add_u32 s3, s3, %d" % ST_BASE)
        k.e("v_and_b32 v2, 15, v1")
        k.e("v_lshlrev_b32 v2, 2, v2")
        k.e("v_add_u32 v2, s3, v2")
        k.e("s_nop 3")
        for n, t in enumerate(tiles):
            for base in (vG + 4 * n, vR + 4 * n):
                k.e("v_cndmask_b32_e64 v%d, v%d, v%d, s[48:49]" % (base, base, base + 1))
                k.e("v_cndmask_b32_e64 v%d, v%d, v%d, s[50:51]" % (base, base, base + 2))
                k.e("v_cndmask_b32_e64 v%d, v%d, v%d, s[52:53]" % (base, base, base + 3))
        k.e("s_and_saveexec_b64 s[38:39], vcc")
        for n, t in enumerate(tiles):
            k.e("ds_write_b32 v2, v%d offset:%d" % (vR + 4 * n, 64 * t))
            k.e("ds_write_b32 v2, v%d offset:%d" % (vG + 4 * n, 320 + 64 * t))
        k.e("s_mov_b64 exec, s[38:39]")
        k.e("s_waitcnt lgkmcnt(0)")
        k.e("s_barrier")

    k.e("s_cmp_ge_u32 s%d, 6" % sW)
    k.e("s_cbranch_scc1 %s_loadw" % name)
    k.e("s_cmp_eq_u32 s%d, 5" % sW)
    k.e("s_cbranch_scc1 %s_pref" % name)
    k.vm = []
    k.lq = []
    srd(k, S_A, 44, 2 << 20)
    vOff = 4
    vPo = 56
    k.e("s_lshl_b32 s3, s%d, 6" % sRB)
    k.e("s_sub_u32 s3, s3, 16")
    k.e("v_lshrrev_b32 v2, 3, v1")
    k.e("v_add_u32 v2, s3, v2")
    k.e("v_and_b32 v3, 7, v1")
    k.e("v_lshrrev_b32 v9, 4, v1")
    k.e("v_xor_b32 v3, v3, v9")
    for p in range(10):
        k.e("v_add_u32 v9, %d, v2" % (8 * p))
        k.e("v_max_i32 v9, 0, v9")
        k.e("v_lshlrev_b32 v9, 10, v9")
        if p & 1:
            k.e("v_xor_b32 v%d, 4, v3" % (vPo + p))
            k.e("v_lshl_add_u32 v%d, v%d, 4, v9" % (vPo + p, vPo + p))
        else:
            k.e("v_lshl_add_u32 v%d, v3, 4, v9" % (vPo + p))

    def lda(st):
        slot = st % NS
        k.e("s_lshl_b32 s%d, s%d, 7" % (sOff, sK))
        k.e("s_add_u32 s%d, s%d, 1" % (sK, sK))
        k.e("s_and_b32 s%d, s%d, 7" % (sK, sK))
        for p in range(10):
            k.e("s_mov_b32 m0, %d" % (slot * SLOT + p * 1024))
            k.e("s_nop 0")
            k.vmem("buffer_load_dwordx4 v%d, %s, s%d offen lds" % (vPo + p, sr(S_A, 4), sOff), ("s", st))

    k.stamp(2)
    lda(0)
    if not EARLY1:
        lda(1)
    k.stamp(3)
    for i in range(8):
        k.wait_vm(("s", i))
        k.stamp(4 + i)
        k.e("s_barrier")
        if i == 0 and EARLY1:
            lda(1)
        if i + 2 < 8:
            lda(i + 2)
        stats_stage(i, [0, 1, 2])
    stats_finish([0, 1, 2])
    k.e("s_branch %s_fin" % name)
    k.lab("%s_pref" % name)
    k.vm = []
    k.lq = []
    TLBI = int(os.environ.get("TLBI", "-1"))

    def tlb_touch():
        k.e("s_load_dwordx2 s[26:27], s[0:1], %d" % KA_OUT)
        srd(k, S_A, 4, 14 << 20)
        k.e("v_lshlrev_b32 v4, 16, v1")
        for n in range(4):
            k.e("s_mov_b32 s3, %d" % (n * (4 << 20)))
            k.vmem("buffer_load_dword v58, v4, %s, s3 offen" % sr(S_A, 4), "pf")
        k.e("s_waitcnt lgkmcnt(0)")
        srd(k, S_A, 26, 2 << 20)
        k.vmem("buffer_load_dword v58, v4, %s, 0 offen" % sr(S_A, 4), "pf")
    k.stamp(2)
    k.stamp(3)
    for i in range(8):
        k.stamp(4 + i)
        k.e("s_barrier")
        if i == TLBI:
            tlb_touch()
        if i == int(os.environ.get("PFI", "6")) and PREF:
            srd(k, S_A, 6, 512 * 1024)
            k.e("v_lshrrev_b32 v4, 2, v1")
            k.e("v_lshlrev_b32 v4, 10, v4")
            k.e("v_and_b32 v3, 3, v1")
            k.e("v_lshl_add_u32 v4, v3, 7, v4")
            k.e("s_lshr_b32 s%d, s2, 3" % sOff)
            k.e("s_lshl_b32 s%d, s%d, 14" % (sOff, sOff))
            k.e("s_and_b32 s%d, s2, 1" % sM)
            k.e("s_lshl_b32 s%d, s%d, 9" % (sM, sM))
            k.e("s_add_u32 s%d, s%d, s%d" % (sOff, sOff, sM))
            k.vmem("buffer_load_dword v56, v4, %s, s%d offen" % (sr(S_A, 4), sOff), "pf")
            k.e("v_lshlrev_b32 v2, 7, v1")
            k.e("s_mul_i32 s3, s2, 7168")
            k.e("v_cmp_gt_u32 vcc, 56, v1")
            k.e("s_and_saveexec_b64 s[38:39], vcc")
            for ptr in ((20, 22) if not os.environ.get("NOCOLDGU") else ()):
                srd(k, S_B, ptr, 512 * 3584)
                k.vmem("buffer_load_dword v57, v2, %s, s3 offen" % sr(S_B, 4), "pf")
            k.e("s_mov_b64 exec, s[38:39]")
        stats_stage(i, [0, 1, 2])
    stats_finish([0, 1, 2])
    k.lab("%s_fin" % name)
    k.e("s_mul_i32 s3, s%d, 160" % sT)
    k.e("s_add_u32 s3, s3, %d" % ST_BASE)
    k.e("v_lshlrev_b32 v2, 2, v1")
    k.e("v_add_u32 v2, s3, v2")
    k.e("v_cmp_gt_u32 vcc, 40, v1")
    k.e("s_and_saveexec_b64 s[38:39], vcc")
    k.e("ds_read_b32 v3, v2")
    k.e("ds_read_b32 v9, v2 offset:320")
    k.e("ds_read_b32 v4, v2 offset:1280")
    k.e("ds_read_b32 v5, v2 offset:1600")
    k.e("s_waitcnt lgkmcnt(0)")
    k.e("v_add_f32 v3, v3, v4")
    k.e("v_add_f32 v9, v9, v5")
    k.e("v_mul_f32 v3, 0x3b000000, v3")
    k.e("v_mul_f32 v9, 0x3b000000, v9")
    k.e("v_fma_f32 v9, -v3, v3, v9")
    k.e("v_max_f32 v9, 0, v9")
    k.e("v_add_f32 v9, 0x3727c5ac, v9")
    k.e("v_rsq_f32 v9, v9")
    k.e("s_nop 0")
    k.e("v_mul_f32 v3, v3, v9")
    k.e("v_sub_f32 v3, 0, v3")
    k.e("ds_write_b32 v2, v9 offset:640")
    k.e("ds_write_b32 v2, v3 offset:960")
    k.e("s_waitcnt lgkmcnt(0)")
    k.e("s_mov_b64 exec, s[38:39]")
    k.e("s_barrier")
    k.stamp(12)
    if MERGE:
        k.e("s_barrier")
        k.e("s_barrier")
        k.e("s_cmp_eq_u32 s%d, 4" % sW)
        k.e("s_cbranch_scc1 %s_nopoll" % name)
        srd(k, S_A, 4, 256 * 128, WS_FLAG)
        k.e("s_memrealtime s[56:57]")
        k.e("s_lshl_b32 s3, s%d, 3" % sRB)
        k.e("s_add_u32 s%d, s3, s%d" % (sOff, sHG))
        k.e("s_lshl_b32 s%d, s%d, 7" % (sOff, sOff))
        k.e("v_mov_b32 v2, s%d" % sOff)
        k.e("s_lshl_b32 s3, s3, 7")
        k.e("v_and_b32 v3, 7, v1")
        k.e("v_lshlrev_b32 v3, 7, v3")
        k.e("v_add_u32 v3, s3, v3")
        k.e("s_waitcnt lgkmcnt(0)")
        k.e("v_mov_b32 v4, s56")
        k.e("v_mov_b32 v5, s57")
        k.e("v_xor_b32 v6, 0x5bd1e995, v4")
        k.e("v_xor_b32 v7, 0x9e3779b9, v5")
        k.e("v_cmp_eq_u32 vcc, 0, v1")
        k.e("s_and_saveexec_b64 s[38:39], vcc")
        k.e("buffer_store_dwordx4 v[4:7], v2, %s, 0 offen sc1" % sr(S_A, 4))
        k.e("s_mov_b64 exec, s[38:39]")
        k.e("s_sub_u32 s54, s54, 200")
        k.e("s_subb_u32 s55, s55, 0")
        k.e("s_mov_b32 s%d, 0" % sM)
        k.lab("%s_poll" % name)
        k.e("buffer_load_dwordx4 v[8:11], v3, %s, 0 offen sc1" % sr(S_A, 4))
        k.e("s_waitcnt vmcnt(0)")
        k.e("v_xor_b32 v10, v10, v8")
        k.e("v_xor_b32 v11, v11, v9")
        k.e("v_subrev_co_u32 v8, vcc, s54, v8")
        k.e("v_mov_b32 v12, s55")
        k.e("s_nop 0")
        k.e("v_subb_co_u32 v9, vcc, v9, v12, vcc")
        k.e("v_xor_b32 v10, 0x5bd1e995, v10")
        k.e("v_xor_b32 v11, 0x9e3779b9, v11")
        k.e("v_lshrrev_b32 v8, 20, v8")
        k.e("v_or_b32 v8, v8, v9")
        k.e("v_or3_b32 v8, v8, v10, v11")
        k.e("v_cmp_eq_u32 vcc, 0, v8")
        k.e("s_add_u32 s%d, s%d, 1" % (sM, sM))
        k.e("s_cmp_eq_u64 vcc, exec")
        k.e("s_cbranch_scc1 %s_nopoll" % name)
        k.e("s_cmp_lt_u32 s%d, 0x10000" % sM)
        k.e("s_cbranch_scc1 %s_poll" % name)
        k.lab("%s_nopoll" % name)
        k.e("s_barrier")
        k.e("s_barrier")
    k.e("s_waitcnt vmcnt(0)")
    k.stamp(13)
    k.stamp_rt(14)
    k.dump(0, sW, 15)
    k.e("s_endpgm")

    k.lab("%s_loadw" % name)
    k.vm = []
    k.lq = []
    srd(k, S_B, 46, 512 * 3072)
    vWe, vWo = 4, 5
    k.e("v_lshrrev_b32 v2, 3, v1")
    k.e("v_mul_u32_u24 v%d, 3072, v2" % vWe)
    k.e("v_and_b32 v2, 1, v1")
    k.e("v_lshl_add_u32 v%d, v2, 4, v%d" % (vWe, vWe))
    k.e("s_lshl_b32 s3, s%d, 7" % sHG)
    k.e("v_add_u32 v%d, s3, v%d" % (vWe, vWe))
    k.e("v_bfe_u32 v2, v1, 1, 2")
    k.e("v_bfe_u32 v3, v1, 4, 1")
    k.e("v_xor_b32 v2, v2, v3")
    k.e("v_xor_b32 v3, 2, v2")
    k.e("v_lshl_add_u32 v%d, v3, 5, v%d" % (vWo, vWe))
    k.e("v_lshl_add_u32 v%d, v2, 5, v%d" % (vWe, vWe))
    k.e("s_mul_i32 s%d, s%d, %d" % (sM, sT, 12 * 1024))
    k.e("s_add_u32 s%d, s%d, %d" % (sM, sM, A_BYTES))
    sG = 82
    for p in range(12):
        p0, p1 = p, 12 + p
        g0 = (p0 // 8) * 1024 + (p0 % 8) * 8 * 3072
        g1 = (p1 // 8) * 1024 + (p1 % 8) * 8 * 3072
        k.e("s_cmp_eq_u32 s%d, 0" % sT)
        k.e("s_mov_b32 s%d, %d" % (sG + p, g1))
        k.e("s_cmov_b32 s%d, %d" % (sG + p, g0))

    def ldw(st):
        slot = st % NS
        k.e("s_mul_i32 s%d, s%d, %d" % (sKb, sK, 64 * 3072))
        k.e("s_add_u32 s%d, s%d, 1" % (sK, sK))
        k.e("s_and_b32 s%d, s%d, 7" % (sK, sK))
        for p in range(12):
            k.e("s_add_u32 m0, s%d, %d" % (sM, slot * SLOT + p * 1024))
            k.e("s_add_u32 s%d, s%d, s%d" % (sOff, sG + p, sKb))
            k.vmem("buffer_load_dwordx4 v%d, %s, s%d offen lds" % (vWo if p & 1 else vWe, sr(S_B, 4), sOff), ("s", st))

    k.stamp(2)
    ldw(0)
    if not EARLY1:
        ldw(1)
    k.stamp(3)
    for i in range(8):
        k.wait_vm(("s", i))
        k.stamp(4 + i)
        k.e("s_barrier")
        if i == 0 and EARLY1:
            ldw(1)
        stats_stage(i, [3, 4])
        if i + 2 < 8:
            ldw(i + 2)
    stats_finish([3, 4])
    k.e("s_barrier")
    k.stamp(12)
    if MERGE:
        srd(k, S_B, 6, 512 * 1024)
        k.e("v_lshrrev_b32 v2, 3, v1")
        k.e("v_lshlrev_b32 v%d, 10, v2" % vWe)
        k.e("v_and_b32 v2, 1, v1")
        k.e("v_lshl_add_u32 v%d, v2, 4, v%d" % (vWe, vWe))
        k.e("s_lshl_b32 s3, s%d, 7" % sHG)
        k.e("v_add_u32 v%d, s3, v%d" % (vWe, vWe))
        k.e("v_bfe_u32 v2, v1, 1, 2")
        k.e("v_bfe_u32 v3, v1, 4, 1")
        k.e("v_xor_b32 v2, v2, v3")
        k.e("v_xor_b32 v3, 2, v2")
        k.e("v_lshl_add_u32 v%d, v3, 5, v%d" % (vWo, vWe))
        k.e("v_lshl_add_u32 v%d, v2, 5, v%d" % (vWe, vWe))
        k.e("s_lshl_b32 s%d, s%d, 18" % (sOff, sT))
        k.e("s_lshl_b32 s%d, s%d, 16" % (sM, sT))
        k.e("s_barrier")
        k.e("s_barrier")
        for ww in range(2):
            for pc in range(16):
                k.e("s_add_u32 m0, s%d, %d" % (sM, ww * 32768 + 16384 + pc * 1024))
                k.e("s_nop 0")
                k.vmem("buffer_load_dwordx4 v%d, %s, s%d offen lds" % (vWo if pc & 1 else vWe, sr(S_B, 4), sOff), "wo")
                k.e("s_add_u32 s%d, s%d, 8192" % (sOff, sOff))
        k.e("s_waitcnt vmcnt(0)")
        k.e("s_barrier")
        k.e("s_barrier")
    k.e("s_waitcnt vmcnt(0)")
    k.stamp(13)
    k.stamp_rt(14)
    k.dump(0, sW, 15)
    k.lab("%s_end" % name)
    k.e("s_endpgm")
    return k.text(), nv, LDS
```

```python
import os
from gen import K, vr, sr, srd, header, KA_X, KA_WQKV, KA_WS, WS_O, f32bits, ROT, KA_WO, KA_WG, KA_WD, PREF, DIAG, EARLY1, WS_H, WS_HST, WS_FLAG, MERGE, KA_OUT

A_BYTES = 80 * 128
W_SUB = 64 * 128
SLOT = A_BYTES + 3 * W_SUB
NS = 4
ST_BASE = NS * SLOT
LDS = ST_BASE + 6 * 320
NEG = -1.0e30


def phase2(k, name, sW, sRB, sHG):
    S_A, S_B, S_R, S_C, S_ST = 8, 12, 16, 84, 88
    sT, sLB, sAoff = 31, 32, 33
    sTile = 48
    vL, vAe, vAo, vRo = 1, 2, 3, 4
    vTr = 5
    vT0, vT1, vT2 = 10, 11, 12
    vXa = 13
    vRes = 16
    vAcc = 24
    vBf = 88
    vAf = 120
    k.vm = ["st"] * 4
    k.lq = []
    srd(k, S_A, 4, 2 << 20, WS_O)
    srd(k, S_R, 44, 2 << 20)
    srd(k, S_C, 4, 2 << 20, WS_H)
    srd(k, S_ST, 4, 2048 * 64, WS_HST)
    k.e("s_lshl_b32 s%d, s%d, 15" % (sLB, sW))
    for t in range(4):
        k.e("s_add_u32 s%d, s%d, %d" % (sT, sW, t))
        k.e("s_and_b32 s%d, s%d, 3" % (sT, sT))
        k.e("s_lshl_b32 s%d, s%d, 14" % (sTile + t, sT))
    k.e("s_lshl_b32 s%d, s%d, 6" % (sT, sRB))
    k.e("v_lshrrev_b32 v%d, 3, v%d" % (vT0, vL))
    k.e("v_add_u32 v%d, s%d, v%d" % (vT1, sT, vT0))
    k.e("v_lshlrev_b32 v%d, 10, v%d" % (vAe, vT1))
    k.e("s_lshl_b32 s3, s%d, 8" % sW)
    k.e("v_add_u32 v%d, s3, v%d" % (vAe, vAe))
    k.e("v_and_b32 v%d, 7, v%d" % (vT0, vL))
    k.e("v_lshrrev_b32 v%d, 4, v%d" % (vT2, vL))
    k.e("v_xor_b32 v%d, v%d, v%d" % (vT0, vT0, vT2))
    k.e("v_xor_b32 v%d, 4, v%d" % (vT1, vT0))
    k.e("v_add_u32 v%d, 8192, v%d" % (vAo, vAe))
    k.e("v_lshl_add_u32 v%d, v%d, 4, v%d" % (vAo, vT1, vAo))
    k.e("v_lshl_add_u32 v%d, v%d, 4, v%d" % (vAe, vT0, vAe))
    k.e("v_and_b32 v%d, 15, v%d" % (vT1, vL))
    k.e("v_lshrrev_b32 v%d, 1, v%d" % (vT0, vT1))
    k.e("v_xor_b32 v%d, v%d, v%d" % (vT0, vT0, vT2))
    k.e("v_lshlrev_b32 v%d, 7, v%d" % (vXa, vT1))
    k.e("v_add_u32 v%d, s%d, v%d" % (vXa, sLB, vXa))
    k.e("v_lshl_add_u32 v%d, v%d, 4, v%d" % (vXa, vT0, vXa))
    k.e("v_xor_b32 v%d, 64, v%d" % (vXa + 1, vXa))
    k.e("s_lshl_b32 s3, s%d, 4" % sW)
    k.e("s_add_u32 s3, s3, s%d" % sT)
    k.e("v_add_u32 v%d, s3, v%d" % (vT1, vT1))
    k.e("v_lshlrev_b32 v%d, 10, v%d" % (vRo, vT1))
    k.e("v_lshl_add_u32 v%d, v%d, 3, v%d" % (vRo, vT2, vRo))
    k.e("s_lshl_b32 s3, s%d, 7" % sHG)
    k.e("v_add_u32 v%d, s3, v%d" % (vRo, vRo))
    vCo, vSw, vSr_, vRr = 156, 158, 159, 160
    k.e("v_lshrrev_b32 v%d, 3, v%d" % (vT0, vL))
    k.e("s_lshl_b32 s%d, s%d, 4" % (sAoff, sW))
    k.e("s_add_u32 s%d, s%d, s%d" % (sAoff, sAoff, sT))
    k.e("v_add_u32 v%d, s%d, v%d" % (vCo, sAoff, vT0))
    k.e("v_lshlrev_b32 v%d, 10, v%d" % (vCo, vCo))
    k.e("v_and_b32 v%d, 7, v%d" % (vT1, vL))
    k.e("v_lshl_add_u32 v%d, v%d, 4, v%d" % (vCo, vT1, vCo))
    k.e("v_add_u32 v%d, s3, v%d" % (vCo, vCo))
    k.e("v_add_u32 v%d, 8192, v%d" % (vCo + 1, vCo))
    k.e("s_lshl_b32 s%d, s%d, 11" % (sAoff, sW))
    k.e("s_add_u32 s%d, s%d, 131072" % (sAoff, sAoff))
    for p in range(2):
        k.e("s_add_u32 m0, s%d, %d" % (sAoff, p * 1024))
        k.e("s_nop 0")
        k.vmem("buffer_load_dwordx4 v%d, %s, 0 offen lds" % (vCo + p, sr(S_R, 4)), "res")
    k.e("v_mul_u32_u24 v%d, 144, v%d" % (vSr_, vT0))
    k.e("v_lshl_add_u32 v%d, v%d, 4, v%d" % (vSr_, vT1, vSr_))
    k.e("v_add_u32 v%d, s%d, v%d" % (vSr_, sLB, vSr_))
    k.e("v_and_b32 v%d, 15, v%d" % (vT0, vL))
    k.e("v_mul_u32_u24 v%d, 144, v%d" % (vSw, vT0))
    k.e("v_lshl_add_u32 v%d, v%d, 3, v%d" % (vSw, vT2, vSw))
    k.e("v_add_u32 v%d, s%d, v%d" % (vSw, sLB, vSw))
    k.e("v_lshlrev_b32 v%d, 7, v%d" % (vRr, vT0))
    k.e("v_lshl_add_u32 v%d, v%d, 3, v%d" % (vRr, vT2, vRr))
    k.e("v_add_u32 v%d, s%d, v%d" % (vRr, sAoff, vRr))
    k.e("v_lshrrev_b32 v%d, 4, v%d" % (vT0, vL))
    k.e("v_bfe_u32 v%d, v%d, 2, 2" % (vT1, vL))
    k.e("v_lshl_add_u32 v%d, v%d, 3, v%d" % (vT2, vT0, vT1))
    k.e("v_lshlrev_b32 v%d, 7, v%d" % (vT2, vT2))
    k.e("v_add_u32 v%d, s%d, v%d" % (vT2, sLB, vT2))
    k.e("v_and_b32 v%d, 3, v%d" % (vTr, vL))
    k.e("v_lshl_add_u32 v%d, v%d, 3, v%d" % (vT2, vTr, vT2))
    k.e("v_bfe_u32 v%d, v%d, 3, 1" % (vT1, vL))
    k.e("v_bfe_u32 v%d, v%d, 4, 1" % (vT0, vL))
    k.e("v_lshl_or_b32 v%d, v%d, 1, v%d" % (vT0, vT0, vT1))
    for j in range(4):
        k.e("v_xor_b32 v%d, %d, v%d" % (vT1, j, vT0))
        k.e("v_lshl_add_u32 v%d, v%d, 5, v%d" % (vTr + j, vT1, vT2))
    k.wait_vm_all()
    k.e("s_barrier")
    k.stamp(15)
    k.e("s_barrier")
    k.stamp(16)
    for j in range(4):
        k.e("ds_read_b64 %s, v%d offset:%d" % (vr(vRes + 2 * j, 2), vRr, 32 * j))
    for u in range(2):
        for t in range(4):
            k.e("s_add_u32 s%d, s%d, %d" % (sAoff, sTile + t, 128 * u))
            for p in range(2):
                k.e("s_add_u32 m0, s%d, %d" % (sLB, u * 8192 + t * 2048 + p * 1024))
                k.e("s_nop 0")
                k.vmem("buffer_load_dwordx4 v%d, %s, s%d offen sc1 lds" % (vAo if p else vAe, sr(S_A, 4), sAoff), ("a", u))

    def rd(s):
        buf = vBf + (s & 1) * 16
        ab = vAf + (s & 1) * 16
        bo = 16384 + s * 4096
        ao = (s // 2) * 8192
        ops = []
        for j in range(4):
            ops.append("ds_read_b64_tr_b16 %s, v%d offset:%d" % (vr(buf + j * 4, 2), vTr + j, bo))
            ops.append("ds_read_b64_tr_b16 %s, v%d offset:%d" % (vr(buf + j * 4 + 2, 2), vTr + j, bo + 512))
            ops.append("ds_read_b128 %s, v%d offset:%d" % (vr(ab + j * 4, 4), vXa + (s & 1), ao + j * 2048))
        return ops

    k.wait_vm(("a", 0))
    for op in rd(0):
        k.e(op)
    for s in range(4):
        buf = vBf + (s & 1) * 16
        ab = vAf + (s & 1) * 16
        k.e("s_waitcnt lgkmcnt(0)")
        fill = []
        if s + 1 < 4:
            k.wait_vm(("a", (s + 1) // 2))
            fill = rd(s + 1)
            if s == 1 and PREF:
                k.e("s_cmp_ge_u32 s%d, 2" % sW)
                k.e("s_cselect_b32 s6, s22, s20")
                k.e("s_cselect_b32 s7, s23, s21")
                srd(k, S_B, 6, 512 * 3584)
                k.e("s_lshr_b32 s3, s2, 3")
                k.e("s_lshl_b32 s3, s3, 1")
                k.e("s_and_b32 s%d, s%d, 1" % (sT, sW))
                k.e("s_add_u32 s3, s3, s%d" % sT)
                k.e("s_mul_i32 s3, s3, %d" % (8 * 3584))
                k.e("s_and_b32 s%d, s2, 3" % sT)
                k.e("s_mul_i32 s%d, s%d, 896" % (sT, sT))
                k.e("s_add_u32 s3, s3, s%d" % sT)
                k.e("v_lshrrev_b32 v%d, 3, v%d" % (vT0, vL))
                k.e("v_mul_u32_u24 v%d, 3584, v%d" % (vT0, vT0))
                k.e("v_and_b32 v%d, 7, v%d" % (vT1, vL))
                k.e("v_min_u32 v%d, 6, v%d" % (vT1, vT1))
                k.e("v_lshl_add_u32 v%d, v%d, 7, v%d" % (vT0, vT1, vT0))
                k.vmem("buffer_load_dword v200, v%d, %s, s3 offen" % (vT0, sr(S_B, 4)), "pf")
        fi = 0
        for t in range(4):
            for j in range(4):
                a = vAcc + (j * 4 + t) * 4
                cin = "0" if s == 0 else vr(a, 4)
                k.e("v_mfma_f32_16x16x32_bf16 %s, %s, %s, %s" % (vr(a, 4), vr(buf + j * 4, 4), vr(ab + t * 4, 4), cin))
                if fi < len(fill):
                    k.e(fill[fi]); fi += 1
    k.stamp(17)
    k.e("v_lshlrev_b32 v%d, 4, v%d" % (vT0, vL))
    k.e("v_add_u32 v%d, s%d, v%d" % (vT1, sLB, vT0))
    k.e("s_nop 7")
    k.e("s_nop 3")
    for t in range(1, 4):
        for j in range(4):
            k.e("ds_write_b128 v%d, %s offset:%d" % (vT1, vr(vAcc + (j * 4 + t) * 4, 4), (t - 1) * 4096 + j * 1024))
    vP = vBf
    vO = vP + 48
    for j in range(4):
        for h in range(2):
            k.e("v_lshlrev_b32 v%d, 16, v%d" % (vO + j * 4 + 2 * h, vRes + 2 * j + h))
            k.e("v_and_b32 v%d, 0xffff0000, v%d" % (vO + j * 4 + 2 * h + 1, vRes + 2 * j + h))
    for j in range(4):
        for r in range(4):
            k.e("v_add_f32 v%d, v%d, v%d" % (vO + j * 4 + r, vO + j * 4 + r, vAcc + (j * 4) * 4 + r))
    k.e("s_waitcnt lgkmcnt(0)")
    k.e("s_barrier")
    for d in range(1, 4):
        k.e("s_sub_u32 s3, s%d, %d" % (sW, d))
        k.e("s_and_b32 s3, s3, 3")
        k.e("s_lshl_b32 s3, s3, 15")
        k.e("v_add_u32 v%d, s3, v%d" % (vT1, vT0))
        for j in range(4):
            k.e("ds_read_b128 %s, v%d offset:%d" % (vr(vP + ((d - 1) * 4 + j) * 4, 4), vT1, (d - 1) * 4096 + j * 1024))
    for d in range(3):
        k.e("s_waitcnt lgkmcnt(%d)" % (8 - 4 * d))
        for j in range(4):
            for r in range(4):
                k.e("v_add_f32 v%d, v%d, v%d" % (vO + j * 4 + r, vO + j * 4 + r, vP + (d * 4 + j) * 4 + r))
    vPk = vP
    for j in range(4):
        k.e("v_cvt_pk_bf16_f32 v%d, v%d, v%d" % (vPk + 2 * j, vO + 4 * j, vO + 4 * j + 1))
        k.e("v_cvt_pk_bf16_f32 v%d, v%d, v%d" % (vPk + 2 * j + 1, vO + 4 * j + 2, vO + 4 * j + 3))
    for j in range(4):
        k.e("ds_write_b64 v%d, %s offset:%d" % (vSw, vr(vPk + 2 * j, 2), 12288 + 32 * j))
    k.e("s_waitcnt lgkmcnt(0)")
    k.e("ds_read_b128 %s, v%d offset:12288" % (vr(vO, 4), vSr_))
    k.e("ds_read_b128 %s, v%d offset:%d" % (vr(vO + 4, 4), vSr_, 12288 + 8 * 144))
    k.e("s_waitcnt lgkmcnt(1)")
    k.vmem("buffer_store_dwordx4 %s, v%d, %s, 0 offen" % (vr(vO, 4), vCo, sr(S_C, 4)), "st")
    k.e("s_waitcnt lgkmcnt(0)")
    k.vmem("buffer_store_dwordx4 %s, v%d, %s, 0 offen" % (vr(vO + 4, 4), vCo + 1, sr(S_C, 4)), "st")
    vS, vQ, vX, vY = vPk + 8, vPk + 9, vPk + 10, vPk + 11
    k.e("v_mov_b32 v%d, 0" % vS)
    k.e("v_mov_b32 v%d, 0" % vQ)
    for i in range(8):
        k.e("v_lshlrev_b32 v%d, 16, v%d" % (vX, vPk + i))
        k.e("v_and_b32 v%d, 0xffff0000, v%d" % (vY, vPk + i))
        k.e("v_add_f32 v%d, v%d, v%d" % (vS, vS, vX))
        k.e("v_fmac_f32 v%d, v%d, v%d" % (vQ, vX, vX))
        k.e("v_add_f32 v%d, v%d, v%d" % (vS, vS, vY))
        k.e("v_fmac_f32 v%d, v%d, v%d" % (vQ, vY, vY))
    for op in ("v_permlane32_swap_b32", "v_permlane16_swap_b32"):
        k.e("v_mov_b32 v%d, v%d" % (vX, vS))
        k.e("v_mov_b32 v%d, v%d" % (vY, vQ))
        k.e("s_nop 1")
        k.e("%s v%d, v%d" % (op, vS, vX))
        k.e("%s v%d, v%d" % (op, vQ, vY))
        k.e("v_add_f32 v%d, v%d, v%d" % (vS, vS, vX))
        k.e("v_add_f32 v%d, v%d, v%d" % (vQ, vQ, vY))
    k.e("v_lshrrev_b32 v%d, 10, v%d" % (vX, vRo))
    k.e("v_lshlrev_b32 v%d, 6, v%d" % (vX, vX))
    k.e("s_lshl_b32 s3, s%d, 3" % sHG)
    k.e("v_add_u32 v%d, s3, v%d" % (vX, vX))
    k.e("v_cmp_gt_u32 vcc, 16, v%d" % vL)
    k.e("s_and_saveexec_b64 s[34:35], vcc")
    k.vmem("buffer_store_dwordx2 %s, v%d, %s, 0 offen" % (vr(vS, 2), vX, sr(S_ST, 4)), "st")
    k.e("s_mov_b64 exec, s[34:35]")
    k.stamp(18)
    if DIAG:
        k.e("s_waitcnt vmcnt(0)")
    k.stamp(19)


def gen_k1(name):
    k = K()
    header(k, name)
    S_A, S_B, S_C = 8, 12, 16
    sW, sRB, sHG, sT = 28, 29, 30, 31
    sOff, sM = 34, 35
    sScale = 36
    sK = 40
    sKb = 41
    k.e("s_cmp_ge_u32 s2, 256")
    k.e("s_cbranch_scc1 %s_end" % name)
    if PREF:
        k.e("s_getpc_b64 s[24:25]")
        k.lab("%s_pc" % name)
        k.e("s_sub_u32 s24, s24, %s_pc-%s" % (name, name))
        k.e("s_subb_u32 s25, s25, 0")
        k.e("s_mov_b32 s26, code_end-%s" % name)
        k.e("s_mov_b32 s27, 0x00020000")
        k.e("v_lshlrev_b32 v3, 7, v0")
        k.e("buffer_load_dword v255, v3, s[24:27], 0 offen")
    k.stamp_rt(0)
    k.stamp(1)
    if MERGE:
        k.e("s_memrealtime s[54:55]")
    k.e("s_load_dwordx4 s[44:47], s[0:1], %d" % KA_X)
    k.e("s_load_dwordx2 s[4:5], s[0:1], %d" % KA_WS)
    k.e("s_load_dwordx2 s[6:7], s[0:1], %d" % KA_WO)
    k.e("s_load_dwordx4 s[20:23], s[0:1], %d" % KA_WG)
    k.e("v_lshrrev_b32 v2, 6, v0")
    k.e("v_and_b32 v1, 63, v0")
    k.e("v_readfirstlane_b32 s%d, v2" % sW)
    k.e("s_and_b32 s3, s2, 7")
    k.e("s_lshr_b32 s%d, s2, 3" % sT)
    k.e("s_lshr_b32 s%d, s3, 1" % sRB)
    k.e("s_lshl_b32 s%d, s%d, 3" % (sRB, sRB))
    k.e("s_lshr_b32 s%d, s%d, 2" % (sHG, sT))
    k.e("s_add_u32 s%d, s%d, s%d" % (sRB, sRB, sHG))
    k.e("s_and_b32 s%d, s3, 1" % sHG)
    k.e("s_lshl_b32 s%d, s%d, 2" % (sHG, sHG))
    k.e("s_and_b32 s%d, s%d, 3" % (sT, sT))
    k.e("s_add_u32 s%d, s%d, s%d" % (sHG, sHG, sT))
    k.e("s_lshr_b32 s3, s2, 5")
    k.e("s_lshl_b32 s%d, s%d, 1" % (sK, sT))
    k.e("s_add_u32 s%d, s%d, s3" % (sK, sK))
    k.e("s_and_b32 s%d, s%d, 7" % (sK, sK))
    if not ROT:
        k.e("s_mov_b32 s%d, 0" % sK)
    k.e("s_waitcnt lgkmcnt(0)")
    k.e("s_cmp_ge_u32 s%d, 4" % sW)
    k.e("s_cbranch_scc1 %s_loader" % name)

    vL = 1
    vXa = 2
    vWa = 6
    vOnes = 8
    vT0, vT1, vT2, vT3 = 12, 13, 14, 15
    vX = 16
    vWf = 56
    vQ = 80
    vKk = 96
    vV = 116
    vCq, vCk, vCv = 136, 140, 144
    vE = 148
    nv = 256
    srd(k, S_C, 4, 2 << 20, WS_O)
    k.e("v_and_b32 v%d, 15, v%d" % (vT0, vL))
    k.e("v_lshrrev_b32 v%d, 4, v%d" % (vT1, vL))
    k.e("v_lshrrev_b32 v%d, 1, v%d" % (vT2, vT0))
    k.e("v_xor_b32 v%d, v%d, v%d" % (vT2, vT2, vT1))
    k.e("v_lshlrev_b32 v%d, 7, v%d" % (vT3, vT0))
    k.e("v_lshl_add_u32 v%d, v%d, 4, v%d" % (vXa, vT2, vT3))
    k.e("v_xor_b32 v%d, 4, v%d" % (vT2, vT2))
    k.e("v_lshl_add_u32 v%d, v%d, 4, v%d" % (vXa + 1, vT2, vT3))
    k.e("v_add_u32 v%d, %d, v%d" % (vXa + 2, 2 * SLOT, vXa))
    k.e("v_add_u32 v%d, %d, v%d" % (vXa + 3, 2 * SLOT, vXa + 1))
    k.e("v_bfe_u32 v%d, v%d, 2, 2" % (vT2, vL))
    k.e("v_lshl_add_u32 v%d, v%d, 3, v%d" % (vT2, vT1, vT2))
    k.e("v_lshlrev_b32 v%d, 7, v%d" % (vT2, vT2))
    k.e("v_and_b32 v%d, 3, v%d" % (vT3, vL))
    k.e("v_lshl_add_u32 v%d, v%d, 3, v%d" % (vT2, vT3, vT2))
    k.e("v_bfe_u32 v%d, v%d, 3, 1" % (vT3, vL))
    k.e("v_bfe_u32 v%d, v%d, 4, 1" % (vT0, vL))
    k.e("v_lshl_or_b32 v%d, v%d, 1, v%d" % (vT0, vT0, vT3))
    k.e("v_xor_b32 v%d, s%d, v%d" % (vT0, sW, vT0))
    k.e("v_lshl_add_u32 v%d, v%d, 5, v%d" % (vWa, vT0, vT2))
    k.e("v_add_u32 v%d, %d, v%d" % (vWa, A_BYTES, vWa))
    k.e("v_add_u32 v%d, %d, v%d" % (vWa + 1, 2 * SLOT, vWa))
    for i in range(4):
        k.e("v_mov_b32 v%d, 0x3f803f80" % (vOnes + i))

    sSl, sIt = 42, 43

    def rd(j, what):
        kk = j % 2
        xb = vX + (j & 1) * 20
        wb = vWf + (j & 1) * 12
        if what[0] == 'w':
            s_ = what[1]
            base = vWa + (1 if j >= 2 else 0)
            k.lds("ds_read_b64_tr_b16 %s, v%d offset:%d" % (vr(wb + 4 * s_, 2), base, s_ * W_SUB + kk * 4096), (kk, what))
            k.lds("ds_read_b64_tr_b16 %s, v%d offset:%d" % (vr(wb + 4 * s_ + 2, 2), base, s_ * W_SUB + kk * 4096 + 512), (kk, what))
        else:
            t = what[1]
            base = vXa + 2 if j >= 2 else vXa + kk
            k.lds("ds_read_b128 %s, v%d offset:%d" % (vr(xb + 4 * t, 4), base, 2048 * t), (kk, what))

    RD_ORDER = [('w', 1), ('x', 0), ('w', 2), ('x', 1), ('w', 0), ('x', 2), ('x', 3), ('x', 4)]
    k.e("v_add_u32 v%d, %d, v%d" % (vXa + 2, SLOT, vXa))
    k.e("v_add_u32 v%d, %d, v%d" % (vWa + 1, SLOT, vWa))
    k.e("s_mov_b32 s%d, 1" % sSl)
    k.e("s_mov_b32 s%d, 0" % sIt)
    for i in range(vQ, vCv + 4):
        k.e("v_mov_b32 v%d, 0" % i)
    k.stamp(2)
    k.e("s_barrier")
    k.stamp(3)
    for w_ in RD_ORDER:
        rd(0, w_)
    k.lab("%s_loop" % name)
    lq0 = list(k.lq)
    for j in range(2):
        xb = vX + (j & 1) * 20
        wb = vWf + (j & 1) * 12
        boundary = (j == 1)
        pend = list(RD_ORDER)
        mf = []
        for t in range(5):
            mf.append((vKk + 4 * t, wb + 4, xb + 4 * t, [('w', 1), ('x', t)]))
            mf.append((vV + 4 * t, xb + 4 * t, wb + 8, [('w', 2), ('x', t)]))
            if t >= 1:
                mf.append((vQ + 4 * (t - 1), wb, xb + 4 * t, [('w', 0), ('x', t)]))
        mf.append((vCq, wb, vOnes, []))
        mf.append((vCk, wb + 4, vOnes, []))
        mf.append((vCv, vOnes, wb + 8, []))
        for n, (d, a_, b_, deps) in enumerate(mf):
            for dp in deps:
                k.wait_lds((j, dp))
            k.e("v_mfma_f32_16x16x32_bf16 %s, %s, %s, %s" % (vr(d, 4), vr(a_, 4), vr(b_, 4), vr(d, 4)))
            if boundary and n < 5:
                continue
            if boundary and n == 5:
                k.wait_lds_all()
                k.e("s_barrier")
            if pend and (boundary or n % 2 == 0 or n >= 8):
                rd(j + 1, pend.pop(0))
        assert not pend
    k.e("v_mov_b32 v%d, v%d" % (vXa, vXa + 2))
    k.e("v_xor_b32 v%d, 64, v%d" % (vXa + 1, vXa + 2))
    k.e("v_mov_b32 v%d, v%d" % (vWa, vWa + 1))
    k.e("s_add_u32 s%d, s%d, 1" % (sSl, sSl))
    k.e("s_cmp_eq_u32 s%d, %d" % (sSl, NS))
    k.e("s_cselect_b32 s%d, 0, s%d" % (sSl, sSl))
    k.e("s_mov_b32 s3, %d" % SLOT)
    k.e("s_cmov_b32 s3, 0x%x" % ((-(NS - 1) * SLOT) & 0xffffffff))
    k.e("v_add_u32 v%d, s3, v%d" % (vXa + 2, vXa + 2))
    k.e("v_add_u32 v%d, s3, v%d" % (vWa + 1, vWa + 1))
    k.e("s_add_u32 s%d, s%d, 1" % (sIt, sIt))
    k.e("s_cmp_lt_u32 s%d, 8" % sIt)
    k.e("s_cbranch_scc1 %s_loop" % name)
    assert k.lq == lq0[len(lq0) - len(k.lq):] or DIAG, (k.lq, lq0)
    k.wait_lds_all()
    k.stamp(11)
    k.e("s_barrier")
    k.stamp(12)
    vSr = vE
    vSn = vE + 5
    vVr = vE + 12
    vVn = vE + 32
    k.e("v_and_b32 v%d, 15, v%d" % (vT0, vL))
    k.e("v_lshlrev_b32 v%d, 2, v%d" % (vT2, vT0))
    k.e("v_lshrrev_b32 v%d, 4, v%d" % (vT1, vL))
    k.e("v_lshlrev_b32 v%d, 4, v%d" % (vT3, vT1))
    k.e("v_add_u32 v%d, %d, v%d" % (vT2, ST_BASE, vT2))
    k.e("v_add_u32 v%d, %d, v%d" % (vT3, ST_BASE, vT3))
    for t in range(5):
        k.e("ds_read_b32 v%d, v%d offset:%d" % (vSr + t, vT2, 640 + 64 * t))
        k.e("ds_read_b32 v%d, v%d offset:%d" % (vSn + t, vT2, 960 + 64 * t))
        k.e("ds_read_b128 %s, v%d offset:%d" % (vr(vVr + 4 * t, 4), vT3, 640 + 64 * t))
        k.e("ds_read_b128 %s, v%d offset:%d" % (vr(vVn + 4 * t, 4), vT3, 960 + 64 * t))
    vBc = vE + 52
    vBp = vE + 56
    vBp1 = vE + 60
    vNeg = vE + 64
    k.e("v_mov_b32 v%d, 0x%08x" % (vNeg, f32bits(NEG)))
    k.e("v_lshlrev_b32 v%d, 2, v%d" % (vT2, vT1))
    k.e("v_sub_u32 v%d, v%d, v%d" % (vT2, vT0, vT2))
    vSgn = vE + 65
    k.e("v_mov_b32 v%d, 0x80000000" % vSgn)
    for r in range(4):
        k.e("v_subrev_u32 v%d, %d, v%d" % (vT3, r, vT2))
        k.e("v_and_b32 v%d, 0x80000001, v%d" % (vT3, vT3))
        k.e("v_cmp_eq_u32 vcc, 0, v%d" % vT3)
        k.e("v_cmp_eq_u32 s[38:39], v%d, v%d" % (vSgn, vT3))
        k.e("s_nop 1")
        k.e("v_cndmask_b32_e64 v%d, v%d, 0, vcc" % (vBc + r, vNeg))
        k.e("v_cndmask_b32_e64 v%d, v%d, 0, s[38:39]" % (vBp + r, vNeg))
    k.e("s_cmp_eq_u32 s%d, 0" % sRB)
    k.e("s_cselect_b64 s[38:39], -1, 0")
    for r in range(4):
        k.e("v_cndmask_b32_e64 v%d, v%d, v%d, s[38:39]" % (vBp1 + r, vBp + r, vNeg))
    k.e("s_mov_b32 s%d, 0x%08x" % (sScale, f32bits(0.25 * 1.4426950408889634)))
    k.e("s_waitcnt lgkmcnt(0)")
    vQb = vX
    vKb = vX + 8
    vVb = vX + 18
    for t in range(5):
        for (acc, cs, dst, on) in ((vQ + 4 * (t - 1), vCq, vQb + 2 * (t - 1), t >= 1), (vKk + 4 * t, vCk, vKb + 2 * t, True)):
            if not on:
                continue
            for r in range(4):
                k.e("v_mul_f32 v%d, v%d, v%d" % (vT0 + r, vSn + t, cs + r))
            for r in range(4):
                k.e("v_fma_f32 v%d, v%d, v%d, v%d" % (vT0 + r, vSr + t, acc + r, vT0 + r))
            k.e("v_cvt_pk_bf16_f32 v%d, v%d, v%d" % (dst, vT0, vT1))
            k.e("v_cvt_pk_bf16_f32 v%d, v%d, v%d" % (dst + 1, vT2, vT3))
        for r in range(4):
            k.e("v_mul_f32 v%d, v%d, v%d" % (vT0 + r, vVn + 4 * t + r, vCv))
        for r in range(4):
            k.e("v_fma_f32 v%d, v%d, v%d, v%d" % (vT0 + r, vVr + 4 * t + r, vV + 4 * t + r, vT0 + r))
        k.e("v_cvt_pk_bf16_f32 v%d, v%d, v%d" % (vVb + 2 * t, vT0, vT1))
        k.e("v_cvt_pk_bf16_f32 v%d, v%d, v%d" % (vVb + 2 * t + 1, vT2, vT3))
    k.e("s_nop 1")
    vS = vQ
    for t in range(4):
        k.e("v_mfma_f32_16x16x16_bf16 %s, %s, %s, 0" % (vr(vS + 8 * t, 4), vr(vKb + 2 * t, 2), vr(vQb + 2 * t, 2)))
        k.e("v_mfma_f32_16x16x16_bf16 %s, %s, %s, 0" % (vr(vS + 8 * t + 4, 4), vr(vKb + 2 * (t + 1), 2), vr(vQb + 2 * t, 2)))
    k.e("s_nop 7")
    k.e("s_nop 1")
    vMx = vE
    vMy = vE + 4
    vSum = vE + 8
    for t in range(4):
        for r in range(4):
            k.e("v_fma_f32 v%d, v%d, s%d, v%d" % (vS + 8 * t + r, vS + 8 * t + r, sScale, (vBp1 if t == 0 else vBp) + r))
            k.e("v_fma_f32 v%d, v%d, s%d, v%d" % (vS + 8 * t + 4 + r, vS + 8 * t + 4 + r, sScale, vBc + r))
        b = vS + 8 * t
        k.e("v_max3_f32 v%d, v%d, v%d, v%d" % (vMx + t, b, b + 1, b + 2))
        k.e("v_max3_f32 v%d, v%d, v%d, v%d" % (vMx + t, vMx + t, b + 3, b + 4))
        k.e("v_max3_f32 v%d, v%d, v%d, v%d" % (vMx + t, vMx + t, b + 5, b + 6))
        k.e("v_max_f32 v%d, v%d, v%d" % (vMx + t, vMx + t, b + 7))
    for op in ("v_permlane32_swap_b32", "v_permlane16_swap_b32"):
        for t in range(4):
            k.e("v_mov_b32 v%d, v%d" % (vMy + t, vMx + t))
        k.e("s_nop 1")
        for t in range(4):
            k.e("%s v%d, v%d" % (op, vMx + t, vMy + t))
        for t in range(4):
            k.e("v_max_f32 v%d, v%d, v%d" % (vMx + t, vMx + t, vMy + t))
    for t in range(4):
        b = vS + 8 * t
        for i in range(8):
            k.e("v_sub_f32 v%d, v%d, v%d" % (b + i, b + i, vMx + t))
        for i in range(8):
            k.e("v_exp_f32 v%d, v%d" % (b + i, b + i))
        k.e("s_nop 0")
        k.e("v_add_f32 v%d, v%d, v%d" % (vSum + t, b, b + 1))
        for i in range(2, 8):
            k.e("v_add_f32 v%d, v%d, v%d" % (vSum + t, vSum + t, b + i))
    vP = vE + 12
    for t in range(4):
        b = vS + 8 * t
        for i in range(4):
            k.e("v_cvt_pk_bf16_f32 v%d, v%d, v%d" % (vP + 4 * t + i, b + 2 * i, b + 2 * i + 1))
    for op in ("v_permlane32_swap_b32", "v_permlane16_swap_b32"):
        for t in range(4):
            k.e("v_mov_b32 v%d, v%d" % (vMy + t, vSum + t))
        k.e("s_nop 1")
        for t in range(4):
            k.e("%s v%d, v%d" % (op, vSum + t, vMy + t))
        for t in range(4):
            k.e("v_add_f32 v%d, v%d, v%d" % (vSum + t, vSum + t, vMy + t))
    vOa = vE + 28
    for t in range(4):
        k.e("v_mfma_f32_16x16x16_bf16 %s, %s, %s, 0" % (vr(vOa + 4 * t, 4), vr(vVb + 2 * t, 2), vr(vP + 4 * t, 2)))
    for t in range(4):
        k.e("v_mfma_f32_16x16x16_bf16 %s, %s, %s, %s" % (vr(vOa + 4 * t, 4), vr(vVb + 2 * (t + 1), 2), vr(vP + 4 * t + 2, 2), vr(vOa + 4 * t, 4)))
    for t in range(4):
        k.e("v_rcp_f32 v%d, v%d" % (vSum + t, vSum + t))
    if MERGE:
        k.e("v_and_b32 v%d, 15, v%d" % (vT0, vL))
        k.e("v_mul_u32_u24 v%d, 144, v%d" % (vT0, vT0))
        k.e("v_lshrrev_b32 v%d, 4, v%d" % (vT1, vL))
        k.e("v_lshl_add_u32 v%d, v%d, 3, v%d" % (vT0, vT1, vT0))
        k.e("s_lshl_b32 s3, s%d, 5" % sW)
        k.e("v_add_u32 v%d, s3, v%d" % (vT0, vT0))
        k.e("s_nop 7")
        for t in range(4):
            for r in range(4):
                k.e("v_mul_f32 v%d, v%d, v%d" % (vOa + 4 * t + r, vOa + 4 * t + r, vSum + t))
            k.e("v_cvt_pk_bf16_f32 v%d, v%d, v%d" % (vP + 2 * t, vOa + 4 * t, vOa + 4 * t + 1))
            k.e("v_cvt_pk_bf16_f32 v%d, v%d, v%d" % (vP + 2 * t + 1, vOa + 4 * t + 2, vOa + 4 * t + 3))
            k.e("ds_write_b64 v%d, %s offset:%d" % (vT0, vr(vP + 2 * t, 2), 16 * 144 * t))
        k.e("v_lshrrev_b32 v%d, 3, v%d" % (vT1, vL))
        k.e("v_mul_u32_u24 v%d, 144, v%d" % (vT1, vT1))
        k.e("v_and_b32 v%d, 7, v%d" % (vT3, vL))
        k.e("v_lshl_add_u32 v%d, v%d, 4, v%d" % (vT1, vT3, vT1))
        k.e("s_mul_i32 s3, s%d, %d" % (sW, 16 * 144))
        k.e("v_add_u32 v%d, s3, v%d" % (vT1, vT1))
        k.e("v_lshrrev_b32 v%d, 3, v%d" % (vT2, vL))
        k.e("s_lshl_b32 s3, s%d, 6" % sRB)
        k.e("s_lshl_b32 s%d, s%d, 4" % (sT, sW))
        k.e("s_add_u32 s3, s3, s%d" % sT)
        k.e("v_add_u32 v%d, s3, v%d" % (vT2, vT2))
        k.e("v_lshlrev_b32 v%d, 10, v%d" % (vT2, vT2))
        k.e("v_and_b32 v%d, 7, v%d" % (vT3, vL))
        k.e("v_lshl_add_u32 v%d, v%d, 4, v%d" % (vT2, vT3, vT2))
        k.e("s_lshl_b32 s3, s%d, 7" % sHG)
        k.e("v_add_u32 v%d, s3, v%d" % (vT2, vT2))
        k.e("s_waitcnt lgkmcnt(0)")
        k.e("s_barrier")
        k.e("ds_read_b128 %s, v%d" % (vr(vOa, 4), vT1))
        k.e("ds_read_b128 %s, v%d offset:%d" % (vr(vOa + 4, 4), vT1, 8 * 144))
        k.e("s_mov_b32 s3, 8192")
        k.e("s_waitcnt lgkmcnt(1)")
        k.vmem("buffer_store_dwordx4 %s, v%d, %s, 0 offen sc1" % (vr(vOa, 4), vT2, sr(S_C, 4)), "st")
        k.e("s_waitcnt lgkmcnt(0)")
        k.vmem("buffer_store_dwordx4 %s, v%d, %s, s3 offen sc1" % (vr(vOa + 4, 4), vT2, sr(S_C, 4)), "st")
    else:
        k.e("v_and_b32 v%d, 15, v%d" % (vT0, vL))
        k.e("s_lshl_b32 s3, s%d, 6" % sRB)
        k.e("v_add_u32 v%d, s3, v%d" % (vT0, vT0))
        k.e("v_lshlrev_b32 v%d, 10, v%d" % (vT0, vT0))
        k.e("v_lshrrev_b32 v%d, 4, v%d" % (vT1, vL))
        k.e("v_lshl_add_u32 v%d, v%d, 3, v%d" % (vT0, vT1, vT0))
        k.e("s_lshl_b32 s3, s%d, 2" % sHG)
        k.e("s_add_u32 s3, s3, s%d" % sW)
        k.e("s_lshl_b32 s3, s3, 5")
        k.e("v_add_u32 v%d, s3, v%d" % (vT0, vT0))
        k.e("s_nop 3")
        for t in range(4):
            for r in range(4):
                k.e("v_mul_f32 v%d, v%d, v%d" % (vOa + 4 * t + r, vOa + 4 * t + r, vSum + t))
            k.e("v_cvt_pk_bf16_f32 v%d, v%d, v%d" % (vP + 2 * t, vOa + 4 * t, vOa + 4 * t + 1))
            k.e("v_cvt_pk_bf16_f32 v%d, v%d, v%d" % (vP + 2 * t + 1, vOa + 4 * t + 2, vOa + 4 * t + 3))
            k.e("s_mov_b32 s3, %d" % (t * 16384))
            k.vmem("buffer_store_dwordx2 %s, v%d, %s, s3 offen%s" % (vr(vP + 2 * t, 2), vT0, sr(S_C, 4), " sc1" if MERGE else ""), "st")
    k.stamp(13)
    if MERGE:
        phase2(k, name, sW, sRB, sHG)
    k.stamp_rt(14)
    k.dump(0, sW, 15 if not MERGE else 20)
    k.e("s_endpgm")

    k.lab("%s_loader" % name)
    vRa = 10
    vOne = 12
    vF = 16
    vG = 28
    vR = 40
    k.e("s_and_b32 s%d, s%d, 1" % (sT, sW))
    k.e("s_lshl_b32 s3, s%d, 2" % sT)
    k.e("v_and_b32 v2, 15, v1")
    k.e("v_lshrrev_b32 v3, 4, v1")
    k.e("v_lshrrev_b32 v9, 1, v2")
    k.e("v_xor_b32 v9, v9, v3")
    k.e("v_xor_b32 v9, s3, v9")
    k.e("v_lshlrev_b32 v2, 7, v2")
    k.e("v_lshl_add_u32 v%d, v9, 4, v2" % vRa)
    k.e("v_add_u32 v%d, %d, v%d" % (vRa + 1, 2 * SLOT, vRa))
    for i in range(4):
        k.e("v_mov_b32 v%d, 0x3f803f80" % (vOne + i))

    def stats_stage(i, tiles):
        slot = i % NS
        for n, t in enumerate(tiles):
            k.lds("ds_read_b128 %s, v%d offset:%d" % (vr(vF + 4 * n, 4), vRa + slot // 2, (slot % 2) * SLOT + 2048 * t), ("f", n))
        for n, t in enumerate(tiles):
            k.wait_lds(("f", n))
            k.e("v_mfma_f32_16x16x32_bf16 %s, %s, %s, %s" % (vr(vG + 4 * n, 4), vr(vF + 4 * n, 4), vr(vF + 4 * n, 4), "0" if i == 0 else vr(vG + 4 * n, 4)))
            k.e("v_mfma_f32_16x16x32_bf16 %s, %s, %s, %s" % (vr(vR + 4 * n, 4), vr(vF + 4 * n, 4), vr(vOne, 4), "0" if i == 0 else vr(vR + 4 * n, 4)))

    def stats_finish(tiles):
        k.e("v_and_b32 v2, 3, v1")
        k.e("v_cmp_eq_u32 s[48:49], 1, v2")
        k.e("v_cmp_eq_u32 s[50:51], 2, v2")
        k.e("v_cmp_eq_u32 s[52:53], 3, v2")
        k.e("v_bfe_u32 v2, v1, 2, 2")
        k.e("v_lshrrev_b32 v3, 4, v1")
        k.e("v_cmp_eq_u32 vcc, v2, v3")
        k.e("s_mul_i32 s3, s%d, 1280" % sT)
        k.e("s_add_u32 s3, s3, %d" % ST_BASE)
        k.e("v_and_b32 v2, 15, v1")
        k.e("v_lshlrev_b32 v2, 2, v2")
        k.e("v_add_u32 v2, s3, v2")
        k.e("s_nop 3")
        for n, t in enumerate(tiles):
            for base in (vG + 4 * n, vR + 4 * n):
                k.e("v_cndmask_b32_e64 v%d, v%d, v%d, s[48:49]" % (base, base, base + 1))
                k.e("v_cndmask_b32_e64 v%d, v%d, v%d, s[50:51]" % (base, base, base + 2))
                k.e("v_cndmask_b32_e64 v%d, v%d, v%d, s[52:53]" % (base, base, base + 3))
        k.e("s_and_saveexec_b64 s[38:39], vcc")
        for n, t in enumerate(tiles):
            k.e("ds_write_b32 v2, v%d offset:%d" % (vR + 4 * n, 64 * t))
            k.e("ds_write_b32 v2, v%d offset:%d" % (vG + 4 * n, 320 + 64 * t))
        k.e("s_mov_b64 exec, s[38:39]")
        k.e("s_waitcnt lgkmcnt(0)")
        k.e("s_barrier")

    k.e("s_cmp_ge_u32 s%d, 6" % sW)
    k.e("s_cbranch_scc1 %s_loadw" % name)
    k.e("s_cmp_eq_u32 s%d, 5" % sW)
    k.e("s_cbranch_scc1 %s_pref" % name)
    k.vm = []
    k.lq = []
    srd(k, S_A, 44, 2 << 20)
    vOff = 4
    vPo = 56
    k.e("s_lshl_b32 s3, s%d, 6" % sRB)
    k.e("s_sub_u32 s3, s3, 16")
    k.e("v_lshrrev_b32 v2, 3, v1")
    k.e("v_add_u32 v2, s3, v2")
    k.e("v_and_b32 v3, 7, v1")
    k.e("v_lshrrev_b32 v9, 4, v1")
    k.e("v_xor_b32 v3, v3, v9")
    for p in range(10):
        k.e("v_add_u32 v9, %d, v2" % (8 * p))
        k.e("v_max_i32 v9, 0, v9")
        k.e("v_lshlrev_b32 v9, 10, v9")
        if p & 1:
            k.e("v_xor_b32 v%d, 4, v3" % (vPo + p))
            k.e("v_lshl_add_u32 v%d, v%d, 4, v9" % (vPo + p, vPo + p))
        else:
            k.e("v_lshl_add_u32 v%d, v3, 4, v9" % (vPo + p))

    def lda(st):
        slot = st % NS
        k.e("s_lshl_b32 s%d, s%d, 7" % (sOff, sK))
        k.e("s_add_u32 s%d, s%d, 1" % (sK, sK))
        k.e("s_and_b32 s%d, s%d, 7" % (sK, sK))
        for p in range(10):
            k.e("s_mov_b32 m0, %d" % (slot * SLOT + p * 1024))
            k.e("s_nop 0")
            k.vmem("buffer_load_dwordx4 v%d, %s, s%d offen lds" % (vPo + p, sr(S_A, 4), sOff), ("s", st))

    k.stamp(2)
    lda(0)
    if not EARLY1:
        lda(1)
    k.stamp(3)
    for i in range(8):
        k.wait_vm(("s", i))
        k.stamp(4 + i)
        k.e("s_barrier")
        if i == 0 and EARLY1:
            lda(1)
        if i + 2 < 8:
            lda(i + 2)
        stats_stage(i, [0, 1, 2])
    stats_finish([0, 1, 2])
    k.e("s_branch %s_fin" % name)
    k.lab("%s_pref" % name)
    k.vm = []
    k.lq = []
    TLBI = int(os.environ.get("TLBI", "-1"))

    def tlb_touch():
        k.e("s_load_dwordx2 s[26:27], s[0:1], %d" % KA_OUT)
        srd(k, S_A, 4, 14 << 20)
        k.e("v_lshlrev_b32 v4, 16, v1")
        for n in range(4):
            k.e("s_mov_b32 s3, %d" % (n * (4 << 20)))
            k.vmem("buffer_load_dword v58, v4, %s, s3 offen" % sr(S_A, 4), "pf")
        k.e("s_waitcnt lgkmcnt(0)")
        srd(k, S_A, 26, 2 << 20)
        k.vmem("buffer_load_dword v58, v4, %s, 0 offen" % sr(S_A, 4), "pf")
    k.stamp(2)
    k.stamp(3)
    for i in range(8):
        k.stamp(4 + i)
        k.e("s_barrier")
        if i == TLBI:
            tlb_touch()
        if i == int(os.environ.get("PFI", "6")) and PREF:
            srd(k, S_A, 6, 512 * 1024)
            k.e("v_lshrrev_b32 v4, 2, v1")
            k.e("v_lshlrev_b32 v4, 10, v4")
            k.e("v_and_b32 v3, 3, v1")
            k.e("v_lshl_add_u32 v4, v3, 7, v4")
            k.e("s_lshr_b32 s%d, s2, 3" % sOff)
            k.e("s_lshl_b32 s%d, s%d, 14" % (sOff, sOff))
            k.e("s_and_b32 s%d, s2, 1" % sM)
            k.e("s_lshl_b32 s%d, s%d, 9" % (sM, sM))
            k.e("s_add_u32 s%d, s%d, s%d" % (sOff, sOff, sM))
            k.vmem("buffer_load_dword v56, v4, %s, s%d offen" % (sr(S_A, 4), sOff), "pf")
            k.e("v_lshlrev_b32 v2, 7, v1")
            k.e("s_mul_i32 s3, s2, 7168")
            k.e("v_cmp_gt_u32 vcc, 56, v1")
            k.e("s_and_saveexec_b64 s[38:39], vcc")
            for ptr in ((20, 22) if not os.environ.get("NOCOLDGU") else ()):
                srd(k, S_B, ptr, 512 * 3584)
                k.vmem("buffer_load_dword v57, v2, %s, s3 offen" % sr(S_B, 4), "pf")
            k.e("s_mov_b64 exec, s[38:39]")
        stats_stage(i, [0, 1, 2])
    stats_finish([0, 1, 2])
    k.lab("%s_fin" % name)
    k.e("s_mul_i32 s3, s%d, 160" % sT)
    k.e("s_add_u32 s3, s3, %d" % ST_BASE)
    k.e("v_lshlrev_b32 v2, 2, v1")
    k.e("v_add_u32 v2, s3, v2")
    k.e("v_cmp_gt_u32 vcc, 40, v1")
    k.e("s_and_saveexec_b64 s[38:39], vcc")
    k.e("ds_read_b32 v3, v2")
    k.e("ds_read_b32 v9, v2 offset:320")
    k.e("ds_read_b32 v4, v2 offset:1280")
    k.e("ds_read_b32 v5, v2 offset:1600")
    k.e("s_waitcnt lgkmcnt(0)")
    k.e("v_add_f32 v3, v3, v4")
    k.e("v_add_f32 v9, v9, v5")
    k.e("v_mul_f32 v3, 0x3b000000, v3")
    k.e("v_mul_f32 v9, 0x3b000000, v9")
    k.e("v_fma_f32 v9, -v3, v3, v9")
    k.e("v_max_f32 v9, 0, v9")
    k.e("v_add_f32 v9, 0x3727c5ac, v9")
    k.e("v_rsq_f32 v9, v9")
    k.e("s_nop 0")
    k.e("v_mul_f32 v3, v3, v9")
    k.e("v_sub_f32 v3, 0, v3")
    k.e("ds_write_b32 v2, v9 offset:640")
    k.e("ds_write_b32 v2, v3 offset:960")
    k.e("s_waitcnt lgkmcnt(0)")
    k.e("s_mov_b64 exec, s[38:39]")
    k.e("s_barrier")
    k.stamp(12)
    if MERGE:
        k.e("s_barrier")
        k.e("s_barrier")
        k.e("s_cmp_eq_u32 s%d, 4" % sW)
        k.e("s_cbranch_scc1 %s_nopoll" % name)
        srd(k, S_A, 4, 256 * 128, WS_FLAG)
        k.e("s_memrealtime s[56:57]")
        k.e("s_lshl_b32 s3, s%d, 3" % sRB)
        k.e("s_add_u32 s%d, s3, s%d" % (sOff, sHG))
        k.e("s_lshl_b32 s%d, s%d, 7" % (sOff, sOff))
        k.e("v_mov_b32 v2, s%d" % sOff)
        k.e("s_lshl_b32 s3, s3, 7")
        k.e("v_and_b32 v3, 7, v1")
        k.e("v_lshlrev_b32 v3, 7, v3")
        k.e("v_add_u32 v3, s3, v3")
        k.e("s_waitcnt lgkmcnt(0)")
        k.e("v_mov_b32 v4, s56")
        k.e("v_mov_b32 v5, s57")
        k.e("v_xor_b32 v6, 0x5bd1e995, v4")
        k.e("v_xor_b32 v7, 0x9e3779b9, v5")
        k.e("v_cmp_eq_u32 vcc, 0, v1")
        k.e("s_and_saveexec_b64 s[38:39], vcc")
        k.e("buffer_store_dwordx4 v[4:7], v2, %s, 0 offen sc1" % sr(S_A, 4))
        k.e("s_mov_b64 exec, s[38:39]")
        k.e("s_sub_u32 s54, s54, 200")
        k.e("s_subb_u32 s55, s55, 0")
        k.e("s_mov_b32 s%d, 0" % sM)
        k.lab("%s_poll" % name)
        k.e("buffer_load_dwordx4 v[8:11], v3, %s, 0 offen sc1" % sr(S_A, 4))
        k.e("s_waitcnt vmcnt(0)")
        k.e("v_xor_b32 v10, v10, v8")
        k.e("v_xor_b32 v11, v11, v9")
        k.e("v_subrev_co_u32 v8, vcc, s54, v8")
        k.e("v_mov_b32 v12, s55")
        k.e("s_nop 0")
        k.e("v_subb_co_u32 v9, vcc, v9, v12, vcc")
        k.e("v_xor_b32 v10, 0x5bd1e995, v10")
        k.e("v_xor_b32 v11, 0x9e3779b9, v11")
        k.e("v_lshrrev_b32 v8, 20, v8")
        k.e("v_or_b32 v8, v8, v9")
        k.e("v_or3_b32 v8, v8, v10, v11")
        k.e("v_cmp_eq_u32 vcc, 0, v8")
        k.e("s_add_u32 s%d, s%d, 1" % (sM, sM))
        k.e("s_cmp_eq_u64 vcc, exec")
        k.e("s_cbranch_scc1 %s_nopoll" % name)
        k.e("s_cmp_lt_u32 s%d, 0x10000" % sM)
        k.e("s_cbranch_scc1 %s_poll" % name)
        k.lab("%s_nopoll" % name)
        k.e("s_barrier")
        k.e("s_barrier")
    k.e("s_waitcnt vmcnt(0)")
    k.stamp(13)
    k.stamp_rt(14)
    k.dump(0, sW, 15)
    k.e("s_endpgm")

    k.lab("%s_loadw" % name)
    k.vm = []
    k.lq = []
    srd(k, S_B, 46, 512 * 3072)
    vWe, vWo = 4, 5
    k.e("v_lshrrev_b32 v2, 3, v1")
    k.e("v_mul_u32_u24 v%d, 3072, v2" % vWe)
    k.e("v_and_b32 v2, 1, v1")
    k.e("v_lshl_add_u32 v%d, v2, 4, v%d" % (vWe, vWe))
    k.e("s_lshl_b32 s3, s%d, 7" % sHG)
    k.e("v_add_u32 v%d, s3, v%d" % (vWe, vWe))
    k.e("v_bfe_u32 v2, v1, 1, 2")
    k.e("v_bfe_u32 v3, v1, 4, 1")
    k.e("v_xor_b32 v2, v2, v3")
    k.e("v_xor_b32 v3, 2, v2")
    k.e("v_lshl_add_u32 v%d, v3, 5, v%d" % (vWo, vWe))
    k.e("v_lshl_add_u32 v%d, v2, 5, v%d" % (vWe, vWe))
    k.e("s_mul_i32 s%d, s%d, %d" % (sM, sT, 12 * 1024))
    k.e("s_add_u32 s%d, s%d, %d" % (sM, sM, A_BYTES))
    sG = 82
    for p in range(12):
        p0, p1 = p, 12 + p
        g0 = (p0 // 8) * 1024 + (p0 % 8) * 8 * 3072
        g1 = (p1 // 8) * 1024 + (p1 % 8) * 8 * 3072
        k.e("s_cmp_eq_u32 s%d, 0" % sT)
        k.e("s_mov_b32 s%d, %d" % (sG + p, g1))
        k.e("s_cmov_b32 s%d, %d" % (sG + p, g0))

    def ldw(st):
        slot = st % NS
        k.e("s_mul_i32 s%d, s%d, %d" % (sKb, sK, 64 * 3072))
        k.e("s_add_u32 s%d, s%d, 1" % (sK, sK))
        k.e("s_and_b32 s%d, s%d, 7" % (sK, sK))
        for p in range(12):
            k.e("s_add_u32 m0, s%d, %d" % (sM, slot * SLOT + p * 1024))
            k.e("s_add_u32 s%d, s%d, s%d" % (sOff, sG + p, sKb))
            k.vmem("buffer_load_dwordx4 v%d, %s, s%d offen lds" % (vWo if p & 1 else vWe, sr(S_B, 4), sOff), ("s", st))

    k.stamp(2)
    ldw(0)
    if not EARLY1:
        ldw(1)
    k.stamp(3)
    for i in range(8):
        k.wait_vm(("s", i))
        k.stamp(4 + i)
        k.e("s_barrier")
        if i == 0 and EARLY1:
            ldw(1)
        stats_stage(i, [3, 4])
        if i + 2 < 8:
            ldw(i + 2)
    stats_finish([3, 4])
    k.e("s_barrier")
    k.stamp(12)
    if MERGE:
        srd(k, S_B, 6, 512 * 1024)
        k.e("v_lshrrev_b32 v2, 3, v1")
        k.e("v_lshlrev_b32 v%d, 10, v2" % vWe)
        k.e("v_and_b32 v2, 1, v1")
        k.e("v_lshl_add_u32 v%d, v2, 4, v%d" % (vWe, vWe))
        k.e("s_lshl_b32 s3, s%d, 7" % sHG)
        k.e("v_add_u32 v%d, s3, v%d" % (vWe, vWe))
        k.e("v_bfe_u32 v2, v1, 1, 2")
        k.e("v_bfe_u32 v3, v1, 4, 1")
        k.e("v_xor_b32 v2, v2, v3")
        k.e("v_xor_b32 v3, 2, v2")
        k.e("v_lshl_add_u32 v%d, v3, 5, v%d" % (vWo, vWe))
        k.e("v_lshl_add_u32 v%d, v2, 5, v%d" % (vWe, vWe))
        k.e("s_lshl_b32 s%d, s%d, 18" % (sOff, sT))
        k.e("s_lshl_b32 s%d, s%d, 16" % (sM, sT))
        k.e("s_barrier")
        k.e("s_barrier")
        for ww in range(2):
            for pc in range(16):
                k.e("s_add_u32 m0, s%d, %d" % (sM, ww * 32768 + 16384 + pc * 1024))
                k.e("s_nop 0")
                k.vmem("buffer_load_dwordx4 v%d, %s, s%d offen lds" % (vWo if pc & 1 else vWe, sr(S_B, 4), sOff), "wo")
                k.e("s_add_u32 s%d, s%d, 8192" % (sOff, sOff))
        k.e("s_waitcnt vmcnt(0)")
        k.e("s_barrier")
        k.e("s_barrier")
    k.e("s_waitcnt vmcnt(0)")
    k.stamp(13)
    k.stamp_rt(14)
    k.dump(0, sW, 15)
    k.lab("%s_end" % name)
    k.e("s_endpgm")
    return k.text(), nv, LDS
```

```python
import sys

import os
import re
DIAG = bool(os.environ.get("DIAG"))
ROT = not os.environ.get("NOROT")
PREF = not os.environ.get("NOPREF")
PREF2 = bool(os.environ.get("PREF2"))
MAP48 = not os.environ.get("NOMAP48")
PKN = bool(os.environ.get("PKN"))
MERGE = not os.environ.get("NOMERGE")
RESLATE = not os.environ.get("NORESLATE")
RESK = int(os.environ.get("RESK", "3"))
EARLY = bool(os.environ.get("EARLY"))
EARLY1 = bool(os.environ.get("EARLY1"))
STF = os.environ.get("STF", "")
STF2 = os.environ.get("STF2", "")
V_WAIT = os.environ.get("V_WAIT", "2")
V_ARD = int(os.environ.get("V_ARD", "3"))
V_NRM = [int(c) for c in os.environ.get("V_NRM", "3333332")]
NAME = "sequential_preLN__sliding_local_dilated__glu_gated_geglu__prompt"

WS_O = 0
WS_H = 2 << 20
WS_HH = 4 << 20
WS_HST = 12 << 20
WS_FLAG = 13 << 20

KA_X, KA_WQKV, KA_WO, KA_BX, KA_WG, KA_WU, KA_WD, KA_OUT, KA_DBG, KA_WS = [8 * i for i in range(10)]


class K:
    def __init__(self):
        self.lines = []
        self.vm = []
        self.lq = []

    def e(self, s):
        m = re.search(r"offset:(\d+)", s)
        if m:
            lim = 4096 if s.startswith("buffer_") else 65536
            assert int(m.group(1)) < lim, s
        self.lines.append("  " + s)

    def lab(self, s):
        self.lines.append(s + ":")

    def c(self, s):
        self.lines.append("  ; " + s)

    def vmem(self, s, tag):
        self.e(s)
        self.vm.append(tag)

    def wait_vm(self, tag):
        idx = max((i for i, t in enumerate(self.vm) if t == tag), default=None)
        if idx is None:
            return
        n = len(self.vm) - 1 - idx
        assert n <= 63, n
        self.e("s_waitcnt vmcnt(%d)" % n)
        self.vm = self.vm[idx + 1:]

    def lds(self, s, tag):
        self.e(s)
        self.lq.append(tag)

    def wait_lds(self, tag):
        idx = max((i for i, t in enumerate(self.lq) if t == tag), default=None)
        if idx is None:
            return False
        n = len(self.lq) - 1 - idx
        if n > 15:
            n = 15
            idx = len(self.lq) - 1 - n
        self.e("s_waitcnt lgkmcnt(%d)" % n)
        self.lq = self.lq[idx + 1:]
        return True

    def wait_lds_all(self):
        self.e("s_waitcnt lgkmcnt(0)")
        self.lq = []

    def wait_vm_all(self):
        self.e("s_waitcnt vmcnt(0)")
        self.vm = []

    def text(self):
        return "\n".join(self.lines) + "\n"

    def stamp(self, i):
        if not DIAG:
            return
        self.e("s_memtime s[58:59]")
        self.e("s_waitcnt lgkmcnt(0)")
        self.lq = []
        self.e("s_mov_b32 s%d, s58" % (64 + i))

    def stamp_rt(self, i):
        if not DIAG:
            return
        self.e("s_memrealtime s[58:59]")
        self.e("s_waitcnt lgkmcnt(0)")
        self.e("s_mov_b32 s%d, s58" % (64 + i))

    def dump(self, kidx, sW, n):
        if not DIAG:
            return
        self.e("s_add_u32 s60, s4, 0x%x" % ((32 << 20) + (kidx << 20)))
        self.e("s_addc_u32 s61, s5, 0")
        self.e("s_mov_b32 s62, 0x100000")
        self.e("s_mov_b32 s63, 0x00020000")
        self.e("s_lshl_b32 s58, s2, 3")
        self.e("s_add_u32 s58, s58, s%d" % sW)
        self.e("s_lshl_b32 s58, s58, 7")
        self.e("v_mov_b32 v0, s58")
        for i in range(n):
            self.e("v_mov_b32 v1, s%d" % (64 + i))
            self.e("buffer_store_dword v1, v0, s[60:63], 0 offen offset:%d" % (4 * i))
            self.e("s_nop 1")


def vr(a, n=1):
    return "v%d" % a if n == 1 else "v[%d:%d]" % (a, a + n - 1)


def sr(a, n=1):
    return "s%d" % a if n == 1 else "s[%d:%d]" % (a, a + n - 1)


def srd(k, d, ptr, nbytes, off=0):
    if off:
        k.e("s_add_u32 s%d, s%d, 0x%x" % (d, ptr, off))
        k.e("s_addc_u32 s%d, s%d, 0" % (d + 1, ptr + 1))
    else:
        k.e("s_mov_b32 s%d, s%d" % (d, ptr))
        k.e("s_mov_b32 s%d, s%d" % (d + 1, ptr + 1))
    k.e("s_mov_b32 s%d, 0x%x" % (d + 2, nbytes))
    k.e("s_mov_b32 s%d, 0x00020000" % (d + 3))


def header(k, name):
    k.lines.append(".globl %s" % name)
    k.lines.append(".p2align 8")
    k.lines.append(".type %s,@function" % name)
    k.lab(name)


def descriptor(name, nvgpr, nsgpr=96):
    nv = (nvgpr + 7) // 8 * 8
    return """.p2align 6
.amdhsa_kernel %s
  .amdhsa_next_free_vgpr %d
  .amdhsa_next_free_sgpr %d
  .amdhsa_accum_offset %d
  .amdhsa_group_segment_fixed_size 0
  .amdhsa_kernarg_size 80
  .amdhsa_user_sgpr_count 2
  .amdhsa_user_sgpr_kernarg_segment_ptr 1
  .amdhsa_system_sgpr_workgroup_id_x 1
.end_amdhsa_kernel
""" % (name, nv, nsgpr, min(nv, 256))


def gen_t2(name, Kdim, lda, a_src, b_ka, r_src, c_dst, stats, kidx=0, LOOK=3, skip=''):
    k = K()
    header(k, name)
    Kw = Kdim // 4
    ns = Kw // 32
    nu = ns // 2
    DA = min(nu, 3)
    DB = min(ns, 4)
    BOFF = DA * 8192
    S_A, S_B, S_R, S_C, S_ST = 8, 12, 16, 20, 24
    sW, sRB, sCB, sT, sLB = 28, 29, 30, 31, 32
    sTile = 36
    sBoff = 40
    sAoff = 41
    sK = 42
    sKb = 43
    sKB = 50
    vL, vAe, vBe, vBo = 1, 2, 3, 4
    vTr = 5
    vRo = 9
    vT0, vT1, vT2 = 10, 11, 12
    vXa = 13
    vAo = 15
    vRes = 16
    vAcc = 24
    vBf = 88
    vAf = 120
    vCo = 156
    nv = 160

    k.e("s_cmp_ge_u32 s2, 256")
    k.e("s_cbranch_scc1 %s_end" % name)
    k.stamp_rt(0)
    k.stamp(1)
    k.e("s_load_dwordx2 s[4:5], s[0:1], %d" % KA_WS)
    k.e("s_load_dwordx2 s[6:7], s[0:1], %d" % b_ka)
    if stats:
        k.e("s_load_dwordx4 s[52:55], s[0:1], %d" % KA_WG)
    nxt = 44
    for src in (a_src, r_src, c_dst):
        if src[0] == 'ka':
            k.e("s_load_dwordx2 s[%d:%d], s[0:1], %d" % (nxt, nxt + 1, src[1]))
            nxt += 2
    k.e("v_lshrrev_b32 v%d, 6, v0" % vT0)
    k.e("v_and_b32 v%d, 63, v0" % vL)
    k.e("v_readfirstlane_b32 s%d, v%d" % (sW, vT0))
    if MAP48 and ns == 14:
        k.e("s_and_b32 s3, s2, 7")
        k.e("s_lshl_b32 s%d, s3, 2" % sRB)
        k.e("s_lshr_b32 s3, s2, 6")
        k.e("s_add_u32 s%d, s%d, s3" % (sRB, sRB))
        k.e("s_lshr_b32 s%d, s2, 3" % sT)
        k.e("s_and_b32 s%d, s%d, 7" % (sCB, sT))
        k.e("s_lshl_b32 s%d, s3, 1" % sK)
        k.e("s_add_u32 s%d, s%d, s%d" % (sK, sK, sCB))
        k.e("s_cmp_ge_u32 s%d, 7" % sK)
        k.e("s_cselect_b32 s3, 7, 0")
        k.e("s_sub_u32 s%d, s%d, s3" % (sK, sK))
    else:
        k.e("s_and_b32 s3, s2, 7")
        k.e("s_lshr_b32 s%d, s2, 3" % sT)
        k.e("s_lshr_b32 s%d, s3, 1" % sRB)
        k.e("s_lshl_b32 s%d, s%d, 3" % (sRB, sRB))
        k.e("s_lshr_b32 s%d, s%d, 2" % (sCB, sT))
        k.e("s_add_u32 s%d, s%d, s%d" % (sRB, sRB, sCB))
        k.e("s_and_b32 s%d, s3, 1" % sCB)
        k.e("s_lshl_b32 s%d, s%d, 2" % (sCB, sCB))
        k.e("s_and_b32 s%d, s%d, 3" % (sT, sT))
        k.e("s_add_u32 s%d, s%d, s%d" % (sCB, sCB, sT))
        k.e("s_lshr_b32 s3, s2, 5")
        if nu == 7:
            k.e("s_lshl_b32 s%d, s%d, 1" % (sK, sT))
            k.e("s_add_u32 s%d, s%d, s3" % (sK, sK))
            k.e("s_cmp_ge_u32 s%d, 7" % sK)
            k.e("s_cselect_b32 s3, 7, 0")
            k.e("s_sub_u32 s%d, s%d, s3" % (sK, sK))
        else:
            assert nu == 2
            k.e("s_add_u32 s%d, s%d, s3" % (sK, sT))
            k.e("s_and_b32 s%d, s%d, 1" % (sK, sK))
    if not ROT:
        k.e("s_mov_b32 s%d, 0" % sK)
    k.e("s_mov_b32 s%d, s%d" % (sKB, sK))
    wave_lds = max(BOFF + DB * 4096, 16384)
    k.e("s_mul_i32 s%d, s%d, %d" % (sLB, sW, wave_lds))
    for t in range(4):
        k.e("s_add_u32 s%d, s%d, %d" % (sT, sW, t))
        k.e("s_and_b32 s%d, s%d, 3" % (sT, sT))
        k.e("s_mul_i32 s%d, s%d, %d" % (sTile + t, sT, 16 * lda))
    k.e("s_lshl_b32 s%d, s%d, 6" % (sT, sRB))
    k.e("v_lshrrev_b32 v%d, 3, v%d" % (vT0, vL))
    k.e("v_add_u32 v%d, s%d, v%d" % (vT1, sT, vT0))
    k.e("s_mov_b32 s3, %d" % lda)
    k.e("v_mul_lo_u32 v%d, v%d, s3" % (vAe, vT1))
    k.e("s_mul_i32 s3, s%d, %d" % (sW, Kw * 2))
    k.e("v_add_u32 v%d, s3, v%d" % (vAe, vAe))
    k.e("v_and_b32 v%d, 7, v%d" % (vT0, vL))
    k.e("v_lshrrev_b32 v%d, 4, v%d" % (vT2, vL))
    k.e("v_xor_b32 v%d, v%d, v%d" % (vT0, vT0, vT2))
    k.e("v_xor_b32 v%d, 4, v%d" % (vT1, vT0))
    k.e("v_add_u32 v%d, %d, v%d" % (vAo, 8 * lda, vAe))
    k.e("v_lshl_add_u32 v%d, v%d, 4, v%d" % (vAo, vT1, vAo))
    k.e("v_lshl_add_u32 v%d, v%d, 4, v%d" % (vAe, vT0, vAe))
    k.e("v_and_b32 v%d, 15, v%d" % (vT1, vL))
    k.e("v_lshrrev_b32 v%d, 1, v%d" % (vT0, vT1))
    k.e("v_xor_b32 v%d, v%d, v%d" % (vT0, vT0, vT2))
    k.e("v_lshlrev_b32 v%d, 7, v%d" % (vXa, vT1))
    k.e("v_add_u32 v%d, s%d, v%d" % (vXa, sLB, vXa))
    k.e("v_lshl_add_u32 v%d, v%d, 4, v%d" % (vXa, vT0, vXa))
    k.e("v_xor_b32 v%d, 64, v%d" % (vXa + 1, vXa))
    k.e("s_lshl_b32 s3, s%d, 4" % sW)
    k.e("s_add_u32 s3, s3, s%d" % sT)
    k.e("v_add_u32 v%d, s3, v%d" % (vT1, vT1))
    k.e("v_lshlrev_b32 v%d, 10, v%d" % (vRo, vT1))
    k.e("v_lshl_add_u32 v%d, v%d, 3, v%d" % (vRo, vT2, vRo))
    k.e("s_lshl_b32 s3, s%d, 7" % sCB)
    k.e("v_add_u32 v%d, s3, v%d" % (vRo, vRo))
    k.e("v_lshrrev_b32 v%d, 3, v%d" % (vT0, vL))
    k.e("s_lshl_b32 s%d, s%d, 4" % (sAoff, sW))
    k.e("s_add_u32 s%d, s%d, s%d" % (sAoff, sAoff, sT))
    k.e("v_add_u32 v%d, s%d, v%d" % (vCo, sAoff, vT0))
    k.e("v_lshlrev_b32 v%d, 10, v%d" % (vCo, vCo))
    k.e("v_and_b32 v%d, 7, v%d" % (vT1, vL))
    k.e("v_lshl_add_u32 v%d, v%d, 4, v%d" % (vCo, vT1, vCo))
    k.e("v_add_u32 v%d, s3, v%d" % (vCo, vCo))
    k.e("v_add_u32 v%d, 8192, v%d" % (vCo + 1, vCo))
    k.e("v_lshrrev_b32 v%d, 3, v%d" % (vT0, vL))
    k.e("v_lshlrev_b32 v%d, 10, v%d" % (vBe, vT0))
    k.e("v_and_b32 v%d, 1, v%d" % (vT0, vL))
    k.e("v_lshl_add_u32 v%d, v%d, 4, v%d" % (vBe, vT0, vBe))
    k.e("s_mul_i32 s%d, s%d, %d" % (sT, sW, Kw * 1024))
    k.e("s_add_u32 s3, s3, s%d" % sT)
    k.e("v_add_u32 v%d, s3, v%d" % (vBe, vBe))
    k.e("v_bfe_u32 v%d, v%d, 1, 2" % (vT0, vL))
    k.e("v_bfe_u32 v%d, v%d, 4, 1" % (vT1, vL))
    k.e("v_xor_b32 v%d, v%d, v%d" % (vT0, vT0, vT1))
    k.e("v_xor_b32 v%d, 2, v%d" % (vT1, vT0))
    k.e("v_lshl_add_u32 v%d, v%d, 5, v%d" % (vBo, vT1, vBe))
    k.e("v_lshl_add_u32 v%d, v%d, 5, v%d" % (vBe, vT0, vBe))
    k.e("v_lshrrev_b32 v%d, 4, v%d" % (vT0, vL))
    k.e("v_bfe_u32 v%d, v%d, 2, 2" % (vT1, vL))
    k.e("v_lshl_add_u32 v%d, v%d, 3, v%d" % (vT2, vT0, vT1))
    k.e("v_lshlrev_b32 v%d, 7, v%d" % (vT2, vT2))
    k.e("v_add_u32 v%d, s%d, v%d" % (vT2, sLB, vT2))
    k.e("v_and_b32 v%d, 3, v%d" % (vTr, vL))
    k.e("v_lshl_add_u32 v%d, v%d, 3, v%d" % (vT2, vTr, vT2))
    k.e("v_bfe_u32 v%d, v%d, 3, 1" % (vT1, vL))
    k.e("v_bfe_u32 v%d, v%d, 4, 1" % (vT0, vL))
    k.e("v_lshl_or_b32 v%d, v%d, 1, v%d" % (vT0, vT0, vT1))
    for j in range(4):
        k.e("v_xor_b32 v%d, %d, v%d" % (vT1, j, vT0))
        k.e("v_lshl_add_u32 v%d, v%d, 5, v%d" % (vTr + j, vT1, vT2))
    k.e("s_waitcnt lgkmcnt(0)")
    nxt = 44
    for d, src, nbytes in ((S_A, a_src, 2048 * lda), (S_R, r_src, 2 << 20), (S_C, c_dst, 2 << 20)):
        if src[0] == 'ka':
            srd(k, d, nxt, nbytes)
            nxt += 2
        else:
            srd(k, d, 4, nbytes, src[1])
    srd(k, S_B, 6, Kdim * 1024)
    if stats:
        srd(k, S_ST, 4, 2048 * 64, WS_HST)

    def issue_a(u):
        if 'A' in skip:
            return
        slot = u % DA
        k.e("s_lshl_b32 s%d, s%d, 7" % (sKb, sK))
        k.e("s_add_u32 s%d, s%d, 1" % (sK, sK))
        k.e("s_cmp_ge_u32 s%d, %d" % (sK, nu))
        k.e("s_cselect_b32 s%d, 0, s%d" % (sK, sK))
        for t in range(4):
            k.e("s_add_u32 s%d, s%d, s%d" % (sAoff, sTile + t, sKb))
            for p in range(2):
                k.e("s_add_u32 m0, s%d, %d" % (sLB, slot * 8192 + t * 2048 + p * 1024))
                k.e("s_nop 0")
                k.vmem("buffer_load_dwordx4 v%d, %s, s%d offen lds" % (vAo if p else vAe, sr(S_A, 4), sAoff), ("a", u))

    def issue_b(s):
        if 'B' in skip:
            return
        slot = s % DB
        if s % 2 == 0:
            k.e("s_lshl_b32 s%d, s%d, 16" % (sBoff, sKB))
            k.e("s_add_u32 s%d, s%d, 1" % (sKB, sKB))
            k.e("s_cmp_ge_u32 s%d, %d" % (sKB, nu))
            k.e("s_cselect_b32 s%d, 0, s%d" % (sKB, sKB))
        for i in range(4):
            k.e("s_add_u32 m0, s%d, %d" % (sLB, BOFF + slot * 4096 + i * 1024))
            k.e("s_nop 0")
            k.vmem("buffer_load_dwordx4 v%d, %s, s%d offen lds" % (vBo if i & 1 else vBe, sr(S_B, 4), sBoff), ("b", s))
            k.e("s_add_u32 s%d, s%d, 8192" % (sBoff, sBoff))

    def rd(s):
        buf = vBf + (s & 1) * 16
        ab = vAf + (s & 1) * 16
        bo = BOFF + (s % DB) * 4096
        ao = ((s // 2) % DA) * 8192
        ops = []
        for j in range(4):
            ops.append("ds_read_b64_tr_b16 %s, v%d offset:%d" % (vr(buf + j * 4, 2), vTr + j, bo))
            ops.append("ds_read_b64_tr_b16 %s, v%d offset:%d" % (vr(buf + j * 4 + 2, 2), vTr + j, bo + 512))
            ops.append("ds_read_b128 %s, v%d offset:%d" % (vr(ab + j * 4, 4), vXa + (s & 1), ao + j * 2048))
        return ops

    def wait_step(s):
        k.wait_vm(("a", s // 2))
        k.wait_vm(("b", s))

    k.stamp(2)
    ia = ib = 0
    issue_a(0); ia = 1
    issue_b(0); issue_b(1); ib = 2
    if nu > 1:
        issue_a(1); ia = 2
    issue_b(2); ib = 3

    RSLOT = (1 if nu == 7 else 0) * 8192

    def res_loads():
        for p in range(2):
            k.e("s_add_u32 m0, s%d, %d" % (sLB, RSLOT + p * 1024))
            k.e("s_nop 0")
            k.vmem("buffer_load_dwordx4 v%d, %s, 0 offen offset:0 lds" % (vCo + p, sr(S_R, 4)), "res")
    k.stamp(3)
    wait_step(0)
    k.stamp(4)
    for op in rd(0):
        k.e(op)
    for s in range(ns):
        buf = vBf + (s & 1) * 16
        ab = vAf + (s & 1) * 16
        k.e("s_waitcnt lgkmcnt(0)")
        if ib < ns:
            issue_b(ib); ib += 1
        if s % 2 == 0 and ia < nu and (ia < DA or s >= 2 * (ia - DA) + 1):
            issue_a(ia); ia += 1
        if s == (11 if nu == 7 else 2):
            res_loads()
        fill = []
        if s + 1 < ns:
            wait_step(s + 1)
            fill = rd(s + 1)
            if s + 2 == ns and stats and PREF:
                k.e("s_cmp_ge_u32 s%d, 2" % sW)
                k.e("s_cselect_b32 s6, s54, s52")
                k.e("s_cselect_b32 s7, s55, s53")
                srd(k, S_B, 6, 512 * 3584)
                k.e("s_lshr_b32 s3, s2, 3")
                k.e("s_lshl_b32 s3, s3, 1")
                k.e("s_and_b32 s%d, s%d, 1" % (sT, sW))
                k.e("s_add_u32 s3, s3, s%d" % sT)
                k.e("s_mul_i32 s3, s3, %d" % (8 * 3584))
                k.e("s_and_b32 s%d, s2, 3" % sT)
                k.e("s_mul_i32 s%d, s%d, 896" % (sT, sT))
                k.e("s_add_u32 s3, s3, s%d" % sT)
                k.e("v_lshrrev_b32 v%d, 3, v%d" % (vT0, vL))
                k.e("v_mul_u32_u24 v%d, 3584, v%d" % (vT0, vT0))
                k.e("v_and_b32 v%d, 7, v%d" % (vT1, vL))
                k.e("v_min_u32 v%d, 6, v%d" % (vT1, vT1))
                k.e("v_lshl_add_u32 v%d, v%d, 7, v%d" % (vT0, vT1, vT0))
                k.vmem("buffer_load_dword v152, v%d, %s, s3 offen" % (vT0, sr(S_B, 4)), "pf")
        fi = 0
        for t in range(4):
            for j in range(4):
                a = vAcc + (j * 4 + t) * 4
                cin = "0" if s == 0 else vr(a, 4)
                k.e("v_mfma_f32_16x16x32_bf16 %s, %s, %s, %s" % (vr(a, 4), vr(buf + j * 4, 4), vr(ab + t * 4, 4), cin))
                if fi < len(fill):
                    k.e(fill[fi]); fi += 1
        k.stamp(5 + s)
    assert ia == nu and ib == ns
    k.e("v_and_b32 v%d, 15, v%d" % (vT2, vL))
    k.e("v_lshlrev_b32 v%d, 7, v%d" % (vT2, vT2))
    k.e("v_lshrrev_b32 v%d, 4, v%d" % (vT1, vL))
    k.e("v_lshl_add_u32 v%d, v%d, 3, v%d" % (vT2, vT1, vT2))
    k.e("v_add_u32 v%d, s%d, v%d" % (vT2, sLB, vT2))
    vSw, vSr_ = 158, 159
    k.e("v_and_b32 v%d, 15, v%d" % (vSw, vL))
    k.e("v_mul_u32_u24 v%d, 144, v%d" % (vSw, vSw))
    k.e("v_lshl_add_u32 v%d, v%d, 3, v%d" % (vSw, vT1, vSw))
    k.e("v_add_u32 v%d, s%d, v%d" % (vSw, sLB, vSw))
    k.e("v_lshrrev_b32 v%d, 3, v%d" % (vSr_, vL))
    k.e("v_mul_u32_u24 v%d, 144, v%d" % (vSr_, vSr_))
    k.e("v_and_b32 v%d, 7, v%d" % (vT0, vL))
    k.e("v_lshl_add_u32 v%d, v%d, 4, v%d" % (vSr_, vT0, vSr_))
    k.e("v_add_u32 v%d, s%d, v%d" % (vSr_, sLB, vSr_))
    k.wait_vm("res")
    k.stamp(8 + ns)
    for j in range(4):
        k.e("ds_read_b64 %s, v%d offset:%d" % (vr(vRes + 2 * j, 2), vT2, RSLOT + 32 * j))
    k.e("v_lshlrev_b32 v%d, 4, v%d" % (vT0, vL))
    k.e("v_add_u32 v%d, s%d, v%d" % (vT1, sLB, vT0))
    k.e("s_nop 7")
    k.e("s_waitcnt lgkmcnt(0)")
    for t in range(1, 4):
        for j in range(4):
            k.e("ds_write_b128 v%d, %s offset:%d" % (vT1, vr(vAcc + (j * 4 + t) * 4, 4), (t - 1) * 4096 + j * 1024))
    vP = vBf
    vO = vP + 48
    for j in range(4):
        for h in range(2):
            k.e("v_lshlrev_b32 v%d, 16, v%d" % (vO + j * 4 + 2 * h, vRes + 2 * j + h))
            k.e("v_and_b32 v%d, 0xffff0000, v%d" % (vO + j * 4 + 2 * h + 1, vRes + 2 * j + h))
    for j in range(4):
        for r in range(4):
            k.e("v_add_f32 v%d, v%d, v%d" % (vO + j * 4 + r, vO + j * 4 + r, vAcc + (j * 4) * 4 + r))
    k.e("s_waitcnt lgkmcnt(0)")
    k.stamp(9 + ns)
    k.e("s_barrier")
    k.stamp(10 + ns)
    for d in range(1, 4):
        k.e("s_sub_u32 s3, s%d, %d" % (sW, d))
        k.e("s_and_b32 s3, s3, 3")
        k.e("s_mul_i32 s3, s3, %d" % wave_lds)
        k.e("v_add_u32 v%d, s3, v%d" % (vT1, vT0))
        for j in range(4):
            k.e("ds_read_b128 %s, v%d offset:%d" % (vr(vP + ((d - 1) * 4 + j) * 4, 4), vT1, (d - 1) * 4096 + j * 1024))
    for d in range(3):
        k.e("s_waitcnt lgkmcnt(%d)" % (8 - 4 * d))
        for j in range(4):
            for r in range(4):
                k.e("v_add_f32 v%d, v%d, v%d" % (vO + j * 4 + r, vO + j * 4 + r, vP + (d * 4 + j) * 4 + r))
    vPk = vP
    for j in range(4):
        k.e("v_cvt_pk_bf16_f32 v%d, v%d, v%d" % (vPk + 2 * j, vO + 4 * j, vO + 4 * j + 1))
        k.e("v_cvt_pk_bf16_f32 v%d, v%d, v%d" % (vPk + 2 * j + 1, vO + 4 * j + 2, vO + 4 * j + 3))
    k.stamp(11 + ns)
    for j in range(4):
        k.e("ds_write_b64 v%d, %s offset:%d" % (vSw, vr(vPk + 2 * j, 2), 12288 + 32 * j))
    k.e("s_waitcnt lgkmcnt(0)")
    k.e("ds_read_b128 %s, v%d offset:12288" % (vr(vO, 4), vSr_))
    k.e("ds_read_b128 %s, v%d offset:%d" % (vr(vO + 4, 4), vSr_, 12288 + 8 * 144))
    k.e("s_waitcnt lgkmcnt(1)")
    k.vmem("buffer_store_dwordx4 %s, v%d, %s, 0 offen" % (vr(vO, 4), vCo, sr(S_C, 4)), "st")
    k.e("s_waitcnt lgkmcnt(0)")
    k.vmem("buffer_store_dwordx4 %s, v%d, %s, 0 offen" % (vr(vO + 4, 4), vCo + 1, sr(S_C, 4)), "st")
    if stats:
        vS, vQ, vX, vY = vPk + 8, vPk + 9, vPk + 10, vPk + 11
        k.e("v_mov_b32 v%d, 0" % vS)
        k.e("v_mov_b32 v%d, 0" % vQ)
        for i in range(8):
            k.e("v_lshlrev_b32 v%d, 16, v%d" % (vX, vPk + i))
            k.e("v_and_b32 v%d, 0xffff0000, v%d" % (vY, vPk + i))
            k.e("v_add_f32 v%d, v%d, v%d" % (vS, vS, vX))
            k.e("v_fmac_f32 v%d, v%d, v%d" % (vQ, vX, vX))
            k.e("v_add_f32 v%d, v%d, v%d" % (vS, vS, vY))
            k.e("v_fmac_f32 v%d, v%d, v%d" % (vQ, vY, vY))
        for op in ("v_permlane32_swap_b32", "v_permlane16_swap_b32"):
            k.e("v_mov_b32 v%d, v%d" % (vX, vS))
            k.e("v_mov_b32 v%d, v%d" % (vY, vQ))
            k.e("s_nop 1")
            k.e("%s v%d, v%d" % (op, vS, vX))
            k.e("%s v%d, v%d" % (op, vQ, vY))
            k.e("v_add_f32 v%d, v%d, v%d" % (vS, vS, vX))
            k.e("v_add_f32 v%d, v%d, v%d" % (vQ, vQ, vY))
        k.e("v_lshrrev_b32 v%d, 10, v%d" % (vX, vRo))
        k.e("v_lshlrev_b32 v%d, 6, v%d" % (vX, vX))
        k.e("s_lshl_b32 s3, s%d, 3" % sCB)
        k.e("v_add_u32 v%d, s3, v%d" % (vX, vX))
        k.e("v_cmp_gt_u32 vcc, 16, v%d" % vL)
        k.e("s_and_saveexec_b64 s[34:35], vcc")
        k.vmem("buffer_store_dwordx2 %s, v%d, %s, 0 offen" % (vr(vS, 2), vX, sr(S_ST, 4)), "st")
        k.e("s_mov_b64 exec, s[34:35]")
    k.stamp(5 + ns)
    if DIAG:
        k.e("s_waitcnt vmcnt(0)")
    k.stamp(6 + ns)
    k.stamp_rt(7 + ns)
    k.dump(kidx, sW, 12 + ns)
    k.lab("%s_end" % name)
    k.e("s_endpgm")
    return k.text(), nv, 4 * wave_lds


K3_A = 16384
K3_NA = 4
K3_UP = 14464
K3_SLOT = 28800
K3_NS = 3
K3_B0 = K3_NA * K3_A


def gen_k3(name):
    k = K()
    header(k, name)
    S_A, S_B, S_C, S_ST = 8, 12, 16, 20
    sW, sRB, sFB, sT = 28, 29, 30, 31
    sOff = 34
    sM = 35
    sMA = 36
    sOffA = 37
    sK = 38
    sKa = 39
    k.e("s_cmp_ge_u32 s2, 256")
    k.e("s_cbranch_scc1 %s_end" % name)
    k.stamp_rt(0)
    k.stamp(1)
    k.e("s_load_dwordx2 s[4:5], s[0:1], %d" % KA_WS)
    k.e("s_load_dwordx4 s[44:47], s[0:1], %d" % KA_WG)
    k.e("s_load_dwordx2 s[48:49], s[0:1], %d" % KA_WD)
    k.e("v_lshrrev_b32 v2, 6, v0")
    k.e("v_and_b32 v1, 63, v0")
    k.e("v_readfirstlane_b32 s%d, v2" % sW)
    k.e("s_and_b32 s3, s2, 7")
    k.e("s_lshr_b32 s%d, s2, 3" % sT)
    k.e("s_lshr_b32 s%d, s3, 2" % sRB)
    k.e("s_lshl_b32 s%d, s%d, 3" % (sRB, sRB))
    k.e("s_lshr_b32 s%d, s%d, 2" % (sFB, sT))
    k.e("s_add_u32 s%d, s%d, s%d" % (sRB, sRB, sFB))
    k.e("s_and_b32 s%d, s3, 3" % sFB)
    k.e("s_lshl_b32 s%d, s%d, 2" % (sFB, sFB))
    k.e("s_and_b32 s%d, s%d, 3" % (sT, sT))
    k.e("s_add_u32 s%d, s%d, s%d" % (sFB, sFB, sT))
    k.e("s_lshr_b32 s3, s2, 5")
    k.e("s_lshl_b32 s%d, s%d, 1" % (sK, sT))
    k.e("s_add_u32 s%d, s%d, s3" % (sK, sK))
    k.e("s_and_b32 s%d, s%d, 7" % (sK, sK))
    if not ROT:
        k.e("s_mov_b32 s%d, 0" % sK)
    k.e("s_cmp_ge_u32 s%d, 4" % sW)
    k.e("s_cbranch_scc1 %s_loader" % name)

    vL = 1
    vO = 3
    vTr = 4
    vRstd, vNmr = 6, 7
    vT0, vT1, vT2, vT3 = 8, 9, 10, 11
    vN = 12
    vW = 24
    vXa = 80
    vCa = 84
    vAr = 208
    vRp = 90
    vAcc = 96
    nv = 216
    k.e("s_lshl_b32 s3, s%d, 7" % sRB)
    k.e("s_lshl_b32 s%d, s%d, 5" % (sT, sW))
    k.e("s_add_u32 s3, s3, s%d" % sT)
    k.e("v_and_b32 v%d, 31, v%d" % (vT3, vL))
    k.e("v_add_u32 v%d, s3, v%d" % (vT0, vT3))
    k.e("v_lshrrev_b32 v%d, 5, v%d" % (vT1, vL))
    k.e("v_lshlrev_b32 v%d, 6, v%d" % (vT2, vT0))
    k.e("s_mov_b32 s3, 3584")
    k.e("v_mul_lo_u32 v%d, v%d, s3" % (vO, vT0))
    k.e("v_lshl_add_u32 v%d, v%d, 4, v%d" % (vO, vT1, vO))
    k.e("s_mul_i32 s3, s%d, 224" % sFB)
    k.e("v_add_u32 v%d, s3, v%d" % (vO, vO))
    k.e("v_bfe_u32 v%d, v%d, 1, 3" % (vT0, vL))
    k.e("v_xor_b32 v%d, v%d, v%d" % (vT0, vT0, vT1))
    k.e("v_add_u32 v%d, s%d, v%d" % (vT3, sT, vT3))
    k.e("v_lshlrev_b32 v%d, 7, v%d" % (vT3, vT3))
    k.e("v_lshl_add_u32 v%d, v%d, 4, v%d" % (vXa, vT0, vT3))
    for u in range(1, 4):
        k.e("v_xor_b32 v%d, %d, v%d" % (vXa + u, 32 * u, vXa))
    k.e("v_bfe_u32 v%d, v%d, 4, 1" % (vT0, vL))
    k.e("v_mul_u32_u24 v%d, %d, v%d" % (vTr, K3_UP, vT0))
    k.e("v_lshrrev_b32 v%d, 5, v%d" % (vT0, vL))
    k.e("v_bfe_u32 v%d, v%d, 2, 2" % (vT1, vL))
    k.e("v_lshl_add_u32 v%d, v%d, 3, v%d" % (vT0, vT0, vT1))
    k.e("v_mul_u32_u24 v%d, 224, v%d" % (vT0, vT0))
    k.e("v_add_u32 v%d, v%d, v%d" % (vTr, vTr, vT0))
    k.e("v_and_b32 v%d, 1, v%d" % (vT0, vL))
    k.e("v_lshl_add_u32 v%d, v%d, 4, v%d" % (vTr, vT0, vTr))
    k.e("v_bfe_u32 v%d, v%d, 1, 1" % (vT0, vL))
    k.e("v_lshl_add_u32 v%d, v%d, 3, v%d" % (vTr, vT0, vTr))
    k.e("v_add_u32 v%d, %d, v%d" % (vTr, K3_B0, vTr))
    k.e("v_add_u32 v%d, %d, v%d" % (vTr + 1, 2 * K3_SLOT, vTr))
    for i in range(2):
        k.e("v_mov_b32 v%d, 0xbdd2d3e8" % (vCa + i))
        k.e("v_mov_b32 v%d, 0xc0135761" % (vCa + 2 + i))
        k.e("v_mov_b32 v%d, 1.0" % (vCa + 4 + i))
    k.e("s_waitcnt lgkmcnt(0)")
    srd(k, S_C, 4, 2048 * 3584, WS_HH)
    srd(k, S_ST, 4, 2048 * 64, WS_HST)
    for i in range(4):
        k.vmem("buffer_load_dwordx4 %s, v%d, %s, 0 offen offset:%d" % (vr(vW + 4 * i, 4), vT2, sr(S_ST, 4), 16 * i), "st")
    k.wait_vm("st")
    k.e("v_add_f32 v%d, v%d, v%d" % (vT0, vW, vW + 2))
    k.e("v_add_f32 v%d, v%d, v%d" % (vT1, vW + 1, vW + 3))
    for i in range(2, 8):
        k.e("v_add_f32 v%d, v%d, v%d" % (vT0, vT0, vW + 2 * i))
        k.e("v_add_f32 v%d, v%d, v%d" % (vT1, vT1, vW + 2 * i + 1))
    k.e("v_mul_f32 v%d, 0x3b000000, v%d" % (vT0, vT0))
    k.e("v_mul_f32 v%d, 0x3b000000, v%d" % (vT1, vT1))
    k.e("v_fma_f32 v%d, -v%d, v%d, v%d" % (vT1, vT0, vT0, vT1))
    k.e("v_max_f32 v%d, 0, v%d" % (vT1, vT1))
    k.e("v_add_f32 v%d, 0x3727c5ac, v%d" % (vT1, vT1))
    k.e("v_rsq_f32 v%d, v%d" % (vRstd, vT1))
    k.e("s_nop 0")
    k.e("v_mul_f32 v%d, v%d, v%d" % (vNmr, vT0, vRstd))
    k.e("v_sub_f32 v%d, 0, v%d" % (vNmr, vNmr))

    k.e("v_mov_b32 v%d, v%d" % (vRp, vRstd))
    k.e("v_mov_b32 v%d, v%d" % (vRp + 1, vRstd))
    k.e("v_mov_b32 v%d, v%d" % (vRp + 2, vNmr))
    k.e("v_mov_b32 v%d, v%d" % (vRp + 3, vNmr))

    def norm_ops(j):
        src = vAr + (j & 1) * 4
        dst = vN + (j & 1) * 4
        ops = []
        for i in range(4):
            a = vT0 if i & 1 == 0 else vT2
            ops.append("v_lshlrev_b32 v%d, 16, v%d" % (a, src + i))
            ops.append("v_and_b32 v%d, 0xffff0000, v%d" % (a + 1, src + i))
            if PKN:
                ops.append("v_pk_fma_f32 %s, %s, %s, %s" % (vr(a, 2), vr(a, 2), vr(vRp, 2), vr(vRp + 2, 2)))
            else:
                ops.append("v_fma_f32 v%d, v%d, v%d, v%d" % (a, a, vRstd, vNmr))
                ops.append("v_fma_f32 v%d, v%d, v%d, v%d" % (a + 1, a + 1, vRstd, vNmr))
            ops.append("v_cvt_pk_bf16_f32 v%d, v%d, v%d" % (dst + i, a, a + 1))
        return ops

    vXn = 20
    sBs, sAs, sIt = 40, 41, 42

    def tr_rd(j, t):
        u = j % 4
        base = vTr + (1 if j >= 4 else 0)
        buf = vW + (j & 1) * 28
        k.lds("ds_read_b64_tr_b16 %s, v%d offset:%d" % (vr(buf + 4 * t, 2), base, u * 3584 + 32 * t), ("w", j % 4, t))
        k.lds("ds_read_b64_tr_b16 %s, v%d offset:%d" % (vr(buf + 4 * t + 2, 2), base, u * 3584 + 32 * t + 896), ("w", j % 4, t))

    def a_rd(j):
        u = j % 4
        base = (vXn + u) if j >= 4 else (vXa + u)
        k.lds("ds_read_b128 %s, v%d" % (vr(vAr + (j & 1) * 4, 4), base), ("a", j % 4))

    k.e("v_add_u32 v%d, %d, v%d" % (vTr + 1, K3_SLOT, vTr))
    k.e("v_add_u32 v%d, %d, v%d" % (vXn, K3_A, vXa))
    k.e("v_add_u32 v%d, %d, v%d" % (vXn + 1, K3_A, vXa + 1))
    k.e("s_mov_b32 s%d, 1" % sBs)
    k.e("s_mov_b32 s%d, 1" % sAs)
    k.e("s_mov_b32 s%d, 0" % sIt)
    for i in range(112):
        k.e("v_mov_b32 v%d, 0" % (vAcc + i))
    k.stamp(2)
    k.e("s_barrier")
    k.stamp(3)
    a_rd(0)
    k.wait_lds(("a", 0))
    for t in range(7):
        tr_rd(0, t)
        if t == 3:
            a_rd(1)
    for op in norm_ops(0):
        k.e(op)
    k.e("s_nop 0")
    k.lab("%s_loop" % name)
    body_start = len(k.lines)
    lq0 = list(k.lq)
    for j in range(4):
        u = j
        buf = vW + (j & 1) * 28
        boundary = (u == 3)
        nrm = norm_ops(j + 1)
        ni = 0
        pend = list(range(7))
        for t in range(7):
            a = vAcc + 16 * t
            if t % 2 == 0:
                if not k.wait_lds(("w", j, min(t + 1, 6))) and t == 0:
                    k.e("s_nop 0")
            k.e("v_mfma_f32_32x32x16_bf16 %s, %s, %s, %s" % (vr(a, 16), vr(buf + 4 * t, 4), vr(vN + (j & 1) * 4, 4), vr(a, 16)))
            if t == 0:
                k.wait_lds(("a", (j + 1) % 4))
            if boundary and t < 2:
                pass
            else:
                if boundary and t == 2:
                    k.wait_lds_all()
                    k.e("s_barrier")
                nrd = 1 if not boundary else 2
                for _ in range(nrd):
                    if pend:
                        tr_rd(j + 1, pend.pop(0))
            if t == 3:
                a_rd(j + 2)
            for _ in range(V_NRM[t]):
                if ni < len(nrm):
                    k.e(nrm[ni]); ni += 1
        assert not pend and ni == len(nrm), (pend, ni)
        if j < 3:
            k.e("s_nop 0")
    k.e("v_mov_b32 v%d, v%d" % (vTr, vTr + 1))
    k.e("s_add_u32 s%d, s%d, 1" % (sBs, sBs))
    k.e("s_cmp_eq_u32 s%d, %d" % (sBs, K3_NS))
    k.e("s_cselect_b32 s%d, 0, s%d" % (sBs, sBs))
    k.e("s_cselect_b32 s3, %d, %d" % (-(K3_NS - 1) * K3_SLOT & 0xffffffff, K3_SLOT) if False else "s_mov_b32 s3, %d" % K3_SLOT)
    k.e("s_cmov_b32 s3, 0x%x" % ((-(K3_NS - 1) * K3_SLOT) & 0xffffffff))
    k.e("v_add_u32 v%d, s3, v%d" % (vTr + 1, vTr + 1))
    k.e("v_mov_b32 v%d, v%d" % (vXa, vXn))
    k.e("v_mov_b32 v%d, v%d" % (vXa + 1, vXn + 1))
    k.e("v_xor_b32 v%d, 64, v%d" % (vXa + 2, vXn))
    k.e("v_xor_b32 v%d, 96, v%d" % (vXa + 3, vXn))
    k.e("v_add_u32 v%d, %d, v%d" % (vXn, K3_A, vXn))
    k.e("v_and_b32 v%d, 0x%x, v%d" % (vXn, K3_NA * K3_A - 1, vXn))
    k.e("v_xor_b32 v%d, 32, v%d" % (vXn + 1, vXn))
    k.e("s_add_u32 s%d, s%d, 1" % (sIt, sIt))
    k.e("s_cmp_lt_u32 s%d, 8" % sIt)
    k.e("s_cbranch_scc1 %s_loop" % name)
    assert k.lq == lq0[len(lq0) - len(k.lq):] or DIAG, (k.lq, lq0)
    k.wait_lds_all()
    k.stamp(11)
    k.e("s_nop 7")
    k.e("s_nop 7")
    tmp = vW
    for t in range(7):
        a = vAcc + 16 * t
        o = tmp + 8 * (t & 1) + 32
        for half in range(2):
            prs = [(a + 4 * half + 2 * i, a + 8 + 4 * half + 2 * i, tmp + 8 * i, tmp + 8 * i + 2) for i in range(2)]
            for g, u_, x0, x1 in prs:
                k.e("v_pk_mul_f32 %s, %s, %s" % (vr(x0, 2), vr(g, 2), vr(g, 2)))
            for g, u_, x0, x1 in prs:
                k.e("v_pk_fma_f32 %s, %s, %s, %s" % (vr(x1, 2), vr(x0, 2), vr(vCa, 2), vr(vCa + 2, 2)))
            for g, u_, x0, x1 in prs:
                k.e("v_pk_mul_f32 %s, %s, %s" % (vr(x1, 2), vr(x1, 2), vr(g, 2)))
            for g, u_, x0, x1 in prs:
                k.e("v_exp_f32 v%d, v%d" % (x1, x1))
                k.e("v_exp_f32 v%d, v%d" % (x1 + 1, x1 + 1))
            for g, u_, x0, x1 in prs:
                k.e("v_pk_mul_f32 %s, %s, %s" % (vr(x0, 2), vr(g, 2), vr(u_, 2)))
            for g, u_, x0, x1 in prs:
                k.e("v_pk_add_f32 %s, %s, %s" % (vr(x1, 2), vr(x1, 2), vr(vCa + 4, 2)))
            for g, u_, x0, x1 in prs:
                k.e("v_rcp_f32 v%d, v%d" % (x1, x1))
                k.e("v_rcp_f32 v%d, v%d" % (x1 + 1, x1 + 1))
            k.e("s_nop 0")
            for g, u_, x0, x1 in prs:
                k.e("v_pk_mul_f32 %s, %s, %s" % (vr(x0, 2), vr(x0, 2), vr(x1, 2)))
            for i, (g, u_, x0, x1) in enumerate(prs):
                k.e("v_cvt_pk_bf16_f32 v%d, v%d, v%d" % (o + 2 * half + i, x0, x0 + 1))
        k.vmem("buffer_store_dwordx4 %s, v%d, %s, 0 offen offset:%d%s" % (vr(o, 4), vO, sr(S_C, 4), 32 * t, STF), "st")
    k.stamp(12)
    if DIAG:
        k.e("s_waitcnt vmcnt(0)")
    k.stamp(13)
    k.stamp_rt(14)
    k.dump(2, sW, 15)
    k.e("s_endpgm")

    k.lab("%s_loader" % name)
    k.vm = []
    k.lq = []
    vOff = 4
    vAo = 12
    sKA = 40
    k.e("s_and_b32 s%d, s%d, 1" % (sT, sW))
    k.e("s_mul_i32 s3, s%d, 448" % sT)
    k.e("s_mul_i32 s%d, s%d, 224" % (sOff, sFB))
    for p in range(7):
        k.e("v_add_u32 v2, s3, v1")
        if p:
            k.e("v_add_u32 v2, %d, v2" % (64 * p))
        k.e("v_mul_u32_u24 v3, 4682, v2")
        k.e("v_lshrrev_b32 v3, 16, v3")
        k.e("v_mul_u32_u24 v11, 14, v3")
        k.e("v_sub_u32 v2, v2, v11")
        k.e("v_mul_u32_u24 v3, 3584, v3")
        k.e("v_lshl_add_u32 v3, v2, 4, v3")
        k.e("v_add_u32 v%d, s%d, v3" % (vOff + p, sOff))
    k.e("s_sub_u32 s3, s%d, 4" % sW)
    k.e("s_lshl_b32 s%d, s3, 12" % sMA)
    k.e("s_lshl_b32 s3, s3, 5")
    k.e("s_lshl_b32 s%d, s%d, 7" % (sOff, sRB))
    k.e("s_add_u32 s3, s3, s%d" % sOff)
    k.e("v_lshrrev_b32 v2, 3, v1")
    k.e("v_add_u32 v2, s3, v2")
    k.e("v_lshlrev_b32 v2, 10, v2")
    k.e("v_and_b32 v3, 7, v1")
    k.e("v_lshrrev_b32 v11, 4, v1")
    k.e("v_xor_b32 v3, v3, v11")
    k.e("v_lshl_add_u32 v%d, v3, 4, v2" % vAo)
    k.e("v_xor_b32 v3, 4, v3")
    k.e("v_lshl_add_u32 v%d, v3, 4, v2" % (vAo + 1))
    k.e("s_mov_b32 s%d, s%d" % (sKA, sK))
    k.e("s_waitcnt lgkmcnt(0)")
    k.e("s_cmp_ge_u32 s%d, 6" % sW)
    k.e("s_cselect_b32 s6, s46, s44")
    k.e("s_cselect_b32 s7, s47, s45")
    k.e("s_cselect_b32 s%d, %d, 0" % (sM, K3_UP))
    k.e("s_add_u32 s%d, s%d, %d" % (sM, sM, K3_B0))
    srd(k, S_B, 6, 512 * 3584)
    srd(k, S_A, 4, 2 << 20, WS_H)
    k.e("s_mul_i32 s3, s%d, 7168" % sT)
    k.e("s_add_u32 s%d, s%d, s3" % (sM, sM))

    def lda(st, tag):
        k.e("s_lshl_b32 s%d, s%d, 7" % (sKa, sKA))
        k.e("s_add_u32 s%d, s%d, 1" % (sKA, sKA))
        k.e("s_and_b32 s%d, s%d, 7" % (sKA, sKA))
        for p in range(4):
            k.e("s_add_u32 m0, s%d, %d" % (sMA, (st % K3_NA) * K3_A + p * 1024))
            k.e("s_add_u32 s%d, s%d, %d" % (sOffA, sKa, p * 8192))
            k.vmem("buffer_load_dwordx4 v%d, %s, s%d offen lds" % (vAo + (p & 1), sr(S_A, 4), sOffA), tag)

    def ld(st):
        slot = st % K3_NS
        k.e("s_mul_i32 s%d, s%d, %d" % (sOff, sK, 64 * 3584))
        k.e("s_add_u32 s%d, s%d, 1" % (sK, sK))
        k.e("s_and_b32 s%d, s%d, 7" % (sK, sK))
        for p in range(7):
            k.e("s_add_u32 m0, s%d, %d" % (sM, slot * K3_SLOT + p * 1024))
            k.e("s_nop 0")
            k.vmem("buffer_load_dwordx4 v%d, %s, s%d offen lds" % (vOff + p, sr(S_B, 4), sOff), ("s", st))
        if st + 1 < 8:
            lda(st + 1, ("s", st))

    k.stamp(2)
    lda(0, ("s", 0))
    ld(0)
    k.stamp(3)
    for i in range(8):
        if i == 0 and not EARLY:
            ld(1)
        k.wait_vm(("s", i))
        k.stamp(4 + i)
        k.e("s_barrier")
        if i == 0 and EARLY:
            ld(1)
        if i + 2 < 8:
            ld(i + 2)
        if i == 6 and PREF and MAP48:
            srd(k, S_C, 48, 1792 * 1024)
            k.e("s_lshr_b32 s3, s2, 3")
            k.e("s_mul_i32 s3, s3, 56")
            k.e("s_sub_u32 s%d, s%d, 4" % (sOff, sW))
            k.e("s_mul_i32 s%d, s%d, 14" % (sOff, sOff))
            k.e("s_add_u32 s3, s3, s%d" % sOff)
            k.e("s_lshl_b32 s3, s3, 10")
            k.e("v_lshlrev_b32 v2, 7, v1")
            k.vmem("buffer_load_dword v3, v2, %s, s3 offen" % sr(S_C, 4), "pf")
            k.e("s_add_u32 s3, s3, 8192")
            k.e("v_cmp_gt_u32 vcc, 48, v1")
            k.e("s_and_saveexec_b64 s[40:41], vcc")
            k.vmem("buffer_load_dword v3, v2, %s, s3 offen" % sr(S_C, 4), "pf")
            k.e("s_mov_b64 exec, s[40:41]")
    k.e("s_barrier")
    k.stamp(12)
    k.e("s_waitcnt vmcnt(0)")
    k.stamp(13)
    k.stamp_rt(14)
    k.dump(2, sW, 15)
    k.lab("%s_end" % name)
    k.e("s_endpgm")
    return k.text(), nv, K3_B0 + K3_NS * K3_SLOT


import struct


def f32bits(x):
    return struct.unpack("<I", struct.pack("<f", x))[0]


def main():
    from gen_k1 import gen_k1
    parts = []
    descs = []
    launches = []
    t, nv, lds = gen_k1("k1_kernel")
    parts.append(t); descs.append(descriptor("k1_kernel", nv)); launches.append(("k1_kernel", 512, lds))
    if not MERGE:
        t, nv, lds = gen_t2("k2_kernel", 512, 1024, ('ws', WS_O), KA_WO, ('ka', KA_X), ('ws', WS_H), True, 1)
        parts.append(t); descs.append(descriptor("k2_kernel", nv)); launches.append(("k2_kernel", 256, lds))
    t, nv, lds = gen_k3("k3_kernel")
    c0 = -2.0 * 1.4426950408889634 * 0.7978845608028654
    t = t.replace("0xc0135761", "0x%08x" % f32bits(c0)).replace("0xbdd2d3e8", "0x%08x" % f32bits(c0 * 0.044715))
    parts.append(t); descs.append(descriptor("k3_kernel", nv)); launches.append(("k3_kernel", 512, lds))
    t, nv, lds = gen_t2("k4_kernel", 1792, 3584, ('ws', WS_HH), KA_WD, ('ws', WS_H), ('ka', KA_OUT), False, 3)
    parts.append(t); descs.append(descriptor("k4_kernel", nv)); launches.append(("k4_kernel", 256, lds))
    out = []
    for n, b, lds in launches:
        out.append("; @launch kernel=%s grid=(256,1,1) block=(%d,1,1) lds=%d" % (n, b, lds))
    out.append('.amdgcn_target "amdgcn-amd-amdhsa--gfx950"')
    out.append(".text")
    out += parts
    out.append("code_end:")
    out.append('.section .rodata,"a"')
    out += descs
    path = sys.argv[1] if len(sys.argv) > 1 else "cdna_kernels/%s.s" % NAME
    open(path, "w").write("\n".join(out))
    print("wrote", path)


if __name__ == "__main__":
    main()
```

```python
import os
from gen import K, vr, sr, srd, header, KA_X, KA_WQKV, KA_WS, WS_O, f32bits, ROT, KA_WO, KA_WG, KA_WD, PREF, DIAG, EARLY1, WS_H, WS_HST, WS_FLAG, MERGE, KA_OUT, MERGE3

A_BYTES = 80 * 128
W_SUB = 64 * 128
SLOT = A_BYTES + 3 * W_SUB
NS = 4
ST_BASE = NS * SLOT
LDS = ST_BASE + 6 * 320
NEG = -1.0e30


def phase2(k, name, sW, sRB, sHG):
    S_A, S_B, S_R, S_C, S_ST = 8, 12, 16, 84, 88
    sT, sLB, sAoff = 31, 32, 33
    sTile = 48
    vL, vAe, vAo, vRo = 1, 2, 3, 4
    vTr = 5
    vT0, vT1, vT2 = 10, 11, 12
    vXa = 13
    vRes = 16
    vAcc = 24
    vBf = 88
    vAf = 120
    k.vm = ["st"] * 4
    k.lq = []
    srd(k, S_A, 4, 2 << 20, WS_O)
    srd(k, S_R, 44, 2 << 20)
    srd(k, S_C, 4, 2 << 20, WS_H)
    srd(k, S_ST, 4, 2048 * 64, WS_HST)
    k.e("s_lshl_b32 s%d, s%d, 15" % (sLB, sW))
    for t in range(4):
        k.e("s_add_u32 s%d, s%d, %d" % (sT, sW, t))
        k.e("s_and_b32 s%d, s%d, 3" % (sT, sT))
        k.e("s_lshl_b32 s%d, s%d, 14" % (sTile + t, sT))
    k.e("s_lshl_b32 s%d, s%d, 6" % (sT, sRB))
    k.e("v_lshrrev_b32 v%d, 3, v%d" % (vT0, vL))
    k.e("v_add_u32 v%d, s%d, v%d" % (vT1, sT, vT0))
    k.e("v_lshlrev_b32 v%d, 10, v%d" % (vAe, vT1))
    k.e("s_lshl_b32 s3, s%d, 8" % sW)
    k.e("v_add_u32 v%d, s3, v%d" % (vAe, vAe))
    k.e("v_and_b32 v%d, 7, v%d" % (vT0, vL))
    k.e("v_lshrrev_b32 v%d, 4, v%d" % (vT2, vL))
    k.e("v_xor_b32 v%d, v%d, v%d" % (vT0, vT0, vT2))
    k.e("v_xor_b32 v%d, 4, v%d" % (vT1, vT0))
    k.e("v_add_u32 v%d, 8192, v%d" % (vAo, vAe))
    k.e("v_lshl_add_u32 v%d, v%d, 4, v%d" % (vAo, vT1, vAo))
    k.e("v_lshl_add_u32 v%d, v%d, 4, v%d" % (vAe, vT0, vAe))
    k.e("v_and_b32 v%d, 15, v%d" % (vT1, vL))
    k.e("v_lshrrev_b32 v%d, 1, v%d" % (vT0, vT1))
    k.e("v_xor_b32 v%d, v%d, v%d" % (vT0, vT0, vT2))
    k.e("v_lshlrev_b32 v%d, 7, v%d" % (vXa, vT1))
    k.e("v_add_u32 v%d, s%d, v%d" % (vXa, sLB, vXa))
    k.e("v_lshl_add_u32 v%d, v%d, 4, v%d" % (vXa, vT0, vXa))
    k.e("v_xor_b32 v%d, 64, v%d" % (vXa + 1, vXa))
    k.e("s_lshl_b32 s3, s%d, 4" % sW)
    k.e("s_add_u32 s3, s3, s%d" % sT)
    k.e("v_add_u32 v%d, s3, v%d" % (vT1, vT1))
    k.e("v_lshlrev_b32 v%d, 10, v%d" % (vRo, vT1))
    k.e("v_lshl_add_u32 v%d, v%d, 3, v%d" % (vRo, vT2, vRo))
    k.e("s_lshl_b32 s3, s%d, 7" % sHG)
    k.e("v_add_u32 v%d, s3, v%d" % (vRo, vRo))
    vCo, vSw, vSr_, vRr = 156, 158, 159, 160
    k.e("v_lshrrev_b32 v%d, 3, v%d" % (vT0, vL))
    k.e("s_lshl_b32 s%d, s%d, 4" % (sAoff, sW))
    k.e("s_add_u32 s%d, s%d, s%d" % (sAoff, sAoff, sT))
    k.e("v_add_u32 v%d, s%d, v%d" % (vCo, sAoff, vT0))
    k.e("v_lshlrev_b32 v%d, 10, v%d" % (vCo, vCo))
    k.e("v_and_b32 v%d, 7, v%d" % (vT1, vL))
    k.e("v_lshl_add_u32 v%d, v%d, 4, v%d" % (vCo, vT1, vCo))
    k.e("v_add_u32 v%d, s3, v%d" % (vCo, vCo))
    k.e("v_add_u32 v%d, 8192, v%d" % (vCo + 1, vCo))
    k.e("s_lshl_b32 s%d, s%d, 11" % (sAoff, sW))
    k.e("s_add_u32 s%d, s%d, 131072" % (sAoff, sAoff))
    for p in range(2):
        k.e("s_add_u32 m0, s%d, %d" % (sAoff, p * 1024))
        k.e("s_nop 0")
        k.vmem("buffer_load_dwordx4 v%d, %s, 0 offen lds" % (vCo + p, sr(S_R, 4)), "res")
    k.e("v_mul_u32_u24 v%d, 144, v%d" % (vSr_, vT0))
    k.e("v_lshl_add_u32 v%d, v%d, 4, v%d" % (vSr_, vT1, vSr_))
    k.e("v_add_u32 v%d, s%d, v%d" % (vSr_, sLB, vSr_))
    k.e("v_and_b32 v%d, 15, v%d" % (vT0, vL))
    k.e("v_mul_u32_u24 v%d, 144, v%d" % (vSw, vT0))
    k.e("v_lshl_add_u32 v%d, v%d, 3, v%d" % (vSw, vT2, vSw))
    k.e("v_add_u32 v%d, s%d, v%d" % (vSw, sLB, vSw))
    k.e("v_lshlrev_b32 v%d, 7, v%d" % (vRr, vT0))
    k.e("v_lshl_add_u32 v%d, v%d, 3, v%d" % (vRr, vT2, vRr))
    k.e("v_add_u32 v%d, s%d, v%d" % (vRr, sAoff, vRr))
    k.e("v_lshrrev_b32 v%d, 4, v%d" % (vT0, vL))
    k.e("v_bfe_u32 v%d, v%d, 2, 2" % (vT1, vL))
    k.e("v_lshl_add_u32 v%d, v%d, 3, v%d" % (vT2, vT0, vT1))
    k.e("v_lshlrev_b32 v%d, 7, v%d" % (vT2, vT2))
    k.e("v_add_u32 v%d, s%d, v%d" % (vT2, sLB, vT2))
    k.e("v_and_b32 v%d, 3, v%d" % (vTr, vL))
    k.e("v_lshl_add_u32 v%d, v%d, 3, v%d" % (vT2, vTr, vT2))
    k.e("v_bfe_u32 v%d, v%d, 3, 1" % (vT1, vL))
    k.e("v_bfe_u32 v%d, v%d, 4, 1" % (vT0, vL))
    k.e("v_lshl_or_b32 v%d, v%d, 1, v%d" % (vT0, vT0, vT1))
    for j in range(4):
        k.e("v_xor_b32 v%d, %d, v%d" % (vT1, j, vT0))
        k.e("v_lshl_add_u32 v%d, v%d, 5, v%d" % (vTr + j, vT1, vT2))
    k.wait_vm_all()
    k.e("s_barrier")
    k.stamp(15)
    k.e("s_barrier")
    k.stamp(16)
    for j in range(4):
        k.e("ds_read_b64 %s, v%d offset:%d" % (vr(vRes + 2 * j, 2), vRr, 32 * j))
    for u in range(2):
        for t in range(4):
            k.e("s_add_u32 s%d, s%d, %d" % (sAoff, sTile + t, 128 * u))
            for p in range(2):
                k.e("s_add_u32 m0, s%d, %d" % (sLB, u * 8192 + t * 2048 + p * 1024))
                k.e("s_nop 0")
                k.vmem("buffer_load_dwordx4 v%d, %s, s%d offen sc1 lds" % (vAo if p else vAe, sr(S_A, 4), sAoff), ("a", u))

    def rd(s):
        buf = vBf + (s & 1) * 16
        ab = vAf + (s & 1) * 16
        bo = 16384 + s * 4096
        ao = (s // 2) * 8192
        ops = []
        for j in range(4):
            ops.append("ds_read_b64_tr_b16 %s, v%d offset:%d" % (vr(buf + j * 4, 2), vTr + j, bo))
            ops.append("ds_read_b64_tr_b16 %s, v%d offset:%d" % (vr(buf + j * 4 + 2, 2), vTr + j, bo + 512))
            ops.append("ds_read_b128 %s, v%d offset:%d" % (vr(ab + j * 4, 4), vXa + (s & 1), ao + j * 2048))
        return ops

    k.wait_vm(("a", 0))
    for op in rd(0):
        k.e(op)
    for s in range(4):
        buf = vBf + (s & 1) * 16
        ab = vAf + (s & 1) * 16
        k.e("s_waitcnt lgkmcnt(0)")
        fill = []
        if s + 1 < 4:
            k.wait_vm(("a", (s + 1) // 2))
            fill = rd(s + 1)
            if s == 1 and PREF:
                k.e("s_cmp_ge_u32 s%d, 2" % sW)
                k.e("s_cselect_b32 s6, s22, s20")
                k.e("s_cselect_b32 s7, s23, s21")
                srd(k, S_B, 6, 512 * 3584)
                k.e("s_lshr_b32 s3, s2, 3")
                k.e("s_lshl_b32 s3, s3, 1")
                k.e("s_and_b32 s%d, s%d, 1" % (sT, sW))
                k.e("s_add_u32 s3, s3, s%d" % sT)
                k.e("s_mul_i32 s3, s3, %d" % (8 * 3584))
                k.e("s_and_b32 s%d, s2, 3" % sT)
                k.e("s_mul_i32 s%d, s%d, 896" % (sT, sT))
                k.e("s_add_u32 s3, s3, s%d" % sT)
                k.e("v_lshrrev_b32 v%d, 3, v%d" % (vT0, vL))
                k.e("v_mul_u32_u24 v%d, 3584, v%d" % (vT0, vT0))
                k.e("v_and_b32 v%d, 7, v%d" % (vT1, vL))
                k.e("v_min_u32 v%d, 6, v%d" % (vT1, vT1))
                k.e("v_lshl_add_u32 v%d, v%d, 7, v%d" % (vT0, vT1, vT0))
                k.vmem("buffer_load_dword v200, v%d, %s, s3 offen" % (vT0, sr(S_B, 4)), "pf")
        fi = 0
        for t in range(4):
            for j in range(4):
                a = vAcc + (j * 4 + t) * 4
                cin = "0" if s == 0 else vr(a, 4)
                k.e("v_mfma_f32_16x16x32_bf16 %s, %s, %s, %s" % (vr(a, 4), vr(buf + j * 4, 4), vr(ab + t * 4, 4), cin))
                if fi < len(fill):
                    k.e(fill[fi]); fi += 1
    k.stamp(17)
    k.e("v_lshlrev_b32 v%d, 4, v%d" % (vT0, vL))
    k.e("v_add_u32 v%d, s%d, v%d" % (vT1, sLB, vT0))
    k.e("s_nop 7")
    k.e("s_nop 3")
    for t in range(1, 4):
        for j in range(4):
            k.e("ds_write_b128 v%d, %s offset:%d" % (vT1, vr(vAcc + (j * 4 + t) * 4, 4), (t - 1) * 4096 + j * 1024))
    vP = vBf
    vO = vP + 48
    for j in range(4):
        for h in range(2):
            k.e("v_lshlrev_b32 v%d, 16, v%d" % (vO + j * 4 + 2 * h, vRes + 2 * j + h))
            k.e("v_and_b32 v%d, 0xffff0000, v%d" % (vO + j * 4 + 2 * h + 1, vRes + 2 * j + h))
    for j in range(4):
        for r in range(4):
            k.e("v_add_f32 v%d, v%d, v%d" % (vO + j * 4 + r, vO + j * 4 + r, vAcc + (j * 4) * 4 + r))
    k.e("s_waitcnt lgkmcnt(0)")
    k.e("s_barrier")
    for d in range(1, 4):
        k.e("s_sub_u32 s3, s%d, %d" % (sW, d))
        k.e("s_and_b32 s3, s3, 3")
        k.e("s_lshl_b32 s3, s3, 15")
        k.e("v_add_u32 v%d, s3, v%d" % (vT1, vT0))
        for j in range(4):
            k.e("ds_read_b128 %s, v%d offset:%d" % (vr(vP + ((d - 1) * 4 + j) * 4, 4), vT1, (d - 1) * 4096 + j * 1024))
    for d in range(3):
        k.e("s_waitcnt lgkmcnt(%d)" % (8 - 4 * d))
        for j in range(4):
            for r in range(4):
                k.e("v_add_f32 v%d, v%d, v%d" % (vO + j * 4 + r, vO + j * 4 + r, vP + (d * 4 + j) * 4 + r))
    vPk = vP
    for j in range(4):
        k.e("v_cvt_pk_bf16_f32 v%d, v%d, v%d" % (vPk + 2 * j, vO + 4 * j, vO + 4 * j + 1))
        k.e("v_cvt_pk_bf16_f32 v%d, v%d, v%d" % (vPk + 2 * j + 1, vO + 4 * j + 2, vO + 4 * j + 3))
    for j in range(4):
        k.e("ds_write_b64 v%d, %s offset:%d" % (vSw, vr(vPk + 2 * j, 2), 12288 + 32 * j))
    k.e("s_waitcnt lgkmcnt(0)")
    k.e("ds_read_b128 %s, v%d offset:12288" % (vr(vO, 4), vSr_))
    k.e("ds_read_b128 %s, v%d offset:%d" % (vr(vO + 4, 4), vSr_, 12288 + 8 * 144))
    k.e("s_waitcnt lgkmcnt(1)")
    SC = " sc1" if MERGE3 else ""
    k.vmem("buffer_store_dwordx4 %s, v%d, %s, 0 offen%s" % (vr(vO, 4), vCo, sr(S_C, 4), SC), "st")
    k.e("s_waitcnt lgkmcnt(0)")
    k.vmem("buffer_store_dwordx4 %s, v%d, %s, 0 offen%s" % (vr(vO + 4, 4), vCo + 1, sr(S_C, 4), SC), "st")
    vS, vQ, vX, vY = vPk + 8, vPk + 9, vPk + 10, vPk + 11
    k.e("v_mov_b32 v%d, 0" % vS)
    k.e("v_mov_b32 v%d, 0" % vQ)
    for i in range(8):
        k.e("v_lshlrev_b32 v%d, 16, v%d" % (vX, vPk + i))
        k.e("v_and_b32 v%d, 0xffff0000, v%d" % (vY, vPk + i))
        k.e("v_add_f32 v%d, v%d, v%d" % (vS, vS, vX))
        k.e("v_fmac_f32 v%d, v%d, v%d" % (vQ, vX, vX))
        k.e("v_add_f32 v%d, v%d, v%d" % (vS, vS, vY))
        k.e("v_fmac_f32 v%d, v%d, v%d" % (vQ, vY, vY))
    for op in ("v_permlane32_swap_b32", "v_permlane16_swap_b32"):
        k.e("v_mov_b32 v%d, v%d" % (vX, vS))
        k.e("v_mov_b32 v%d, v%d" % (vY, vQ))
        k.e("s_nop 1")
        k.e("%s v%d, v%d" % (op, vS, vX))
        k.e("%s v%d, v%d" % (op, vQ, vY))
        k.e("v_add_f32 v%d, v%d, v%d" % (vS, vS, vX))
        k.e("v_add_f32 v%d, v%d, v%d" % (vQ, vQ, vY))
    k.e("s_lshl_b32 s3, s%d, 3" % sRB)
    k.e("s_add_u32 s3, s3, s%d" % sHG)
    k.e("s_lshl_b32 s3, s3, 9")
    k.e("s_lshl_b32 s%d, s%d, 7" % (sT, sW))
    k.e("s_add_u32 s3, s3, s%d" % sT)
    k.e("v_lshlrev_b32 v%d, 3, v%d" % (vX, vL))
    k.e("v_add_u32 v%d, s3, v%d" % (vX, vX))
    k.e("v_cmp_gt_u32 vcc, 16, v%d" % vL)
    k.e("s_and_saveexec_b64 s[34:35], vcc")
    k.vmem("buffer_store_dwordx2 %s, v%d, %s, 0 offen%s" % (vr(vS, 2), vX, sr(S_ST, 4), SC), "st")
    k.e("s_mov_b64 exec, s[34:35]")
    k.stamp(18)
    if DIAG:
        k.e("s_waitcnt vmcnt(0)")
    k.stamp(19)


def gen_k1(name):
    k = K()
    header(k, name)
    S_A, S_B, S_C = 8, 12, 16
    sW, sRB, sHG, sT = 28, 29, 30, 31
    sOff, sM = 34, 35
    sScale = 36
    sK = 40
    sKb = 41
    k.e("s_cmp_ge_u32 s2, 256")
    k.e("s_cbranch_scc1 %s_end" % name)
    if PREF:
        k.e("s_getpc_b64 s[24:25]")
        k.lab("%s_pc" % name)
        k.e("s_sub_u32 s24, s24, %s_pc-%s" % (name, name))
        k.e("s_subb_u32 s25, s25, 0")
        k.e("s_mov_b32 s26, code_end-%s" % name)
        k.e("s_mov_b32 s27, 0x00020000")
        k.e("v_lshlrev_b32 v3, 7, v0")
        k.e("buffer_load_dword v255, v3, s[24:27], 0 offen")
    k.stamp_rt(0)
    k.stamp(1)
    if MERGE:
        k.e("s_memrealtime s[54:55]")
    k.e("s_load_dwordx4 s[44:47], s[0:1], %d" % KA_X)
    k.e("s_load_dwordx2 s[4:5], s[0:1], %d" % KA_WS)
    k.e("s_load_dwordx2 s[6:7], s[0:1], %d" % KA_WO)
    k.e("s_load_dwordx4 s[20:23], s[0:1], %d" % KA_WG)
    k.e("v_lshrrev_b32 v2, 6, v0")
    k.e("v_and_b32 v1, 63, v0")
    k.e("v_readfirstlane_b32 s%d, v2" % sW)
    k.e("s_and_b32 s3, s2, 7")
    k.e("s_lshr_b32 s%d, s2, 3" % sT)
    k.e("s_lshr_b32 s%d, s3, 1" % sRB)
    k.e("s_lshl_b32 s%d, s%d, 3" % (sRB, sRB))
    k.e("s_lshr_b32 s%d, s%d, 2" % (sHG, sT))
    k.e("s_add_u32 s%d, s%d, s%d" % (sRB, sRB, sHG))
    k.e("s_and_b32 s%d, s3, 1" % sHG)
    k.e("s_lshl_b32 s%d, s%d, 2" % (sHG, sHG))
    k.e("s_and_b32 s%d, s%d, 3" % (sT, sT))
    k.e("s_add_u32 s%d, s%d, s%d" % (sHG, sHG, sT))
    k.e("s_lshr_b32 s3, s2, 5")
    k.e("s_lshl_b32 s%d, s%d, 1" % (sK, sT))
    k.e("s_add_u32 s%d, s%d, s3" % (sK, sK))
    k.e("s_and_b32 s%d, s%d, 7" % (sK, sK))
    if not ROT:
        k.e("s_mov_b32 s%d, 0" % sK)
    k.e("s_waitcnt lgkmcnt(0)")
    k.e("s_cmp_ge_u32 s%d, 4" % sW)
    k.e("s_cbranch_scc1 %s_loader" % name)

    vL = 1
    vXa = 2
    vWa = 6
    vOnes = 8
    vT0, vT1, vT2, vT3 = 12, 13, 14, 15
    vX = 16
    vWf = 56
    vQ = 80
    vKk = 96
    vV = 116
    vCq, vCk, vCv = 136, 140, 144
    vE = 148
    nv = 256
    srd(k, S_C, 4, 2 << 20, WS_O)
    k.e("v_and_b32 v%d, 15, v%d" % (vT0, vL))
    k.e("v_lshrrev_b32 v%d, 4, v%d" % (vT1, vL))
    k.e("v_lshrrev_b32 v%d, 1, v%d" % (vT2, vT0))
    k.e("v_xor_b32 v%d, v%d, v%d" % (vT2, vT2, vT1))
    k.e("v_lshlrev_b32 v%d, 7, v%d" % (vT3, vT0))
    k.e("v_lshl_add_u32 v%d, v%d, 4, v%d" % (vXa, vT2, vT3))
    k.e("v_xor_b32 v%d, 4, v%d" % (vT2, vT2))
    k.e("v_lshl_add_u32 v%d, v%d, 4, v%d" % (vXa + 1, vT2, vT3))
    k.e("v_add_u32 v%d, %d, v%d" % (vXa + 2, 2 * SLOT, vXa))
    k.e("v_add_u32 v%d, %d, v%d" % (vXa + 3, 2 * SLOT, vXa + 1))
    k.e("v_bfe_u32 v%d, v%d, 2, 2" % (vT2, vL))
    k.e("v_lshl_add_u32 v%d, v%d, 3, v%d" % (vT2, vT1, vT2))
    k.e("v_lshlrev_b32 v%d, 7, v%d" % (vT2, vT2))
    k.e("v_and_b32 v%d, 3, v%d" % (vT3, vL))
    k.e("v_lshl_add_u32 v%d, v%d, 3, v%d" % (vT2, vT3, vT2))
    k.e("v_bfe_u32 v%d, v%d, 3, 1" % (vT3, vL))
    k.e("v_bfe_u32 v%d, v%d, 4, 1" % (vT0, vL))
    k.e("v_lshl_or_b32 v%d, v%d, 1, v%d" % (vT0, vT0, vT3))
    k.e("v_xor_b32 v%d, s%d, v%d" % (vT0, sW, vT0))
    k.e("v_lshl_add_u32 v%d, v%d, 5, v%d" % (vWa, vT0, vT2))
    k.e("v_add_u32 v%d, %d, v%d" % (vWa, A_BYTES, vWa))
    k.e("v_add_u32 v%d, %d, v%d" % (vWa + 1, 2 * SLOT, vWa))
    for i in range(4):
        k.e("v_mov_b32 v%d, 0x3f803f80" % (vOnes + i))

    sSl, sIt = 42, 43

    def rd(j, what):
        kk = j % 2
        xb = vX + (j & 1) * 20
        wb = vWf + (j & 1) * 12
        if what[0] == 'w':
            s_ = what[1]
            base = vWa + (1 if j >= 2 else 0)
            k.lds("ds_read_b64_tr_b16 %s, v%d offset:%d" % (vr(wb + 4 * s_, 2), base, s_ * W_SUB + kk * 4096), (kk, what))
            k.lds("ds_read_b64_tr_b16 %s, v%d offset:%d" % (vr(wb + 4 * s_ + 2, 2), base, s_ * W_SUB + kk * 4096 + 512), (kk, what))
        else:
            t = what[1]
            base = vXa + 2 if j >= 2 else vXa + kk
            k.lds("ds_read_b128 %s, v%d offset:%d" % (vr(xb + 4 * t, 4), base, 2048 * t), (kk, what))

    RD_ORDER = [('w', 1), ('x', 0), ('w', 2), ('x', 1), ('w', 0), ('x', 2), ('x', 3), ('x', 4)]
    k.e("v_add_u32 v%d, %d, v%d" % (vXa + 2, SLOT, vXa))
    k.e("v_add_u32 v%d, %d, v%d" % (vWa + 1, SLOT, vWa))
    k.e("s_mov_b32 s%d, 1" % sSl)
    k.e("s_mov_b32 s%d, 0" % sIt)
    for i in range(vQ, vCv + 4):
        k.e("v_mov_b32 v%d, 0" % i)
    k.stamp(2)
    k.e("s_barrier")
    k.stamp(3)
    for w_ in RD_ORDER:
        rd(0, w_)
    k.lab("%s_loop" % name)
    lq0 = list(k.lq)
    for j in range(2):
        xb = vX + (j & 1) * 20
        wb = vWf + (j & 1) * 12
        boundary = (j == 1)
        pend = list(RD_ORDER)
        mf = []
        for t in range(5):
            mf.append((vKk + 4 * t, wb + 4, xb + 4 * t, [('w', 1), ('x', t)]))
            mf.append((vV + 4 * t, xb + 4 * t, wb + 8, [('w', 2), ('x', t)]))
            if t >= 1:
                mf.append((vQ + 4 * (t - 1), wb, xb + 4 * t, [('w', 0), ('x', t)]))
        mf.append((vCq, wb, vOnes, []))
        mf.append((vCk, wb + 4, vOnes, []))
        mf.append((vCv, vOnes, wb + 8, []))
        for n, (d, a_, b_, deps) in enumerate(mf):
            for dp in deps:
                k.wait_lds((j, dp))
            k.e("v_mfma_f32_16x16x32_bf16 %s, %s, %s, %s" % (vr(d, 4), vr(a_, 4), vr(b_, 4), vr(d, 4)))
            if boundary and n < 5:
                continue
            if boundary and n == 5:
                k.wait_lds_all()
                k.e("s_barrier")
            if pend and (boundary or n % 2 == 0 or n >= 8):
                rd(j + 1, pend.pop(0))
        assert not pend
    k.e("v_mov_b32 v%d, v%d" % (vXa, vXa + 2))
    k.e("v_xor_b32 v%d, 64, v%d" % (vXa + 1, vXa + 2))
    k.e("v_mov_b32 v%d, v%d" % (vWa, vWa + 1))
    k.e("s_add_u32 s%d, s%d, 1" % (sSl, sSl))
    k.e("s_cmp_eq_u32 s%d, %d" % (sSl, NS))
    k.e("s_cselect_b32 s%d, 0, s%d" % (sSl, sSl))
    k.e("s_mov_b32 s3, %d" % SLOT)
    k.e("s_cmov_b32 s3, 0x%x" % ((-(NS - 1) * SLOT) & 0xffffffff))
    k.e("v_add_u32 v%d, s3, v%d" % (vXa + 2, vXa + 2))
    k.e("v_add_u32 v%d, s3, v%d" % (vWa + 1, vWa + 1))
    k.e("s_add_u32 s%d, s%d, 1" % (sIt, sIt))
    k.e("s_cmp_lt_u32 s%d, 8" % sIt)
    k.e("s_cbranch_scc1 %s_loop" % name)
    assert k.lq == lq0[len(lq0) - len(k.lq):] or DIAG, (k.lq, lq0)
    k.wait_lds_all()
    k.stamp(11)
    k.e("s_barrier")
    k.stamp(12)
    vSr = vE
    vSn = vE + 5
    vVr = vE + 12
    vVn = vE + 32
    k.e("v_and_b32 v%d, 15, v%d" % (vT0, vL))
    k.e("v_lshlrev_b32 v%d, 2, v%d" % (vT2, vT0))
    k.e("v_lshrrev_b32 v%d, 4, v%d" % (vT1, vL))
    k.e("v_lshlrev_b32 v%d, 4, v%d" % (vT3, vT1))
    k.e("v_add_u32 v%d, %d, v%d" % (vT2, ST_BASE, vT2))
    k.e("v_add_u32 v%d, %d, v%d" % (vT3, ST_BASE, vT3))
    for t in range(5):
        k.e("ds_read_b32 v%d, v%d offset:%d" % (vSr + t, vT2, 640 + 64 * t))
        k.e("ds_read_b32 v%d, v%d offset:%d" % (vSn + t, vT2, 960 + 64 * t))
        k.e("ds_read_b128 %s, v%d offset:%d" % (vr(vVr + 4 * t, 4), vT3, 640 + 64 * t))
        k.e("ds_read_b128 %s, v%d offset:%d" % (vr(vVn + 4 * t, 4), vT3, 960 + 64 * t))
    vBc = vE + 52
    vBp = vE + 56
    vBp1 = vE + 60
    vNeg = vE + 64
    k.e("v_mov_b32 v%d, 0x%08x" % (vNeg, f32bits(NEG)))
    k.e("v_lshlrev_b32 v%d, 2, v%d" % (vT2, vT1))
    k.e("v_sub_u32 v%d, v%d, v%d" % (vT2, vT0, vT2))
    vSgn = vE + 65
    k.e("v_mov_b32 v%d, 0x80000000" % vSgn)
    for r in range(4):
        k.e("v_subrev_u32 v%d, %d, v%d" % (vT3, r, vT2))
        k.e("v_and_b32 v%d, 0x80000001, v%d" % (vT3, vT3))
        k.e("v_cmp_eq_u32 vcc, 0, v%d" % vT3)
        k.e("v_cmp_eq_u32 s[38:39], v%d, v%d" % (vSgn, vT3))
        k.e("s_nop 1")
        k.e("v_cndmask_b32_e64 v%d, v%d, 0, vcc" % (vBc + r, vNeg))
        k.e("v_cndmask_b32_e64 v%d, v%d, 0, s[38:39]" % (vBp + r, vNeg))
    k.e("s_cmp_eq_u32 s%d, 0" % sRB)
    k.e("s_cselect_b64 s[38:39], -1, 0")
    for r in range(4):
        k.e("v_cndmask_b32_e64 v%d, v%d, v%d, s[38:39]" % (vBp1 + r, vBp + r, vNeg))
    k.e("s_mov_b32 s%d, 0x%08x" % (sScale, f32bits(0.25 * 1.4426950408889634)))
    k.e("s_waitcnt lgkmcnt(0)")
    vQb = vX
    vKb = vX + 8
    vVb = vX + 18
    for t in range(5):
        for (acc, cs, dst, on) in ((vQ + 4 * (t - 1), vCq, vQb + 2 * (t - 1), t >= 1), (vKk + 4 * t, vCk, vKb + 2 * t, True)):
            if not on:
                continue
            for r in range(4):
                k.e("v_mul_f32 v%d, v%d, v%d" % (vT0 + r, vSn + t, cs + r))
            for r in range(4):
                k.e("v_fma_f32 v%d, v%d, v%d, v%d" % (vT0 + r, vSr + t, acc + r, vT0 + r))
            k.e("v_cvt_pk_bf16_f32 v%d, v%d, v%d" % (dst, vT0, vT1))
            k.e("v_cvt_pk_bf16_f32 v%d, v%d, v%d" % (dst + 1, vT2, vT3))
        for r in range(4):
            k.e("v_mul_f32 v%d, v%d, v%d" % (vT0 + r, vVn + 4 * t + r, vCv))
        for r in range(4):
            k.e("v_fma_f32 v%d, v%d, v%d, v%d" % (vT0 + r, vVr + 4 * t + r, vV + 4 * t + r, vT0 + r))
        k.e("v_cvt_pk_bf16_f32 v%d, v%d, v%d" % (vVb + 2 * t, vT0, vT1))
        k.e("v_cvt_pk_bf16_f32 v%d, v%d, v%d" % (vVb + 2 * t + 1, vT2, vT3))
    k.e("s_nop 1")
    vS = vQ
    for t in range(4):
        k.e("v_mfma_f32_16x16x16_bf16 %s, %s, %s, 0" % (vr(vS + 8 * t, 4), vr(vKb + 2 * t, 2), vr(vQb + 2 * t, 2)))
        k.e("v_mfma_f32_16x16x16_bf16 %s, %s, %s, 0" % (vr(vS + 8 * t + 4, 4), vr(vKb + 2 * (t + 1), 2), vr(vQb + 2 * t, 2)))
    k.e("s_nop 7")
    k.e("s_nop 1")
    vMx = vE
    vMy = vE + 4
    vSum = vE + 8
    for t in range(4):
        for r in range(4):
            k.e("v_fma_f32 v%d, v%d, s%d, v%d" % (vS + 8 * t + r, vS + 8 * t + r, sScale, (vBp1 if t == 0 else vBp) + r))
            k.e("v_fma_f32 v%d, v%d, s%d, v%d" % (vS + 8 * t + 4 + r, vS + 8 * t + 4 + r, sScale, vBc + r))
        b = vS + 8 * t
        k.e("v_max3_f32 v%d, v%d, v%d, v%d" % (vMx + t, b, b + 1, b + 2))
        k.e("v_max3_f32 v%d, v%d, v%d, v%d" % (vMx + t, vMx + t, b + 3, b + 4))
        k.e("v_max3_f32 v%d, v%d, v%d, v%d" % (vMx + t, vMx + t, b + 5, b + 6))
        k.e("v_max_f32 v%d, v%d, v%d" % (vMx + t, vMx + t, b + 7))
    for op in ("v_permlane32_swap_b32", "v_permlane16_swap_b32"):
        for t in range(4):
            k.e("v_mov_b32 v%d, v%d" % (vMy + t, vMx + t))
        k.e("s_nop 1")
        for t in range(4):
            k.e("%s v%d, v%d" % (op, vMx + t, vMy + t))
        for t in range(4):
            k.e("v_max_f32 v%d, v%d, v%d" % (vMx + t, vMx + t, vMy + t))
    for t in range(4):
        b = vS + 8 * t
        for i in range(8):
            k.e("v_sub_f32 v%d, v%d, v%d" % (b + i, b + i, vMx + t))
        for i in range(8):
            k.e("v_exp_f32 v%d, v%d" % (b + i, b + i))
        k.e("s_nop 0")
        k.e("v_add_f32 v%d, v%d, v%d" % (vSum + t, b, b + 1))
        for i in range(2, 8):
            k.e("v_add_f32 v%d, v%d, v%d" % (vSum + t, vSum + t, b + i))
    vP = vE + 12
    for t in range(4):
        b = vS + 8 * t
        for i in range(4):
            k.e("v_cvt_pk_bf16_f32 v%d, v%d, v%d" % (vP + 4 * t + i, b + 2 * i, b + 2 * i + 1))
    for op in ("v_permlane32_swap_b32", "v_permlane16_swap_b32"):
        for t in range(4):
            k.e("v_mov_b32 v%d, v%d" % (vMy + t, vSum + t))
        k.e("s_nop 1")
        for t in range(4):
            k.e("%s v%d, v%d" % (op, vSum + t, vMy + t))
        for t in range(4):
            k.e("v_add_f32 v%d, v%d, v%d" % (vSum + t, vSum + t, vMy + t))
    vOa = vE + 28
    for t in range(4):
        k.e("v_mfma_f32_16x16x16_bf16 %s, %s, %s, 0" % (vr(vOa + 4 * t, 4), vr(vVb + 2 * t, 2), vr(vP + 4 * t, 2)))
    for t in range(4):
        k.e("v_mfma_f32_16x16x16_bf16 %s, %s, %s, %s" % (vr(vOa + 4 * t, 4), vr(vVb + 2 * (t + 1), 2), vr(vP + 4 * t + 2, 2), vr(vOa + 4 * t, 4)))
    for t in range(4):
        k.e("v_rcp_f32 v%d, v%d" % (vSum + t, vSum + t))
    if MERGE:
        k.e("v_and_b32 v%d, 15, v%d" % (vT0, vL))
        k.e("v_mul_u32_u24 v%d, 144, v%d" % (vT0, vT0))
        k.e("v_lshrrev_b32 v%d, 4, v%d" % (vT1, vL))
        k.e("v_lshl_add_u32 v%d, v%d, 3, v%d" % (vT0, vT1, vT0))
        k.e("s_lshl_b32 s3, s%d, 5" % sW)
        k.e("v_add_u32 v%d, s3, v%d" % (vT0, vT0))
        k.e("s_nop 7")
        for t in range(4):
            for r in range(4):
                k.e("v_mul_f32 v%d, v%d, v%d" % (vOa + 4 * t + r, vOa + 4 * t + r, vSum + t))
            k.e("v_cvt_pk_bf16_f32 v%d, v%d, v%d" % (vP + 2 * t, vOa + 4 * t, vOa + 4 * t + 1))
            k.e("v_cvt_pk_bf16_f32 v%d, v%d, v%d" % (vP + 2 * t + 1, vOa + 4 * t + 2, vOa + 4 * t + 3))
            k.e("ds_write_b64 v%d, %s offset:%d" % (vT0, vr(vP + 2 * t, 2), 16 * 144 * t))
        k.e("v_lshrrev_b32 v%d, 3, v%d" % (vT1, vL))
        k.e("v_mul_u32_u24 v%d, 144, v%d" % (vT1, vT1))
        k.e("v_and_b32 v%d, 7, v%d" % (vT3, vL))
        k.e("v_lshl_add_u32 v%d, v%d, 4, v%d" % (vT1, vT3, vT1))
        k.e("s_mul_i32 s3, s%d, %d" % (sW, 16 * 144))
        k.e("v_add_u32 v%d, s3, v%d" % (vT1, vT1))
        k.e("v_lshrrev_b32 v%d, 3, v%d" % (vT2, vL))
        k.e("s_lshl_b32 s3, s%d, 6" % sRB)
        k.e("s_lshl_b32 s%d, s%d, 4" % (sT, sW))
        k.e("s_add_u32 s3, s3, s%d" % sT)
        k.e("v_add_u32 v%d, s3, v%d" % (vT2, vT2))
        k.e("v_lshlrev_b32 v%d, 10, v%d" % (vT2, vT2))
        k.e("v_and_b32 v%d, 7, v%d" % (vT3, vL))
        k.e("v_lshl_add_u32 v%d, v%d, 4, v%d" % (vT2, vT3, vT2))
        k.e("s_lshl_b32 s3, s%d, 7" % sHG)
        k.e("v_add_u32 v%d, s3, v%d" % (vT2, vT2))
        k.e("s_waitcnt lgkmcnt(0)")
        k.e("s_barrier")
        k.e("ds_read_b128 %s, v%d" % (vr(vOa, 4), vT1))
        k.e("ds_read_b128 %s, v%d offset:%d" % (vr(vOa + 4, 4), vT1, 8 * 144))
        k.e("s_mov_b32 s3, 8192")
        k.e("s_waitcnt lgkmcnt(1)")
        k.vmem("buffer_store_dwordx4 %s, v%d, %s, 0 offen sc1" % (vr(vOa, 4), vT2, sr(S_C, 4)), "st")
        k.e("s_waitcnt lgkmcnt(0)")
        k.vmem("buffer_store_dwordx4 %s, v%d, %s, s3 offen sc1" % (vr(vOa + 4, 4), vT2, sr(S_C, 4)), "st")
    else:
        k.e("v_and_b32 v%d, 15, v%d" % (vT0, vL))
        k.e("s_lshl_b32 s3, s%d, 6" % sRB)
        k.e("v_add_u32 v%d, s3, v%d" % (vT0, vT0))
        k.e("v_lshlrev_b32 v%d, 10, v%d" % (vT0, vT0))
        k.e("v_lshrrev_b32 v%d, 4, v%d" % (vT1, vL))
        k.e("v_lshl_add_u32 v%d, v%d, 3, v%d" % (vT0, vT1, vT0))
        k.e("s_lshl_b32 s3, s%d, 2" % sHG)
        k.e("s_add_u32 s3, s3, s%d" % sW)
        k.e("s_lshl_b32 s3, s3, 5")
        k.e("v_add_u32 v%d, s3, v%d" % (vT0, vT0))
        k.e("s_nop 3")
        for t in range(4):
            for r in range(4):
                k.e("v_mul_f32 v%d, v%d, v%d" % (vOa + 4 * t + r, vOa + 4 * t + r, vSum + t))
            k.e("v_cvt_pk_bf16_f32 v%d, v%d, v%d" % (vP + 2 * t, vOa + 4 * t, vOa + 4 * t + 1))
            k.e("v_cvt_pk_bf16_f32 v%d, v%d, v%d" % (vP + 2 * t + 1, vOa + 4 * t + 2, vOa + 4 * t + 3))
            k.e("s_mov_b32 s3, %d" % (t * 16384))
            k.vmem("buffer_store_dwordx2 %s, v%d, %s, s3 offen%s" % (vr(vP + 2 * t, 2), vT0, sr(S_C, 4), " sc1" if MERGE else ""), "st")
    k.stamp(13)
    if MERGE:
        phase2(k, name, sW, sRB, sHG)
    k.stamp_rt(14)
    if MERGE3:
        k.e("s_waitcnt vmcnt(0)")
        k.e("s_barrier")
        if DIAG:
            k.e("v_mov_b32 v250, v0")
    k.dump(0, sW, 15 if not MERGE else 20)
    if MERGE3:
        if DIAG:
            k.e("v_mov_b32 v0, v250")
        k.e("s_branch k3_kernel")
    else:
        k.e("s_endpgm")

    k.lab("%s_loader" % name)
    vRa = 10
    vOne = 12
    vF = 16
    vG = 28
    vR = 40
    k.e("s_and_b32 s%d, s%d, 1" % (sT, sW))
    k.e("s_lshl_b32 s3, s%d, 2" % sT)
    k.e("v_and_b32 v2, 15, v1")
    k.e("v_lshrrev_b32 v3, 4, v1")
    k.e("v_lshrrev_b32 v9, 1, v2")
    k.e("v_xor_b32 v9, v9, v3")
    k.e("v_xor_b32 v9, s3, v9")
    k.e("v_lshlrev_b32 v2, 7, v2")
    k.e("v_lshl_add_u32 v%d, v9, 4, v2" % vRa)
    k.e("v_add_u32 v%d, %d, v%d" % (vRa + 1, 2 * SLOT, vRa))
    for i in range(4):
        k.e("v_mov_b32 v%d, 0x3f803f80" % (vOne + i))

    def stats_stage(i, tiles):
        slot = i % NS
        for n, t in enumerate(tiles):
            k.lds("ds_read_b128 %s, v%d offset:%d" % (vr(vF + 4 * n, 4), vRa + slot // 2, (slot % 2) * SLOT + 2048 * t), ("f", n))
        for n, t in enumerate(tiles):
            k.wait_lds(("f", n))
            k.e("v_mfma_f32_16x16x32_bf16 %s, %s, %s, %s" % (vr(vG + 4 * n, 4), vr(vF + 4 * n, 4), vr(vF + 4 * n, 4), "0" if i == 0 else vr(vG + 4 * n, 4)))
            k.e("v_mfma_f32_16x16x32_bf16 %s, %s, %s, %s" % (vr(vR + 4 * n, 4), vr(vF + 4 * n, 4), vr(vOne, 4), "0" if i == 0 else vr(vR + 4 * n, 4)))

    def stats_finish(tiles):
        k.e("v_and_b32 v2, 3, v1")
        k.e("v_cmp_eq_u32 s[48:49], 1, v2")
        k.e("v_cmp_eq_u32 s[50:51], 2, v2")
        k.e("v_cmp_eq_u32 s[52:53], 3, v2")
        k.e("v_bfe_u32 v2, v1, 2, 2")
        k.e("v_lshrrev_b32 v3, 4, v1")
        k.e("v_cmp_eq_u32 vcc, v2, v3")
        k.e("s_mul_i32 s3, s%d, 1280" % sT)
        k.e("s_add_u32 s3, s3, %d" % ST_BASE)
        k.e("v_and_b32 v2, 15, v1")
        k.e("v_lshlrev_b32 v2, 2, v2")
        k.e("v_add_u32 v2, s3, v2")
        k.e("s_nop 3")
        for n, t in enumerate(tiles):
            for base in (vG + 4 * n, vR + 4 * n):
                k.e("v_cndmask_b32_e64 v%d, v%d, v%d, s[48:49]" % (base, base, base + 1))
                k.e("v_cndmask_b32_e64 v%d, v%d, v%d, s[50:51]" % (base, base, base + 2))
                k.e("v_cndmask_b32_e64 v%d, v%d, v%d, s[52:53]" % (base, base, base + 3))
        k.e("s_and_saveexec_b64 s[38:39], vcc")
        for n, t in enumerate(tiles):
            k.e("ds_write_b32 v2, v%d offset:%d" % (vR + 4 * n, 64 * t))
            k.e("ds_write_b32 v2, v%d offset:%d" % (vG + 4 * n, 320 + 64 * t))
        k.e("s_mov_b64 exec, s[38:39]")
        k.e("s_waitcnt lgkmcnt(0)")
        k.e("s_barrier")

    k.e("s_cmp_ge_u32 s%d, 6" % sW)
    k.e("s_cbranch_scc1 %s_loadw" % name)
    k.e("s_cmp_eq_u32 s%d, 5" % sW)
    k.e("s_cbranch_scc1 %s_pref" % name)
    k.vm = []
    k.lq = []
    srd(k, S_A, 44, 2 << 20)
    vOff = 4
    vPo = 56
    k.e("s_lshl_b32 s3, s%d, 6" % sRB)
    k.e("s_sub_u32 s3, s3, 16")
    k.e("v_lshrrev_b32 v2, 3, v1")
    k.e("v_add_u32 v2, s3, v2")
    k.e("v_and_b32 v3, 7, v1")
    k.e("v_lshrrev_b32 v9, 4, v1")
    k.e("v_xor_b32 v3, v3, v9")
    for p in range(10):
        k.e("v_add_u32 v9, %d, v2" % (8 * p))
        k.e("v_max_i32 v9, 0, v9")
        k.e("v_lshlrev_b32 v9, 10, v9")
        if p & 1:
            k.e("v_xor_b32 v%d, 4, v3" % (vPo + p))
            k.e("v_lshl_add_u32 v%d, v%d, 4, v9" % (vPo + p, vPo + p))
        else:
            k.e("v_lshl_add_u32 v%d, v3, 4, v9" % (vPo + p))

    def lda(st):
        slot = st % NS
        k.e("s_lshl_b32 s%d, s%d, 7" % (sOff, sK))
        k.e("s_add_u32 s%d, s%d, 1" % (sK, sK))
        k.e("s_and_b32 s%d, s%d, 7" % (sK, sK))
        for p in range(10):
            k.e("s_mov_b32 m0, %d" % (slot * SLOT + p * 1024))
            k.e("s_nop 0")
            k.vmem("buffer_load_dwordx4 v%d, %s, s%d offen lds" % (vPo + p, sr(S_A, 4), sOff), ("s", st))

    k.stamp(2)
    lda(0)
    if not EARLY1:
        lda(1)
    k.stamp(3)
    for i in range(8):
        k.wait_vm(("s", i))
        k.stamp(4 + i)
        k.e("s_barrier")
        if i == 0 and EARLY1:
            lda(1)
        if i + 2 < 8:
            lda(i + 2)
        stats_stage(i, [0, 1, 2])
    stats_finish([0, 1, 2])
    k.e("s_branch %s_fin" % name)
    k.lab("%s_pref" % name)
    k.vm = []
    k.lq = []
    TLBI = int(os.environ.get("TLBI", "-1"))

    def tlb_touch():
        k.e("s_load_dwordx2 s[26:27], s[0:1], %d" % KA_OUT)
        srd(k, S_A, 4, 14 << 20)
        k.e("v_lshlrev_b32 v4, 16, v1")
        for n in range(4):
            k.e("s_mov_b32 s3, %d" % (n * (4 << 20)))
            k.vmem("buffer_load_dword v58, v4, %s, s3 offen" % sr(S_A, 4), "pf")
        k.e("s_waitcnt lgkmcnt(0)")
        srd(k, S_A, 26, 2 << 20)
        k.vmem("buffer_load_dword v58, v4, %s, 0 offen" % sr(S_A, 4), "pf")
    k.stamp(2)
    k.stamp(3)
    for i in range(8):
        k.stamp(4 + i)
        k.e("s_barrier")
        if i == TLBI:
            tlb_touch()
        if i == int(os.environ.get("PFI", "6")) and PREF:
            srd(k, S_A, 6, 512 * 1024)
            k.e("v_lshrrev_b32 v4, 2, v1")
            k.e("v_lshlrev_b32 v4, 10, v4")
            k.e("v_and_b32 v3, 3, v1")
            k.e("v_lshl_add_u32 v4, v3, 7, v4")
            k.e("s_lshr_b32 s%d, s2, 3" % sOff)
            k.e("s_lshl_b32 s%d, s%d, 14" % (sOff, sOff))
            k.e("s_and_b32 s%d, s2, 1" % sM)
            k.e("s_lshl_b32 s%d, s%d, 9" % (sM, sM))
            k.e("s_add_u32 s%d, s%d, s%d" % (sOff, sOff, sM))
            k.vmem("buffer_load_dword v56, v4, %s, s%d offen" % (sr(S_A, 4), sOff), "pf")
            k.e("v_lshlrev_b32 v2, 7, v1")
            k.e("s_mul_i32 s3, s2, 7168")
            k.e("v_cmp_gt_u32 vcc, 56, v1")
            k.e("s_and_saveexec_b64 s[38:39], vcc")
            for ptr in ((20, 22) if not os.environ.get("NOCOLDGU") else ()):
                srd(k, S_B, ptr, 512 * 3584)
                k.vmem("buffer_load_dword v57, v2, %s, s3 offen" % sr(S_B, 4), "pf")
            k.e("s_mov_b64 exec, s[38:39]")
        stats_stage(i, [0, 1, 2])
    stats_finish([0, 1, 2])
    k.lab("%s_fin" % name)
    k.e("s_mul_i32 s3, s%d, 160" % sT)
    k.e("s_add_u32 s3, s3, %d" % ST_BASE)
    k.e("v_lshlrev_b32 v2, 2, v1")
    k.e("v_add_u32 v2, s3, v2")
    k.e("v_cmp_gt_u32 vcc, 40, v1")
    k.e("s_and_saveexec_b64 s[38:39], vcc")
    k.e("ds_read_b32 v3, v2")
    k.e("ds_read_b32 v9, v2 offset:320")
    k.e("ds_read_b32 v4, v2 offset:1280")
    k.e("ds_read_b32 v5, v2 offset:1600")
    k.e("s_waitcnt lgkmcnt(0)")
    k.e("v_add_f32 v3, v3, v4")
    k.e("v_add_f32 v9, v9, v5")
    k.e("v_mul_f32 v3, 0x3b000000, v3")
    k.e("v_mul_f32 v9, 0x3b000000, v9")
    k.e("v_fma_f32 v9, -v3, v3, v9")
    k.e("v_max_f32 v9, 0, v9")
    k.e("v_add_f32 v9, 0x3727c5ac, v9")
    k.e("v_rsq_f32 v9, v9")
    k.e("s_nop 0")
    k.e("v_mul_f32 v3, v3, v9")
    k.e("v_sub_f32 v3, 0, v3")
    k.e("ds_write_b32 v2, v9 offset:640")
    k.e("ds_write_b32 v2, v3 offset:960")
    k.e("s_waitcnt lgkmcnt(0)")
    k.e("s_mov_b64 exec, s[38:39]")
    k.e("s_barrier")
    k.stamp(12)
    if MERGE:
        k.e("s_barrier")
        k.e("s_barrier")
        k.e("s_cmp_eq_u32 s%d, 4" % sW)
        k.e("s_cbranch_scc1 %s_nopoll" % name)
        srd(k, S_A, 4, 256 * 128, WS_FLAG)
        k.e("s_memrealtime s[56:57]")
        k.e("s_lshl_b32 s3, s%d, 3" % sRB)
        k.e("s_add_u32 s%d, s3, s%d" % (sOff, sHG))
        k.e("s_lshl_b32 s%d, s%d, 7" % (sOff, sOff))
        k.e("v_mov_b32 v2, s%d" % sOff)
        k.e("s_lshl_b32 s3, s3, 7")
        k.e("v_and_b32 v3, 7, v1")
        k.e("v_lshlrev_b32 v3, 7, v3")
        k.e("v_add_u32 v3, s3, v3")
        k.e("s_waitcnt lgkmcnt(0)")
        k.e("v_mov_b32 v4, s56")
        k.e("v_mov_b32 v5, s57")
        k.e("v_xor_b32 v6, 0x5bd1e995, v4")
        k.e("v_xor_b32 v7, 0x9e3779b9, v5")
        k.e("v_cmp_eq_u32 vcc, 0, v1")
        k.e("s_and_saveexec_b64 s[38:39], vcc")
        k.e("buffer_store_dwordx4 v[4:7], v2, %s, 0 offen sc1" % sr(S_A, 4))
        k.e("s_mov_b64 exec, s[38:39]")
        k.e("s_sub_u32 s54, s54, 200")
        k.e("s_subb_u32 s55, s55, 0")
        k.e("s_mov_b32 s%d, 0" % sM)
        k.lab("%s_poll" % name)
        k.e("buffer_load_dwordx4 v[8:11], v3, %s, 0 offen sc1" % sr(S_A, 4))
        k.e("s_waitcnt vmcnt(0)")
        k.e("v_xor_b32 v10, v10, v8")
        k.e("v_xor_b32 v11, v11, v9")
        k.e("v_subrev_co_u32 v8, vcc, s54, v8")
        k.e("v_mov_b32 v12, s55")
        k.e("s_nop 0")
        k.e("v_subb_co_u32 v9, vcc, v9, v12, vcc")
        k.e("v_xor_b32 v10, 0x5bd1e995, v10")
        k.e("v_xor_b32 v11, 0x9e3779b9, v11")
        k.e("v_lshrrev_b32 v8, 20, v8")
        k.e("v_or_b32 v8, v8, v9")
        k.e("v_or3_b32 v8, v8, v10, v11")
        k.e("v_cmp_eq_u32 vcc, 0, v8")
        k.e("s_add_u32 s%d, s%d, 1" % (sM, sM))
        k.e("s_cmp_eq_u64 vcc, exec")
        k.e("s_cbranch_scc1 %s_nopoll" % name)
        k.e("s_cmp_lt_u32 s%d, 0x10000" % sM)
        k.e("s_cbranch_scc1 %s_poll" % name)
        k.lab("%s_nopoll" % name)
        k.e("s_barrier")
        k.e("s_barrier")
    if MERGE3:
        k.e("s_barrier")
        k.e("s_cmp_eq_u32 s%d, 4" % sW)
        k.e("s_cbranch_scc1 k3_kernel")
        srd(k, S_A, 4, 256 * 128, WS_FLAG + 32768)
        k.e("s_memrealtime s[56:57]")
        k.e("s_waitcnt lgkmcnt(0)")
        k.e("v_mov_b32 v4, s56")
        k.e("v_mov_b32 v5, s57")
        k.e("v_xor_b32 v6, 0x5bd1e995, v4")
        k.e("v_xor_b32 v7, 0x9e3779b9, v5")
        k.e("v_cmp_eq_u32 vcc, 0, v1")
        k.e("s_and_saveexec_b64 s[38:39], vcc")
        k.e("buffer_store_dwordx4 v[4:7], v2, %s, 0 offen sc1" % sr(S_A, 4))
        k.e("s_mov_b64 exec, s[38:39]")
        k.e("s_branch k3_kernel")
    k.e("s_waitcnt vmcnt(0)")
    k.stamp(13)
    k.stamp_rt(14)
    k.dump(0, sW, 15)
    k.e("s_endpgm")

    k.lab("%s_loadw" % name)
    k.vm = []
    k.lq = []
    srd(k, S_B, 46, 512 * 3072)
    vWe, vWo = 4, 5
    k.e("v_lshrrev_b32 v2, 3, v1")
    k.e("v_mul_u32_u24 v%d, 3072, v2" % vWe)
    k.e("v_and_b32 v2, 1, v1")
    k.e("v_lshl_add_u32 v%d, v2, 4, v%d" % (vWe, vWe))
    k.e("s_lshl_b32 s3, s%d, 7" % sHG)
    k.e("v_add_u32 v%d, s3, v%d" % (vWe, vWe))
    k.e("v_bfe_u32 v2, v1, 1, 2")
    k.e("v_bfe_u32 v3, v1, 4, 1")
    k.e("v_xor_b32 v2, v2, v3")
    k.e("v_xor_b32 v3, 2, v2")
    k.e("v_lshl_add_u32 v%d, v3, 5, v%d" % (vWo, vWe))
    k.e("v_lshl_add_u32 v%d, v2, 5, v%d" % (vWe, vWe))
    k.e("s_mul_i32 s%d, s%d, %d" % (sM, sT, 12 * 1024))
    k.e("s_add_u32 s%d, s%d, %d" % (sM, sM, A_BYTES))
    sG = 82
    for p in range(12):
        p0, p1 = p, 12 + p
        g0 = (p0 // 8) * 1024 + (p0 % 8) * 8 * 3072
        g1 = (p1 // 8) * 1024 + (p1 % 8) * 8 * 3072
        k.e("s_cmp_eq_u32 s%d, 0" % sT)
        k.e("s_mov_b32 s%d, %d" % (sG + p, g1))
        k.e("s_cmov_b32 s%d, %d" % (sG + p, g0))

    def ldw(st):
        slot = st % NS
        k.e("s_mul_i32 s%d, s%d, %d" % (sKb, sK, 64 * 3072))
        k.e("s_add_u32 s%d, s%d, 1" % (sK, sK))
        k.e("s_and_b32 s%d, s%d, 7" % (sK, sK))
        for p in range(12):
            k.e("s_add_u32 m0, s%d, %d" % (sM, slot * SLOT + p * 1024))
            k.e("s_add_u32 s%d, s%d, s%d" % (sOff, sG + p, sKb))
            k.vmem("buffer_load_dwordx4 v%d, %s, s%d offen lds" % (vWo if p & 1 else vWe, sr(S_B, 4), sOff), ("s", st))

    k.stamp(2)
    ldw(0)
    if not EARLY1:
        ldw(1)
    k.stamp(3)
    for i in range(8):
        k.wait_vm(("s", i))
        k.stamp(4 + i)
        k.e("s_barrier")
        if i == 0 and EARLY1:
            ldw(1)
        stats_stage(i, [3, 4])
        if i + 2 < 8:
            ldw(i + 2)
    stats_finish([3, 4])
    k.e("s_barrier")
    k.stamp(12)
    if MERGE:
        srd(k, S_B, 6, 512 * 1024)
        k.e("v_lshrrev_b32 v2, 3, v1")
        k.e("v_lshlrev_b32 v%d, 10, v2" % vWe)
        k.e("v_and_b32 v2, 1, v1")
        k.e("v_lshl_add_u32 v%d, v2, 4, v%d" % (vWe, vWe))
        k.e("s_lshl_b32 s3, s%d, 7" % sHG)
        k.e("v_add_u32 v%d, s3, v%d" % (vWe, vWe))
        k.e("v_bfe_u32 v2, v1, 1, 2")
        k.e("v_bfe_u32 v3, v1, 4, 1")
        k.e("v_xor_b32 v2, v2, v3")
        k.e("v_xor_b32 v3, 2, v2")
        k.e("v_lshl_add_u32 v%d, v3, 5, v%d" % (vWo, vWe))
        k.e("v_lshl_add_u32 v%d, v2, 5, v%d" % (vWe, vWe))
        k.e("s_lshl_b32 s%d, s%d, 18" % (sOff, sT))
        k.e("s_lshl_b32 s%d, s%d, 16" % (sM, sT))
        k.e("s_barrier")
        k.e("s_barrier")
        for ww in range(2):
            for pc in range(16):
                k.e("s_add_u32 m0, s%d, %d" % (sM, ww * 32768 + 16384 + pc * 1024))
                k.e("s_nop 0")
                k.vmem("buffer_load_dwordx4 v%d, %s, s%d offen lds" % (vWo if pc & 1 else vWe, sr(S_B, 4), sOff), "wo")
                k.e("s_add_u32 s%d, s%d, 8192" % (sOff, sOff))
        k.e("s_waitcnt vmcnt(0)")
        k.e("s_barrier")
        k.e("s_barrier")
        if MERGE3:
            k.e("s_barrier")
            k.e("s_branch k3_kernel")
    k.e("s_waitcnt vmcnt(0)")
    k.stamp(13)
    k.stamp_rt(14)
    k.dump(0, sW, 15)
    k.lab("%s_end" % name)
    k.e("s_endpgm")
    return k.text(), nv, LDS
```

```python
import sys

import os
import re
DIAG = bool(os.environ.get("DIAG"))
ROT = not os.environ.get("NOROT")
PREF = not os.environ.get("NOPREF")
PREF2 = bool(os.environ.get("PREF2"))
MAP48 = not os.environ.get("NOMAP48")
PKN = bool(os.environ.get("PKN"))
MERGE = not os.environ.get("NOMERGE")
MERGE3 = MERGE and not os.environ.get("NOMERGE3")
MERGE4 = MERGE3 and not os.environ.get("NOMERGE4")
NPRE = int(os.environ.get("NPRE", "3"))
RESLATE = not os.environ.get("NORESLATE")
RESK = int(os.environ.get("RESK", "3"))
EARLY = bool(os.environ.get("EARLY"))
EARLY1 = bool(os.environ.get("EARLY1"))
STF = os.environ.get("STF", "")
STF2 = os.environ.get("STF2", "")
V_WAIT = os.environ.get("V_WAIT", "2")
V_ARD = int(os.environ.get("V_ARD", "3"))
V_NRM = [int(c) for c in os.environ.get("V_NRM", "3333332")]
NAME = "sequential_preLN__sliding_local_dilated__glu_gated_geglu__prompt"

WS_O = 0
WS_H = 2 << 20
WS_HH = 4 << 20
WS_HST = 12 << 20
WS_FLAG = 13 << 20

KA_X, KA_WQKV, KA_WO, KA_BX, KA_WG, KA_WU, KA_WD, KA_OUT, KA_DBG, KA_WS = [8 * i for i in range(10)]


class K:
    def __init__(self):
        self.lines = []
        self.vm = []
        self.lq = []

    def e(self, s):
        m = re.search(r"offset:(\d+)", s)
        if m:
            lim = 4096 if s.startswith("buffer_") else 65536
            assert int(m.group(1)) < lim, s
        self.lines.append("  " + s)

    def lab(self, s):
        self.lines.append(s + ":")

    def c(self, s):
        self.lines.append("  ; " + s)

    def vmem(self, s, tag):
        self.e(s)
        self.vm.append(tag)

    def wait_vm(self, tag):
        idx = max((i for i, t in enumerate(self.vm) if t == tag), default=None)
        if idx is None:
            return
        n = len(self.vm) - 1 - idx
        assert n <= 63, n
        self.e("s_waitcnt vmcnt(%d)" % n)
        self.vm = self.vm[idx + 1:]

    def lds(self, s, tag):
        self.e(s)
        self.lq.append(tag)

    def wait_lds(self, tag):
        idx = max((i for i, t in enumerate(self.lq) if t == tag), default=None)
        if idx is None:
            return False
        n = len(self.lq) - 1 - idx
        if n > 15:
            n = 15
            idx = len(self.lq) - 1 - n
        self.e("s_waitcnt lgkmcnt(%d)" % n)
        self.lq = self.lq[idx + 1:]
        return True

    def wait_lds_all(self):
        self.e("s_waitcnt lgkmcnt(0)")
        self.lq = []

    def wait_vm_all(self):
        self.e("s_waitcnt vmcnt(0)")
        self.vm = []

    def text(self):
        return "\n".join(self.lines) + "\n"

    def stamp(self, i):
        if not DIAG:
            return
        self.e("s_memtime s[58:59]")
        self.e("s_waitcnt lgkmcnt(0)")
        self.lq = []
        self.e("s_mov_b32 s%d, s58" % (64 + i))

    def stamp_rt(self, i):
        if not DIAG:
            return
        self.e("s_memrealtime s[58:59]")
        self.e("s_waitcnt lgkmcnt(0)")
        self.e("s_mov_b32 s%d, s58" % (64 + i))

    def dump(self, kidx, sW, n):
        if not DIAG:
            return
        self.e("s_add_u32 s60, s4, 0x%x" % ((32 << 20) + (kidx << 20)))
        self.e("s_addc_u32 s61, s5, 0")
        self.e("s_mov_b32 s62, 0x100000")
        self.e("s_mov_b32 s63, 0x00020000")
        self.e("s_lshl_b32 s58, s2, 3")
        self.e("s_add_u32 s58, s58, s%d" % sW)
        self.e("s_lshl_b32 s58, s58, 7")
        self.e("v_mov_b32 v0, s58")
        for i in range(n):
            self.e("v_mov_b32 v1, s%d" % (64 + i))
            self.e("buffer_store_dword v1, v0, s[60:63], 0 offen offset:%d" % (4 * i))
            self.e("s_nop 1")


def vr(a, n=1):
    return "v%d" % a if n == 1 else "v[%d:%d]" % (a, a + n - 1)


def sr(a, n=1):
    return "s%d" % a if n == 1 else "s[%d:%d]" % (a, a + n - 1)


def srd(k, d, ptr, nbytes, off=0):
    if off:
        k.e("s_add_u32 s%d, s%d, 0x%x" % (d, ptr, off))
        k.e("s_addc_u32 s%d, s%d, 0" % (d + 1, ptr + 1))
    else:
        k.e("s_mov_b32 s%d, s%d" % (d, ptr))
        k.e("s_mov_b32 s%d, s%d" % (d + 1, ptr + 1))
    k.e("s_mov_b32 s%d, 0x%x" % (d + 2, nbytes))
    k.e("s_mov_b32 s%d, 0x00020000" % (d + 3))


def header(k, name):
    k.lines.append(".globl %s" % name)
    k.lines.append(".p2align 8")
    k.lines.append(".type %s,@function" % name)
    k.lab(name)


def descriptor(name, nvgpr, nsgpr=96):
    nv = (nvgpr + 7) // 8 * 8
    return """.p2align 6
.amdhsa_kernel %s
  .amdhsa_next_free_vgpr %d
  .amdhsa_next_free_sgpr %d
  .amdhsa_accum_offset %d
  .amdhsa_group_segment_fixed_size 0
  .amdhsa_kernarg_size 80
  .amdhsa_user_sgpr_count 2
  .amdhsa_user_sgpr_kernarg_segment_ptr 1
  .amdhsa_system_sgpr_workgroup_id_x 1
.end_amdhsa_kernel
""" % (name, nv, nsgpr, min(nv, 256))


def gen_t2(name, Kdim, lda, a_src, b_ka, r_src, c_dst, stats, kidx=0, LOOK=3, skip=''):
    k = K()
    M4 = MERGE4 and Kdim == 1792
    SC = " sc1" if M4 else ""
    if M4:
        k.lab(name)
    else:
        header(k, name)
    Kw = Kdim // 4
    ns = Kw // 32
    nu = ns // 2
    DA = min(nu, 3)
    DB = min(ns, 4)
    BOFF = DA * 8192
    S_A, S_B, S_R, S_C, S_ST = 8, 12, 16, 20, 24
    sW, sRB, sCB, sT, sLB = 28, 29, 30, 31, 32
    sTile = 36
    sBoff = 40
    sAoff = 41
    sK = 42
    sKb = 43
    sKB = 50
    vL, vAe, vBe, vBo = 1, 2, 3, 4
    vTr = 5
    vRo = 9
    vT0, vT1, vT2 = 10, 11, 12
    vXa = 13
    vAo = 15
    vRes = 16
    vAcc = 24
    vBf = 88
    vAf = 120
    vCo = 156
    nv = 160

    k.e("s_cmp_ge_u32 s2, 256")
    k.e("s_cbranch_scc1 %s_end" % name)
    k.stamp_rt(0)
    k.stamp(1)
    k.e("s_load_dwordx2 s[4:5], s[0:1], %d" % KA_WS)
    k.e("s_load_dwordx2 s[6:7], s[0:1], %d" % b_ka)
    if stats:
        k.e("s_load_dwordx4 s[52:55], s[0:1], %d" % KA_WG)
    nxt = 44
    for src in (a_src, r_src, c_dst):
        if src[0] == 'ka':
            k.e("s_load_dwordx2 s[%d:%d], s[0:1], %d" % (nxt, nxt + 1, src[1]))
            nxt += 2
    k.e("v_lshrrev_b32 v%d, 6, v0" % vT0)
    k.e("v_and_b32 v%d, 63, v0" % vL)
    k.e("v_readfirstlane_b32 s%d, v%d" % (sW, vT0))
    if MAP48 and ns == 14:
        k.e("s_and_b32 s3, s2, 7")
        k.e("s_lshl_b32 s%d, s3, 2" % sRB)
        k.e("s_lshr_b32 s3, s2, 6")
        k.e("s_add_u32 s%d, s%d, s3" % (sRB, sRB))
        k.e("s_lshr_b32 s%d, s2, 3" % sT)
        k.e("s_and_b32 s%d, s%d, 7" % (sCB, sT))
        k.e("s_lshl_b32 s%d, s3, 1" % sK)
        k.e("s_add_u32 s%d, s%d, s%d" % (sK, sK, sCB))
        k.e("s_cmp_ge_u32 s%d, 7" % sK)
        k.e("s_cselect_b32 s3, 7, 0")
        k.e("s_sub_u32 s%d, s%d, s3" % (sK, sK))
    else:
        k.e("s_and_b32 s3, s2, 7")
        k.e("s_lshr_b32 s%d, s2, 3" % sT)
        k.e("s_lshr_b32 s%d, s3, 1" % sRB)
        k.e("s_lshl_b32 s%d, s%d, 3" % (sRB, sRB))
        k.e("s_lshr_b32 s%d, s%d, 2" % (sCB, sT))
        k.e("s_add_u32 s%d, s%d, s%d" % (sRB, sRB, sCB))
        k.e("s_and_b32 s%d, s3, 1" % sCB)
        k.e("s_lshl_b32 s%d, s%d, 2" % (sCB, sCB))
        k.e("s_and_b32 s%d, s%d, 3" % (sT, sT))
        k.e("s_add_u32 s%d, s%d, s%d" % (sCB, sCB, sT))
        k.e("s_lshr_b32 s3, s2, 5")
        if nu == 7:
            k.e("s_lshl_b32 s%d, s%d, 1" % (sK, sT))
            k.e("s_add_u32 s%d, s%d, s3" % (sK, sK))
            k.e("s_cmp_ge_u32 s%d, 7" % sK)
            k.e("s_cselect_b32 s3, 7, 0")
            k.e("s_sub_u32 s%d, s%d, s3" % (sK, sK))
        else:
            assert nu == 2
            k.e("s_add_u32 s%d, s%d, s3" % (sK, sT))
            k.e("s_and_b32 s%d, s%d, 1" % (sK, sK))
    if not ROT:
        k.e("s_mov_b32 s%d, 0" % sK)
    k.e("s_mov_b32 s%d, s%d" % (sKB, sK))
    if M4:
        k.e("s_cmp_lt_u32 s%d, 4" % sW)
        k.e("s_cbranch_scc1 %s_main" % name)
        k.e("s_waitcnt lgkmcnt(0)")
        k.e("s_cmp_lg_u32 s%d, 5" % sW)
        k.e("s_cbranch_scc1 %s_nopoll" % name)
        srd(k, S_ST, 4, 256 * 128, WS_FLAG + 65536)
        k.e("s_lshr_b32 s3, s%d, 1" % sRB)
        k.e("s_lshl_b32 s3, s3, 11")
        k.e("v_and_b32 v3, 15, v1")
        k.e("v_lshlrev_b32 v3, 7, v3")
        k.e("v_add_u32 v3, s3, v3")
        k.e("s_mov_b32 s%d, 0" % sT)
        k.lab("%s_poll" % name)
        k.e("buffer_load_dwordx4 v[16:19], v3, %s, 0 offen sc1" % sr(S_ST, 4))
        k.e("s_waitcnt vmcnt(0)")
        k.e("v_xor_b32 v18, v18, v16")
        k.e("v_xor_b32 v19, v19, v17")
        k.e("v_subrev_co_u32 v16, vcc, s54, v16")
        k.e("v_mov_b32 v20, s55")
        k.e("s_nop 0")
        k.e("v_subb_co_u32 v17, vcc, v17, v20, vcc")
        k.e("v_xor_b32 v18, 0x5bd1e995, v18")
        k.e("v_xor_b32 v19, 0x9e3779b9, v19")
        k.e("v_lshrrev_b32 v16, 20, v16")
        k.e("v_or_b32 v16, v16, v17")
        k.e("v_or3_b32 v16, v16, v18, v19")
        k.e("v_cmp_eq_u32 vcc, 0, v16")
        k.e("s_add_u32 s%d, s%d, 1" % (sT, sT))
        k.e("s_cmp_eq_u64 vcc, exec")
        k.e("s_cbranch_scc1 %s_nopoll" % name)
        k.e("s_cmp_lt_u32 s%d, 0x10000" % sT)
        k.e("s_cbranch_scc1 %s_poll" % name)
        k.lab("%s_nopoll" % name)
        k.e("s_barrier")
        k.e("s_barrier")
        k.e("s_endpgm")
        k.lab("%s_main" % name)
    wave_lds = max(BOFF + DB * 4096, 16384)
    k.e("s_mul_i32 s%d, s%d, %d" % (sLB, sW, wave_lds))
    for t in range(4):
        k.e("s_add_u32 s%d, s%d, %d" % (sT, sW, t))
        k.e("s_and_b32 s%d, s%d, 3" % (sT, sT))
        k.e("s_mul_i32 s%d, s%d, %d" % (sTile + t, sT, 16 * lda))
    k.e("s_lshl_b32 s%d, s%d, 6" % (sT, sRB))
    k.e("v_lshrrev_b32 v%d, 3, v%d" % (vT0, vL))
    k.e("v_add_u32 v%d, s%d, v%d" % (vT1, sT, vT0))
    k.e("s_mov_b32 s3, %d" % lda)
    k.e("v_mul_lo_u32 v%d, v%d, s3" % (vAe, vT1))
    k.e("s_mul_i32 s3, s%d, %d" % (sW, Kw * 2))
    k.e("v_add_u32 v%d, s3, v%d" % (vAe, vAe))
    k.e("v_and_b32 v%d, 7, v%d" % (vT0, vL))
    k.e("v_lshrrev_b32 v%d, 4, v%d" % (vT2, vL))
    k.e("v_xor_b32 v%d, v%d, v%d" % (vT0, vT0, vT2))
    k.e("v_xor_b32 v%d, 4, v%d" % (vT1, vT0))
    k.e("v_add_u32 v%d, %d, v%d" % (vAo, 8 * lda, vAe))
    k.e("v_lshl_add_u32 v%d, v%d, 4, v%d" % (vAo, vT1, vAo))
    k.e("v_lshl_add_u32 v%d, v%d, 4, v%d" % (vAe, vT0, vAe))
    k.e("v_and_b32 v%d, 15, v%d" % (vT1, vL))
    k.e("v_lshrrev_b32 v%d, 1, v%d" % (vT0, vT1))
    k.e("v_xor_b32 v%d, v%d, v%d" % (vT0, vT0, vT2))
    k.e("v_lshlrev_b32 v%d, 7, v%d" % (vXa, vT1))
    k.e("v_add_u32 v%d, s%d, v%d" % (vXa, sLB, vXa))
    k.e("v_lshl_add_u32 v%d, v%d, 4, v%d" % (vXa, vT0, vXa))
    k.e("v_xor_b32 v%d, 64, v%d" % (vXa + 1, vXa))
    k.e("s_lshl_b32 s3, s%d, 4" % sW)
    k.e("s_add_u32 s3, s3, s%d" % sT)
    k.e("v_add_u32 v%d, s3, v%d" % (vT1, vT1))
    k.e("v_lshlrev_b32 v%d, 10, v%d" % (vRo, vT1))
    k.e("v_lshl_add_u32 v%d, v%d, 3, v%d" % (vRo, vT2, vRo))
    k.e("s_lshl_b32 s3, s%d, 7" % sCB)
    k.e("v_add_u32 v%d, s3, v%d" % (vRo, vRo))
    k.e("v_lshrrev_b32 v%d, 3, v%d" % (vT0, vL))
    k.e("s_lshl_b32 s%d, s%d, 4" % (sAoff, sW))
    k.e("s_add_u32 s%d, s%d, s%d" % (sAoff, sAoff, sT))
    k.e("v_add_u32 v%d, s%d, v%d" % (vCo, sAoff, vT0))
    k.e("v_lshlrev_b32 v%d, 10, v%d" % (vCo, vCo))
    k.e("v_and_b32 v%d, 7, v%d" % (vT1, vL))
    k.e("v_lshl_add_u32 v%d, v%d, 4, v%d" % (vCo, vT1, vCo))
    k.e("v_add_u32 v%d, s3, v%d" % (vCo, vCo))
    k.e("v_add_u32 v%d, 8192, v%d" % (vCo + 1, vCo))
    k.e("v_lshrrev_b32 v%d, 3, v%d" % (vT0, vL))
    k.e("v_lshlrev_b32 v%d, 10, v%d" % (vBe, vT0))
    k.e("v_and_b32 v%d, 1, v%d" % (vT0, vL))
    k.e("v_lshl_add_u32 v%d, v%d, 4, v%d" % (vBe, vT0, vBe))
    k.e("s_mul_i32 s%d, s%d, %d" % (sT, sW, Kw * 1024))
    k.e("s_add_u32 s3, s3, s%d" % sT)
    k.e("v_add_u32 v%d, s3, v%d" % (vBe, vBe))
    k.e("v_bfe_u32 v%d, v%d, 1, 2" % (vT0, vL))
    k.e("v_bfe_u32 v%d, v%d, 4, 1" % (vT1, vL))
    k.e("v_xor_b32 v%d, v%d, v%d" % (vT0, vT0, vT1))
    k.e("v_xor_b32 v%d, 2, v%d" % (vT1, vT0))
    k.e("v_lshl_add_u32 v%d, v%d, 5, v%d" % (vBo, vT1, vBe))
    k.e("v_lshl_add_u32 v%d, v%d, 5, v%d" % (vBe, vT0, vBe))
    k.e("v_lshrrev_b32 v%d, 4, v%d" % (vT0, vL))
    k.e("v_bfe_u32 v%d, v%d, 2, 2" % (vT1, vL))
    k.e("v_lshl_add_u32 v%d, v%d, 3, v%d" % (vT2, vT0, vT1))
    k.e("v_lshlrev_b32 v%d, 7, v%d" % (vT2, vT2))
    k.e("v_add_u32 v%d, s%d, v%d" % (vT2, sLB, vT2))
    k.e("v_and_b32 v%d, 3, v%d" % (vTr, vL))
    k.e("v_lshl_add_u32 v%d, v%d, 3, v%d" % (vT2, vTr, vT2))
    k.e("v_bfe_u32 v%d, v%d, 3, 1" % (vT1, vL))
    k.e("v_bfe_u32 v%d, v%d, 4, 1" % (vT0, vL))
    k.e("v_lshl_or_b32 v%d, v%d, 1, v%d" % (vT0, vT0, vT1))
    for j in range(4):
        k.e("v_xor_b32 v%d, %d, v%d" % (vT1, j, vT0))
        k.e("v_lshl_add_u32 v%d, v%d, 5, v%d" % (vTr + j, vT1, vT2))
    k.e("s_waitcnt lgkmcnt(0)")
    nxt = 44
    for d, src, nbytes in ((S_A, a_src, 2048 * lda), (S_R, r_src, 2 << 20), (S_C, c_dst, 2 << 20)):
        if src[0] == 'ka':
            srd(k, d, nxt, nbytes)
            nxt += 2
        else:
            srd(k, d, 4, nbytes, src[1])
    srd(k, S_B, 6, Kdim * 1024)
    if stats:
        srd(k, S_ST, 4, 2048 * 64, WS_HST)

    def issue_a(u):
        if 'A' in skip:
            return
        slot = u % DA
        k.e("s_lshl_b32 s%d, s%d, 7" % (sKb, sK))
        k.e("s_add_u32 s%d, s%d, 1" % (sK, sK))
        k.e("s_cmp_ge_u32 s%d, %d" % (sK, nu))
        k.e("s_cselect_b32 s%d, 0, s%d" % (sK, sK))
        for t in range(4):
            k.e("s_add_u32 s%d, s%d, s%d" % (sAoff, sTile + t, sKb))
            for p in range(2):
                k.e("s_add_u32 m0, s%d, %d" % (sLB, slot * 8192 + t * 2048 + p * 1024))
                k.e("s_nop 0")
                k.vmem("buffer_load_dwordx4 v%d, %s, s%d offen%s lds" % (vAo if p else vAe, sr(S_A, 4), sAoff, SC), ("a", u))

    def issue_b(s):
        if 'B' in skip:
            return
        slot = s % DB
        if s % 2 == 0:
            k.e("s_lshl_b32 s%d, s%d, 16" % (sBoff, sKB))
            k.e("s_add_u32 s%d, s%d, 1" % (sKB, sKB))
            k.e("s_cmp_ge_u32 s%d, %d" % (sKB, nu))
            k.e("s_cselect_b32 s%d, 0, s%d" % (sKB, sKB))
        for i in range(4):
            k.e("s_add_u32 m0, s%d, %d" % (sLB, BOFF + slot * 4096 + i * 1024))
            k.e("s_nop 0")
            k.vmem("buffer_load_dwordx4 v%d, %s, s%d offen lds" % (vBo if i & 1 else vBe, sr(S_B, 4), sBoff), ("b", s))
            k.e("s_add_u32 s%d, s%d, 8192" % (sBoff, sBoff))

    def rd(s):
        buf = vBf + (s & 1) * 16
        ab = vAf + (s & 1) * 16
        bo = BOFF + (s % DB) * 4096
        ao = ((s // 2) % DA) * 8192
        ops = []
        for j in range(4):
            ops.append("ds_read_b64_tr_b16 %s, v%d offset:%d" % (vr(buf + j * 4, 2), vTr + j, bo))
            ops.append("ds_read_b64_tr_b16 %s, v%d offset:%d" % (vr(buf + j * 4 + 2, 2), vTr + j, bo + 512))
            ops.append("ds_read_b128 %s, v%d offset:%d" % (vr(ab + j * 4, 4), vXa + (s & 1), ao + j * 2048))
        return ops

    def wait_step(s):
        k.wait_vm(("a", s // 2))
        k.wait_vm(("b", s))

    k.stamp(2)
    ia = ib = 0
    if M4:
        issue_b(0); issue_b(1); issue_b(2); ib = 3
        k.e("s_barrier")
        issue_a(0); issue_a(1); ia = 2
    else:
        issue_a(0); ia = 1
        issue_b(0); issue_b(1); ib = 2
        if nu > 1:
            issue_a(1); ia = 2
        issue_b(2); ib = 3

    RSLOT = (1 if nu == 7 else 0) * 8192

    def res_loads():
        for p in range(2):
            k.e("s_add_u32 m0, s%d, %d" % (sLB, RSLOT + p * 1024))
            k.e("s_nop 0")
            k.vmem("buffer_load_dwordx4 v%d, %s, 0 offen%s lds" % (vCo + p, sr(S_R, 4), SC), "res")
    k.stamp(3)
    wait_step(0)
    k.stamp(4)
    for op in rd(0):
        k.e(op)
    for s in range(ns):
        buf = vBf + (s & 1) * 16
        ab = vAf + (s & 1) * 16
        k.e("s_waitcnt lgkmcnt(0)")
        if ib < ns:
            issue_b(ib); ib += 1
        if s % 2 == 0 and ia < nu and (ia < DA or s >= 2 * (ia - DA) + 1):
            issue_a(ia); ia += 1
        if s == (11 if nu == 7 else 2):
            res_loads()
        fill = []
        if s + 1 < ns:
            wait_step(s + 1)
            fill = rd(s + 1)
            if s + 2 == ns and stats and PREF:
                k.e("s_cmp_ge_u32 s%d, 2" % sW)
                k.e("s_cselect_b32 s6, s54, s52")
                k.e("s_cselect_b32 s7, s55, s53")
                srd(k, S_B, 6, 512 * 3584)
                k.e("s_lshr_b32 s3, s2, 3")
                k.e("s_lshl_b32 s3, s3, 1")
                k.e("s_and_b32 s%d, s%d, 1" % (sT, sW))
                k.e("s_add_u32 s3, s3, s%d" % sT)
                k.e("s_mul_i32 s3, s3, %d" % (8 * 3584))
                k.e("s_and_b32 s%d, s2, 3" % sT)
                k.e("s_mul_i32 s%d, s%d, 896" % (sT, sT))
                k.e("s_add_u32 s3, s3, s%d" % sT)
                k.e("v_lshrrev_b32 v%d, 3, v%d" % (vT0, vL))
                k.e("v_mul_u32_u24 v%d, 3584, v%d" % (vT0, vT0))
                k.e("v_and_b32 v%d, 7, v%d" % (vT1, vL))
                k.e("v_min_u32 v%d, 6, v%d" % (vT1, vT1))
                k.e("v_lshl_add_u32 v%d, v%d, 7, v%d" % (vT0, vT1, vT0))
                k.vmem("buffer_load_dword v152, v%d, %s, s3 offen" % (vT0, sr(S_B, 4)), "pf")
        fi = 0
        for t in range(4):
            for j in range(4):
                a = vAcc + (j * 4 + t) * 4
                cin = "0" if s == 0 else vr(a, 4)
                k.e("v_mfma_f32_16x16x32_bf16 %s, %s, %s, %s" % (vr(a, 4), vr(buf + j * 4, 4), vr(ab + t * 4, 4), cin))
                if fi < len(fill):
                    k.e(fill[fi]); fi += 1
        k.stamp(5 + s)
    assert ia == nu and ib == ns
    k.e("v_and_b32 v%d, 15, v%d" % (vT2, vL))
    k.e("v_lshlrev_b32 v%d, 7, v%d" % (vT2, vT2))
    k.e("v_lshrrev_b32 v%d, 4, v%d" % (vT1, vL))
    k.e("v_lshl_add_u32 v%d, v%d, 3, v%d" % (vT2, vT1, vT2))
    k.e("v_add_u32 v%d, s%d, v%d" % (vT2, sLB, vT2))
    vSw, vSr_ = 158, 159
    k.e("v_and_b32 v%d, 15, v%d" % (vSw, vL))
    k.e("v_mul_u32_u24 v%d, 144, v%d" % (vSw, vSw))
    k.e("v_lshl_add_u32 v%d, v%d, 3, v%d" % (vSw, vT1, vSw))
    k.e("v_add_u32 v%d, s%d, v%d" % (vSw, sLB, vSw))
    k.e("v_lshrrev_b32 v%d, 3, v%d" % (vSr_, vL))
    k.e("v_mul_u32_u24 v%d, 144, v%d" % (vSr_, vSr_))
    k.e("v_and_b32 v%d, 7, v%d" % (vT0, vL))
    k.e("v_lshl_add_u32 v%d, v%d, 4, v%d" % (vSr_, vT0, vSr_))
    k.e("v_add_u32 v%d, s%d, v%d" % (vSr_, sLB, vSr_))
    k.wait_vm("res")
    k.stamp(8 + ns)
    for j in range(4):
        k.e("ds_read_b64 %s, v%d offset:%d" % (vr(vRes + 2 * j, 2), vT2, RSLOT + 32 * j))
    k.e("v_lshlrev_b32 v%d, 4, v%d" % (vT0, vL))
    k.e("v_add_u32 v%d, s%d, v%d" % (vT1, sLB, vT0))
    k.e("s_nop 7")
    k.e("s_waitcnt lgkmcnt(0)")
    for t in range(1, 4):
        for j in range(4):
            k.e("ds_write_b128 v%d, %s offset:%d" % (vT1, vr(vAcc + (j * 4 + t) * 4, 4), (t - 1) * 4096 + j * 1024))
    vP = vBf
    vO = vP + 48
    for j in range(4):
        for h in range(2):
            k.e("v_lshlrev_b32 v%d, 16, v%d" % (vO + j * 4 + 2 * h, vRes + 2 * j + h))
            k.e("v_and_b32 v%d, 0xffff0000, v%d" % (vO + j * 4 + 2 * h + 1, vRes + 2 * j + h))
    for j in range(4):
        for r in range(4):
            k.e("v_add_f32 v%d, v%d, v%d" % (vO + j * 4 + r, vO + j * 4 + r, vAcc + (j * 4) * 4 + r))
    k.e("s_waitcnt lgkmcnt(0)")
    k.stamp(9 + ns)
    k.e("s_barrier")
    k.stamp(10 + ns)
    for d in range(1, 4):
        k.e("s_sub_u32 s3, s%d, %d" % (sW, d))
        k.e("s_and_b32 s3, s3, 3")
        k.e("s_mul_i32 s3, s3, %d" % wave_lds)
        k.e("v_add_u32 v%d, s3, v%d" % (vT1, vT0))
        for j in range(4):
            k.e("ds_read_b128 %s, v%d offset:%d" % (vr(vP + ((d - 1) * 4 + j) * 4, 4), vT1, (d - 1) * 4096 + j * 1024))
    for d in range(3):
        k.e("s_waitcnt lgkmcnt(%d)" % (8 - 4 * d))
        for j in range(4):
            for r in range(4):
                k.e("v_add_f32 v%d, v%d, v%d" % (vO + j * 4 + r, vO + j * 4 + r, vP + (d * 4 + j) * 4 + r))
    vPk = vP
    for j in range(4):
        k.e("v_cvt_pk_bf16_f32 v%d, v%d, v%d" % (vPk + 2 * j, vO + 4 * j, vO + 4 * j + 1))
        k.e("v_cvt_pk_bf16_f32 v%d, v%d, v%d" % (vPk + 2 * j + 1, vO + 4 * j + 2, vO + 4 * j + 3))
    k.stamp(11 + ns)
    for j in range(4):
        k.e("ds_write_b64 v%d, %s offset:%d" % (vSw, vr(vPk + 2 * j, 2), 12288 + 32 * j))
    k.e("s_waitcnt lgkmcnt(0)")
    k.e("ds_read_b128 %s, v%d offset:12288" % (vr(vO, 4), vSr_))
    k.e("ds_read_b128 %s, v%d offset:%d" % (vr(vO + 4, 4), vSr_, 12288 + 8 * 144))
    k.e("s_waitcnt lgkmcnt(1)")
    k.vmem("buffer_store_dwordx4 %s, v%d, %s, 0 offen" % (vr(vO, 4), vCo, sr(S_C, 4)), "st")
    k.e("s_waitcnt lgkmcnt(0)")
    k.vmem("buffer_store_dwordx4 %s, v%d, %s, 0 offen" % (vr(vO + 4, 4), vCo + 1, sr(S_C, 4)), "st")
    if stats:
        vS, vQ, vX, vY = vPk + 8, vPk + 9, vPk + 10, vPk + 11
        k.e("v_mov_b32 v%d, 0" % vS)
        k.e("v_mov_b32 v%d, 0" % vQ)
        for i in range(8):
            k.e("v_lshlrev_b32 v%d, 16, v%d" % (vX, vPk + i))
            k.e("v_and_b32 v%d, 0xffff0000, v%d" % (vY, vPk + i))
            k.e("v_add_f32 v%d, v%d, v%d" % (vS, vS, vX))
            k.e("v_fmac_f32 v%d, v%d, v%d" % (vQ, vX, vX))
            k.e("v_add_f32 v%d, v%d, v%d" % (vS, vS, vY))
            k.e("v_fmac_f32 v%d, v%d, v%d" % (vQ, vY, vY))
        for op in ("v_permlane32_swap_b32", "v_permlane16_swap_b32"):
            k.e("v_mov_b32 v%d, v%d" % (vX, vS))
            k.e("v_mov_b32 v%d, v%d" % (vY, vQ))
            k.e("s_nop 1")
            k.e("%s v%d, v%d" % (op, vS, vX))
            k.e("%s v%d, v%d" % (op, vQ, vY))
            k.e("v_add_f32 v%d, v%d, v%d" % (vS, vS, vX))
            k.e("v_add_f32 v%d, v%d, v%d" % (vQ, vQ, vY))
        k.e("s_lshl_b32 s3, s%d, 3" % sRB)
        k.e("s_add_u32 s3, s3, s%d" % sCB)
        k.e("s_lshl_b32 s3, s3, 9")
        k.e("s_lshl_b32 s%d, s%d, 7" % (sT, sW))
        k.e("s_add_u32 s3, s3, s%d" % sT)
        k.e("v_lshlrev_b32 v%d, 3, v%d" % (vX, vL))
        k.e("v_add_u32 v%d, s3, v%d" % (vX, vX))
        k.e("v_cmp_gt_u32 vcc, 16, v%d" % vL)
        k.e("s_and_saveexec_b64 s[34:35], vcc")
        k.vmem("buffer_store_dwordx2 %s, v%d, %s, 0 offen" % (vr(vS, 2), vX, sr(S_ST, 4)), "st")
        k.e("s_mov_b64 exec, s[34:35]")
    k.stamp(5 + ns)
    if DIAG:
        k.e("s_waitcnt vmcnt(0)")
    k.stamp(6 + ns)
    k.stamp_rt(7 + ns)
    k.dump(kidx, sW, 12 + ns)
    k.lab("%s_end" % name)
    k.e("s_endpgm")
    return k.text(), nv, 4 * wave_lds


K3_A = 16384
K3_NA = 4
K3_UP = 14464
K3_SLOT = 28800
K3_NS = 3
K3_B0 = K3_NA * K3_A


def gen_k3(name):
    k = K()
    if MERGE3:
        k.lab(name)
    else:
        header(k, name)
    SC = " sc1" if MERGE3 else ""
    S_A, S_B, S_C, S_ST = 8, 12, 16, 20
    sW, sRB, sFB, sT = 28, 29, 30, 31
    sOff = 34
    sM = 35
    sMA = 36
    sOffA = 37
    sK = 38
    sKa = 39
    k.e("s_cmp_ge_u32 s2, 256")
    k.e("s_cbranch_scc1 %s_end" % name)
    k.stamp_rt(0)
    k.stamp(1)
    k.e("s_load_dwordx2 s[4:5], s[0:1], %d" % KA_WS)
    k.e("s_load_dwordx4 s[44:47], s[0:1], %d" % KA_WG)
    k.e("s_load_dwordx2 s[48:49], s[0:1], %d" % KA_WD)
    k.e("v_lshrrev_b32 v2, 6, v0")
    k.e("v_and_b32 v1, 63, v0")
    k.e("v_readfirstlane_b32 s%d, v2" % sW)
    k.e("s_and_b32 s3, s2, 7")
    k.e("s_lshr_b32 s%d, s2, 3" % sT)
    k.e("s_lshr_b32 s%d, s3, 2" % sRB)
    k.e("s_lshl_b32 s%d, s%d, 3" % (sRB, sRB))
    k.e("s_lshr_b32 s%d, s%d, 2" % (sFB, sT))
    k.e("s_add_u32 s%d, s%d, s%d" % (sRB, sRB, sFB))
    k.e("s_and_b32 s%d, s3, 3" % sFB)
    k.e("s_lshl_b32 s%d, s%d, 2" % (sFB, sFB))
    k.e("s_and_b32 s%d, s%d, 3" % (sT, sT))
    k.e("s_add_u32 s%d, s%d, s%d" % (sFB, sFB, sT))
    k.e("s_lshr_b32 s3, s2, 5")
    k.e("s_lshl_b32 s%d, s%d, 1" % (sK, sT))
    k.e("s_add_u32 s%d, s%d, s3" % (sK, sK))
    k.e("s_and_b32 s%d, s%d, 7" % (sK, sK))
    if not ROT:
        k.e("s_mov_b32 s%d, 0" % sK)
    k.e("s_cmp_ge_u32 s%d, 4" % sW)
    k.e("s_cbranch_scc1 %s_loader" % name)

    vL = 1
    vO = 3
    vTr = 4
    vRstd, vNmr = 6, 7
    vT0, vT1, vT2, vT3 = 8, 9, 10, 11
    vN = 12
    vW = 24
    vXa = 80
    vCa = 84
    vAr = 208
    vRp = 90
    vAcc = 96
    nv = 216
    k.e("s_lshl_b32 s3, s%d, 7" % sRB)
    k.e("s_lshl_b32 s%d, s%d, 5" % (sT, sW))
    k.e("s_add_u32 s3, s3, s%d" % sT)
    k.e("v_and_b32 v%d, 31, v%d" % (vT3, vL))
    k.e("v_add_u32 v%d, s3, v%d" % (vT0, vT3))
    k.e("v_lshrrev_b32 v%d, 5, v%d" % (vT1, vL))
    k.e("v_lshrrev_b32 v%d, 6, v%d" % (vT2, vT0))
    k.e("v_lshlrev_b32 v%d, 12, v%d" % (vT2, vT2))
    k.e("v_and_b32 v%d, 63, v%d" % (vO, vT0))
    k.e("v_lshl_add_u32 v%d, v%d, 3, v%d" % (vT2, vO, vT2))
    k.e("s_mov_b32 s3, 3584")
    k.e("v_mul_lo_u32 v%d, v%d, s3" % (vO, vT0))
    k.e("v_lshl_add_u32 v%d, v%d, 4, v%d" % (vO, vT1, vO))
    k.e("s_mul_i32 s3, s%d, 224" % sFB)
    k.e("v_add_u32 v%d, s3, v%d" % (vO, vO))
    k.e("v_bfe_u32 v%d, v%d, 1, 3" % (vT0, vL))
    k.e("v_xor_b32 v%d, v%d, v%d" % (vT0, vT0, vT1))
    k.e("v_add_u32 v%d, s%d, v%d" % (vT3, sT, vT3))
    k.e("v_lshlrev_b32 v%d, 7, v%d" % (vT3, vT3))
    k.e("v_lshl_add_u32 v%d, v%d, 4, v%d" % (vXa, vT0, vT3))
    for u in range(1, 4):
        k.e("v_xor_b32 v%d, %d, v%d" % (vXa + u, 32 * u, vXa))
    k.e("v_bfe_u32 v%d, v%d, 4, 1" % (vT0, vL))
    k.e("v_mul_u32_u24 v%d, %d, v%d" % (vTr, K3_UP, vT0))
    k.e("v_lshrrev_b32 v%d, 5, v%d" % (vT0, vL))
    k.e("v_bfe_u32 v%d, v%d, 2, 2" % (vT1, vL))
    k.e("v_lshl_add_u32 v%d, v%d, 3, v%d" % (vT0, vT0, vT1))
    k.e("v_mul_u32_u24 v%d, 224, v%d" % (vT0, vT0))
    k.e("v_add_u32 v%d, v%d, v%d" % (vTr, vTr, vT0))
    k.e("v_and_b32 v%d, 1, v%d" % (vT0, vL))
    k.e("v_lshl_add_u32 v%d, v%d, 4, v%d" % (vTr, vT0, vTr))
    k.e("v_bfe_u32 v%d, v%d, 1, 1" % (vT0, vL))
    k.e("v_lshl_add_u32 v%d, v%d, 3, v%d" % (vTr, vT0, vTr))
    k.e("v_add_u32 v%d, %d, v%d" % (vTr, K3_B0, vTr))
    k.e("v_add_u32 v%d, %d, v%d" % (vTr + 1, 2 * K3_SLOT, vTr))
    for i in range(2):
        k.e("v_mov_b32 v%d, 0xbdd2d3e8" % (vCa + i))
        k.e("v_mov_b32 v%d, 0xc0135761" % (vCa + 2 + i))
        k.e("v_mov_b32 v%d, 1.0" % (vCa + 4 + i))
    k.e("s_waitcnt lgkmcnt(0)")
    srd(k, S_C, 4, 2048 * 3584, WS_HH)
    srd(k, S_ST, 4, 2048 * 64, WS_HST)
    if MERGE3:
        for i in range(112):
            k.e("v_mov_b32 v%d, 0" % (vAcc + i))
        k.e("s_barrier")
    for i in range(8):
        k.vmem("buffer_load_dwordx2 %s, v%d, %s, 0 offen offset:%d%s" % (vr(vW + 2 * i, 2), vT2, sr(S_ST, 4), 512 * i, SC), "st")
    k.wait_vm("st")
    k.e("v_add_f32 v%d, v%d, v%d" % (vT0, vW, vW + 2))
    k.e("v_add_f32 v%d, v%d, v%d" % (vT1, vW + 1, vW + 3))
    for i in range(2, 8):
        k.e("v_add_f32 v%d, v%d, v%d" % (vT0, vT0, vW + 2 * i))
        k.e("v_add_f32 v%d, v%d, v%d" % (vT1, vT1, vW + 2 * i + 1))
    k.e("v_mul_f32 v%d, 0x3b000000, v%d" % (vT0, vT0))
    k.e("v_mul_f32 v%d, 0x3b000000, v%d" % (vT1, vT1))
    k.e("v_fma_f32 v%d, -v%d, v%d, v%d" % (vT1, vT0, vT0, vT1))
    k.e("v_max_f32 v%d, 0, v%d" % (vT1, vT1))
    k.e("v_add_f32 v%d, 0x3727c5ac, v%d" % (vT1, vT1))
    k.e("v_rsq_f32 v%d, v%d" % (vRstd, vT1))
    k.e("s_nop 0")
    k.e("v_mul_f32 v%d, v%d, v%d" % (vNmr, vT0, vRstd))
    k.e("v_sub_f32 v%d, 0, v%d" % (vNmr, vNmr))

    k.e("v_mov_b32 v%d, v%d" % (vRp, vRstd))
    k.e("v_mov_b32 v%d, v%d" % (vRp + 1, vRstd))
    k.e("v_mov_b32 v%d, v%d" % (vRp + 2, vNmr))
    k.e("v_mov_b32 v%d, v%d" % (vRp + 3, vNmr))

    def norm_ops(j):
        src = vAr + (j & 1) * 4
        dst = vN + (j & 1) * 4
        ops = []
        for i in range(4):
            a = vT0 if i & 1 == 0 else vT2
            ops.append("v_lshlrev_b32 v%d, 16, v%d" % (a, src + i))
            ops.append("v_and_b32 v%d, 0xffff0000, v%d" % (a + 1, src + i))
            if PKN:
                ops.append("v_pk_fma_f32 %s, %s, %s, %s" % (vr(a, 2), vr(a, 2), vr(vRp, 2), vr(vRp + 2, 2)))
            else:
                ops.append("v_fma_f32 v%d, v%d, v%d, v%d" % (a, a, vRstd, vNmr))
                ops.append("v_fma_f32 v%d, v%d, v%d, v%d" % (a + 1, a + 1, vRstd, vNmr))
            ops.append("v_cvt_pk_bf16_f32 v%d, v%d, v%d" % (dst + i, a, a + 1))
        return ops

    vXn = 20
    sBs, sAs, sIt = 40, 41, 42

    def tr_rd(j, t):
        u = j % 4
        base = vTr + (1 if j >= 4 else 0)
        buf = vW + (j & 1) * 28
        k.lds("ds_read_b64_tr_b16 %s, v%d offset:%d" % (vr(buf + 4 * t, 2), base, u * 3584 + 32 * t), ("w", j % 4, t))
        k.lds("ds_read_b64_tr_b16 %s, v%d offset:%d" % (vr(buf + 4 * t + 2, 2), base, u * 3584 + 32 * t + 896), ("w", j % 4, t))

    def a_rd(j):
        u = j % 4
        base = (vXn + u) if j >= 4 else (vXa + u)
        k.lds("ds_read_b128 %s, v%d" % (vr(vAr + (j & 1) * 4, 4), base), ("a", j % 4))

    k.e("v_add_u32 v%d, %d, v%d" % (vTr + 1, K3_SLOT, vTr))
    k.e("v_add_u32 v%d, %d, v%d" % (vXn, K3_A, vXa))
    k.e("v_add_u32 v%d, %d, v%d" % (vXn + 1, K3_A, vXa + 1))
    k.e("s_mov_b32 s%d, 1" % sBs)
    k.e("s_mov_b32 s%d, 1" % sAs)
    k.e("s_mov_b32 s%d, 0" % sIt)
    if not MERGE3:
        for i in range(112):
            k.e("v_mov_b32 v%d, 0" % (vAcc + i))
    k.stamp(2)
    k.e("s_barrier")
    k.stamp(3)
    a_rd(0)
    k.wait_lds(("a", 0))
    for t in range(7):
        tr_rd(0, t)
        if t == 3:
            a_rd(1)
    for op in norm_ops(0):
        k.e(op)
    k.e("s_nop 0")
    k.lab("%s_loop" % name)
    body_start = len(k.lines)
    lq0 = list(k.lq)
    for j in range(4):
        u = j
        buf = vW + (j & 1) * 28
        boundary = (u == 3)
        nrm = norm_ops(j + 1)
        ni = 0
        pend = list(range(7))
        for t in range(7):
            a = vAcc + 16 * t
            if t % 2 == 0:
                if not k.wait_lds(("w", j, min(t + 1, 6))) and t == 0:
                    k.e("s_nop 0")
            k.e("v_mfma_f32_32x32x16_bf16 %s, %s, %s, %s" % (vr(a, 16), vr(buf + 4 * t, 4), vr(vN + (j & 1) * 4, 4), vr(a, 16)))
            if t == 0:
                k.wait_lds(("a", (j + 1) % 4))
            if boundary and t < 2:
                pass
            else:
                if boundary and t == 2:
                    k.wait_lds_all()
                    k.e("s_barrier")
                nrd = 1 if not boundary else 2
                for _ in range(nrd):
                    if pend:
                        tr_rd(j + 1, pend.pop(0))
            if t == 3:
                a_rd(j + 2)
            for _ in range(V_NRM[t]):
                if ni < len(nrm):
                    k.e(nrm[ni]); ni += 1
        assert not pend and ni == len(nrm), (pend, ni)
        if j < 3:
            k.e("s_nop 0")
    k.e("v_mov_b32 v%d, v%d" % (vTr, vTr + 1))
    k.e("s_add_u32 s%d, s%d, 1" % (sBs, sBs))
    k.e("s_cmp_eq_u32 s%d, %d" % (sBs, K3_NS))
    k.e("s_cselect_b32 s%d, 0, s%d" % (sBs, sBs))
    k.e("s_cselect_b32 s3, %d, %d" % (-(K3_NS - 1) * K3_SLOT & 0xffffffff, K3_SLOT) if False else "s_mov_b32 s3, %d" % K3_SLOT)
    k.e("s_cmov_b32 s3, 0x%x" % ((-(K3_NS - 1) * K3_SLOT) & 0xffffffff))
    k.e("v_add_u32 v%d, s3, v%d" % (vTr + 1, vTr + 1))
    k.e("v_mov_b32 v%d, v%d" % (vXa, vXn))
    k.e("v_mov_b32 v%d, v%d" % (vXa + 1, vXn + 1))
    k.e("v_xor_b32 v%d, 64, v%d" % (vXa + 2, vXn))
    k.e("v_xor_b32 v%d, 96, v%d" % (vXa + 3, vXn))
    k.e("v_add_u32 v%d, %d, v%d" % (vXn, K3_A, vXn))
    k.e("v_and_b32 v%d, 0x%x, v%d" % (vXn, K3_NA * K3_A - 1, vXn))
    k.e("v_xor_b32 v%d, 32, v%d" % (vXn + 1, vXn))
    k.e("s_add_u32 s%d, s%d, 1" % (sIt, sIt))
    k.e("s_cmp_lt_u32 s%d, 8" % sIt)
    k.e("s_cbranch_scc1 %s_loop" % name)
    assert k.lq == lq0[len(lq0) - len(k.lq):] or DIAG, (k.lq, lq0)
    k.wait_lds_all()
    k.stamp(11)
    if MERGE4:
        k.e("v_and_b32 v%d, 31, v%d" % (vT0, vL))
        k.e("v_mul_u32_u24 v%d, 240, v%d" % (vXa, vT0))
        k.e("v_lshrrev_b32 v%d, 5, v%d" % (vT0, vL))
        k.e("v_lshl_add_u32 v%d, v%d, 4, v%d" % (vXa, vT0, vXa))
        k.e("s_mul_i32 s3, s%d, 7680" % sW)
        k.e("v_add_u32 v%d, s3, v%d" % (vXa, vXa))
    k.e("s_nop 7")
    k.e("s_nop 7")
    tmp = vW
    for t in range(7):
        a = vAcc + 16 * t
        o = tmp + 8 * (t & 1) + 32
        for half in range(2):
            prs = [(a + 4 * half + 2 * i, a + 8 + 4 * half + 2 * i, tmp + 8 * i, tmp + 8 * i + 2) for i in range(2)]
            for g, u_, x0, x1 in prs:
                k.e("v_pk_mul_f32 %s, %s, %s" % (vr(x0, 2), vr(g, 2), vr(g, 2)))
            for g, u_, x0, x1 in prs:
                k.e("v_pk_fma_f32 %s, %s, %s, %s" % (vr(x1, 2), vr(x0, 2), vr(vCa, 2), vr(vCa + 2, 2)))
            for g, u_, x0, x1 in prs:
                k.e("v_pk_mul_f32 %s, %s, %s" % (vr(x1, 2), vr(x1, 2), vr(g, 2)))
            for g, u_, x0, x1 in prs:
                k.e("v_exp_f32 v%d, v%d" % (x1, x1))
                k.e("v_exp_f32 v%d, v%d" % (x1 + 1, x1 + 1))
            for g, u_, x0, x1 in prs:
                k.e("v_pk_mul_f32 %s, %s, %s" % (vr(x0, 2), vr(g, 2), vr(u_, 2)))
            for g, u_, x0, x1 in prs:
                k.e("v_pk_add_f32 %s, %s, %s" % (vr(x1, 2), vr(x1, 2), vr(vCa + 4, 2)))
            for g, u_, x0, x1 in prs:
                k.e("v_rcp_f32 v%d, v%d" % (x1, x1))
                k.e("v_rcp_f32 v%d, v%d" % (x1 + 1, x1 + 1))
            k.e("s_nop 0")
            for g, u_, x0, x1 in prs:
                k.e("v_pk_mul_f32 %s, %s, %s" % (vr(x0, 2), vr(x0, 2), vr(x1, 2)))
            for i, (g, u_, x0, x1) in enumerate(prs):
                k.e("v_cvt_pk_bf16_f32 v%d, v%d, v%d" % (o + 2 * half + i, x0, x0 + 1))
        if MERGE4:
            k.e("ds_write_b128 v%d, %s offset:%d" % (vXa, vr(o, 4), 32 * t))
        else:
            k.vmem("buffer_store_dwordx4 %s, v%d, %s, 0 offen offset:%d%s" % (vr(o, 4), vO, sr(S_C, 4), 32 * t, STF), "st")
    if MERGE4:
        k.e("v_mul_u32_u24 v%d, 4682, v%d" % (vT0, vL))
        k.e("v_lshrrev_b32 v%d, 16, v%d" % (vT0, vT0))
        k.e("v_mul_u32_u24 v%d, 14, v%d" % (vT1, vT0))
        k.e("v_sub_u32 v%d, v%d, v%d" % (vT1, vL, vT1))
        k.e("v_mul_u32_u24 v%d, 240, v%d" % (vT2, vT0))
        k.e("v_lshl_add_u32 v%d, v%d, 4, v%d" % (vT2, vT1, vT2))
        k.e("s_mul_i32 s3, s%d, 7680" % sW)
        k.e("v_add_u32 v%d, s3, v%d" % (vT2, vT2))
        k.e("s_lshl_b32 s3, s%d, 7" % sRB)
        k.e("s_lshl_b32 s%d, s%d, 5" % (sT, sW))
        k.e("s_add_u32 s3, s3, s%d" % sT)
        k.e("v_add_u32 v%d, s3, v%d" % (vT0, vT0))
        k.e("v_mul_u32_u24 v%d, 3584, v%d" % (vT0, vT0))
        k.e("v_lshl_add_u32 v%d, v%d, 4, v%d" % (vT0, vT1, vT0))
        k.e("s_mul_i32 s3, s%d, 224" % sFB)
        k.e("v_add_u32 v%d, s3, v%d" % (vT0, vT0))
        k.e("v_cmp_gt_u32 vcc, 56, v%d" % vL)
        k.e("s_waitcnt lgkmcnt(0)")
        k.e("s_and_saveexec_b64 s[40:41], vcc")
        for n in range(8):
            k.e("ds_read_b128 %s, v%d offset:%d" % (vr(vAcc + 4 * n, 4), vT2, 960 * n))
        for n in range(8):
            k.e("s_waitcnt lgkmcnt(%d)" % (7 - n))
            k.e("s_mov_b32 s3, %d" % (4 * 3584 * n))
            k.vmem("buffer_store_dwordx4 %s, v%d, %s, s3 offen sc1" % (vr(vAcc + 4 * n, 4), vT0, sr(S_C, 4)), "st")
        k.e("s_mov_b64 exec, s[40:41]")
    k.stamp(12)
    if DIAG or MERGE4:
        k.e("s_waitcnt vmcnt(0)")
    k.stamp(13)
    k.stamp_rt(14)
    if MERGE4:
        k.e("s_barrier")
        if DIAG:
            k.e("v_mov_b32 v250, v0")
    k.dump(2, sW, 15)
    if MERGE4:
        if DIAG:
            k.e("v_mov_b32 v0, v250")
        k.e("s_branch k4_kernel")
    else:
        k.e("s_endpgm")

    k.lab("%s_loader" % name)
    k.vm = []
    k.lq = []
    vOff = 4
    vAo = 12
    sKA = 40
    k.e("s_and_b32 s%d, s%d, 1" % (sT, sW))
    k.e("s_mul_i32 s3, s%d, 448" % sT)
    k.e("s_mul_i32 s%d, s%d, 224" % (sOff, sFB))
    for p in range(7):
        k.e("v_add_u32 v2, s3, v1")
        if p:
            k.e("v_add_u32 v2, %d, v2" % (64 * p))
        k.e("v_mul_u32_u24 v3, 4682, v2")
        k.e("v_lshrrev_b32 v3, 16, v3")
        k.e("v_mul_u32_u24 v11, 14, v3")
        k.e("v_sub_u32 v2, v2, v11")
        k.e("v_mul_u32_u24 v3, 3584, v3")
        k.e("v_lshl_add_u32 v3, v2, 4, v3")
        k.e("v_add_u32 v%d, s%d, v3" % (vOff + p, sOff))
    k.e("s_sub_u32 s3, s%d, 4" % sW)
    k.e("s_lshl_b32 s%d, s3, 12" % sMA)
    k.e("s_lshl_b32 s3, s3, 5")
    k.e("s_lshl_b32 s%d, s%d, 7" % (sOff, sRB))
    k.e("s_add_u32 s3, s3, s%d" % sOff)
    k.e("v_lshrrev_b32 v2, 3, v1")
    k.e("v_add_u32 v2, s3, v2")
    k.e("v_lshlrev_b32 v2, 10, v2")
    k.e("v_and_b32 v3, 7, v1")
    k.e("v_lshrrev_b32 v11, 4, v1")
    k.e("v_xor_b32 v3, v3, v11")
    k.e("v_lshl_add_u32 v%d, v3, 4, v2" % vAo)
    k.e("v_xor_b32 v3, 4, v3")
    k.e("v_lshl_add_u32 v%d, v3, 4, v2" % (vAo + 1))
    k.e("s_mov_b32 s%d, s%d" % (sKA, sK))
    k.e("s_waitcnt lgkmcnt(0)")
    k.e("s_cmp_ge_u32 s%d, 6" % sW)
    k.e("s_cselect_b32 s6, s46, s44")
    k.e("s_cselect_b32 s7, s47, s45")
    k.e("s_cselect_b32 s%d, %d, 0" % (sM, K3_UP))
    k.e("s_add_u32 s%d, s%d, %d" % (sM, sM, K3_B0))
    srd(k, S_B, 6, 512 * 3584)
    srd(k, S_A, 4, 2 << 20, WS_H)
    k.e("s_mul_i32 s3, s%d, 7168" % sT)
    k.e("s_add_u32 s%d, s%d, s3" % (sM, sM))

    def lda(st, tag):
        k.e("s_lshl_b32 s%d, s%d, 7" % (sKa, sKA))
        k.e("s_add_u32 s%d, s%d, 1" % (sKA, sKA))
        k.e("s_and_b32 s%d, s%d, 7" % (sKA, sKA))
        for p in range(4):
            k.e("s_add_u32 m0, s%d, %d" % (sMA, (st % K3_NA) * K3_A + p * 1024))
            k.e("s_add_u32 s%d, s%d, %d" % (sOffA, sKa, p * 8192))
            k.vmem("buffer_load_dwordx4 v%d, %s, s%d offen%s lds" % (vAo + (p & 1), sr(S_A, 4), sOffA, SC), tag)

    def ld(st, with_a=True):
        slot = st % K3_NS
        k.e("s_mul_i32 s%d, s%d, %d" % (sOff, sK, 64 * 3584))
        k.e("s_add_u32 s%d, s%d, 1" % (sK, sK))
        k.e("s_and_b32 s%d, s%d, 7" % (sK, sK))
        for p in range(7):
            k.e("s_add_u32 m0, s%d, %d" % (sM, slot * K3_SLOT + p * 1024))
            k.e("s_nop 0")
            k.vmem("buffer_load_dwordx4 v%d, %s, s%d offen lds" % (vOff + p, sr(S_B, 4), sOff), ("s", st))
        if st + 1 < 8 and with_a:
            lda(st + 1, ("s", st))

    k.stamp(2)
    if MERGE3:
        for st_ in range(NPRE):
            ld(st_, False)
        k.e("s_cmp_lg_u32 s%d, 5" % sW)
        k.e("s_cbranch_scc1 %s_nopoll" % name)
        srd(k, S_C, 4, 256 * 128, WS_FLAG + 32768)
        k.e("s_lshl_b32 s3, s%d, 11" % sRB)
        k.e("v_and_b32 v3, 15, v1")
        k.e("v_lshlrev_b32 v3, 7, v3")
        k.e("v_add_u32 v3, s3, v3")
        k.e("s_mov_b32 s%d, 0" % sOffA)
        k.lab("%s_poll" % name)
        k.e("buffer_load_dwordx4 v[16:19], v3, %s, 0 offen sc1" % sr(S_C, 4))
        k.e("s_waitcnt vmcnt(0)")
        k.e("v_xor_b32 v18, v18, v16")
        k.e("v_xor_b32 v19, v19, v17")
        k.e("v_subrev_co_u32 v16, vcc, s54, v16")
        k.e("v_mov_b32 v20, s55")
        k.e("s_nop 0")
        k.e("v_subb_co_u32 v17, vcc, v17, v20, vcc")
        k.e("v_xor_b32 v18, 0x5bd1e995, v18")
        k.e("v_xor_b32 v19, 0x9e3779b9, v19")
        k.e("v_lshrrev_b32 v16, 20, v16")
        k.e("v_or_b32 v16, v16, v17")
        k.e("v_or3_b32 v16, v16, v18, v19")
        k.e("v_cmp_eq_u32 vcc, 0, v16")
        k.e("s_add_u32 s%d, s%d, 1" % (sOffA, sOffA))
        k.e("s_cmp_eq_u64 vcc, exec")
        k.e("s_cbranch_scc1 %s_nopoll" % name)
        k.e("s_cmp_lt_u32 s%d, 0x10000" % sOffA)
        k.e("s_cbranch_scc1 %s_poll" % name)
        k.lab("%s_nopoll" % name)
        k.e("s_barrier")
        lda(0, ("s", 0))
        lda(1, ("s", 0))
        if NPRE < 2:
            ld(1, False)
    else:
        lda(0, ("s", 0))
        ld(0)
    k.stamp(3)
    for i in range(8):
        if i == 0 and not EARLY and not MERGE3:
            ld(1)
        k.wait_vm(("s", i))
        k.stamp(4 + i)
        k.e("s_barrier")
        if i == 0 and EARLY and not MERGE3:
            ld(1)
        if MERGE3 and i == 0:
            lda(2, ("s", 1))
            if NPRE < 3:
                ld(2, False)
            lda(3, ("s", 2))
        elif i + 2 < 8:
            ld(i + 2)
        if i == 6 and PREF and MAP48:
            srd(k, S_C, 48, 1792 * 1024)
            k.e("s_lshr_b32 s3, s2, 3")
            k.e("s_mul_i32 s3, s3, 56")
            k.e("s_sub_u32 s%d, s%d, 4" % (sOff, sW))
            k.e("s_mul_i32 s%d, s%d, 14" % (sOff, sOff))
            k.e("s_add_u32 s3, s3, s%d" % sOff)
            k.e("s_lshl_b32 s3, s3, 10")
            k.e("v_lshlrev_b32 v2, 7, v1")
            k.vmem("buffer_load_dword v3, v2, %s, s3 offen" % sr(S_C, 4), "pf")
            k.e("s_add_u32 s3, s3, 8192")
            k.e("v_cmp_gt_u32 vcc, 48, v1")
            k.e("s_and_saveexec_b64 s[40:41], vcc")
            k.vmem("buffer_load_dword v3, v2, %s, s3 offen" % sr(S_C, 4), "pf")
            k.e("s_mov_b64 exec, s[40:41]")
    k.e("s_barrier")
    if MERGE4:
        k.e("s_barrier")
        k.e("s_cmp_lg_u32 s%d, 5" % sW)
        k.e("s_cbranch_scc1 k4_kernel")
        srd(k, S_C, 4, 256 * 128, WS_FLAG + 65536)
        k.e("s_memrealtime s[56:57]")
        k.e("s_lshl_b32 s3, s%d, 4" % sRB)
        k.e("s_add_u32 s3, s3, s%d" % sFB)
        k.e("s_lshl_b32 s3, s3, 7")
        k.e("v_mov_b32 v2, s3")
        k.e("s_waitcnt lgkmcnt(0)")
        k.e("v_mov_b32 v4, s56")
        k.e("v_mov_b32 v5, s57")
        k.e("v_xor_b32 v6, 0x5bd1e995, v4")
        k.e("v_xor_b32 v7, 0x9e3779b9, v5")
        k.e("v_cmp_eq_u32 vcc, 0, v1")
        k.e("s_and_saveexec_b64 s[40:41], vcc")
        k.e("buffer_store_dwordx4 v[4:7], v2, %s, 0 offen sc1" % sr(S_C, 4))
        k.e("s_mov_b64 exec, s[40:41]")
        k.e("s_branch k4_kernel")
    k.stamp(12)
    k.e("s_waitcnt vmcnt(0)")
    k.stamp(13)
    k.stamp_rt(14)
    k.dump(2, sW, 15)
    k.lab("%s_end" % name)
    k.e("s_endpgm")
    return k.text(), nv, K3_B0 + K3_NS * K3_SLOT


import struct


def f32bits(x):
    return struct.unpack("<I", struct.pack("<f", x))[0]


def main():
    from gen_k1 import gen_k1
    parts = []
    descs = []
    launches = []
    t, nv, lds = gen_k1("k1_kernel")
    parts.append(t); descs.append(descriptor("k1_kernel", nv)); launches.append(("k1_kernel", 512, lds))
    if not MERGE:
        t, nv, lds = gen_t2("k2_kernel", 512, 1024, ('ws', WS_O), KA_WO, ('ka', KA_X), ('ws', WS_H), True, 1)
        parts.append(t); descs.append(descriptor("k2_kernel", nv)); launches.append(("k2_kernel", 256, lds))
    t, nv, lds = gen_k3("k3_kernel")
    c0 = -2.0 * 1.4426950408889634 * 0.7978845608028654
    t = t.replace("0xc0135761", "0x%08x" % f32bits(c0)).replace("0xbdd2d3e8", "0x%08x" % f32bits(c0 * 0.044715))
    parts.append(t)
    if MERGE3:
        launches[0] = (launches[0][0], 512, max(launches[0][2], lds))
    else:
        descs.append(descriptor("k3_kernel", nv)); launches.append(("k3_kernel", 512, lds))
    t, nv, lds = gen_t2("k4_kernel", 1792, 3584, ('ws', WS_HH), KA_WD, ('ws', WS_H), ('ka', KA_OUT), False, 3)
    parts.append(t)
    if MERGE4:
        launches[0] = (launches[0][0], 512, max(launches[0][2], lds))
    else:
        descs.append(descriptor("k4_kernel", nv)); launches.append(("k4_kernel", 256, lds))
    out = []
    for n, b, lds in launches:
        out.append("; @launch kernel=%s grid=(256,1,1) block=(%d,1,1) lds=%d" % (n, b, lds))
    out.append('.amdgcn_target "amdgcn-amd-amdhsa--gfx950"')
    out.append(".text")
    out += parts
    out.append("code_end:")
    out.append('.section .rodata,"a"')
    out += descs
    path = sys.argv[1] if len(sys.argv) > 1 else "cdna_kernels/%s.s" % NAME
    open(path, "w").write("\n".join(out))
    print("wrote", path)


if __name__ == "__main__":
    main()
```

```python
import os
from gen import K, vr, sr, srd, header, KA_X, KA_WQKV, KA_WS, WS_O, f32bits, ROT, KA_WO, KA_WG, KA_WD, PREF, DIAG, EARLY1, WS_H, WS_HST, WS_FLAG, MERGE, KA_OUT, MERGE3

A_BYTES = 80 * 128
W_SUB = 64 * 128
SLOT = A_BYTES + 3 * W_SUB
NS = 4
ST_BASE = NS * SLOT
LDS = ST_BASE + 6 * 320
NEG = -1.0e30


def phase2(k, name, sW, sRB, sHG):
    S_A, S_B, S_R, S_C, S_ST = 8, 12, 16, 84, 88
    sT, sLB, sAoff = 31, 32, 33
    sTile = 48
    vL, vAe, vAo, vRo = 1, 2, 3, 4
    vTr = 5
    vT0, vT1, vT2 = 10, 11, 12
    vXa = 13
    vRes = 16
    vAcc = 24
    vBf = 88
    vAf = 120
    k.vm = ["st"] * 4
    k.lq = []
    srd(k, S_A, 4, 2 << 20, WS_O)
    srd(k, S_R, 44, 2 << 20)
    srd(k, S_C, 4, 2 << 20, WS_H)
    srd(k, S_ST, 4, 2048 * 64, WS_HST)
    k.e("s_lshl_b32 s%d, s%d, 15" % (sLB, sW))
    for t in range(4):
        k.e("s_add_u32 s%d, s%d, %d" % (sT, sW, t))
        k.e("s_and_b32 s%d, s%d, 3" % (sT, sT))
        k.e("s_lshl_b32 s%d, s%d, 14" % (sTile + t, sT))
    k.e("s_lshl_b32 s%d, s%d, 6" % (sT, sRB))
    k.e("v_lshrrev_b32 v%d, 3, v%d" % (vT0, vL))
    k.e("v_add_u32 v%d, s%d, v%d" % (vT1, sT, vT0))
    k.e("v_lshlrev_b32 v%d, 10, v%d" % (vAe, vT1))
    k.e("s_lshl_b32 s3, s%d, 8" % sW)
    k.e("v_add_u32 v%d, s3, v%d" % (vAe, vAe))
    k.e("v_and_b32 v%d, 7, v%d" % (vT0, vL))
    k.e("v_lshrrev_b32 v%d, 4, v%d" % (vT2, vL))
    k.e("v_xor_b32 v%d, v%d, v%d" % (vT0, vT0, vT2))
    k.e("v_xor_b32 v%d, 4, v%d" % (vT1, vT0))
    k.e("v_add_u32 v%d, 8192, v%d" % (vAo, vAe))
    k.e("v_lshl_add_u32 v%d, v%d, 4, v%d" % (vAo, vT1, vAo))
    k.e("v_lshl_add_u32 v%d, v%d, 4, v%d" % (vAe, vT0, vAe))
    k.e("v_and_b32 v%d, 15, v%d" % (vT1, vL))
    k.e("v_lshrrev_b32 v%d, 1, v%d" % (vT0, vT1))
    k.e("v_xor_b32 v%d, v%d, v%d" % (vT0, vT0, vT2))
    k.e("v_lshlrev_b32 v%d, 7, v%d" % (vXa, vT1))
    k.e("v_add_u32 v%d, s%d, v%d" % (vXa, sLB, vXa))
    k.e("v_lshl_add_u32 v%d, v%d, 4, v%d" % (vXa, vT0, vXa))
    k.e("v_xor_b32 v%d, 64, v%d" % (vXa + 1, vXa))
    k.e("s_lshl_b32 s3, s%d, 4" % sW)
    k.e("s_add_u32 s3, s3, s%d" % sT)
    k.e("v_add_u32 v%d, s3, v%d" % (vT1, vT1))
    k.e("v_lshlrev_b32 v%d, 10, v%d" % (vRo, vT1))
    k.e("v_lshl_add_u32 v%d, v%d, 3, v%d" % (vRo, vT2, vRo))
    k.e("s_lshl_b32 s3, s%d, 7" % sHG)
    k.e("v_add_u32 v%d, s3, v%d" % (vRo, vRo))
    vCo, vSw, vSr_, vRr = 156, 158, 159, 160
    k.e("v_lshrrev_b32 v%d, 3, v%d" % (vT0, vL))
    k.e("s_lshl_b32 s%d, s%d, 4" % (sAoff, sW))
    k.e("s_add_u32 s%d, s%d, s%d" % (sAoff, sAoff, sT))
    k.e("v_add_u32 v%d, s%d, v%d" % (vCo, sAoff, vT0))
    k.e("v_lshlrev_b32 v%d, 10, v%d" % (vCo, vCo))
    k.e("v_and_b32 v%d, 7, v%d" % (vT1, vL))
    k.e("v_lshl_add_u32 v%d, v%d, 4, v%d" % (vCo, vT1, vCo))
    k.e("v_add_u32 v%d, s3, v%d" % (vCo, vCo))
    k.e("v_add_u32 v%d, 8192, v%d" % (vCo + 1, vCo))
    k.e("s_lshl_b32 s%d, s%d, 11" % (sAoff, sW))
    k.e("s_add_u32 s%d, s%d, 131072" % (sAoff, sAoff))
    for p in range(2):
        k.e("s_add_u32 m0, s%d, %d" % (sAoff, p * 1024))
        k.e("s_nop 0")
        k.vmem("buffer_load_dwordx4 v%d, %s, 0 offen lds" % (vCo + p, sr(S_R, 4)), "res")
    k.e("v_mul_u32_u24 v%d, 144, v%d" % (vSr_, vT0))
    k.e("v_lshl_add_u32 v%d, v%d, 4, v%d" % (vSr_, vT1, vSr_))
    k.e("v_add_u32 v%d, s%d, v%d" % (vSr_, sLB, vSr_))
    k.e("v_and_b32 v%d, 15, v%d" % (vT0, vL))
    k.e("v_mul_u32_u24 v%d, 144, v%d" % (vSw, vT0))
    k.e("v_lshl_add_u32 v%d, v%d, 3, v%d" % (vSw, vT2, vSw))
    k.e("v_add_u32 v%d, s%d, v%d" % (vSw, sLB, vSw))
    k.e("v_lshlrev_b32 v%d, 7, v%d" % (vRr, vT0))
    k.e("v_lshl_add_u32 v%d, v%d, 3, v%d" % (vRr, vT2, vRr))
    k.e("v_add_u32 v%d, s%d, v%d" % (vRr, sAoff, vRr))
    k.e("v_lshrrev_b32 v%d, 4, v%d" % (vT0, vL))
    k.e("v_bfe_u32 v%d, v%d, 2, 2" % (vT1, vL))
    k.e("v_lshl_add_u32 v%d, v%d, 3, v%d" % (vT2, vT0, vT1))
    k.e("v_lshlrev_b32 v%d, 7, v%d" % (vT2, vT2))
    k.e("v_add_u32 v%d, s%d, v%d" % (vT2, sLB, vT2))
    k.e("v_and_b32 v%d, 3, v%d" % (vTr, vL))
    k.e("v_lshl_add_u32 v%d, v%d, 3, v%d" % (vT2, vTr, vT2))
    k.e("v_bfe_u32 v%d, v%d, 3, 1" % (vT1, vL))
    k.e("v_bfe_u32 v%d, v%d, 4, 1" % (vT0, vL))
    k.e("v_lshl_or_b32 v%d, v%d, 1, v%d" % (vT0, vT0, vT1))
    for j in range(4):
        k.e("v_xor_b32 v%d, %d, v%d" % (vT1, j, vT0))
        k.e("v_lshl_add_u32 v%d, v%d, 5, v%d" % (vTr + j, vT1, vT2))
    k.wait_vm_all()
    k.e("s_barrier")
    k.stamp(15)
    k.e("s_barrier")
    k.stamp(16)
    for j in range(4):
        k.e("ds_read_b64 %s, v%d offset:%d" % (vr(vRes + 2 * j, 2), vRr, 32 * j))
    for u in range(2):
        for t in range(4):
            k.e("s_add_u32 s%d, s%d, %d" % (sAoff, sTile + t, 128 * u))
            for p in range(2):
                k.e("s_add_u32 m0, s%d, %d" % (sLB, u * 8192 + t * 2048 + p * 1024))
                k.e("s_nop 0")
                k.vmem("buffer_load_dwordx4 v%d, %s, s%d offen sc1 lds" % (vAo if p else vAe, sr(S_A, 4), sAoff), ("a", u))

    def rd(s):
        buf = vBf + (s & 1) * 16
        ab = vAf + (s & 1) * 16
        bo = 16384 + s * 4096
        ao = (s // 2) * 8192
        ops = []
        for j in range(4):
            ops.append("ds_read_b64_tr_b16 %s, v%d offset:%d" % (vr(buf + j * 4, 2), vTr + j, bo))
            ops.append("ds_read_b64_tr_b16 %s, v%d offset:%d" % (vr(buf + j * 4 + 2, 2), vTr + j, bo + 512))
            ops.append("ds_read_b128 %s, v%d offset:%d" % (vr(ab + j * 4, 4), vXa + (s & 1), ao + j * 2048))
        return ops

    k.wait_vm(("a", 0))
    for op in rd(0):
        k.e(op)
    for s in range(4):
        buf = vBf + (s & 1) * 16
        ab = vAf + (s & 1) * 16
        k.e("s_waitcnt lgkmcnt(0)")
        fill = []
        if s + 1 < 4:
            k.wait_vm(("a", (s + 1) // 2))
            fill = rd(s + 1)
            if s == 1 and PREF:
                k.e("s_cmp_ge_u32 s%d, 2" % sW)
                k.e("s_cselect_b32 s6, s22, s20")
                k.e("s_cselect_b32 s7, s23, s21")
                srd(k, S_B, 6, 512 * 3584)
                k.e("s_lshr_b32 s3, s2, 3")
                k.e("s_lshl_b32 s3, s3, 1")
                k.e("s_and_b32 s%d, s%d, 1" % (sT, sW))
                k.e("s_add_u32 s3, s3, s%d" % sT)
                k.e("s_mul_i32 s3, s3, %d" % (8 * 3584))
                k.e("s_and_b32 s%d, s2, 3" % sT)
                k.e("s_mul_i32 s%d, s%d, 896" % (sT, sT))
                k.e("s_add_u32 s3, s3, s%d" % sT)
                k.e("v_lshrrev_b32 v%d, 3, v%d" % (vT0, vL))
                k.e("v_mul_u32_u24 v%d, 3584, v%d" % (vT0, vT0))
                k.e("v_and_b32 v%d, 7, v%d" % (vT1, vL))
                k.e("v_min_u32 v%d, 6, v%d" % (vT1, vT1))
                k.e("v_lshl_add_u32 v%d, v%d, 7, v%d" % (vT0, vT1, vT0))
                k.vmem("buffer_load_dword v200, v%d, %s, s3 offen" % (vT0, sr(S_B, 4)), "pf")
        fi = 0
        for t in range(4):
            for j in range(4):
                a = vAcc + (j * 4 + t) * 4
                cin = "0" if s == 0 else vr(a, 4)
                k.e("v_mfma_f32_16x16x32_bf16 %s, %s, %s, %s" % (vr(a, 4), vr(buf + j * 4, 4), vr(ab + t * 4, 4), cin))
                if fi < len(fill):
                    k.e(fill[fi]); fi += 1
    k.stamp(17)
    k.e("v_lshlrev_b32 v%d, 4, v%d" % (vT0, vL))
    k.e("v_add_u32 v%d, s%d, v%d" % (vT1, sLB, vT0))
    k.e("s_nop 7")
    k.e("s_nop 3")
    for t in range(1, 4):
        for j in range(4):
            k.e("ds_write_b128 v%d, %s offset:%d" % (vT1, vr(vAcc + (j * 4 + t) * 4, 4), (t - 1) * 4096 + j * 1024))
    vP = vBf
    vO = vP + 48
    for j in range(4):
        for h in range(2):
            k.e("v_lshlrev_b32 v%d, 16, v%d" % (vO + j * 4 + 2 * h, vRes + 2 * j + h))
            k.e("v_and_b32 v%d, 0xffff0000, v%d" % (vO + j * 4 + 2 * h + 1, vRes + 2 * j + h))
    for j in range(4):
        for r in range(4):
            k.e("v_add_f32 v%d, v%d, v%d" % (vO + j * 4 + r, vO + j * 4 + r, vAcc + (j * 4) * 4 + r))
    k.e("s_waitcnt lgkmcnt(0)")
    k.e("s_barrier")
    for d in range(1, 4):
        k.e("s_sub_u32 s3, s%d, %d" % (sW, d))
        k.e("s_and_b32 s3, s3, 3")
        k.e("s_lshl_b32 s3, s3, 15")
        k.e("v_add_u32 v%d, s3, v%d" % (vT1, vT0))
        for j in range(4):
            k.e("ds_read_b128 %s, v%d offset:%d" % (vr(vP + ((d - 1) * 4 + j) * 4, 4), vT1, (d - 1) * 4096 + j * 1024))
    for d in range(3):
        k.e("s_waitcnt lgkmcnt(%d)" % (8 - 4 * d))
        for j in range(4):
            for r in range(4):
                k.e("v_add_f32 v%d, v%d, v%d" % (vO + j * 4 + r, vO + j * 4 + r, vP + (d * 4 + j) * 4 + r))
    vPk = vP
    for j in range(4):
        k.e("v_cvt_pk_bf16_f32 v%d, v%d, v%d" % (vPk + 2 * j, vO + 4 * j, vO + 4 * j + 1))
        k.e("v_cvt_pk_bf16_f32 v%d, v%d, v%d" % (vPk + 2 * j + 1, vO + 4 * j + 2, vO + 4 * j + 3))
    for j in range(4):
        k.e("ds_write_b64 v%d, %s offset:%d" % (vSw, vr(vPk + 2 * j, 2), 12288 + 32 * j))
    k.e("s_waitcnt lgkmcnt(0)")
    k.e("ds_read_b128 %s, v%d offset:12288" % (vr(vO, 4), vSr_))
    k.e("ds_read_b128 %s, v%d offset:%d" % (vr(vO + 4, 4), vSr_, 12288 + 8 * 144))
    k.e("s_waitcnt lgkmcnt(1)")
    SC = " sc1" if MERGE3 else ""
    k.vmem("buffer_store_dwordx4 %s, v%d, %s, 0 offen%s" % (vr(vO, 4), vCo, sr(S_C, 4), SC), "st")
    k.e("s_waitcnt lgkmcnt(0)")
    k.vmem("buffer_store_dwordx4 %s, v%d, %s, 0 offen%s" % (vr(vO + 4, 4), vCo + 1, sr(S_C, 4), SC), "st")
    vS, vQ, vX, vY = vPk + 8, vPk + 9, vPk + 10, vPk + 11
    k.e("v_mov_b32 v%d, 0" % vS)
    k.e("v_mov_b32 v%d, 0" % vQ)
    for i in range(8):
        k.e("v_lshlrev_b32 v%d, 16, v%d" % (vX, vPk + i))
        k.e("v_and_b32 v%d, 0xffff0000, v%d" % (vY, vPk + i))
        k.e("v_add_f32 v%d, v%d, v%d" % (vS, vS, vX))
        k.e("v_fmac_f32 v%d, v%d, v%d" % (vQ, vX, vX))
        k.e("v_add_f32 v%d, v%d, v%d" % (vS, vS, vY))
        k.e("v_fmac_f32 v%d, v%d, v%d" % (vQ, vY, vY))
    for op in ("v_permlane32_swap_b32", "v_permlane16_swap_b32"):
        k.e("v_mov_b32 v%d, v%d" % (vX, vS))
        k.e("v_mov_b32 v%d, v%d" % (vY, vQ))
        k.e("s_nop 1")
        k.e("%s v%d, v%d" % (op, vS, vX))
        k.e("%s v%d, v%d" % (op, vQ, vY))
        k.e("v_add_f32 v%d, v%d, v%d" % (vS, vS, vX))
        k.e("v_add_f32 v%d, v%d, v%d" % (vQ, vQ, vY))
    k.e("s_lshl_b32 s3, s%d, 3" % sRB)
    k.e("s_add_u32 s3, s3, s%d" % sHG)
    k.e("s_lshl_b32 s3, s3, 9")
    k.e("s_lshl_b32 s%d, s%d, 7" % (sT, sW))
    k.e("s_add_u32 s3, s3, s%d" % sT)
    k.e("v_lshlrev_b32 v%d, 3, v%d" % (vX, vL))
    k.e("v_add_u32 v%d, s3, v%d" % (vX, vX))
    k.e("v_cmp_gt_u32 vcc, 16, v%d" % vL)
    k.e("s_and_saveexec_b64 s[34:35], vcc")
    k.vmem("buffer_store_dwordx2 %s, v%d, %s, 0 offen%s" % (vr(vS, 2), vX, sr(S_ST, 4), SC), "st")
    k.e("s_mov_b64 exec, s[34:35]")
    k.stamp(18)
    if DIAG:
        k.e("s_waitcnt vmcnt(0)")
    k.stamp(19)


def gen_k1(name):
    k = K()
    header(k, name)
    S_A, S_B, S_C = 8, 12, 16
    sW, sRB, sHG, sT = 28, 29, 30, 31
    sOff, sM = 34, 35
    sScale = 36
    sK = 40
    sKb = 41
    k.e("s_cmp_ge_u32 s2, 256")
    k.e("s_cbranch_scc1 %s_end" % name)
    if PREF:
        k.e("s_getpc_b64 s[24:25]")
        k.lab("%s_pc" % name)
        k.e("s_sub_u32 s24, s24, %s_pc-%s" % (name, name))
        k.e("s_subb_u32 s25, s25, 0")
        k.e("s_mov_b32 s26, code_end-%s" % name)
        k.e("s_mov_b32 s27, 0x00020000")
        k.e("v_lshlrev_b32 v3, 7, v0")
        k.e("buffer_load_dword v255, v3, s[24:27], 0 offen")
    k.stamp_rt(0)
    k.stamp(1)
    if MERGE:
        k.e("s_memrealtime s[54:55]")
    k.e("s_load_dwordx4 s[44:47], s[0:1], %d" % KA_X)
    k.e("s_load_dwordx2 s[4:5], s[0:1], %d" % KA_WS)
    k.e("s_load_dwordx2 s[6:7], s[0:1], %d" % KA_WO)
    k.e("s_load_dwordx4 s[20:23], s[0:1], %d" % KA_WG)
    k.e("v_lshrrev_b32 v2, 6, v0")
    k.e("v_and_b32 v1, 63, v0")
    k.e("v_readfirstlane_b32 s%d, v2" % sW)
    k.e("s_and_b32 s3, s2, 7")
    k.e("s_lshr_b32 s%d, s2, 3" % sT)
    k.e("s_lshr_b32 s%d, s3, 1" % sRB)
    k.e("s_lshl_b32 s%d, s%d, 3" % (sRB, sRB))
    k.e("s_lshr_b32 s%d, s%d, 2" % (sHG, sT))
    k.e("s_add_u32 s%d, s%d, s%d" % (sRB, sRB, sHG))
    k.e("s_and_b32 s%d, s3, 1" % sHG)
    k.e("s_lshl_b32 s%d, s%d, 2" % (sHG, sHG))
    k.e("s_and_b32 s%d, s%d, 3" % (sT, sT))
    k.e("s_add_u32 s%d, s%d, s%d" % (sHG, sHG, sT))
    k.e("s_lshr_b32 s3, s2, 5")
    k.e("s_lshl_b32 s%d, s%d, 1" % (sK, sT))
    k.e("s_add_u32 s%d, s%d, s3" % (sK, sK))
    k.e("s_and_b32 s%d, s%d, 7" % (sK, sK))
    if not ROT:
        k.e("s_mov_b32 s%d, 0" % sK)
    k.e("s_waitcnt lgkmcnt(0)")
    k.e("s_cmp_ge_u32 s%d, 4" % sW)
    k.e("s_cbranch_scc1 %s_loader" % name)

    vL = 1
    vXa = 2
    vWa = 6
    vOnes = 8
    vT0, vT1, vT2, vT3 = 12, 13, 14, 15
    vX = 16
    vWf = 56
    vQ = 80
    vKk = 96
    vV = 116
    vCq, vCk, vCv = 136, 140, 144
    vE = 148
    nv = 256
    srd(k, S_C, 4, 2 << 20, WS_O)
    k.e("v_and_b32 v%d, 15, v%d" % (vT0, vL))
    k.e("v_lshrrev_b32 v%d, 4, v%d" % (vT1, vL))
    k.e("v_lshrrev_b32 v%d, 1, v%d" % (vT2, vT0))
    k.e("v_xor_b32 v%d, v%d, v%d" % (vT2, vT2, vT1))
    k.e("v_lshlrev_b32 v%d, 7, v%d" % (vT3, vT0))
    k.e("v_lshl_add_u32 v%d, v%d, 4, v%d" % (vXa, vT2, vT3))
    k.e("v_xor_b32 v%d, 4, v%d" % (vT2, vT2))
    k.e("v_lshl_add_u32 v%d, v%d, 4, v%d" % (vXa + 1, vT2, vT3))
    k.e("v_add_u32 v%d, %d, v%d" % (vXa + 2, 2 * SLOT, vXa))
    k.e("v_add_u32 v%d, %d, v%d" % (vXa + 3, 2 * SLOT, vXa + 1))
    k.e("v_bfe_u32 v%d, v%d, 2, 2" % (vT2, vL))
    k.e("v_lshl_add_u32 v%d, v%d, 3, v%d" % (vT2, vT1, vT2))
    k.e("v_lshlrev_b32 v%d, 7, v%d" % (vT2, vT2))
    k.e("v_and_b32 v%d, 3, v%d" % (vT3, vL))
    k.e("v_lshl_add_u32 v%d, v%d, 3, v%d" % (vT2, vT3, vT2))
    k.e("v_bfe_u32 v%d, v%d, 3, 1" % (vT3, vL))
    k.e("v_bfe_u32 v%d, v%d, 4, 1" % (vT0, vL))
    k.e("v_lshl_or_b32 v%d, v%d, 1, v%d" % (vT0, vT0, vT3))
    k.e("v_xor_b32 v%d, s%d, v%d" % (vT0, sW, vT0))
    k.e("v_lshl_add_u32 v%d, v%d, 5, v%d" % (vWa, vT0, vT2))
    k.e("v_add_u32 v%d, %d, v%d" % (vWa, A_BYTES, vWa))
    k.e("v_add_u32 v%d, %d, v%d" % (vWa + 1, 2 * SLOT, vWa))
    for i in range(4):
        k.e("v_mov_b32 v%d, 0x3f803f80" % (vOnes + i))

    sSl, sIt = 42, 43

    def rd(j, what):
        kk = j % 2
        xb = vX + (j & 1) * 20
        wb = vWf + (j & 1) * 12
        if what[0] == 'w':
            s_ = what[1]
            base = vWa + (1 if j >= 2 else 0)
            k.lds("ds_read_b64_tr_b16 %s, v%d offset:%d" % (vr(wb + 4 * s_, 2), base, s_ * W_SUB + kk * 4096), (kk, what))
            k.lds("ds_read_b64_tr_b16 %s, v%d offset:%d" % (vr(wb + 4 * s_ + 2, 2), base, s_ * W_SUB + kk * 4096 + 512), (kk, what))
        else:
            t = what[1]
            base = vXa + 2 if j >= 2 else vXa + kk
            k.lds("ds_read_b128 %s, v%d offset:%d" % (vr(xb + 4 * t, 4), base, 2048 * t), (kk, what))

    RD_ORDER = [('w', 1), ('x', 0), ('w', 2), ('x', 1), ('w', 0), ('x', 2), ('x', 3), ('x', 4)]
    k.e("v_add_u32 v%d, %d, v%d" % (vXa + 2, SLOT, vXa))
    k.e("v_add_u32 v%d, %d, v%d" % (vWa + 1, SLOT, vWa))
    k.e("s_mov_b32 s%d, 1" % sSl)
    k.e("s_mov_b32 s%d, 0" % sIt)
    for i in range(vQ, vCv + 4):
        k.e("v_mov_b32 v%d, 0" % i)
    k.stamp(2)
    k.e("s_barrier")
    k.stamp(3)
    for w_ in RD_ORDER:
        rd(0, w_)
    k.lab("%s_loop" % name)
    lq0 = list(k.lq)
    for j in range(2):
        xb = vX + (j & 1) * 20
        wb = vWf + (j & 1) * 12
        boundary = (j == 1)
        pend = list(RD_ORDER)
        mf = []
        for t in range(5):
            mf.append((vKk + 4 * t, wb + 4, xb + 4 * t, [('w', 1), ('x', t)]))
            mf.append((vV + 4 * t, xb + 4 * t, wb + 8, [('w', 2), ('x', t)]))
            if t >= 1:
                mf.append((vQ + 4 * (t - 1), wb, xb + 4 * t, [('w', 0), ('x', t)]))
        mf.append((vCq, wb, vOnes, []))
        mf.append((vCk, wb + 4, vOnes, []))
        mf.append((vCv, vOnes, wb + 8, []))
        for n, (d, a_, b_, deps) in enumerate(mf):
            for dp in deps:
                k.wait_lds((j, dp))
            k.e("v_mfma_f32_16x16x32_bf16 %s, %s, %s, %s" % (vr(d, 4), vr(a_, 4), vr(b_, 4), vr(d, 4)))
            if boundary and n < 5:
                continue
            if boundary and n == 5:
                k.wait_lds_all()
                k.e("s_barrier")
            if pend and (boundary or n % 2 == 0 or n >= 8):
                rd(j + 1, pend.pop(0))
        assert not pend
    k.e("v_mov_b32 v%d, v%d" % (vXa, vXa + 2))
    k.e("v_xor_b32 v%d, 64, v%d" % (vXa + 1, vXa + 2))
    k.e("v_mov_b32 v%d, v%d" % (vWa, vWa + 1))
    k.e("s_add_u32 s%d, s%d, 1" % (sSl, sSl))
    k.e("s_cmp_eq_u32 s%d, %d" % (sSl, NS))
    k.e("s_cselect_b32 s%d, 0, s%d" % (sSl, sSl))
    k.e("s_mov_b32 s3, %d" % SLOT)
    k.e("s_cmov_b32 s3, 0x%x" % ((-(NS - 1) * SLOT) & 0xffffffff))
    k.e("v_add_u32 v%d, s3, v%d" % (vXa + 2, vXa + 2))
    k.e("v_add_u32 v%d, s3, v%d" % (vWa + 1, vWa + 1))
    k.e("s_add_u32 s%d, s%d, 1" % (sIt, sIt))
    k.e("s_cmp_lt_u32 s%d, 8" % sIt)
    k.e("s_cbranch_scc1 %s_loop" % name)
    assert k.lq == lq0[len(lq0) - len(k.lq):] or DIAG, (k.lq, lq0)
    k.wait_lds_all()
    k.stamp(11)
    k.e("s_barrier")
    k.stamp(12)
    vSr = vE
    vSn = vE + 5
    vVr = vE + 12
    vVn = vE + 32
    k.e("v_and_b32 v%d, 15, v%d" % (vT0, vL))
    k.e("v_lshlrev_b32 v%d, 2, v%d" % (vT2, vT0))
    k.e("v_lshrrev_b32 v%d, 4, v%d" % (vT1, vL))
    k.e("v_lshlrev_b32 v%d, 4, v%d" % (vT3, vT1))
    k.e("v_add_u32 v%d, %d, v%d" % (vT2, ST_BASE, vT2))
    k.e("v_add_u32 v%d, %d, v%d" % (vT3, ST_BASE, vT3))
    for t in range(5):
        k.e("ds_read_b32 v%d, v%d offset:%d" % (vSr + t, vT2, 640 + 64 * t))
        k.e("ds_read_b32 v%d, v%d offset:%d" % (vSn + t, vT2, 960 + 64 * t))
        k.e("ds_read_b128 %s, v%d offset:%d" % (vr(vVr + 4 * t, 4), vT3, 640 + 64 * t))
        k.e("ds_read_b128 %s, v%d offset:%d" % (vr(vVn + 4 * t, 4), vT3, 960 + 64 * t))
    vBc = vE + 52
    vBp = vE + 56
    vBp1 = vE + 60
    vNeg = vE + 64
    k.e("v_mov_b32 v%d, 0x%08x" % (vNeg, f32bits(NEG)))
    k.e("v_lshlrev_b32 v%d, 2, v%d" % (vT2, vT1))
    k.e("v_sub_u32 v%d, v%d, v%d" % (vT2, vT0, vT2))
    vSgn = vE + 65
    k.e("v_mov_b32 v%d, 0x80000000" % vSgn)
    for r in range(4):
        k.e("v_subrev_u32 v%d, %d, v%d" % (vT3, r, vT2))
        k.e("v_and_b32 v%d, 0x80000001, v%d" % (vT3, vT3))
        k.e("v_cmp_eq_u32 vcc, 0, v%d" % vT3)
        k.e("v_cmp_eq_u32 s[38:39], v%d, v%d" % (vSgn, vT3))
        k.e("s_nop 1")
        k.e("v_cndmask_b32_e64 v%d, v%d, 0, vcc" % (vBc + r, vNeg))
        k.e("v_cndmask_b32_e64 v%d, v%d, 0, s[38:39]" % (vBp + r, vNeg))
    k.e("s_cmp_eq_u32 s%d, 0" % sRB)
    k.e("s_cselect_b64 s[38:39], -1, 0")
    for r in range(4):
        k.e("v_cndmask_b32_e64 v%d, v%d, v%d, s[38:39]" % (vBp1 + r, vBp + r, vNeg))
    k.e("s_mov_b32 s%d, 0x%08x" % (sScale, f32bits(0.25 * 1.4426950408889634)))
    k.e("s_waitcnt lgkmcnt(0)")
    vQb = vX
    vKb = vX + 8
    vVb = vX + 18
    for t in range(5):
        for (acc, cs, dst, on) in ((vQ + 4 * (t - 1), vCq, vQb + 2 * (t - 1), t >= 1), (vKk + 4 * t, vCk, vKb + 2 * t, True)):
            if not on:
                continue
            for r in range(4):
                k.e("v_mul_f32 v%d, v%d, v%d" % (vT0 + r, vSn + t, cs + r))
            for r in range(4):
                k.e("v_fma_f32 v%d, v%d, v%d, v%d" % (vT0 + r, vSr + t, acc + r, vT0 + r))
            k.e("v_cvt_pk_bf16_f32 v%d, v%d, v%d" % (dst, vT0, vT1))
            k.e("v_cvt_pk_bf16_f32 v%d, v%d, v%d" % (dst + 1, vT2, vT3))
        for r in range(4):
            k.e("v_mul_f32 v%d, v%d, v%d" % (vT0 + r, vVn + 4 * t + r, vCv))
        for r in range(4):
            k.e("v_fma_f32 v%d, v%d, v%d, v%d" % (vT0 + r, vVr + 4 * t + r, vV + 4 * t + r, vT0 + r))
        k.e("v_cvt_pk_bf16_f32 v%d, v%d, v%d" % (vVb + 2 * t, vT0, vT1))
        k.e("v_cvt_pk_bf16_f32 v%d, v%d, v%d" % (vVb + 2 * t + 1, vT2, vT3))
    k.e("s_nop 1")
    vS = vQ
    for t in range(4):
        k.e("v_mfma_f32_16x16x16_bf16 %s, %s, %s, 0" % (vr(vS + 8 * t, 4), vr(vKb + 2 * t, 2), vr(vQb + 2 * t, 2)))
        k.e("v_mfma_f32_16x16x16_bf16 %s, %s, %s, 0" % (vr(vS + 8 * t + 4, 4), vr(vKb + 2 * (t + 1), 2), vr(vQb + 2 * t, 2)))
    k.e("s_nop 7")
    k.e("s_nop 1")
    vMx = vE
    vMy = vE + 4
    vSum = vE + 8
    for t in range(4):
        for r in range(4):
            k.e("v_fma_f32 v%d, v%d, s%d, v%d" % (vS + 8 * t + r, vS + 8 * t + r, sScale, (vBp1 if t == 0 else vBp) + r))
            k.e("v_fma_f32 v%d, v%d, s%d, v%d" % (vS + 8 * t + 4 + r, vS + 8 * t + 4 + r, sScale, vBc + r))
        b = vS + 8 * t
        k.e("v_max3_f32 v%d, v%d, v%d, v%d" % (vMx + t, b, b + 1, b + 2))
        k.e("v_max3_f32 v%d, v%d, v%d, v%d" % (vMx + t, vMx + t, b + 3, b + 4))
        k.e("v_max3_f32 v%d, v%d, v%d, v%d" % (vMx + t, vMx + t, b + 5, b + 6))
        k.e("v_max_f32 v%d, v%d, v%d" % (vMx + t, vMx + t, b + 7))
    for op in ("v_permlane32_swap_b32", "v_permlane16_swap_b32"):
        for t in range(4):
            k.e("v_mov_b32 v%d, v%d" % (vMy + t, vMx + t))
        k.e("s_nop 1")
        for t in range(4):
            k.e("%s v%d, v%d" % (op, vMx + t, vMy + t))
        for t in range(4):
            k.e("v_max_f32 v%d, v%d, v%d" % (vMx + t, vMx + t, vMy + t))
    for t in range(4):
        b = vS + 8 * t
        for i in range(8):
            k.e("v_sub_f32 v%d, v%d, v%d" % (b + i, b + i, vMx + t))
        for i in range(8):
            k.e("v_exp_f32 v%d, v%d" % (b + i, b + i))
        k.e("s_nop 0")
        k.e("v_add_f32 v%d, v%d, v%d" % (vSum + t, b, b + 1))
        for i in range(2, 8):
            k.e("v_add_f32 v%d, v%d, v%d" % (vSum + t, vSum + t, b + i))
    vP = vE + 12
    for t in range(4):
        b = vS + 8 * t
        for i in range(4):
            k.e("v_cvt_pk_bf16_f32 v%d, v%d, v%d" % (vP + 4 * t + i, b + 2 * i, b + 2 * i + 1))
    for op in ("v_permlane32_swap_b32", "v_permlane16_swap_b32"):
        for t in range(4):
            k.e("v_mov_b32 v%d, v%d" % (vMy + t, vSum + t))
        k.e("s_nop 1")
        for t in range(4):
            k.e("%s v%d, v%d" % (op, vSum + t, vMy + t))
        for t in range(4):
            k.e("v_add_f32 v%d, v%d, v%d" % (vSum + t, vSum + t, vMy + t))
    vOa = vE + 28
    for t in range(4):
        k.e("v_mfma_f32_16x16x16_bf16 %s, %s, %s, 0" % (vr(vOa + 4 * t, 4), vr(vVb + 2 * t, 2), vr(vP + 4 * t, 2)))
    for t in range(4):
        k.e("v_mfma_f32_16x16x16_bf16 %s, %s, %s, %s" % (vr(vOa + 4 * t, 4), vr(vVb + 2 * (t + 1), 2), vr(vP + 4 * t + 2, 2), vr(vOa + 4 * t, 4)))
    for t in range(4):
        k.e("v_rcp_f32 v%d, v%d" % (vSum + t, vSum + t))
    if MERGE:
        k.e("v_and_b32 v%d, 15, v%d" % (vT0, vL))
        k.e("v_mul_u32_u24 v%d, 144, v%d" % (vT0, vT0))
        k.e("v_lshrrev_b32 v%d, 4, v%d" % (vT1, vL))
        k.e("v_lshl_add_u32 v%d, v%d, 3, v%d" % (vT0, vT1, vT0))
        k.e("s_lshl_b32 s3, s%d, 5" % sW)
        k.e("v_add_u32 v%d, s3, v%d" % (vT0, vT0))
        k.e("s_nop 7")
        for t in range(4):
            for r in range(4):
                k.e("v_mul_f32 v%d, v%d, v%d" % (vOa + 4 * t + r, vOa + 4 * t + r, vSum + t))
            k.e("v_cvt_pk_bf16_f32 v%d, v%d, v%d" % (vP + 2 * t, vOa + 4 * t, vOa + 4 * t + 1))
            k.e("v_cvt_pk_bf16_f32 v%d, v%d, v%d" % (vP + 2 * t + 1, vOa + 4 * t + 2, vOa + 4 * t + 3))
            k.e("ds_write_b64 v%d, %s offset:%d" % (vT0, vr(vP + 2 * t, 2), 16 * 144 * t))
        k.e("v_lshrrev_b32 v%d, 3, v%d" % (vT1, vL))
        k.e("v_mul_u32_u24 v%d, 144, v%d" % (vT1, vT1))
        k.e("v_and_b32 v%d, 7, v%d" % (vT3, vL))
        k.e("v_lshl_add_u32 v%d, v%d, 4, v%d" % (vT1, vT3, vT1))
        k.e("s_mul_i32 s3, s%d, %d" % (sW, 16 * 144))
        k.e("v_add_u32 v%d, s3, v%d" % (vT1, vT1))
        k.e("v_lshrrev_b32 v%d, 3, v%d" % (vT2, vL))
        k.e("s_lshl_b32 s3, s%d, 6" % sRB)
        k.e("s_lshl_b32 s%d, s%d, 4" % (sT, sW))
        k.e("s_add_u32 s3, s3, s%d" % sT)
        k.e("v_add_u32 v%d, s3, v%d" % (vT2, vT2))
        k.e("v_lshlrev_b32 v%d, 10, v%d" % (vT2, vT2))
        k.e("v_and_b32 v%d, 7, v%d" % (vT3, vL))
        k.e("v_lshl_add_u32 v%d, v%d, 4, v%d" % (vT2, vT3, vT2))
        k.e("s_lshl_b32 s3, s%d, 7" % sHG)
        k.e("v_add_u32 v%d, s3, v%d" % (vT2, vT2))
        k.e("s_waitcnt lgkmcnt(0)")
        k.e("s_barrier")
        k.e("ds_read_b128 %s, v%d" % (vr(vOa, 4), vT1))
        k.e("ds_read_b128 %s, v%d offset:%d" % (vr(vOa + 4, 4), vT1, 8 * 144))
        k.e("s_mov_b32 s3, 8192")
        k.e("s_waitcnt lgkmcnt(1)")
        k.vmem("buffer_store_dwordx4 %s, v%d, %s, 0 offen sc1" % (vr(vOa, 4), vT2, sr(S_C, 4)), "st")
        k.e("s_waitcnt lgkmcnt(0)")
        k.vmem("buffer_store_dwordx4 %s, v%d, %s, s3 offen sc1" % (vr(vOa + 4, 4), vT2, sr(S_C, 4)), "st")
    else:
        k.e("v_and_b32 v%d, 15, v%d" % (vT0, vL))
        k.e("s_lshl_b32 s3, s%d, 6" % sRB)
        k.e("v_add_u32 v%d, s3, v%d" % (vT0, vT0))
        k.e("v_lshlrev_b32 v%d, 10, v%d" % (vT0, vT0))
        k.e("v_lshrrev_b32 v%d, 4, v%d" % (vT1, vL))
        k.e("v_lshl_add_u32 v%d, v%d, 3, v%d" % (vT0, vT1, vT0))
        k.e("s_lshl_b32 s3, s%d, 2" % sHG)
        k.e("s_add_u32 s3, s3, s%d" % sW)
        k.e("s_lshl_b32 s3, s3, 5")
        k.e("v_add_u32 v%d, s3, v%d" % (vT0, vT0))
        k.e("s_nop 3")
        for t in range(4):
            for r in range(4):
                k.e("v_mul_f32 v%d, v%d, v%d" % (vOa + 4 * t + r, vOa + 4 * t + r, vSum + t))
            k.e("v_cvt_pk_bf16_f32 v%d, v%d, v%d" % (vP + 2 * t, vOa + 4 * t, vOa + 4 * t + 1))
            k.e("v_cvt_pk_bf16_f32 v%d, v%d, v%d" % (vP + 2 * t + 1, vOa + 4 * t + 2, vOa + 4 * t + 3))
            k.e("s_mov_b32 s3, %d" % (t * 16384))
            k.vmem("buffer_store_dwordx2 %s, v%d, %s, s3 offen%s" % (vr(vP + 2 * t, 2), vT0, sr(S_C, 4), " sc1" if MERGE else ""), "st")
    k.stamp(13)
    if MERGE:
        phase2(k, name, sW, sRB, sHG)
    k.stamp_rt(14)
    if MERGE3:
        k.e("s_waitcnt vmcnt(0)")
        k.e("s_barrier")
        if DIAG:
            k.e("v_mov_b32 v250, v0")
    k.dump(0, sW, 15 if not MERGE else 20)
    if MERGE3:
        if DIAG:
            k.e("v_mov_b32 v0, v250")
        k.e("s_branch k3_kernel")
    else:
        k.e("s_endpgm")

    k.lab("%s_loader" % name)
    vRa = 10
    vOne = 12
    vF = 16
    vG = 28
    vR = 40
    k.e("s_and_b32 s%d, s%d, 1" % (sT, sW))
    k.e("s_lshl_b32 s3, s%d, 2" % sT)
    k.e("v_and_b32 v2, 15, v1")
    k.e("v_lshrrev_b32 v3, 4, v1")
    k.e("v_lshrrev_b32 v9, 1, v2")
    k.e("v_xor_b32 v9, v9, v3")
    k.e("v_xor_b32 v9, s3, v9")
    k.e("v_lshlrev_b32 v2, 7, v2")
    k.e("v_lshl_add_u32 v%d, v9, 4, v2" % vRa)
    k.e("v_add_u32 v%d, %d, v%d" % (vRa + 1, 2 * SLOT, vRa))
    for i in range(4):
        k.e("v_mov_b32 v%d, 0x3f803f80" % (vOne + i))

    def stats_stage(i, tiles):
        slot = i % NS
        for n, t in enumerate(tiles):
            k.lds("ds_read_b128 %s, v%d offset:%d" % (vr(vF + 4 * n, 4), vRa + slot // 2, (slot % 2) * SLOT + 2048 * t), ("f", n))
        for n, t in enumerate(tiles):
            k.wait_lds(("f", n))
            k.e("v_mfma_f32_16x16x32_bf16 %s, %s, %s, %s" % (vr(vG + 4 * n, 4), vr(vF + 4 * n, 4), vr(vF + 4 * n, 4), "0" if i == 0 else vr(vG + 4 * n, 4)))
            k.e("v_mfma_f32_16x16x32_bf16 %s, %s, %s, %s" % (vr(vR + 4 * n, 4), vr(vF + 4 * n, 4), vr(vOne, 4), "0" if i == 0 else vr(vR + 4 * n, 4)))

    def stats_finish(tiles):
        k.e("v_and_b32 v2, 3, v1")
        k.e("v_cmp_eq_u32 s[48:49], 1, v2")
        k.e("v_cmp_eq_u32 s[50:51], 2, v2")
        k.e("v_cmp_eq_u32 s[52:53], 3, v2")
        k.e("v_bfe_u32 v2, v1, 2, 2")
        k.e("v_lshrrev_b32 v3, 4, v1")
        k.e("v_cmp_eq_u32 vcc, v2, v3")
        k.e("s_mul_i32 s3, s%d, 1280" % sT)
        k.e("s_add_u32 s3, s3, %d" % ST_BASE)
        k.e("v_and_b32 v2, 15, v1")
        k.e("v_lshlrev_b32 v2, 2, v2")
        k.e("v_add_u32 v2, s3, v2")
        k.e("s_nop 3")
        for n, t in enumerate(tiles):
            for base in (vG + 4 * n, vR + 4 * n):
                k.e("v_cndmask_b32_e64 v%d, v%d, v%d, s[48:49]" % (base, base, base + 1))
                k.e("v_cndmask_b32_e64 v%d, v%d, v%d, s[50:51]" % (base, base, base + 2))
                k.e("v_cndmask_b32_e64 v%d, v%d, v%d, s[52:53]" % (base, base, base + 3))
        k.e("s_and_saveexec_b64 s[38:39], vcc")
        for n, t in enumerate(tiles):
            k.e("ds_write_b32 v2, v%d offset:%d" % (vR + 4 * n, 64 * t))
            k.e("ds_write_b32 v2, v%d offset:%d" % (vG + 4 * n, 320 + 64 * t))
        k.e("s_mov_b64 exec, s[38:39]")
        k.e("s_waitcnt lgkmcnt(0)")
        k.e("s_barrier")

    k.e("s_cmp_ge_u32 s%d, 6" % sW)
    k.e("s_cbranch_scc1 %s_loadw" % name)
    k.e("s_cmp_eq_u32 s%d, 5" % sW)
    k.e("s_cbranch_scc1 %s_pref" % name)
    k.vm = []
    k.lq = []
    srd(k, S_A, 44, 2 << 20)
    vOff = 4
    vPo = 56
    k.e("s_lshl_b32 s3, s%d, 6" % sRB)
    k.e("s_sub_u32 s3, s3, 16")
    k.e("v_lshrrev_b32 v2, 3, v1")
    k.e("v_add_u32 v2, s3, v2")
    k.e("v_and_b32 v3, 7, v1")
    k.e("v_lshrrev_b32 v9, 4, v1")
    k.e("v_xor_b32 v3, v3, v9")
    for p in range(10):
        k.e("v_add_u32 v9, %d, v2" % (8 * p))
        k.e("v_max_i32 v9, 0, v9")
        k.e("v_lshlrev_b32 v9, 10, v9")
        if p & 1:
            k.e("v_xor_b32 v%d, 4, v3" % (vPo + p))
            k.e("v_lshl_add_u32 v%d, v%d, 4, v9" % (vPo + p, vPo + p))
        else:
            k.e("v_lshl_add_u32 v%d, v3, 4, v9" % (vPo + p))

    def lda(st):
        slot = st % NS
        k.e("s_lshl_b32 s%d, s%d, 7" % (sOff, sK))
        k.e("s_add_u32 s%d, s%d, 1" % (sK, sK))
        k.e("s_and_b32 s%d, s%d, 7" % (sK, sK))
        for p in range(10):
            k.e("s_mov_b32 m0, %d" % (slot * SLOT + p * 1024))
            k.e("s_nop 0")
            k.vmem("buffer_load_dwordx4 v%d, %s, s%d offen lds" % (vPo + p, sr(S_A, 4), sOff), ("s", st))

    k.stamp(2)
    lda(0)
    if not EARLY1:
        lda(1)
    k.stamp(3)
    for i in range(8):
        k.wait_vm(("s", i))
        k.stamp(4 + i)
        k.e("s_barrier")
        if i == 0 and EARLY1:
            lda(1)
        if i + 2 < 8:
            lda(i + 2)
        stats_stage(i, [0, 1, 2])
    stats_finish([0, 1, 2])
    k.e("s_branch %s_fin" % name)
    k.lab("%s_pref" % name)
    k.vm = []
    k.lq = []
    TLBI = int(os.environ.get("TLBI", "-1"))

    def tlb_touch():
        k.e("s_load_dwordx2 s[26:27], s[0:1], %d" % KA_OUT)
        srd(k, S_A, 4, 14 << 20)
        k.e("v_lshlrev_b32 v4, 16, v1")
        for n in range(4):
            k.e("s_mov_b32 s3, %d" % (n * (4 << 20)))
            k.vmem("buffer_load_dword v58, v4, %s, s3 offen" % sr(S_A, 4), "pf")
        k.e("s_waitcnt lgkmcnt(0)")
        srd(k, S_A, 26, 2 << 20)
        k.vmem("buffer_load_dword v58, v4, %s, 0 offen" % sr(S_A, 4), "pf")
    k.stamp(2)
    k.stamp(3)
    for i in range(8):
        k.stamp(4 + i)
        k.e("s_barrier")
        if i == TLBI:
            tlb_touch()
        if i == int(os.environ.get("PFI", "6")) and PREF:
            srd(k, S_A, 6, 512 * 1024)
            k.e("v_lshrrev_b32 v4, 2, v1")
            k.e("v_lshlrev_b32 v4, 10, v4")
            k.e("v_and_b32 v3, 3, v1")
            k.e("v_lshl_add_u32 v4, v3, 7, v4")
            k.e("s_lshr_b32 s%d, s2, 3" % sOff)
            k.e("s_lshl_b32 s%d, s%d, 14" % (sOff, sOff))
            k.e("s_and_b32 s%d, s2, 1" % sM)
            k.e("s_lshl_b32 s%d, s%d, 9" % (sM, sM))
            k.e("s_add_u32 s%d, s%d, s%d" % (sOff, sOff, sM))
            k.vmem("buffer_load_dword v56, v4, %s, s%d offen" % (sr(S_A, 4), sOff), "pf")
            k.e("v_lshlrev_b32 v2, 7, v1")
            k.e("s_mul_i32 s3, s2, 7168")
            k.e("v_cmp_gt_u32 vcc, 56, v1")
            k.e("s_and_saveexec_b64 s[38:39], vcc")
            for ptr in ((20, 22) if not os.environ.get("NOCOLDGU") else ()):
                srd(k, S_B, ptr, 512 * 3584)
                k.vmem("buffer_load_dword v57, v2, %s, s3 offen" % sr(S_B, 4), "pf")
            k.e("s_mov_b64 exec, s[38:39]")
        stats_stage(i, [0, 1, 2])
    stats_finish([0, 1, 2])
    k.lab("%s_fin" % name)
    k.e("s_mul_i32 s3, s%d, 160" % sT)
    k.e("s_add_u32 s3, s3, %d" % ST_BASE)
    k.e("v_lshlrev_b32 v2, 2, v1")
    k.e("v_add_u32 v2, s3, v2")
    k.e("v_cmp_gt_u32 vcc, 40, v1")
    k.e("s_and_saveexec_b64 s[38:39], vcc")
    k.e("ds_read_b32 v3, v2")
    k.e("ds_read_b32 v9, v2 offset:320")
    k.e("ds_read_b32 v4, v2 offset:1280")
    k.e("ds_read_b32 v5, v2 offset:1600")
    k.e("s_waitcnt lgkmcnt(0)")
    k.e("v_add_f32 v3, v3, v4")
    k.e("v_add_f32 v9, v9, v5")
    k.e("v_mul_f32 v3, 0x3b000000, v3")
    k.e("v_mul_f32 v9, 0x3b000000, v9")
    k.e("v_fma_f32 v9, -v3, v3, v9")
    k.e("v_max_f32 v9, 0, v9")
    k.e("v_add_f32 v9, 0x3727c5ac, v9")
    k.e("v_rsq_f32 v9, v9")
    k.e("s_nop 0")
    k.e("v_mul_f32 v3, v3, v9")
    k.e("v_sub_f32 v3, 0, v3")
    k.e("ds_write_b32 v2, v9 offset:640")
    k.e("ds_write_b32 v2, v3 offset:960")
    k.e("s_waitcnt lgkmcnt(0)")
    k.e("s_mov_b64 exec, s[38:39]")
    k.e("s_barrier")
    k.stamp(12)
    if MERGE:
        k.e("s_barrier")
        k.e("s_barrier")
        k.e("s_cmp_eq_u32 s%d, 4" % sW)
        k.e("s_cbranch_scc1 %s_nopoll" % name)
        srd(k, S_A, 4, 256 * 128, WS_FLAG)
        k.e("s_memrealtime s[56:57]")
        k.e("s_lshl_b32 s3, s%d, 3" % sRB)
        k.e("s_add_u32 s%d, s3, s%d" % (sOff, sHG))
        k.e("s_lshl_b32 s%d, s%d, 7" % (sOff, sOff))
        k.e("v_mov_b32 v2, s%d" % sOff)
        k.e("s_lshl_b32 s3, s3, 7")
        k.e("v_and_b32 v3, 7, v1")
        k.e("v_lshlrev_b32 v3, 7, v3")
        k.e("v_add_u32 v3, s3, v3")
        k.e("s_waitcnt lgkmcnt(0)")
        k.e("v_mov_b32 v4, s56")
        k.e("v_mov_b32 v5, s57")
        k.e("v_xor_b32 v6, 0x5bd1e995, v4")
        k.e("v_xor_b32 v7, 0x9e3779b9, v5")
        k.e("v_cmp_eq_u32 vcc, 0, v1")
        k.e("s_and_saveexec_b64 s[38:39], vcc")
        k.e("buffer_store_dwordx4 v[4:7], v2, %s, 0 offen sc1" % sr(S_A, 4))
        k.e("s_mov_b64 exec, s[38:39]")
        k.e("s_sub_u32 s54, s54, 200")
        k.e("s_subb_u32 s55, s55, 0")
        k.e("s_mov_b32 s%d, 0" % sM)
        k.lab("%s_poll" % name)
        k.e("buffer_load_dwordx4 v[8:11], v3, %s, 0 offen sc1" % sr(S_A, 4))
        k.e("s_waitcnt vmcnt(0)")
        k.e("v_xor_b32 v10, v10, v8")
        k.e("v_xor_b32 v11, v11, v9")
        k.e("v_subrev_co_u32 v8, vcc, s54, v8")
        k.e("v_mov_b32 v12, s55")
        k.e("s_nop 0")
        k.e("v_subb_co_u32 v9, vcc, v9, v12, vcc")
        k.e("v_xor_b32 v10, 0x5bd1e995, v10")
        k.e("v_xor_b32 v11, 0x9e3779b9, v11")
        k.e("v_lshrrev_b32 v8, 20, v8")
        k.e("v_or_b32 v8, v8, v9")
        k.e("v_or3_b32 v8, v8, v10, v11")
        k.e("v_cmp_eq_u32 vcc, 0, v8")
        k.e("s_add_u32 s%d, s%d, 1" % (sM, sM))
        k.e("s_cmp_eq_u64 vcc, exec")
        k.e("s_cbranch_scc1 %s_nopoll" % name)
        k.e("s_cmp_lt_u32 s%d, 0x10000" % sM)
        k.e("s_cbranch_scc1 %s_poll" % name)
        k.lab("%s_nopoll" % name)
        k.e("s_barrier")
        k.e("s_barrier")
    if MERGE3:
        k.e("s_barrier")
        k.e("s_cmp_eq_u32 s%d, 4" % sW)
        k.e("s_cbranch_scc1 k3_kernel")
        srd(k, S_A, 4, 256 * 128, WS_FLAG + 32768)
        k.e("s_memrealtime s[56:57]")
        k.e("s_waitcnt lgkmcnt(0)")
        k.e("v_mov_b32 v4, s56")
        k.e("v_mov_b32 v5, s57")
        k.e("v_xor_b32 v6, 0x5bd1e995, v4")
        k.e("v_xor_b32 v7, 0x9e3779b9, v5")
        k.e("v_cmp_eq_u32 vcc, 0, v1")
        k.e("s_and_saveexec_b64 s[38:39], vcc")
        k.e("buffer_store_dwordx4 v[4:7], v2, %s, 0 offen sc1" % sr(S_A, 4))
        k.e("s_mov_b64 exec, s[38:39]")
        k.e("s_branch k3_kernel")
    k.e("s_waitcnt vmcnt(0)")
    k.stamp(13)
    k.stamp_rt(14)
    k.dump(0, sW, 15)
    k.e("s_endpgm")

    k.lab("%s_loadw" % name)
    k.vm = []
    k.lq = []
    srd(k, S_B, 46, 512 * 3072)
    vWe, vWo = 4, 5
    k.e("v_lshrrev_b32 v2, 3, v1")
    k.e("v_mul_u32_u24 v%d, 3072, v2" % vWe)
    k.e("v_and_b32 v2, 1, v1")
    k.e("v_lshl_add_u32 v%d, v2, 4, v%d" % (vWe, vWe))
    k.e("s_lshl_b32 s3, s%d, 7" % sHG)
    k.e("v_add_u32 v%d, s3, v%d" % (vWe, vWe))
    k.e("v_bfe_u32 v2, v1, 1, 2")
    k.e("v_bfe_u32 v3, v1, 4, 1")
    k.e("v_xor_b32 v2, v2, v3")
    k.e("v_xor_b32 v3, 2, v2")
    k.e("v_lshl_add_u32 v%d, v3, 5, v%d" % (vWo, vWe))
    k.e("v_lshl_add_u32 v%d, v2, 5, v%d" % (vWe, vWe))
    k.e("s_mul_i32 s%d, s%d, %d" % (sM, sT, 12 * 1024))
    k.e("s_add_u32 s%d, s%d, %d" % (sM, sM, A_BYTES))
    sG = 82
    for p in range(12):
        p0, p1 = p, 12 + p
        g0 = (p0 // 8) * 1024 + (p0 % 8) * 8 * 3072
        g1 = (p1 // 8) * 1024 + (p1 % 8) * 8 * 3072
        k.e("s_cmp_eq_u32 s%d, 0" % sT)
        k.e("s_mov_b32 s%d, %d" % (sG + p, g1))
        k.e("s_cmov_b32 s%d, %d" % (sG + p, g0))

    def ldw(st):
        slot = st % NS
        k.e("s_mul_i32 s%d, s%d, %d" % (sKb, sK, 64 * 3072))
        k.e("s_add_u32 s%d, s%d, 1" % (sK, sK))
        k.e("s_and_b32 s%d, s%d, 7" % (sK, sK))
        for p in range(12):
            k.e("s_add_u32 m0, s%d, %d" % (sM, slot * SLOT + p * 1024))
            k.e("s_add_u32 s%d, s%d, s%d" % (sOff, sG + p, sKb))
            k.vmem("buffer_load_dwordx4 v%d, %s, s%d offen lds" % (vWo if p & 1 else vWe, sr(S_B, 4), sOff), ("s", st))

    k.stamp(2)
    ldw(0)
    if not EARLY1:
        ldw(1)
    k.stamp(3)
    for i in range(8):
        k.wait_vm(("s", i))
        k.stamp(4 + i)
        k.e("s_barrier")
        if i == 0 and EARLY1:
            ldw(1)
        stats_stage(i, [3, 4])
        if i + 2 < 8:
            ldw(i + 2)
    stats_finish([3, 4])
    k.e("s_barrier")
    k.stamp(12)
    if MERGE:
        srd(k, S_B, 6, 512 * 1024)
        k.e("v_lshrrev_b32 v2, 3, v1")
        k.e("v_lshlrev_b32 v%d, 10, v2" % vWe)
        k.e("v_and_b32 v2, 1, v1")
        k.e("v_lshl_add_u32 v%d, v2, 4, v%d" % (vWe, vWe))
        k.e("s_lshl_b32 s3, s%d, 7" % sHG)
        k.e("v_add_u32 v%d, s3, v%d" % (vWe, vWe))
        k.e("v_bfe_u32 v2, v1, 1, 2")
        k.e("v_bfe_u32 v3, v1, 4, 1")
        k.e("v_xor_b32 v2, v2, v3")
        k.e("v_xor_b32 v3, 2, v2")
        k.e("v_lshl_add_u32 v%d, v3, 5, v%d" % (vWo, vWe))
        k.e("v_lshl_add_u32 v%d, v2, 5, v%d" % (vWe, vWe))
        k.e("s_lshl_b32 s%d, s%d, 18" % (sOff, sT))
        k.e("s_lshl_b32 s%d, s%d, 16" % (sM, sT))
        k.e("s_barrier")
        k.e("s_barrier")
        for ww in range(2):
            for pc in range(16):
                k.e("s_add_u32 m0, s%d, %d" % (sM, ww * 32768 + 16384 + pc * 1024))
                k.e("s_nop 0")
                k.vmem("buffer_load_dwordx4 v%d, %s, s%d offen lds" % (vWo if pc & 1 else vWe, sr(S_B, 4), sOff), "wo")
                k.e("s_add_u32 s%d, s%d, 8192" % (sOff, sOff))
        k.e("s_waitcnt vmcnt(0)")
        k.e("s_barrier")
        k.e("s_barrier")
        if MERGE3:
            k.e("s_barrier")
            k.e("s_branch k3_kernel")
    k.e("s_waitcnt vmcnt(0)")
    k.stamp(13)
    k.stamp_rt(14)
    k.dump(0, sW, 15)
    k.lab("%s_end" % name)
    k.e("s_endpgm")
    if not os.environ.get("NOREORDER"):
        L = k.lines
        i0 = L.index("  s_cbranch_scc1 %s_loader" % name)
        i1 = L.index("%s_loader:" % name)
        comp = L[i0 + 1:i1]
        iw0 = L.index("%s_loadw:" % name)
        iw1 = L.index("%s_end:" % name)
        ib = L.index("  s_cbranch_scc1 %s_loadw" % name)
        head = L[:i0] + ["  s_cbranch_scc0 %s_compute" % name] + L[i1:ib] + ["  s_cbranch_scc0 %s_loada" % name]
        wl = L[iw0:iw1] + ["  s_branch %s_end" % name]
        al = ["%s_loada:" % name] + L[ib + 1:iw0]
        k.lines = head + wl + al + L[iw1:] + ["%s_compute:" % name] + comp
    return k.text(), nv, LDS
```

```python
import os
from gen import K, vr, sr, srd, header, KA_X, KA_WQKV, KA_WS, WS_O, f32bits, ROT, KA_WO, KA_WG, KA_WD, PREF, DIAG, EARLY1, WS_H, WS_HST, WS_FLAG, MERGE, KA_OUT, MERGE3

A_BYTES = 80 * 128
W_SUB = 64 * 128
SLOT = A_BYTES + 3 * W_SUB
NS = 4
ST_BASE = NS * SLOT
LDS = ST_BASE + 6 * 320
NEG = -1.0e30


def phase2(k, name, sW, sRB, sHG):
    S_A, S_B, S_R, S_C, S_ST = 8, 12, 16, 84, 88
    sT, sLB, sAoff = 31, 32, 33
    sTile = 48
    vL, vAe, vAo, vRo = 1, 2, 3, 4
    vTr = 5
    vT0, vT1, vT2 = 10, 11, 12
    vXa = 13
    vRes = 16
    vAcc = 24
    vBf = 88
    vAf = 120
    k.vm = ["st"] * 4
    k.lq = []
    srd(k, S_A, 4, 2 << 20, WS_O)
    srd(k, S_R, 44, 2 << 20)
    srd(k, S_C, 4, 2 << 20, WS_H)
    srd(k, S_ST, 4, 2048 * 64, WS_HST)
    k.e("s_lshl_b32 s%d, s%d, 15" % (sLB, sW))
    for t in range(4):
        k.e("s_add_u32 s%d, s%d, %d" % (sT, sW, t))
        k.e("s_and_b32 s%d, s%d, 3" % (sT, sT))
        k.e("s_lshl_b32 s%d, s%d, 14" % (sTile + t, sT))
    k.e("s_lshl_b32 s%d, s%d, 6" % (sT, sRB))
    k.e("v_lshrrev_b32 v%d, 3, v%d" % (vT0, vL))
    k.e("v_add_u32 v%d, s%d, v%d" % (vT1, sT, vT0))
    k.e("v_lshlrev_b32 v%d, 10, v%d" % (vAe, vT1))
    k.e("s_lshl_b32 s3, s%d, 8" % sW)
    k.e("v_add_u32 v%d, s3, v%d" % (vAe, vAe))
    k.e("v_and_b32 v%d, 7, v%d" % (vT0, vL))
    k.e("v_lshrrev_b32 v%d, 4, v%d" % (vT2, vL))
    k.e("v_xor_b32 v%d, v%d, v%d" % (vT0, vT0, vT2))
    k.e("v_xor_b32 v%d, 4, v%d" % (vT1, vT0))
    k.e("v_add_u32 v%d, 8192, v%d" % (vAo, vAe))
    k.e("v_lshl_add_u32 v%d, v%d, 4, v%d" % (vAo, vT1, vAo))
    k.e("v_lshl_add_u32 v%d, v%d, 4, v%d" % (vAe, vT0, vAe))
    k.e("v_and_b32 v%d, 15, v%d" % (vT1, vL))
    k.e("v_lshrrev_b32 v%d, 1, v%d" % (vT0, vT1))
    k.e("v_xor_b32 v%d, v%d, v%d" % (vT0, vT0, vT2))
    k.e("v_lshlrev_b32 v%d, 7, v%d" % (vXa, vT1))
    k.e("v_add_u32 v%d, s%d, v%d" % (vXa, sLB, vXa))
    k.e("v_lshl_add_u32 v%d, v%d, 4, v%d" % (vXa, vT0, vXa))
    k.e("v_xor_b32 v%d, 64, v%d" % (vXa + 1, vXa))
    k.e("s_lshl_b32 s3, s%d, 4" % sW)
    k.e("s_add_u32 s3, s3, s%d" % sT)
    k.e("v_add_u32 v%d, s3, v%d" % (vT1, vT1))
    k.e("v_lshlrev_b32 v%d, 10, v%d" % (vRo, vT1))
    k.e("v_lshl_add_u32 v%d, v%d, 3, v%d" % (vRo, vT2, vRo))
    k.e("s_lshl_b32 s3, s%d, 7" % sHG)
    k.e("v_add_u32 v%d, s3, v%d" % (vRo, vRo))
    vCo, vSw, vSr_, vRr = 156, 158, 159, 160
    k.e("v_lshrrev_b32 v%d, 3, v%d" % (vT0, vL))
    k.e("s_lshl_b32 s%d, s%d, 4" % (sAoff, sW))
    k.e("s_add_u32 s%d, s%d, s%d" % (sAoff, sAoff, sT))
    k.e("v_add_u32 v%d, s%d, v%d" % (vCo, sAoff, vT0))
    k.e("v_lshlrev_b32 v%d, 10, v%d" % (vCo, vCo))
    k.e("v_and_b32 v%d, 7, v%d" % (vT1, vL))
    k.e("v_lshl_add_u32 v%d, v%d, 4, v%d" % (vCo, vT1, vCo))
    k.e("v_add_u32 v%d, s3, v%d" % (vCo, vCo))
    k.e("v_add_u32 v%d, 8192, v%d" % (vCo + 1, vCo))
    k.e("s_lshl_b32 s%d, s%d, 11" % (sAoff, sW))
    k.e("s_add_u32 s%d, s%d, 131072" % (sAoff, sAoff))
    for p in range(2):
        k.e("s_add_u32 m0, s%d, %d" % (sAoff, p * 1024))
        k.e("s_nop 0")
        k.vmem("buffer_load_dwordx4 v%d, %s, 0 offen lds" % (vCo + p, sr(S_R, 4)), "res")
    k.e("v_mul_u32_u24 v%d, 144, v%d" % (vSr_, vT0))
    k.e("v_lshl_add_u32 v%d, v%d, 4, v%d" % (vSr_, vT1, vSr_))
    k.e("v_add_u32 v%d, s%d, v%d" % (vSr_, sLB, vSr_))
    k.e("v_and_b32 v%d, 15, v%d" % (vT0, vL))
    k.e("v_mul_u32_u24 v%d, 144, v%d" % (vSw, vT0))
    k.e("v_lshl_add_u32 v%d, v%d, 3, v%d" % (vSw, vT2, vSw))
    k.e("v_add_u32 v%d, s%d, v%d" % (vSw, sLB, vSw))
    k.e("v_lshlrev_b32 v%d, 7, v%d" % (vRr, vT0))
    k.e("v_lshl_add_u32 v%d, v%d, 3, v%d" % (vRr, vT2, vRr))
    k.e("v_add_u32 v%d, s%d, v%d" % (vRr, sAoff, vRr))
    k.e("v_lshrrev_b32 v%d, 4, v%d" % (vT0, vL))
    k.e("v_bfe_u32 v%d, v%d, 2, 2" % (vT1, vL))
    k.e("v_lshl_add_u32 v%d, v%d, 3, v%d" % (vT2, vT0, vT1))
    k.e("v_lshlrev_b32 v%d, 7, v%d" % (vT2, vT2))
    k.e("v_add_u32 v%d, s%d, v%d" % (vT2, sLB, vT2))
    k.e("v_and_b32 v%d, 3, v%d" % (vTr, vL))
    k.e("v_lshl_add_u32 v%d, v%d, 3, v%d" % (vT2, vTr, vT2))
    k.e("v_bfe_u32 v%d, v%d, 3, 1" % (vT1, vL))
    k.e("v_bfe_u32 v%d, v%d, 4, 1" % (vT0, vL))
    k.e("v_lshl_or_b32 v%d, v%d, 1, v%d" % (vT0, vT0, vT1))
    for j in range(4):
        k.e("v_xor_b32 v%d, %d, v%d" % (vT1, j, vT0))
        k.e("v_lshl_add_u32 v%d, v%d, 5, v%d" % (vTr + j, vT1, vT2))
    k.wait_vm_all()
    k.e("s_barrier")
    k.stamp(15)
    k.e("s_barrier")
    k.stamp(16)
    for j in range(4):
        k.e("ds_read_b64 %s, v%d offset:%d" % (vr(vRes + 2 * j, 2), vRr, 32 * j))
    for u in range(2):
        for t in range(4):
            k.e("s_add_u32 s%d, s%d, %d" % (sAoff, sTile + t, 128 * u))
            for p in range(2):
                k.e("s_add_u32 m0, s%d, %d" % (sLB, u * 8192 + t * 2048 + p * 1024))
                k.e("s_nop 0")
                k.vmem("buffer_load_dwordx4 v%d, %s, s%d offen sc1 lds" % (vAo if p else vAe, sr(S_A, 4), sAoff), ("a", u))

    def rd(s):
        buf = vBf + (s & 1) * 16
        ab = vAf + (s & 1) * 16
        bo = 16384 + s * 4096
        ao = (s // 2) * 8192
        ops = []
        for j in range(4):
            ops.append("ds_read_b64_tr_b16 %s, v%d offset:%d" % (vr(buf + j * 4, 2), vTr + j, bo))
            ops.append("ds_read_b64_tr_b16 %s, v%d offset:%d" % (vr(buf + j * 4 + 2, 2), vTr + j, bo + 512))
            ops.append("ds_read_b128 %s, v%d offset:%d" % (vr(ab + j * 4, 4), vXa + (s & 1), ao + j * 2048))
        return ops

    k.wait_vm(("a", 0))
    for op in rd(0):
        k.e(op)
    for s in range(4):
        buf = vBf + (s & 1) * 16
        ab = vAf + (s & 1) * 16
        k.e("s_waitcnt lgkmcnt(0)")
        fill = []
        if s + 1 < 4:
            k.wait_vm(("a", (s + 1) // 2))
            fill = rd(s + 1)
            if s == 1 and PREF:
                k.e("s_cmp_ge_u32 s%d, 2" % sW)
                k.e("s_cselect_b32 s6, s22, s20")
                k.e("s_cselect_b32 s7, s23, s21")
                srd(k, S_B, 6, 512 * 3584)
                k.e("s_lshr_b32 s3, s2, 3")
                k.e("s_lshl_b32 s3, s3, 1")
                k.e("s_and_b32 s%d, s%d, 1" % (sT, sW))
                k.e("s_add_u32 s3, s3, s%d" % sT)
                k.e("s_mul_i32 s3, s3, %d" % (8 * 3584))
                k.e("s_and_b32 s%d, s2, 3" % sT)
                k.e("s_mul_i32 s%d, s%d, 896" % (sT, sT))
                k.e("s_add_u32 s3, s3, s%d" % sT)
                k.e("v_lshrrev_b32 v%d, 3, v%d" % (vT0, vL))
                k.e("v_mul_u32_u24 v%d, 3584, v%d" % (vT0, vT0))
                k.e("v_and_b32 v%d, 7, v%d" % (vT1, vL))
                k.e("v_min_u32 v%d, 6, v%d" % (vT1, vT1))
                k.e("v_lshl_add_u32 v%d, v%d, 7, v%d" % (vT0, vT1, vT0))
                k.vmem("buffer_load_dword v200, v%d, %s, s3 offen" % (vT0, sr(S_B, 4)), "pf")
        fi = 0
        for t in range(4):
            for j in range(4):
                a = vAcc + (j * 4 + t) * 4
                cin = "0" if s == 0 else vr(a, 4)
                k.e("v_mfma_f32_16x16x32_bf16 %s, %s, %s, %s" % (vr(a, 4), vr(buf + j * 4, 4), vr(ab + t * 4, 4), cin))
                if fi < len(fill):
                    k.e(fill[fi]); fi += 1
    k.stamp(17)
    k.e("v_lshlrev_b32 v%d, 4, v%d" % (vT0, vL))
    k.e("v_add_u32 v%d, s%d, v%d" % (vT1, sLB, vT0))
    k.e("s_nop 7")
    k.e("s_nop 3")
    for t in range(1, 4):
        for j in range(4):
            k.e("ds_write_b128 v%d, %s offset:%d" % (vT1, vr(vAcc + (j * 4 + t) * 4, 4), (t - 1) * 4096 + j * 1024))
    vP = vBf
    vO = vP + 48
    for j in range(4):
        for h in range(2):
            k.e("v_lshlrev_b32 v%d, 16, v%d" % (vO + j * 4 + 2 * h, vRes + 2 * j + h))
            k.e("v_and_b32 v%d, 0xffff0000, v%d" % (vO + j * 4 + 2 * h + 1, vRes + 2 * j + h))
    for j in range(4):
        for r in range(4):
            k.e("v_add_f32 v%d, v%d, v%d" % (vO + j * 4 + r, vO + j * 4 + r, vAcc + (j * 4) * 4 + r))
    k.e("s_waitcnt lgkmcnt(0)")
    k.e("s_barrier")
    for d in range(1, 4):
        k.e("s_sub_u32 s3, s%d, %d" % (sW, d))
        k.e("s_and_b32 s3, s3, 3")
        k.e("s_lshl_b32 s3, s3, 15")
        k.e("v_add_u32 v%d, s3, v%d" % (vT1, vT0))
        for j in range(4):
            k.e("ds_read_b128 %s, v%d offset:%d" % (vr(vP + ((d - 1) * 4 + j) * 4, 4), vT1, (d - 1) * 4096 + j * 1024))
    for d in range(3):
        k.e("s_waitcnt lgkmcnt(%d)" % (8 - 4 * d))
        for j in range(4):
            for r in range(4):
                k.e("v_add_f32 v%d, v%d, v%d" % (vO + j * 4 + r, vO + j * 4 + r, vP + (d * 4 + j) * 4 + r))
    vPk = vP
    for j in range(4):
        k.e("v_cvt_pk_bf16_f32 v%d, v%d, v%d" % (vPk + 2 * j, vO + 4 * j, vO + 4 * j + 1))
        k.e("v_cvt_pk_bf16_f32 v%d, v%d, v%d" % (vPk + 2 * j + 1, vO + 4 * j + 2, vO + 4 * j + 3))
    for j in range(4):
        k.e("ds_write_b64 v%d, %s offset:%d" % (vSw, vr(vPk + 2 * j, 2), 12288 + 32 * j))
    k.e("s_waitcnt lgkmcnt(0)")
    k.e("ds_read_b128 %s, v%d offset:12288" % (vr(vO, 4), vSr_))
    k.e("ds_read_b128 %s, v%d offset:%d" % (vr(vO + 4, 4), vSr_, 12288 + 8 * 144))
    k.e("s_waitcnt lgkmcnt(1)")
    SC = " sc1" if MERGE3 else ""
    k.vmem("buffer_store_dwordx4 %s, v%d, %s, 0 offen%s" % (vr(vO, 4), vCo, sr(S_C, 4), SC), "st")
    k.e("s_waitcnt lgkmcnt(0)")
    k.vmem("buffer_store_dwordx4 %s, v%d, %s, 0 offen%s" % (vr(vO + 4, 4), vCo + 1, sr(S_C, 4), SC), "st")
    vS, vQ, vX, vY = vPk + 8, vPk + 9, vPk + 10, vPk + 11
    k.e("v_mov_b32 v%d, 0" % vS)
    k.e("v_mov_b32 v%d, 0" % vQ)
    for i in range(8):
        k.e("v_lshlrev_b32 v%d, 16, v%d" % (vX, vPk + i))
        k.e("v_and_b32 v%d, 0xffff0000, v%d" % (vY, vPk + i))
        k.e("v_add_f32 v%d, v%d, v%d" % (vS, vS, vX))
        k.e("v_fmac_f32 v%d, v%d, v%d" % (vQ, vX, vX))
        k.e("v_add_f32 v%d, v%d, v%d" % (vS, vS, vY))
        k.e("v_fmac_f32 v%d, v%d, v%d" % (vQ, vY, vY))
    for op in ("v_permlane32_swap_b32", "v_permlane16_swap_b32"):
        k.e("v_mov_b32 v%d, v%d" % (vX, vS))
        k.e("v_mov_b32 v%d, v%d" % (vY, vQ))
        k.e("s_nop 1")
        k.e("%s v%d, v%d" % (op, vS, vX))
        k.e("%s v%d, v%d" % (op, vQ, vY))
        k.e("v_add_f32 v%d, v%d, v%d" % (vS, vS, vX))
        k.e("v_add_f32 v%d, v%d, v%d" % (vQ, vQ, vY))
    k.e("s_lshl_b32 s3, s%d, 3" % sRB)
    k.e("s_add_u32 s3, s3, s%d" % sHG)
    k.e("s_lshl_b32 s3, s3, 9")
    k.e("s_lshl_b32 s%d, s%d, 7" % (sT, sW))
    k.e("s_add_u32 s3, s3, s%d" % sT)
    k.e("v_lshlrev_b32 v%d, 3, v%d" % (vX, vL))
    k.e("v_add_u32 v%d, s3, v%d" % (vX, vX))
    k.e("v_cmp_gt_u32 vcc, 16, v%d" % vL)
    k.e("s_and_saveexec_b64 s[34:35], vcc")
    k.vmem("buffer_store_dwordx2 %s, v%d, %s, 0 offen%s" % (vr(vS, 2), vX, sr(S_ST, 4), SC), "st")
    k.e("s_mov_b64 exec, s[34:35]")
    k.stamp(18)
    if DIAG:
        k.e("s_waitcnt vmcnt(0)")
    k.stamp(19)


def gen_k1(name):
    k = K()
    header(k, name)
    S_A, S_B, S_C = 8, 12, 16
    sW, sRB, sHG, sT = 28, 29, 30, 31
    sOff, sM = 34, 35
    sScale = 36
    sK = 40
    sKb = 41
    k.e("s_cmp_ge_u32 s2, 256")
    k.e("s_cbranch_scc1 %s_end" % name)
    if PREF:
        k.e("s_getpc_b64 s[24:25]")
        k.lab("%s_pc" % name)
        k.e("s_sub_u32 s24, s24, %s_pc-%s" % (name, name))
        k.e("s_subb_u32 s25, s25, 0")
        k.e("s_mov_b32 s26, code_end-%s" % name)
        k.e("s_mov_b32 s27, 0x00020000")
        k.e("v_lshlrev_b32 v3, 7, v0")
        k.e("buffer_load_dword v255, v3, s[24:27], 0 offen")
    k.stamp_rt(0)
    k.stamp(1)
    if MERGE:
        k.e("s_memrealtime s[54:55]")
    k.e("s_load_dwordx4 s[44:47], s[0:1], %d" % KA_X)
    k.e("s_load_dwordx2 s[4:5], s[0:1], %d" % KA_WS)
    k.e("s_load_dwordx2 s[6:7], s[0:1], %d" % KA_WO)
    k.e("s_load_dwordx4 s[20:23], s[0:1], %d" % KA_WG)
    k.e("v_lshrrev_b32 v2, 6, v0")
    k.e("v_and_b32 v1, 63, v0")
    k.e("v_readfirstlane_b32 s%d, v2" % sW)
    k.e("s_and_b32 s3, s2, 7")
    k.e("s_lshr_b32 s%d, s2, 3" % sT)
    k.e("s_lshr_b32 s%d, s3, 1" % sRB)
    k.e("s_lshl_b32 s%d, s%d, 3" % (sRB, sRB))
    k.e("s_lshr_b32 s%d, s%d, 2" % (sHG, sT))
    k.e("s_add_u32 s%d, s%d, s%d" % (sRB, sRB, sHG))
    k.e("s_and_b32 s%d, s3, 1" % sHG)
    k.e("s_lshl_b32 s%d, s%d, 2" % (sHG, sHG))
    k.e("s_and_b32 s%d, s%d, 3" % (sT, sT))
    k.e("s_add_u32 s%d, s%d, s%d" % (sHG, sHG, sT))
    k.e("s_lshr_b32 s3, s2, 5")
    k.e("s_lshl_b32 s%d, s%d, 1" % (sK, sT))
    k.e("s_add_u32 s%d, s%d, s3" % (sK, sK))
    k.e("s_and_b32 s%d, s%d, 7" % (sK, sK))
    if not ROT:
        k.e("s_mov_b32 s%d, 0" % sK)
    k.e("s_waitcnt lgkmcnt(0)")
    k.e("s_cmp_ge_u32 s%d, 4" % sW)
    k.e("s_cbranch_scc1 %s_loader" % name)

    vL = 1
    vXa = 2
    vWa = 6
    vOnes = 8
    vT0, vT1, vT2, vT3 = 12, 13, 14, 15
    vX = 16
    vWf = 56
    vQ = 80
    vKk = 96
    vV = 116
    vCq, vCk, vCv = 136, 140, 144
    vE = 148
    nv = 256
    srd(k, S_C, 4, 2 << 20, WS_O)
    k.e("v_and_b32 v%d, 15, v%d" % (vT0, vL))
    k.e("v_lshrrev_b32 v%d, 4, v%d" % (vT1, vL))
    k.e("v_lshrrev_b32 v%d, 1, v%d" % (vT2, vT0))
    k.e("v_xor_b32 v%d, v%d, v%d" % (vT2, vT2, vT1))
    k.e("v_lshlrev_b32 v%d, 7, v%d" % (vT3, vT0))
    k.e("v_lshl_add_u32 v%d, v%d, 4, v%d" % (vXa, vT2, vT3))
    k.e("v_xor_b32 v%d, 4, v%d" % (vT2, vT2))
    k.e("v_lshl_add_u32 v%d, v%d, 4, v%d" % (vXa + 1, vT2, vT3))
    k.e("v_add_u32 v%d, %d, v%d" % (vXa + 2, 2 * SLOT, vXa))
    k.e("v_add_u32 v%d, %d, v%d" % (vXa + 3, 2 * SLOT, vXa + 1))
    k.e("v_bfe_u32 v%d, v%d, 2, 2" % (vT2, vL))
    k.e("v_lshl_add_u32 v%d, v%d, 3, v%d" % (vT2, vT1, vT2))
    k.e("v_lshlrev_b32 v%d, 7, v%d" % (vT2, vT2))
    k.e("v_and_b32 v%d, 3, v%d" % (vT3, vL))
    k.e("v_lshl_add_u32 v%d, v%d, 3, v%d" % (vT2, vT3, vT2))
    k.e("v_bfe_u32 v%d, v%d, 3, 1" % (vT3, vL))
    k.e("v_bfe_u32 v%d, v%d, 4, 1" % (vT0, vL))
    k.e("v_lshl_or_b32 v%d, v%d, 1, v%d" % (vT0, vT0, vT3))
    k.e("v_xor_b32 v%d, s%d, v%d" % (vT0, sW, vT0))
    k.e("v_lshl_add_u32 v%d, v%d, 5, v%d" % (vWa, vT0, vT2))
    k.e("v_add_u32 v%d, %d, v%d" % (vWa, A_BYTES, vWa))
    k.e("v_add_u32 v%d, %d, v%d" % (vWa + 1, 2 * SLOT, vWa))
    for i in range(4):
        k.e("v_mov_b32 v%d, 0x3f803f80" % (vOnes + i))

    sSl, sIt = 42, 43

    def rd(j, what):
        kk = j % 2
        xb = vX + (j & 1) * 20
        wb = vWf + (j & 1) * 12
        if what[0] == 'w':
            s_ = what[1]
            base = vWa + (1 if j >= 2 else 0)
            k.lds("ds_read_b64_tr_b16 %s, v%d offset:%d" % (vr(wb + 4 * s_, 2), base, s_ * W_SUB + kk * 4096), (kk, what))
            k.lds("ds_read_b64_tr_b16 %s, v%d offset:%d" % (vr(wb + 4 * s_ + 2, 2), base, s_ * W_SUB + kk * 4096 + 512), (kk, what))
        else:
            t = what[1]
            base = vXa + 2 if j >= 2 else vXa + kk
            k.lds("ds_read_b128 %s, v%d offset:%d" % (vr(xb + 4 * t, 4), base, 2048 * t), (kk, what))

    RD_ORDER = [('w', 1), ('x', 0), ('w', 2), ('x', 1), ('w', 0), ('x', 2), ('x', 3), ('x', 4)]
    k.e("v_add_u32 v%d, %d, v%d" % (vXa + 2, SLOT, vXa))
    k.e("v_add_u32 v%d, %d, v%d" % (vWa + 1, SLOT, vWa))
    k.e("s_mov_b32 s%d, 1" % sSl)
    k.e("s_mov_b32 s%d, 0" % sIt)
    for i in range(vQ, vCv + 4):
        k.e("v_mov_b32 v%d, 0" % i)
    k.stamp(2)
    k.e("s_barrier")
    k.stamp(3)
    for w_ in RD_ORDER:
        rd(0, w_)
    k.lab("%s_loop" % name)
    lq0 = list(k.lq)
    for j in range(2):
        xb = vX + (j & 1) * 20
        wb = vWf + (j & 1) * 12
        boundary = (j == 1)
        pend = list(RD_ORDER)
        mf = []
        for t in range(5):
            mf.append((vKk + 4 * t, wb + 4, xb + 4 * t, [('w', 1), ('x', t)]))
            mf.append((vV + 4 * t, xb + 4 * t, wb + 8, [('w', 2), ('x', t)]))
            if t >= 1:
                mf.append((vQ + 4 * (t - 1), wb, xb + 4 * t, [('w', 0), ('x', t)]))
        mf.append((vCq, wb, vOnes, []))
        mf.append((vCk, wb + 4, vOnes, []))
        mf.append((vCv, vOnes, wb + 8, []))
        for n, (d, a_, b_, deps) in enumerate(mf):
            for dp in deps:
                k.wait_lds((j, dp))
            k.e("v_mfma_f32_16x16x32_bf16 %s, %s, %s, %s" % (vr(d, 4), vr(a_, 4), vr(b_, 4), vr(d, 4)))
            if boundary and n < 5:
                continue
            if boundary and n == 5:
                k.wait_lds_all()
                k.e("s_barrier")
            if pend and (boundary or n % 2 == 0 or n >= 8):
                rd(j + 1, pend.pop(0))
        assert not pend
    k.e("v_mov_b32 v%d, v%d" % (vXa, vXa + 2))
    k.e("v_xor_b32 v%d, 64, v%d" % (vXa + 1, vXa + 2))
    k.e("v_mov_b32 v%d, v%d" % (vWa, vWa + 1))
    k.e("s_add_u32 s%d, s%d, 1" % (sSl, sSl))
    k.e("s_cmp_eq_u32 s%d, %d" % (sSl, NS))
    k.e("s_cselect_b32 s%d, 0, s%d" % (sSl, sSl))
    k.e("s_mov_b32 s3, %d" % SLOT)
    k.e("s_cmov_b32 s3, 0x%x" % ((-(NS - 1) * SLOT) & 0xffffffff))
    k.e("v_add_u32 v%d, s3, v%d" % (vXa + 2, vXa + 2))
    k.e("v_add_u32 v%d, s3, v%d" % (vWa + 1, vWa + 1))
    k.e("s_add_u32 s%d, s%d, 1" % (sIt, sIt))
    k.e("s_cmp_lt_u32 s%d, 8" % sIt)
    k.e("s_cbranch_scc1 %s_loop" % name)
    assert k.lq == lq0[len(lq0) - len(k.lq):] or DIAG, (k.lq, lq0)
    k.wait_lds_all()
    k.stamp(11)
    k.e("s_barrier")
    k.stamp(12)
    vSr = vE
    vSn = vE + 5
    vVr = vE + 12
    vVn = vE + 32
    k.e("v_and_b32 v%d, 15, v%d" % (vT0, vL))
    k.e("v_lshlrev_b32 v%d, 2, v%d" % (vT2, vT0))
    k.e("v_lshrrev_b32 v%d, 4, v%d" % (vT1, vL))
    k.e("v_lshlrev_b32 v%d, 4, v%d" % (vT3, vT1))
    k.e("v_add_u32 v%d, %d, v%d" % (vT2, ST_BASE, vT2))
    k.e("v_add_u32 v%d, %d, v%d" % (vT3, ST_BASE, vT3))
    for t in range(5):
        k.e("ds_read_b32 v%d, v%d offset:%d" % (vSr + t, vT2, 640 + 64 * t))
        k.e("ds_read_b32 v%d, v%d offset:%d" % (vSn + t, vT2, 960 + 64 * t))
        k.e("ds_read_b128 %s, v%d offset:%d" % (vr(vVr + 4 * t, 4), vT3, 640 + 64 * t))
        k.e("ds_read_b128 %s, v%d offset:%d" % (vr(vVn + 4 * t, 4), vT3, 960 + 64 * t))
    vBc = vE + 52
    vBp = vE + 56
    vBp1 = vE + 60
    vNeg = vE + 64
    k.e("v_mov_b32 v%d, 0x%08x" % (vNeg, f32bits(NEG)))
    k.e("v_lshlrev_b32 v%d, 2, v%d" % (vT2, vT1))
    k.e("v_sub_u32 v%d, v%d, v%d" % (vT2, vT0, vT2))
    vSgn = vE + 65
    k.e("v_mov_b32 v%d, 0x80000000" % vSgn)
    for r in range(4):
        k.e("v_subrev_u32 v%d, %d, v%d" % (vT3, r, vT2))
        k.e("v_and_b32 v%d, 0x80000001, v%d" % (vT3, vT3))
        k.e("v_cmp_eq_u32 vcc, 0, v%d" % vT3)
        k.e("v_cmp_eq_u32 s[38:39], v%d, v%d" % (vSgn, vT3))
        k.e("s_nop 1")
        k.e("v_cndmask_b32_e64 v%d, v%d, 0, vcc" % (vBc + r, vNeg))
        k.e("v_cndmask_b32_e64 v%d, v%d, 0, s[38:39]" % (vBp + r, vNeg))
    k.e("s_cmp_eq_u32 s%d, 0" % sRB)
    k.e("s_cselect_b64 s[38:39], -1, 0")
    for r in range(4):
        k.e("v_cndmask_b32_e64 v%d, v%d, v%d, s[38:39]" % (vBp1 + r, vBp + r, vNeg))
    k.e("s_mov_b32 s%d, 0x%08x" % (sScale, f32bits(0.25 * 1.4426950408889634)))
    k.e("s_waitcnt lgkmcnt(0)")
    vQb = vX
    vKb = vX + 8
    vVb = vX + 18
    for t in range(5):
        for (acc, cs, dst, on) in ((vQ + 4 * (t - 1), vCq, vQb + 2 * (t - 1), t >= 1), (vKk + 4 * t, vCk, vKb + 2 * t, True)):
            if not on:
                continue
            for r in range(4):
                k.e("v_mul_f32 v%d, v%d, v%d" % (vT0 + r, vSn + t, cs + r))
            for r in range(4):
                k.e("v_fma_f32 v%d, v%d, v%d, v%d" % (vT0 + r, vSr + t, acc + r, vT0 + r))
            k.e("v_cvt_pk_bf16_f32 v%d, v%d, v%d" % (dst, vT0, vT1))
            k.e("v_cvt_pk_bf16_f32 v%d, v%d, v%d" % (dst + 1, vT2, vT3))
        for r in range(4):
            k.e("v_mul_f32 v%d, v%d, v%d" % (vT0 + r, vVn + 4 * t + r, vCv))
        for r in range(4):
            k.e("v_fma_f32 v%d, v%d, v%d, v%d" % (vT0 + r, vVr + 4 * t + r, vV + 4 * t + r, vT0 + r))
        k.e("v_cvt_pk_bf16_f32 v%d, v%d, v%d" % (vVb + 2 * t, vT0, vT1))
        k.e("v_cvt_pk_bf16_f32 v%d, v%d, v%d" % (vVb + 2 * t + 1, vT2, vT3))
    k.e("s_nop 1")
    vS = vQ
    for t in range(4):
        k.e("v_mfma_f32_16x16x16_bf16 %s, %s, %s, 0" % (vr(vS + 8 * t, 4), vr(vKb + 2 * t, 2), vr(vQb + 2 * t, 2)))
        k.e("v_mfma_f32_16x16x16_bf16 %s, %s, %s, 0" % (vr(vS + 8 * t + 4, 4), vr(vKb + 2 * (t + 1), 2), vr(vQb + 2 * t, 2)))
    k.e("s_nop 7")
    k.e("s_nop 1")
    vMx = vE
    vMy = vE + 4
    vSum = vE + 8
    for t in range(4):
        for r in range(4):
            k.e("v_fma_f32 v%d, v%d, s%d, v%d" % (vS + 8 * t + r, vS + 8 * t + r, sScale, (vBp1 if t == 0 else vBp) + r))
            k.e("v_fma_f32 v%d, v%d, s%d, v%d" % (vS + 8 * t + 4 + r, vS + 8 * t + 4 + r, sScale, vBc + r))
        b = vS + 8 * t
        k.e("v_max3_f32 v%d, v%d, v%d, v%d" % (vMx + t, b, b + 1, b + 2))
        k.e("v_max3_f32 v%d, v%d, v%d, v%d" % (vMx + t, vMx + t, b + 3, b + 4))
        k.e("v_max3_f32 v%d, v%d, v%d, v%d" % (vMx + t, vMx + t, b + 5, b + 6))
        k.e("v_max_f32 v%d, v%d, v%d" % (vMx + t, vMx + t, b + 7))
    for op in ("v_permlane32_swap_b32", "v_permlane16_swap_b32"):
        for t in range(4):
            k.e("v_mov_b32 v%d, v%d" % (vMy + t, vMx + t))
        k.e("s_nop 1")
        for t in range(4):
            k.e("%s v%d, v%d" % (op, vMx + t, vMy + t))
        for t in range(4):
            k.e("v_max_f32 v%d, v%d, v%d" % (vMx + t, vMx + t, vMy + t))
    for t in range(4):
        b = vS + 8 * t
        for i in range(8):
            k.e("v_sub_f32 v%d, v%d, v%d" % (b + i, b + i, vMx + t))
        for i in range(8):
            k.e("v_exp_f32 v%d, v%d" % (b + i, b + i))
        k.e("s_nop 0")
        k.e("v_add_f32 v%d, v%d, v%d" % (vSum + t, b, b + 1))
        for i in range(2, 8):
            k.e("v_add_f32 v%d, v%d, v%d" % (vSum + t, vSum + t, b + i))
    vP = vE + 12
    for t in range(4):
        b = vS + 8 * t
        for i in range(4):
            k.e("v_cvt_pk_bf16_f32 v%d, v%d, v%d" % (vP + 4 * t + i, b + 2 * i, b + 2 * i + 1))
    for op in ("v_permlane32_swap_b32", "v_permlane16_swap_b32"):
        for t in range(4):
            k.e("v_mov_b32 v%d, v%d" % (vMy + t, vSum + t))
        k.e("s_nop 1")
        for t in range(4):
            k.e("%s v%d, v%d" % (op, vSum + t, vMy + t))
        for t in range(4):
            k.e("v_add_f32 v%d, v%d, v%d" % (vSum + t, vSum + t, vMy + t))
    vOa = vE + 28
    for t in range(4):
        k.e("v_mfma_f32_16x16x16_bf16 %s, %s, %s, 0" % (vr(vOa + 4 * t, 4), vr(vVb + 2 * t, 2), vr(vP + 4 * t, 2)))
    for t in range(4):
        k.e("v_mfma_f32_16x16x16_bf16 %s, %s, %s, %s" % (vr(vOa + 4 * t, 4), vr(vVb + 2 * (t + 1), 2), vr(vP + 4 * t + 2, 2), vr(vOa + 4 * t, 4)))
    for t in range(4):
        k.e("v_rcp_f32 v%d, v%d" % (vSum + t, vSum + t))
    if MERGE:
        k.e("v_and_b32 v%d, 15, v%d" % (vT0, vL))
        k.e("v_mul_u32_u24 v%d, 144, v%d" % (vT0, vT0))
        k.e("v_lshrrev_b32 v%d, 4, v%d" % (vT1, vL))
        k.e("v_lshl_add_u32 v%d, v%d, 3, v%d" % (vT0, vT1, vT0))
        k.e("s_lshl_b32 s3, s%d, 5" % sW)
        k.e("v_add_u32 v%d, s3, v%d" % (vT0, vT0))
        k.e("s_nop 7")
        for t in range(4):
            for r in range(4):
                k.e("v_mul_f32 v%d, v%d, v%d" % (vOa + 4 * t + r, vOa + 4 * t + r, vSum + t))
            k.e("v_cvt_pk_bf16_f32 v%d, v%d, v%d" % (vP + 2 * t, vOa + 4 * t, vOa + 4 * t + 1))
            k.e("v_cvt_pk_bf16_f32 v%d, v%d, v%d" % (vP + 2 * t + 1, vOa + 4 * t + 2, vOa + 4 * t + 3))
            k.e("ds_write_b64 v%d, %s offset:%d" % (vT0, vr(vP + 2 * t, 2), 16 * 144 * t))
        k.e("v_lshrrev_b32 v%d, 3, v%d" % (vT1, vL))
        k.e("v_mul_u32_u24 v%d, 144, v%d" % (vT1, vT1))
        k.e("v_and_b32 v%d, 7, v%d" % (vT3, vL))
        k.e("v_lshl_add_u32 v%d, v%d, 4, v%d" % (vT1, vT3, vT1))
        k.e("s_mul_i32 s3, s%d, %d" % (sW, 16 * 144))
        k.e("v_add_u32 v%d, s3, v%d" % (vT1, vT1))
        k.e("v_lshrrev_b32 v%d, 3, v%d" % (vT2, vL))
        k.e("s_lshl_b32 s3, s%d, 6" % sRB)
        k.e("s_lshl_b32 s%d, s%d, 4" % (sT, sW))
        k.e("s_add_u32 s3, s3, s%d" % sT)
        k.e("v_add_u32 v%d, s3, v%d" % (vT2, vT2))
        k.e("v_lshlrev_b32 v%d, 10, v%d" % (vT2, vT2))
        k.e("v_and_b32 v%d, 7, v%d" % (vT3, vL))
        k.e("v_lshl_add_u32 v%d, v%d, 4, v%d" % (vT2, vT3, vT2))
        k.e("s_lshl_b32 s3, s%d, 7" % sHG)
        k.e("v_add_u32 v%d, s3, v%d" % (vT2, vT2))
        k.e("s_waitcnt lgkmcnt(0)")
        k.e("s_barrier")
        k.e("ds_read_b128 %s, v%d" % (vr(vOa, 4), vT1))
        k.e("ds_read_b128 %s, v%d offset:%d" % (vr(vOa + 4, 4), vT1, 8 * 144))
        k.e("s_mov_b32 s3, 8192")
        k.e("s_waitcnt lgkmcnt(1)")
        k.vmem("buffer_store_dwordx4 %s, v%d, %s, 0 offen sc1" % (vr(vOa, 4), vT2, sr(S_C, 4)), "st")
        k.e("s_waitcnt lgkmcnt(0)")
        k.vmem("buffer_store_dwordx4 %s, v%d, %s, s3 offen sc1" % (vr(vOa + 4, 4), vT2, sr(S_C, 4)), "st")
    else:
        k.e("v_and_b32 v%d, 15, v%d" % (vT0, vL))
        k.e("s_lshl_b32 s3, s%d, 6" % sRB)
        k.e("v_add_u32 v%d, s3, v%d" % (vT0, vT0))
        k.e("v_lshlrev_b32 v%d, 10, v%d" % (vT0, vT0))
        k.e("v_lshrrev_b32 v%d, 4, v%d" % (vT1, vL))
        k.e("v_lshl_add_u32 v%d, v%d, 3, v%d" % (vT0, vT1, vT0))
        k.e("s_lshl_b32 s3, s%d, 2" % sHG)
        k.e("s_add_u32 s3, s3, s%d" % sW)
        k.e("s_lshl_b32 s3, s3, 5")
        k.e("v_add_u32 v%d, s3, v%d" % (vT0, vT0))
        k.e("s_nop 3")
        for t in range(4):
            for r in range(4):
                k.e("v_mul_f32 v%d, v%d, v%d" % (vOa + 4 * t + r, vOa + 4 * t + r, vSum + t))
            k.e("v_cvt_pk_bf16_f32 v%d, v%d, v%d" % (vP + 2 * t, vOa + 4 * t, vOa + 4 * t + 1))
            k.e("v_cvt_pk_bf16_f32 v%d, v%d, v%d" % (vP + 2 * t + 1, vOa + 4 * t + 2, vOa + 4 * t + 3))
            k.e("s_mov_b32 s3, %d" % (t * 16384))
            k.vmem("buffer_store_dwordx2 %s, v%d, %s, s3 offen%s" % (vr(vP + 2 * t, 2), vT0, sr(S_C, 4), " sc1" if MERGE else ""), "st")
    k.stamp(13)
    if MERGE:
        phase2(k, name, sW, sRB, sHG)
    k.stamp_rt(14)
    if MERGE3:
        k.e("s_waitcnt vmcnt(0)")
        k.e("s_barrier")
        if DIAG:
            k.e("v_mov_b32 v250, v0")
    k.dump(0, sW, 15 if not MERGE else 20)
    if MERGE3:
        if DIAG:
            k.e("v_mov_b32 v0, v250")
        k.e("s_branch k3_kernel")
    else:
        k.e("s_endpgm")

    k.lab("%s_loader" % name)
    vRa = 10
    vOne = 12
    vF = 16
    vG = 28
    vR = 40
    k.e("s_and_b32 s%d, s%d, 1" % (sT, sW))
    k.e("s_lshl_b32 s3, s%d, 2" % sT)
    k.e("v_and_b32 v2, 15, v1")
    k.e("v_lshrrev_b32 v3, 4, v1")
    k.e("v_lshrrev_b32 v9, 1, v2")
    k.e("v_xor_b32 v9, v9, v3")
    k.e("v_xor_b32 v9, s3, v9")
    k.e("v_lshlrev_b32 v2, 7, v2")
    k.e("v_lshl_add_u32 v%d, v9, 4, v2" % vRa)
    k.e("v_add_u32 v%d, %d, v%d" % (vRa + 1, 2 * SLOT, vRa))
    for i in range(4):
        k.e("v_mov_b32 v%d, 0x3f803f80" % (vOne + i))

    def stats_stage(i, tiles):
        slot = i % NS
        for n, t in enumerate(tiles):
            k.lds("ds_read_b128 %s, v%d offset:%d" % (vr(vF + 4 * n, 4), vRa + slot // 2, (slot % 2) * SLOT + 2048 * t), ("f", n))
        for n, t in enumerate(tiles):
            k.wait_lds(("f", n))
            k.e("v_mfma_f32_16x16x32_bf16 %s, %s, %s, %s" % (vr(vG + 4 * n, 4), vr(vF + 4 * n, 4), vr(vF + 4 * n, 4), "0" if i == 0 else vr(vG + 4 * n, 4)))
            k.e("v_mfma_f32_16x16x32_bf16 %s, %s, %s, %s" % (vr(vR + 4 * n, 4), vr(vF + 4 * n, 4), vr(vOne, 4), "0" if i == 0 else vr(vR + 4 * n, 4)))

    def stats_finish(tiles):
        k.e("v_and_b32 v2, 3, v1")
        k.e("v_cmp_eq_u32 s[48:49], 1, v2")
        k.e("v_cmp_eq_u32 s[50:51], 2, v2")
        k.e("v_cmp_eq_u32 s[52:53], 3, v2")
        k.e("v_bfe_u32 v2, v1, 2, 2")
        k.e("v_lshrrev_b32 v3, 4, v1")
        k.e("v_cmp_eq_u32 vcc, v2, v3")
        k.e("s_mul_i32 s3, s%d, 1280" % sT)
        k.e("s_add_u32 s3, s3, %d" % ST_BASE)
        k.e("v_and_b32 v2, 15, v1")
        k.e("v_lshlrev_b32 v2, 2, v2")
        k.e("v_add_u32 v2, s3, v2")
        k.e("s_nop 3")
        for n, t in enumerate(tiles):
            for base in (vG + 4 * n, vR + 4 * n):
                k.e("v_cndmask_b32_e64 v%d, v%d, v%d, s[48:49]" % (base, base, base + 1))
                k.e("v_cndmask_b32_e64 v%d, v%d, v%d, s[50:51]" % (base, base, base + 2))
                k.e("v_cndmask_b32_e64 v%d, v%d, v%d, s[52:53]" % (base, base, base + 3))
        k.e("s_and_saveexec_b64 s[38:39], vcc")
        for n, t in enumerate(tiles):
            k.e("ds_write_b32 v2, v%d offset:%d" % (vR + 4 * n, 64 * t))
            k.e("ds_write_b32 v2, v%d offset:%d" % (vG + 4 * n, 320 + 64 * t))
        k.e("s_mov_b64 exec, s[38:39]")
        k.e("s_waitcnt lgkmcnt(0)")
        k.e("s_barrier")

    k.e("s_cmp_ge_u32 s%d, 6" % sW)
    k.e("s_cbranch_scc1 %s_loadw" % name)
    k.e("s_cmp_eq_u32 s%d, 5" % sW)
    k.e("s_cbranch_scc1 %s_pref" % name)
    k.vm = []
    k.lq = []
    srd(k, S_A, 44, 2 << 20)
    vOff = 4
    vPo = 56
    k.e("s_lshl_b32 s3, s%d, 6" % sRB)
    k.e("s_sub_u32 s3, s3, 16")
    k.e("v_lshrrev_b32 v2, 3, v1")
    k.e("v_add_u32 v2, s3, v2")
    k.e("v_and_b32 v3, 7, v1")
    k.e("v_lshrrev_b32 v9, 4, v1")
    k.e("v_xor_b32 v3, v3, v9")
    for p in range(10):
        k.e("v_add_u32 v9, %d, v2" % (8 * p))
        k.e("v_max_i32 v9, 0, v9")
        k.e("v_lshlrev_b32 v9, 10, v9")
        if p & 1:
            k.e("v_xor_b32 v%d, 4, v3" % (vPo + p))
            k.e("v_lshl_add_u32 v%d, v%d, 4, v9" % (vPo + p, vPo + p))
        else:
            k.e("v_lshl_add_u32 v%d, v3, 4, v9" % (vPo + p))

    def lda(st):
        slot = st % NS
        k.e("s_lshl_b32 s%d, s%d, 7" % (sOff, sK))
        k.e("s_add_u32 s%d, s%d, 1" % (sK, sK))
        k.e("s_and_b32 s%d, s%d, 7" % (sK, sK))
        for p in range(10):
            k.e("s_mov_b32 m0, %d" % (slot * SLOT + p * 1024))
            k.e("s_nop 0")
            k.vmem("buffer_load_dwordx4 v%d, %s, s%d offen lds" % (vPo + p, sr(S_A, 4), sOff), ("s", st))

    k.stamp(2)
    lda(0)
    if not EARLY1:
        lda(1)
    k.stamp(3)
    for i in range(8):
        k.wait_vm(("s", i))
        k.stamp(4 + i)
        k.e("s_barrier")
        if i == 0 and EARLY1:
            lda(1)
        if i + 2 < 8:
            lda(i + 2)
        stats_stage(i, [0, 1, 2])
    stats_finish([0, 1, 2])
    k.e("s_branch %s_fin" % name)
    k.lab("%s_pref" % name)
    k.vm = []
    k.lq = []
    TLBI = int(os.environ.get("TLBI", "-1"))

    def tlb_touch():
        k.e("s_load_dwordx2 s[26:27], s[0:1], %d" % KA_OUT)
        srd(k, S_A, 4, 14 << 20)
        k.e("v_lshlrev_b32 v4, 16, v1")
        for n in range(4):
            k.e("s_mov_b32 s3, %d" % (n * (4 << 20)))
            k.vmem("buffer_load_dword v58, v4, %s, s3 offen" % sr(S_A, 4), "pf")
        k.e("s_waitcnt lgkmcnt(0)")
        srd(k, S_A, 26, 2 << 20)
        k.vmem("buffer_load_dword v58, v4, %s, 0 offen" % sr(S_A, 4), "pf")
    k.stamp(2)
    k.stamp(3)
    for i in range(8):
        k.stamp(4 + i)
        k.e("s_barrier")
        if i == TLBI:
            tlb_touch()
        if i == 7 and MERGE:
            k.wait_lds_all()
            k.e("s_memrealtime s[56:57]")
            k.e("s_waitcnt lgkmcnt(0)")
        if i == int(os.environ.get("PFI", "6")) and PREF:
            srd(k, S_A, 6, 512 * 1024)
            k.e("v_lshrrev_b32 v4, 2, v1")
            k.e("v_lshlrev_b32 v4, 10, v4")
            k.e("v_and_b32 v3, 3, v1")
            k.e("v_lshl_add_u32 v4, v3, 7, v4")
            k.e("s_lshr_b32 s%d, s2, 3" % sOff)
            k.e("s_lshl_b32 s%d, s%d, 14" % (sOff, sOff))
            k.e("s_and_b32 s%d, s2, 1" % sM)
            k.e("s_lshl_b32 s%d, s%d, 9" % (sM, sM))
            k.e("s_add_u32 s%d, s%d, s%d" % (sOff, sOff, sM))
            k.vmem("buffer_load_dword v56, v4, %s, s%d offen" % (sr(S_A, 4), sOff), "pf")
            k.e("v_lshlrev_b32 v2, 7, v1")
            k.e("s_mul_i32 s3, s2, 7168")
            k.e("v_cmp_gt_u32 vcc, 56, v1")
            k.e("s_and_saveexec_b64 s[38:39], vcc")
            for ptr in ((20, 22) if not os.environ.get("NOCOLDGU") else ()):
                srd(k, S_B, ptr, 512 * 3584)
                k.vmem("buffer_load_dword v57, v2, %s, s3 offen" % sr(S_B, 4), "pf")
            k.e("s_mov_b64 exec, s[38:39]")
        stats_stage(i, [0, 1, 2])
    stats_finish([0, 1, 2])
    k.lab("%s_fin" % name)
    k.e("s_mul_i32 s3, s%d, 160" % sT)
    k.e("s_add_u32 s3, s3, %d" % ST_BASE)
    k.e("v_lshlrev_b32 v2, 2, v1")
    k.e("v_add_u32 v2, s3, v2")
    k.e("v_cmp_gt_u32 vcc, 40, v1")
    k.e("s_and_saveexec_b64 s[38:39], vcc")
    k.e("ds_read_b32 v3, v2")
    k.e("ds_read_b32 v9, v2 offset:320")
    k.e("ds_read_b32 v4, v2 offset:1280")
    k.e("ds_read_b32 v5, v2 offset:1600")
    k.e("s_waitcnt lgkmcnt(0)")
    k.e("v_add_f32 v3, v3, v4")
    k.e("v_add_f32 v9, v9, v5")
    k.e("v_mul_f32 v3, 0x3b000000, v3")
    k.e("v_mul_f32 v9, 0x3b000000, v9")
    k.e("v_fma_f32 v9, -v3, v3, v9")
    k.e("v_max_f32 v9, 0, v9")
    k.e("v_add_f32 v9, 0x3727c5ac, v9")
    k.e("v_rsq_f32 v9, v9")
    k.e("s_nop 0")
    k.e("v_mul_f32 v3, v3, v9")
    k.e("v_sub_f32 v3, 0, v3")
    k.e("ds_write_b32 v2, v9 offset:640")
    k.e("ds_write_b32 v2, v3 offset:960")
    k.e("s_waitcnt lgkmcnt(0)")
    k.e("s_mov_b64 exec, s[38:39]")
    k.e("s_barrier")
    k.stamp(12)
    if MERGE:
        k.e("s_barrier")
        k.e("s_barrier")
        k.e("s_cmp_eq_u32 s%d, 4" % sW)
        k.e("s_cbranch_scc1 %s_nopoll" % name)
        srd(k, S_A, 4, 256 * 128, WS_FLAG)
        k.e("s_lshl_b32 s3, s%d, 3" % sRB)
        k.e("s_add_u32 s%d, s3, s%d" % (sOff, sHG))
        k.e("s_lshl_b32 s%d, s%d, 7" % (sOff, sOff))
        k.e("v_mov_b32 v2, s%d" % sOff)
        k.e("s_lshl_b32 s3, s3, 7")
        k.e("v_and_b32 v3, 7, v1")
        k.e("v_lshlrev_b32 v3, 7, v3")
        k.e("v_add_u32 v3, s3, v3")
        k.e("s_waitcnt lgkmcnt(0)")
        k.e("v_mov_b32 v4, s56")
        k.e("v_mov_b32 v5, s57")
        k.e("v_xor_b32 v6, 0x5bd1e995, v4")
        k.e("v_xor_b32 v7, 0x9e3779b9, v5")
        k.e("v_cmp_eq_u32 vcc, 0, v1")
        k.e("s_and_saveexec_b64 s[38:39], vcc")
        k.e("buffer_store_dwordx4 v[4:7], v2, %s, 0 offen sc1" % sr(S_A, 4))
        k.e("s_mov_b64 exec, s[38:39]")
        k.e("s_sub_u32 s54, s54, 200")
        k.e("s_subb_u32 s55, s55, 0")
        k.e("s_mov_b32 s%d, 0" % sM)
        k.lab("%s_poll" % name)
        k.e("buffer_load_dwordx4 v[8:11], v3, %s, 0 offen sc1" % sr(S_A, 4))
        k.e("s_waitcnt vmcnt(0)")
        k.e("v_xor_b32 v10, v10, v8")
        k.e("v_xor_b32 v11, v11, v9")
        k.e("v_subrev_co_u32 v8, vcc, s54, v8")
        k.e("v_mov_b32 v12, s55")
        k.e("s_nop 0")
        k.e("v_subb_co_u32 v9, vcc, v9, v12, vcc")
        k.e("v_xor_b32 v10, 0x5bd1e995, v10")
        k.e("v_xor_b32 v11, 0x9e3779b9, v11")
        k.e("v_lshrrev_b32 v8, 20, v8")
        k.e("v_or_b32 v8, v8, v9")
        k.e("v_or3_b32 v8, v8, v10, v11")
        k.e("v_cmp_eq_u32 vcc, 0, v8")
        k.e("s_add_u32 s%d, s%d, 1" % (sM, sM))
        k.e("s_cmp_eq_u64 vcc, exec")
        k.e("s_cbranch_scc1 %s_nopoll" % name)
        k.e("s_cmp_lt_u32 s%d, 0x10000" % sM)
        k.e("s_cbranch_scc1 %s_poll" % name)
        k.lab("%s_nopoll" % name)
        k.e("s_barrier")
        k.e("s_barrier")
    if MERGE3:
        k.e("s_barrier")
        k.e("s_cmp_eq_u32 s%d, 4" % sW)
        k.e("s_cbranch_scc1 k3_kernel")
        srd(k, S_A, 4, 256 * 128, WS_FLAG + 32768)
        k.e("v_mov_b32 v4, s56")
        k.e("v_mov_b32 v5, s57")
        k.e("v_xor_b32 v6, 0x5bd1e995, v4")
        k.e("v_xor_b32 v7, 0x9e3779b9, v5")
        k.e("v_cmp_eq_u32 vcc, 0, v1")
        k.e("s_and_saveexec_b64 s[38:39], vcc")
        k.e("buffer_store_dwordx4 v[4:7], v2, %s, 0 offen sc1" % sr(S_A, 4))
        k.e("s_mov_b64 exec, s[38:39]")
        k.e("s_branch k3_kernel")
    k.e("s_waitcnt vmcnt(0)")
    k.stamp(13)
    k.stamp_rt(14)
    k.dump(0, sW, 15)
    k.e("s_endpgm")

    k.lab("%s_loadw" % name)
    k.vm = []
    k.lq = []
    srd(k, S_B, 46, 512 * 3072)
    vWe, vWo = 4, 5
    k.e("v_lshrrev_b32 v2, 3, v1")
    k.e("v_mul_u32_u24 v%d, 3072, v2" % vWe)
    k.e("v_and_b32 v2, 1, v1")
    k.e("v_lshl_add_u32 v%d, v2, 4, v%d" % (vWe, vWe))
    k.e("s_lshl_b32 s3, s%d, 7" % sHG)
    k.e("v_add_u32 v%d, s3, v%d" % (vWe, vWe))
    k.e("v_bfe_u32 v2, v1, 1, 2")
    k.e("v_bfe_u32 v3, v1, 4, 1")
    k.e("v_xor_b32 v2, v2, v3")
    k.e("v_xor_b32 v3, 2, v2")
    k.e("v_lshl_add_u32 v%d, v3, 5, v%d" % (vWo, vWe))
    k.e("v_lshl_add_u32 v%d, v2, 5, v%d" % (vWe, vWe))
    k.e("s_mul_i32 s%d, s%d, %d" % (sM, sT, 12 * 1024))
    k.e("s_add_u32 s%d, s%d, %d" % (sM, sM, A_BYTES))
    sG = 82
    for p in range(12):
        p0, p1 = p, 12 + p
        g0 = (p0 // 8) * 1024 + (p0 % 8) * 8 * 3072
        g1 = (p1 // 8) * 1024 + (p1 % 8) * 8 * 3072
        k.e("s_cmp_eq_u32 s%d, 0" % sT)
        k.e("s_mov_b32 s%d, %d" % (sG + p, g1))
        k.e("s_cmov_b32 s%d, %d" % (sG + p, g0))

    def ldw(st):
        slot = st % NS
        k.e("s_mul_i32 s%d, s%d, %d" % (sKb, sK, 64 * 3072))
        k.e("s_add_u32 s%d, s%d, 1" % (sK, sK))
        k.e("s_and_b32 s%d, s%d, 7" % (sK, sK))
        for p in range(12):
            k.e("s_add_u32 m0, s%d, %d" % (sM, slot * SLOT + p * 1024))
            k.e("s_add_u32 s%d, s%d, s%d" % (sOff, sG + p, sKb))
            k.vmem("buffer_load_dwordx4 v%d, %s, s%d offen lds" % (vWo if p & 1 else vWe, sr(S_B, 4), sOff), ("s", st))

    k.stamp(2)
    ldw(0)
    if not EARLY1:
        ldw(1)
    k.stamp(3)
    for i in range(8):
        k.wait_vm(("s", i))
        k.stamp(4 + i)
        k.e("s_barrier")
        if i == 0 and EARLY1:
            ldw(1)
        stats_stage(i, [3, 4])
        if i + 2 < 8:
            ldw(i + 2)
    stats_finish([3, 4])
    k.e("s_barrier")
    k.stamp(12)
    if MERGE:
        srd(k, S_B, 6, 512 * 1024)
        k.e("v_lshrrev_b32 v2, 3, v1")
        k.e("v_lshlrev_b32 v%d, 10, v2" % vWe)
        k.e("v_and_b32 v2, 1, v1")
        k.e("v_lshl_add_u32 v%d, v2, 4, v%d" % (vWe, vWe))
        k.e("s_lshl_b32 s3, s%d, 7" % sHG)
        k.e("v_add_u32 v%d, s3, v%d" % (vWe, vWe))
        k.e("v_bfe_u32 v2, v1, 1, 2")
        k.e("v_bfe_u32 v3, v1, 4, 1")
        k.e("v_xor_b32 v2, v2, v3")
        k.e("v_xor_b32 v3, 2, v2")
        k.e("v_lshl_add_u32 v%d, v3, 5, v%d" % (vWo, vWe))
        k.e("v_lshl_add_u32 v%d, v2, 5, v%d" % (vWe, vWe))
        k.e("s_lshl_b32 s%d, s%d, 18" % (sOff, sT))
        k.e("s_lshl_b32 s%d, s%d, 16" % (sM, sT))
        k.e("s_barrier")
        k.e("s_barrier")
        for ww in range(2):
            for pc in range(16):
                k.e("s_add_u32 m0, s%d, %d" % (sM, ww * 32768 + 16384 + pc * 1024))
                k.e("s_nop 0")
                k.vmem("buffer_load_dwordx4 v%d, %s, s%d offen lds" % (vWo if pc & 1 else vWe, sr(S_B, 4), sOff), "wo")
                k.e("s_add_u32 s%d, s%d, 8192" % (sOff, sOff))
        k.e("s_waitcnt vmcnt(0)")
        k.e("s_barrier")
        k.e("s_barrier")
        if MERGE3:
            k.e("s_barrier")
            k.e("s_branch k3_kernel")
    k.e("s_waitcnt vmcnt(0)")
    k.stamp(13)
    k.stamp_rt(14)
    k.dump(0, sW, 15)
    k.lab("%s_end" % name)
    k.e("s_endpgm")
    if not os.environ.get("NOREORDER"):
        L = k.lines
        i0 = L.index("  s_cbranch_scc1 %s_loader" % name)
        i1 = L.index("%s_loader:" % name)
        comp = L[i0 + 1:i1]
        iw0 = L.index("%s_loadw:" % name)
        iw1 = L.index("%s_end:" % name)
        ib = L.index("  s_cbranch_scc1 %s_loadw" % name)
        head = L[:i0] + ["  s_cbranch_scc0 %s_compute" % name] + L[i1:ib] + ["  s_cbranch_scc0 %s_loada" % name]
        wl = L[iw0:iw1] + ["  s_branch %s_end" % name]
        al = ["%s_loada:" % name] + L[ib + 1:iw0]
        k.lines = head + wl + al + L[iw1:] + ["%s_compute:" % name] + comp
    return k.text(), nv, LDS
```

```python
import sys

import os
import re
DIAG = bool(os.environ.get("DIAG"))
ROT = not os.environ.get("NOROT")
PREF = not os.environ.get("NOPREF")
PREF2 = bool(os.environ.get("PREF2"))
MAP48 = not os.environ.get("NOMAP48")
PKN = bool(os.environ.get("PKN"))
MERGE = not os.environ.get("NOMERGE")
MERGE3 = MERGE and not os.environ.get("NOMERGE3")
MERGE4 = MERGE3 and not os.environ.get("NOMERGE4")
NPRE = int(os.environ.get("NPRE", "3"))
RESLATE = not os.environ.get("NORESLATE")
RESK = int(os.environ.get("RESK", "3"))
EARLY = bool(os.environ.get("EARLY"))
EARLY1 = bool(os.environ.get("EARLY1"))
STF = os.environ.get("STF", "")
STF2 = os.environ.get("STF2", "")
V_WAIT = os.environ.get("V_WAIT", "2")
V_ARD = int(os.environ.get("V_ARD", "3"))
V_NRM = [int(c) for c in os.environ.get("V_NRM", "3333332")]
NAME = "sequential_preLN__sliding_local_dilated__glu_gated_geglu__prompt"

WS_O = 0
WS_H = 2 << 20
WS_HH = 4 << 20
WS_HST = 12 << 20
WS_FLAG = 13 << 20

KA_X, KA_WQKV, KA_WO, KA_BX, KA_WG, KA_WU, KA_WD, KA_OUT, KA_DBG, KA_WS = [8 * i for i in range(10)]


class K:
    def __init__(self):
        self.lines = []
        self.vm = []
        self.lq = []

    def e(self, s):
        m = re.search(r"offset:(\d+)", s)
        if m:
            lim = 4096 if s.startswith("buffer_") else 65536
            assert int(m.group(1)) < lim, s
        self.lines.append("  " + s)

    def lab(self, s):
        self.lines.append(s + ":")

    def c(self, s):
        self.lines.append("  ; " + s)

    def vmem(self, s, tag):
        self.e(s)
        self.vm.append(tag)

    def wait_vm(self, tag):
        idx = max((i for i, t in enumerate(self.vm) if t == tag), default=None)
        if idx is None:
            return
        n = len(self.vm) - 1 - idx
        assert n <= 63, n
        self.e("s_waitcnt vmcnt(%d)" % n)
        self.vm = self.vm[idx + 1:]

    def lds(self, s, tag):
        self.e(s)
        self.lq.append(tag)

    def wait_lds(self, tag):
        idx = max((i for i, t in enumerate(self.lq) if t == tag), default=None)
        if idx is None:
            return False
        n = len(self.lq) - 1 - idx
        if n > 15:
            n = 15
            idx = len(self.lq) - 1 - n
        self.e("s_waitcnt lgkmcnt(%d)" % n)
        self.lq = self.lq[idx + 1:]
        return True

    def wait_lds_all(self):
        self.e("s_waitcnt lgkmcnt(0)")
        self.lq = []

    def wait_vm_all(self):
        self.e("s_waitcnt vmcnt(0)")
        self.vm = []

    def text(self):
        return "\n".join(self.lines) + "\n"

    def stamp(self, i):
        if not DIAG:
            return
        self.e("s_memtime s[58:59]")
        self.e("s_waitcnt lgkmcnt(0)")
        self.lq = []
        self.e("s_mov_b32 s%d, s58" % (64 + i))

    def stamp_rt(self, i):
        if not DIAG:
            return
        self.e("s_memrealtime s[58:59]")
        self.e("s_waitcnt lgkmcnt(0)")
        self.e("s_mov_b32 s%d, s58" % (64 + i))

    def dump(self, kidx, sW, n):
        if not DIAG:
            return
        self.e("s_add_u32 s60, s4, 0x%x" % ((32 << 20) + (kidx << 20)))
        self.e("s_addc_u32 s61, s5, 0")
        self.e("s_mov_b32 s62, 0x100000")
        self.e("s_mov_b32 s63, 0x00020000")
        self.e("s_lshl_b32 s58, s2, 3")
        self.e("s_add_u32 s58, s58, s%d" % sW)
        self.e("s_lshl_b32 s58, s58, 7")
        self.e("v_mov_b32 v0, s58")
        for i in range(n):
            self.e("v_mov_b32 v1, s%d" % (64 + i))
            self.e("buffer_store_dword v1, v0, s[60:63], 0 offen offset:%d" % (4 * i))
            self.e("s_nop 1")


def vr(a, n=1):
    return "v%d" % a if n == 1 else "v[%d:%d]" % (a, a + n - 1)


def sr(a, n=1):
    return "s%d" % a if n == 1 else "s[%d:%d]" % (a, a + n - 1)


def srd(k, d, ptr, nbytes, off=0):
    if off:
        k.e("s_add_u32 s%d, s%d, 0x%x" % (d, ptr, off))
        k.e("s_addc_u32 s%d, s%d, 0" % (d + 1, ptr + 1))
    else:
        k.e("s_mov_b32 s%d, s%d" % (d, ptr))
        k.e("s_mov_b32 s%d, s%d" % (d + 1, ptr + 1))
    k.e("s_mov_b32 s%d, 0x%x" % (d + 2, nbytes))
    k.e("s_mov_b32 s%d, 0x00020000" % (d + 3))


def header(k, name):
    k.lines.append(".globl %s" % name)
    k.lines.append(".p2align 8")
    k.lines.append(".type %s,@function" % name)
    k.lab(name)


def descriptor(name, nvgpr, nsgpr=96):
    nv = (nvgpr + 7) // 8 * 8
    return """.p2align 6
.amdhsa_kernel %s
  .amdhsa_next_free_vgpr %d
  .amdhsa_next_free_sgpr %d
  .amdhsa_accum_offset %d
  .amdhsa_group_segment_fixed_size 0
  .amdhsa_kernarg_size 80
  .amdhsa_user_sgpr_count 2
  .amdhsa_user_sgpr_kernarg_segment_ptr 1
  .amdhsa_system_sgpr_workgroup_id_x 1
.end_amdhsa_kernel
""" % (name, nv, nsgpr, min(nv, 256))


def gen_t2(name, Kdim, lda, a_src, b_ka, r_src, c_dst, stats, kidx=0, LOOK=3, skip=''):
    k = K()
    M4 = MERGE4 and Kdim == 1792
    SC = " sc1" if M4 else ""
    if M4:
        k.lab(name)
    else:
        header(k, name)
    Kw = Kdim // 4
    ns = Kw // 32
    nu = ns // 2
    DA = min(nu, 3)
    DB = min(ns, 4)
    BOFF = DA * 8192
    S_A, S_B, S_R, S_C, S_ST = 8, 12, 16, 20, 24
    sW, sRB, sCB, sT, sLB = 28, 29, 30, 31, 32
    sTile = 36
    sBoff = 40
    sAoff = 41
    sK = 42
    sKb = 43
    sKB = 50
    vL, vAe, vBe, vBo = 1, 2, 3, 4
    vTr = 5
    vRo = 9
    vT0, vT1, vT2 = 10, 11, 12
    vXa = 13
    vAo = 15
    vRes = 16
    vAcc = 24
    vBf = 88
    vAf = 120
    vCo = 156
    nv = 160

    k.e("s_cmp_ge_u32 s2, 256")
    k.e("s_cbranch_scc1 %s_end" % name)
    k.stamp_rt(0)
    k.stamp(1)
    k.e("s_load_dwordx2 s[4:5], s[0:1], %d" % KA_WS)
    k.e("s_load_dwordx2 s[6:7], s[0:1], %d" % b_ka)
    if stats:
        k.e("s_load_dwordx4 s[52:55], s[0:1], %d" % KA_WG)
    nxt = 44
    for src in (a_src, r_src, c_dst):
        if src[0] == 'ka':
            k.e("s_load_dwordx2 s[%d:%d], s[0:1], %d" % (nxt, nxt + 1, src[1]))
            nxt += 2
    k.e("v_lshrrev_b32 v%d, 6, v0" % vT0)
    k.e("v_and_b32 v%d, 63, v0" % vL)
    k.e("v_readfirstlane_b32 s%d, v%d" % (sW, vT0))
    if MAP48 and ns == 14:
        k.e("s_and_b32 s3, s2, 7")
        k.e("s_lshl_b32 s%d, s3, 2" % sRB)
        k.e("s_lshr_b32 s3, s2, 6")
        k.e("s_add_u32 s%d, s%d, s3" % (sRB, sRB))
        k.e("s_lshr_b32 s%d, s2, 3" % sT)
        k.e("s_and_b32 s%d, s%d, 7" % (sCB, sT))
        k.e("s_lshl_b32 s%d, s3, 1" % sK)
        k.e("s_add_u32 s%d, s%d, s%d" % (sK, sK, sCB))
        k.e("s_cmp_ge_u32 s%d, 7" % sK)
        k.e("s_cselect_b32 s3, 7, 0")
        k.e("s_sub_u32 s%d, s%d, s3" % (sK, sK))
    else:
        k.e("s_and_b32 s3, s2, 7")
        k.e("s_lshr_b32 s%d, s2, 3" % sT)
        k.e("s_lshr_b32 s%d, s3, 1" % sRB)
        k.e("s_lshl_b32 s%d, s%d, 3" % (sRB, sRB))
        k.e("s_lshr_b32 s%d, s%d, 2" % (sCB, sT))
        k.e("s_add_u32 s%d, s%d, s%d" % (sRB, sRB, sCB))
        k.e("s_and_b32 s%d, s3, 1" % sCB)
        k.e("s_lshl_b32 s%d, s%d, 2" % (sCB, sCB))
        k.e("s_and_b32 s%d, s%d, 3" % (sT, sT))
        k.e("s_add_u32 s%d, s%d, s%d" % (sCB, sCB, sT))
        k.e("s_lshr_b32 s3, s2, 5")
        if nu == 7:
            k.e("s_lshl_b32 s%d, s%d, 1" % (sK, sT))
            k.e("s_add_u32 s%d, s%d, s3" % (sK, sK))
            k.e("s_cmp_ge_u32 s%d, 7" % sK)
            k.e("s_cselect_b32 s3, 7, 0")
            k.e("s_sub_u32 s%d, s%d, s3" % (sK, sK))
        else:
            assert nu == 2
            k.e("s_add_u32 s%d, s%d, s3" % (sK, sT))
            k.e("s_and_b32 s%d, s%d, 1" % (sK, sK))
    if not ROT:
        k.e("s_mov_b32 s%d, 0" % sK)
    k.e("s_mov_b32 s%d, s%d" % (sKB, sK))
    if M4:
        k.e("s_cmp_lt_u32 s%d, 4" % sW)
        k.e("s_cbranch_scc1 %s_main" % name)
        k.e("s_waitcnt lgkmcnt(0)")
        k.e("s_cmp_lg_u32 s%d, 5" % sW)
        k.e("s_cbranch_scc1 %s_nopoll" % name)
        srd(k, S_ST, 4, 256 * 128, WS_FLAG + 65536)
        k.e("s_lshr_b32 s3, s%d, 1" % sRB)
        k.e("s_lshl_b32 s3, s3, 11")
        k.e("v_and_b32 v3, 15, v1")
        k.e("v_lshlrev_b32 v3, 7, v3")
        k.e("v_add_u32 v3, s3, v3")
        k.e("s_mov_b32 s%d, 0" % sT)
        k.lab("%s_poll" % name)
        k.e("buffer_load_dwordx4 v[16:19], v3, %s, 0 offen sc1" % sr(S_ST, 4))
        k.e("s_waitcnt vmcnt(0)")
        k.e("v_xor_b32 v18, v18, v16")
        k.e("v_xor_b32 v19, v19, v17")
        k.e("v_subrev_co_u32 v16, vcc, s54, v16")
        k.e("v_mov_b32 v20, s55")
        k.e("s_nop 0")
        k.e("v_subb_co_u32 v17, vcc, v17, v20, vcc")
        k.e("v_xor_b32 v18, 0x5bd1e995, v18")
        k.e("v_xor_b32 v19, 0x9e3779b9, v19")
        k.e("v_lshrrev_b32 v16, 20, v16")
        k.e("v_or_b32 v16, v16, v17")
        k.e("v_or3_b32 v16, v16, v18, v19")
        k.e("v_cmp_eq_u32 vcc, 0, v16")
        k.e("s_add_u32 s%d, s%d, 1" % (sT, sT))
        k.e("s_cmp_eq_u64 vcc, exec")
        k.e("s_cbranch_scc1 %s_nopoll" % name)
        k.e("s_cmp_lt_u32 s%d, 0x10000" % sT)
        k.e("s_cbranch_scc1 %s_poll" % name)
        k.lab("%s_nopoll" % name)
        k.e("s_barrier")
        k.e("s_barrier")
        k.e("s_endpgm")
        k.lab("%s_main" % name)
    wave_lds = max(BOFF + DB * 4096, 16384)
    k.e("s_mul_i32 s%d, s%d, %d" % (sLB, sW, wave_lds))
    for t in range(4):
        k.e("s_add_u32 s%d, s%d, %d" % (sT, sW, t))
        k.e("s_and_b32 s%d, s%d, 3" % (sT, sT))
        k.e("s_mul_i32 s%d, s%d, %d" % (sTile + t, sT, 16 * lda))
    k.e("s_lshl_b32 s%d, s%d, 6" % (sT, sRB))
    k.e("v_lshrrev_b32 v%d, 3, v%d" % (vT0, vL))
    k.e("v_add_u32 v%d, s%d, v%d" % (vT1, sT, vT0))
    k.e("s_mov_b32 s3, %d" % lda)
    k.e("v_mul_lo_u32 v%d, v%d, s3" % (vAe, vT1))
    k.e("s_mul_i32 s3, s%d, %d" % (sW, Kw * 2))
    k.e("v_add_u32 v%d, s3, v%d" % (vAe, vAe))
    k.e("v_and_b32 v%d, 7, v%d" % (vT0, vL))
    k.e("v_lshrrev_b32 v%d, 4, v%d" % (vT2, vL))
    k.e("v_xor_b32 v%d, v%d, v%d" % (vT0, vT0, vT2))
    k.e("v_xor_b32 v%d, 4, v%d" % (vT1, vT0))
    k.e("v_add_u32 v%d, %d, v%d" % (vAo, 8 * lda, vAe))
    k.e("v_lshl_add_u32 v%d, v%d, 4, v%d" % (vAo, vT1, vAo))
    k.e("v_lshl_add_u32 v%d, v%d, 4, v%d" % (vAe, vT0, vAe))
    k.e("v_and_b32 v%d, 15, v%d" % (vT1, vL))
    k.e("v_lshrrev_b32 v%d, 1, v%d" % (vT0, vT1))
    k.e("v_xor_b32 v%d, v%d, v%d" % (vT0, vT0, vT2))
    k.e("v_lshlrev_b32 v%d, 7, v%d" % (vXa, vT1))
    k.e("v_add_u32 v%d, s%d, v%d" % (vXa, sLB, vXa))
    k.e("v_lshl_add_u32 v%d, v%d, 4, v%d" % (vXa, vT0, vXa))
    k.e("v_xor_b32 v%d, 64, v%d" % (vXa + 1, vXa))
    k.e("s_lshl_b32 s3, s%d, 4" % sW)
    k.e("s_add_u32 s3, s3, s%d" % sT)
    k.e("v_add_u32 v%d, s3, v%d" % (vT1, vT1))
    k.e("v_lshlrev_b32 v%d, 10, v%d" % (vRo, vT1))
    k.e("v_lshl_add_u32 v%d, v%d, 3, v%d" % (vRo, vT2, vRo))
    k.e("s_lshl_b32 s3, s%d, 7" % sCB)
    k.e("v_add_u32 v%d, s3, v%d" % (vRo, vRo))
    k.e("v_lshrrev_b32 v%d, 3, v%d" % (vT0, vL))
    k.e("s_lshl_b32 s%d, s%d, 4" % (sAoff, sW))
    k.e("s_add_u32 s%d, s%d, s%d" % (sAoff, sAoff, sT))
    k.e("v_add_u32 v%d, s%d, v%d" % (vCo, sAoff, vT0))
    k.e("v_lshlrev_b32 v%d, 10, v%d" % (vCo, vCo))
    k.e("v_and_b32 v%d, 7, v%d" % (vT1, vL))
    k.e("v_lshl_add_u32 v%d, v%d, 4, v%d" % (vCo, vT1, vCo))
    k.e("v_add_u32 v%d, s3, v%d" % (vCo, vCo))
    k.e("v_add_u32 v%d, 8192, v%d" % (vCo + 1, vCo))
    k.e("v_lshrrev_b32 v%d, 3, v%d" % (vT0, vL))
    k.e("v_lshlrev_b32 v%d, 10, v%d" % (vBe, vT0))
    k.e("v_and_b32 v%d, 1, v%d" % (vT0, vL))
    k.e("v_lshl_add_u32 v%d, v%d, 4, v%d" % (vBe, vT0, vBe))
    k.e("s_mul_i32 s%d, s%d, %d" % (sT, sW, Kw * 1024))
    k.e("s_add_u32 s3, s3, s%d" % sT)
    k.e("v_add_u32 v%d, s3, v%d" % (vBe, vBe))
    k.e("v_bfe_u32 v%d, v%d, 1, 2" % (vT0, vL))
    k.e("v_bfe_u32 v%d, v%d, 4, 1" % (vT1, vL))
    k.e("v_xor_b32 v%d, v%d, v%d" % (vT0, vT0, vT1))
    k.e("v_xor_b32 v%d, 2, v%d" % (vT1, vT0))
    k.e("v_lshl_add_u32 v%d, v%d, 5, v%d" % (vBo, vT1, vBe))
    k.e("v_lshl_add_u32 v%d, v%d, 5, v%d" % (vBe, vT0, vBe))
    k.e("v_lshrrev_b32 v%d, 4, v%d" % (vT0, vL))
    k.e("v_bfe_u32 v%d, v%d, 2, 2" % (vT1, vL))
    k.e("v_lshl_add_u32 v%d, v%d, 3, v%d" % (vT2, vT0, vT1))
    k.e("v_lshlrev_b32 v%d, 7, v%d" % (vT2, vT2))
    k.e("v_add_u32 v%d, s%d, v%d" % (vT2, sLB, vT2))
    k.e("v_and_b32 v%d, 3, v%d" % (vTr, vL))
    k.e("v_lshl_add_u32 v%d, v%d, 3, v%d" % (vT2, vTr, vT2))
    k.e("v_bfe_u32 v%d, v%d, 3, 1" % (vT1, vL))
    k.e("v_bfe_u32 v%d, v%d, 4, 1" % (vT0, vL))
    k.e("v_lshl_or_b32 v%d, v%d, 1, v%d" % (vT0, vT0, vT1))
    for j in range(4):
        k.e("v_xor_b32 v%d, %d, v%d" % (vT1, j, vT0))
        k.e("v_lshl_add_u32 v%d, v%d, 5, v%d" % (vTr + j, vT1, vT2))
    k.e("s_waitcnt lgkmcnt(0)")
    nxt = 44
    for d, src, nbytes in ((S_A, a_src, 2048 * lda), (S_R, r_src, 2 << 20), (S_C, c_dst, 2 << 20)):
        if src[0] == 'ka':
            srd(k, d, nxt, nbytes)
            nxt += 2
        else:
            srd(k, d, 4, nbytes, src[1])
    srd(k, S_B, 6, Kdim * 1024)
    if stats:
        srd(k, S_ST, 4, 2048 * 64, WS_HST)

    def issue_a(u):
        if 'A' in skip:
            return
        slot = u % DA
        k.e("s_lshl_b32 s%d, s%d, 7" % (sKb, sK))
        k.e("s_add_u32 s%d, s%d, 1" % (sK, sK))
        k.e("s_cmp_ge_u32 s%d, %d" % (sK, nu))
        k.e("s_cselect_b32 s%d, 0, s%d" % (sK, sK))
        for t in range(4):
            k.e("s_add_u32 s%d, s%d, s%d" % (sAoff, sTile + t, sKb))
            for p in range(2):
                k.e("s_add_u32 m0, s%d, %d" % (sLB, slot * 8192 + t * 2048 + p * 1024))
                k.e("s_nop 0")
                k.vmem("buffer_load_dwordx4 v%d, %s, s%d offen%s lds" % (vAo if p else vAe, sr(S_A, 4), sAoff, SC), ("a", u))

    def issue_b(s):
        if 'B' in skip:
            return
        slot = s % DB
        if s % 2 == 0:
            k.e("s_lshl_b32 s%d, s%d, 16" % (sBoff, sKB))
            k.e("s_add_u32 s%d, s%d, 1" % (sKB, sKB))
            k.e("s_cmp_ge_u32 s%d, %d" % (sKB, nu))
            k.e("s_cselect_b32 s%d, 0, s%d" % (sKB, sKB))
        for i in range(4):
            k.e("s_add_u32 m0, s%d, %d" % (sLB, BOFF + slot * 4096 + i * 1024))
            k.e("s_nop 0")
            k.vmem("buffer_load_dwordx4 v%d, %s, s%d offen lds" % (vBo if i & 1 else vBe, sr(S_B, 4), sBoff), ("b", s))
            k.e("s_add_u32 s%d, s%d, 8192" % (sBoff, sBoff))

    def rd(s):
        buf = vBf + (s & 1) * 16
        ab = vAf + (s & 1) * 16
        bo = BOFF + (s % DB) * 4096
        ao = ((s // 2) % DA) * 8192
        ops = []
        for j in range(4):
            ops.append("ds_read_b64_tr_b16 %s, v%d offset:%d" % (vr(buf + j * 4, 2), vTr + j, bo))
            ops.append("ds_read_b64_tr_b16 %s, v%d offset:%d" % (vr(buf + j * 4 + 2, 2), vTr + j, bo + 512))
            ops.append("ds_read_b128 %s, v%d offset:%d" % (vr(ab + j * 4, 4), vXa + (s & 1), ao + j * 2048))
        return ops

    def wait_step(s):
        k.wait_vm(("a", s // 2))
        k.wait_vm(("b", s))

    k.stamp(2)
    ia = ib = 0
    if M4:
        issue_b(0); issue_b(1); issue_b(2); ib = 3
        k.e("s_barrier")
        issue_a(0); issue_a(1); ia = 2
    else:
        issue_a(0); ia = 1
        issue_b(0); issue_b(1); ib = 2
        if nu > 1:
            issue_a(1); ia = 2
        issue_b(2); ib = 3

    RSLOT = (1 if nu == 7 else 0) * 8192

    def res_loads():
        for p in range(2):
            k.e("s_add_u32 m0, s%d, %d" % (sLB, RSLOT + p * 1024))
            k.e("s_nop 0")
            k.vmem("buffer_load_dwordx4 v%d, %s, 0 offen%s lds" % (vCo + p, sr(S_R, 4), SC), "res")
    k.stamp(3)
    wait_step(0)
    k.stamp(4)
    for op in rd(0):
        k.e(op)
    for s in range(ns):
        buf = vBf + (s & 1) * 16
        ab = vAf + (s & 1) * 16
        k.e("s_waitcnt lgkmcnt(0)")
        if ib < ns:
            issue_b(ib); ib += 1
        if s % 2 == 0 and ia < nu and (ia < DA or s >= 2 * (ia - DA) + 1):
            issue_a(ia); ia += 1
        if s == (11 if nu == 7 else 2):
            res_loads()
        fill = []
        if s + 1 < ns:
            wait_step(s + 1)
            fill = rd(s + 1)
            if s + 2 == ns and stats and PREF:
                k.e("s_cmp_ge_u32 s%d, 2" % sW)
                k.e("s_cselect_b32 s6, s54, s52")
                k.e("s_cselect_b32 s7, s55, s53")
                srd(k, S_B, 6, 512 * 3584)
                k.e("s_lshr_b32 s3, s2, 3")
                k.e("s_lshl_b32 s3, s3, 1")
                k.e("s_and_b32 s%d, s%d, 1" % (sT, sW))
                k.e("s_add_u32 s3, s3, s%d" % sT)
                k.e("s_mul_i32 s3, s3, %d" % (8 * 3584))
                k.e("s_and_b32 s%d, s2, 3" % sT)
                k.e("s_mul_i32 s%d, s%d, 896" % (sT, sT))
                k.e("s_add_u32 s3, s3, s%d" % sT)
                k.e("v_lshrrev_b32 v%d, 3, v%d" % (vT0, vL))
                k.e("v_mul_u32_u24 v%d, 3584, v%d" % (vT0, vT0))
                k.e("v_and_b32 v%d, 7, v%d" % (vT1, vL))
                k.e("v_min_u32 v%d, 6, v%d" % (vT1, vT1))
                k.e("v_lshl_add_u32 v%d, v%d, 7, v%d" % (vT0, vT1, vT0))
                k.vmem("buffer_load_dword v152, v%d, %s, s3 offen" % (vT0, sr(S_B, 4)), "pf")
        fi = 0
        for t in range(4):
            for j in range(4):
                a = vAcc + (j * 4 + t) * 4
                cin = "0" if s == 0 else vr(a, 4)
                k.e("v_mfma_f32_16x16x32_bf16 %s, %s, %s, %s" % (vr(a, 4), vr(buf + j * 4, 4), vr(ab + t * 4, 4), cin))
                if fi < len(fill):
                    k.e(fill[fi]); fi += 1
        k.stamp(5 + s)
    assert ia == nu and ib == ns
    k.e("v_and_b32 v%d, 15, v%d" % (vT2, vL))
    k.e("v_lshlrev_b32 v%d, 7, v%d" % (vT2, vT2))
    k.e("v_lshrrev_b32 v%d, 4, v%d" % (vT1, vL))
    k.e("v_lshl_add_u32 v%d, v%d, 3, v%d" % (vT2, vT1, vT2))
    k.e("v_add_u32 v%d, s%d, v%d" % (vT2, sLB, vT2))
    vSw, vSr_ = 158, 159
    k.e("v_and_b32 v%d, 15, v%d" % (vSw, vL))
    k.e("v_mul_u32_u24 v%d, 144, v%d" % (vSw, vSw))
    k.e("v_lshl_add_u32 v%d, v%d, 3, v%d" % (vSw, vT1, vSw))
    k.e("v_add_u32 v%d, s%d, v%d" % (vSw, sLB, vSw))
    k.e("v_lshrrev_b32 v%d, 3, v%d" % (vSr_, vL))
    k.e("v_mul_u32_u24 v%d, 144, v%d" % (vSr_, vSr_))
    k.e("v_and_b32 v%d, 7, v%d" % (vT0, vL))
    k.e("v_lshl_add_u32 v%d, v%d, 4, v%d" % (vSr_, vT0, vSr_))
    k.e("v_add_u32 v%d, s%d, v%d" % (vSr_, sLB, vSr_))
    k.wait_vm("res")
    k.stamp(8 + ns)
    for j in range(4):
        k.e("ds_read_b64 %s, v%d offset:%d" % (vr(vRes + 2 * j, 2), vT2, RSLOT + 32 * j))
    k.e("v_lshlrev_b32 v%d, 4, v%d" % (vT0, vL))
    k.e("v_add_u32 v%d, s%d, v%d" % (vT1, sLB, vT0))
    k.e("s_nop 7")
    k.e("s_waitcnt lgkmcnt(0)")
    for t in range(1, 4):
        for j in range(4):
            k.e("ds_write_b128 v%d, %s offset:%d" % (vT1, vr(vAcc + (j * 4 + t) * 4, 4), (t - 1) * 4096 + j * 1024))
    vP = vBf
    vO = vP + 48
    for j in range(4):
        for h in range(2):
            k.e("v_lshlrev_b32 v%d, 16, v%d" % (vO + j * 4 + 2 * h, vRes + 2 * j + h))
            k.e("v_and_b32 v%d, 0xffff0000, v%d" % (vO + j * 4 + 2 * h + 1, vRes + 2 * j + h))
    for j in range(4):
        for r in range(4):
            k.e("v_add_f32 v%d, v%d, v%d" % (vO + j * 4 + r, vO + j * 4 + r, vAcc + (j * 4) * 4 + r))
    k.e("s_waitcnt lgkmcnt(0)")
    k.stamp(9 + ns)
    k.e("s_barrier")
    k.stamp(10 + ns)
    for d in range(1, 4):
        k.e("s_sub_u32 s3, s%d, %d" % (sW, d))
        k.e("s_and_b32 s3, s3, 3")
        k.e("s_mul_i32 s3, s3, %d" % wave_lds)
        k.e("v_add_u32 v%d, s3, v%d" % (vT1, vT0))
        for j in range(4):
            k.e("ds_read_b128 %s, v%d offset:%d" % (vr(vP + ((d - 1) * 4 + j) * 4, 4), vT1, (d - 1) * 4096 + j * 1024))
    for d in range(3):
        k.e("s_waitcnt lgkmcnt(%d)" % (8 - 4 * d))
        for j in range(4):
            for r in range(4):
                k.e("v_add_f32 v%d, v%d, v%d" % (vO + j * 4 + r, vO + j * 4 + r, vP + (d * 4 + j) * 4 + r))
    vPk = vP
    for j in range(4):
        k.e("v_cvt_pk_bf16_f32 v%d, v%d, v%d" % (vPk + 2 * j, vO + 4 * j, vO + 4 * j + 1))
        k.e("v_cvt_pk_bf16_f32 v%d, v%d, v%d" % (vPk + 2 * j + 1, vO + 4 * j + 2, vO + 4 * j + 3))
    k.stamp(11 + ns)
    for j in range(4):
        k.e("ds_write_b64 v%d, %s offset:%d" % (vSw, vr(vPk + 2 * j, 2), 12288 + 32 * j))
    k.e("s_waitcnt lgkmcnt(0)")
    k.e("ds_read_b128 %s, v%d offset:12288" % (vr(vO, 4), vSr_))
    k.e("ds_read_b128 %s, v%d offset:%d" % (vr(vO + 4, 4), vSr_, 12288 + 8 * 144))
    k.e("s_waitcnt lgkmcnt(1)")
    k.vmem("buffer_store_dwordx4 %s, v%d, %s, 0 offen" % (vr(vO, 4), vCo, sr(S_C, 4)), "st")
    k.e("s_waitcnt lgkmcnt(0)")
    k.vmem("buffer_store_dwordx4 %s, v%d, %s, 0 offen" % (vr(vO + 4, 4), vCo + 1, sr(S_C, 4)), "st")
    if stats:
        vS, vQ, vX, vY = vPk + 8, vPk + 9, vPk + 10, vPk + 11
        k.e("v_mov_b32 v%d, 0" % vS)
        k.e("v_mov_b32 v%d, 0" % vQ)
        for i in range(8):
            k.e("v_lshlrev_b32 v%d, 16, v%d" % (vX, vPk + i))
            k.e("v_and_b32 v%d, 0xffff0000, v%d" % (vY, vPk + i))
            k.e("v_add_f32 v%d, v%d, v%d" % (vS, vS, vX))
            k.e("v_fmac_f32 v%d, v%d, v%d" % (vQ, vX, vX))
            k.e("v_add_f32 v%d, v%d, v%d" % (vS, vS, vY))
            k.e("v_fmac_f32 v%d, v%d, v%d" % (vQ, vY, vY))
        for op in ("v_permlane32_swap_b32", "v_permlane16_swap_b32"):
            k.e("v_mov_b32 v%d, v%d" % (vX, vS))
            k.e("v_mov_b32 v%d, v%d" % (vY, vQ))
            k.e("s_nop 1")
            k.e("%s v%d, v%d" % (op, vS, vX))
            k.e("%s v%d, v%d" % (op, vQ, vY))
            k.e("v_add_f32 v%d, v%d, v%d" % (vS, vS, vX))
            k.e("v_add_f32 v%d, v%d, v%d" % (vQ, vQ, vY))
        k.e("s_lshl_b32 s3, s%d, 3" % sRB)
        k.e("s_add_u32 s3, s3, s%d" % sCB)
        k.e("s_lshl_b32 s3, s3, 9")
        k.e("s_lshl_b32 s%d, s%d, 7" % (sT, sW))
        k.e("s_add_u32 s3, s3, s%d" % sT)
        k.e("v_lshlrev_b32 v%d, 3, v%d" % (vX, vL))
        k.e("v_add_u32 v%d, s3, v%d" % (vX, vX))
        k.e("v_cmp_gt_u32 vcc, 16, v%d" % vL)
        k.e("s_and_saveexec_b64 s[34:35], vcc")
        k.vmem("buffer_store_dwordx2 %s, v%d, %s, 0 offen" % (vr(vS, 2), vX, sr(S_ST, 4)), "st")
        k.e("s_mov_b64 exec, s[34:35]")
    k.stamp(5 + ns)
    if DIAG:
        k.e("s_waitcnt vmcnt(0)")
    k.stamp(6 + ns)
    k.stamp_rt(7 + ns)
    k.dump(kidx, sW, 12 + ns)
    k.lab("%s_end" % name)
    k.e("s_endpgm")
    return k.text(), nv, 4 * wave_lds


K3_A = 16384
K3_NA = 4
K3_UP = 14464
K3_SLOT = 28800
K3_NS = 3
K3_B0 = K3_NA * K3_A


def gen_k3(name):
    k = K()
    if MERGE3:
        k.lab(name)
    else:
        header(k, name)
    SC = " sc1" if MERGE3 else ""
    S_A, S_B, S_C, S_ST = 8, 12, 16, 20
    sW, sRB, sFB, sT = 28, 29, 30, 31
    sOff = 34
    sM = 35
    sMA = 36
    sOffA = 37
    sK = 38
    sKa = 39
    k.e("s_cmp_ge_u32 s2, 256")
    k.e("s_cbranch_scc1 %s_end" % name)
    k.stamp_rt(0)
    k.stamp(1)
    k.e("s_load_dwordx2 s[4:5], s[0:1], %d" % KA_WS)
    k.e("s_load_dwordx4 s[44:47], s[0:1], %d" % KA_WG)
    k.e("s_load_dwordx2 s[48:49], s[0:1], %d" % KA_WD)
    k.e("v_lshrrev_b32 v2, 6, v0")
    k.e("v_and_b32 v1, 63, v0")
    k.e("v_readfirstlane_b32 s%d, v2" % sW)
    k.e("s_and_b32 s3, s2, 7")
    k.e("s_lshr_b32 s%d, s2, 3" % sT)
    k.e("s_lshr_b32 s%d, s3, 2" % sRB)
    k.e("s_lshl_b32 s%d, s%d, 3" % (sRB, sRB))
    k.e("s_lshr_b32 s%d, s%d, 2" % (sFB, sT))
    k.e("s_add_u32 s%d, s%d, s%d" % (sRB, sRB, sFB))
    k.e("s_and_b32 s%d, s3, 3" % sFB)
    k.e("s_lshl_b32 s%d, s%d, 2" % (sFB, sFB))
    k.e("s_and_b32 s%d, s%d, 3" % (sT, sT))
    k.e("s_add_u32 s%d, s%d, s%d" % (sFB, sFB, sT))
    k.e("s_lshr_b32 s3, s2, 5")
    k.e("s_lshl_b32 s%d, s%d, 1" % (sK, sT))
    k.e("s_add_u32 s%d, s%d, s3" % (sK, sK))
    k.e("s_and_b32 s%d, s%d, 7" % (sK, sK))
    if not ROT:
        k.e("s_mov_b32 s%d, 0" % sK)
    k.e("s_cmp_ge_u32 s%d, 4" % sW)
    k.e("s_cbranch_scc1 %s_loader" % name)

    vL = 1
    vO = 3
    vTr = 4
    vRstd, vNmr = 6, 7
    vT0, vT1, vT2, vT3 = 8, 9, 10, 11
    vN = 12
    vW = 24
    vXa = 80
    vCa = 84
    vAr = 208
    vRp = 90
    vAcc = 96
    nv = 216
    k.e("s_lshl_b32 s3, s%d, 7" % sRB)
    k.e("s_lshl_b32 s%d, s%d, 5" % (sT, sW))
    k.e("s_add_u32 s3, s3, s%d" % sT)
    k.e("v_and_b32 v%d, 31, v%d" % (vT3, vL))
    k.e("v_add_u32 v%d, s3, v%d" % (vT0, vT3))
    k.e("v_lshrrev_b32 v%d, 5, v%d" % (vT1, vL))
    k.e("v_lshrrev_b32 v%d, 6, v%d" % (vT2, vT0))
    k.e("v_lshlrev_b32 v%d, 12, v%d" % (vT2, vT2))
    k.e("v_and_b32 v%d, 63, v%d" % (vO, vT0))
    k.e("v_lshl_add_u32 v%d, v%d, 3, v%d" % (vT2, vO, vT2))
    k.e("s_mov_b32 s3, 3584")
    k.e("v_mul_lo_u32 v%d, v%d, s3" % (vO, vT0))
    k.e("v_lshl_add_u32 v%d, v%d, 4, v%d" % (vO, vT1, vO))
    k.e("s_mul_i32 s3, s%d, 224" % sFB)
    k.e("v_add_u32 v%d, s3, v%d" % (vO, vO))
    k.e("v_bfe_u32 v%d, v%d, 1, 3" % (vT0, vL))
    k.e("v_xor_b32 v%d, v%d, v%d" % (vT0, vT0, vT1))
    k.e("v_add_u32 v%d, s%d, v%d" % (vT3, sT, vT3))
    k.e("v_lshlrev_b32 v%d, 7, v%d" % (vT3, vT3))
    k.e("v_lshl_add_u32 v%d, v%d, 4, v%d" % (vXa, vT0, vT3))
    for u in range(1, 4):
        k.e("v_xor_b32 v%d, %d, v%d" % (vXa + u, 32 * u, vXa))
    k.e("v_bfe_u32 v%d, v%d, 4, 1" % (vT0, vL))
    k.e("v_mul_u32_u24 v%d, %d, v%d" % (vTr, K3_UP, vT0))
    k.e("v_lshrrev_b32 v%d, 5, v%d" % (vT0, vL))
    k.e("v_bfe_u32 v%d, v%d, 2, 2" % (vT1, vL))
    k.e("v_lshl_add_u32 v%d, v%d, 3, v%d" % (vT0, vT0, vT1))
    k.e("v_mul_u32_u24 v%d, 224, v%d" % (vT0, vT0))
    k.e("v_add_u32 v%d, v%d, v%d" % (vTr, vTr, vT0))
    k.e("v_and_b32 v%d, 1, v%d" % (vT0, vL))
    k.e("v_lshl_add_u32 v%d, v%d, 4, v%d" % (vTr, vT0, vTr))
    k.e("v_bfe_u32 v%d, v%d, 1, 1" % (vT0, vL))
    k.e("v_lshl_add_u32 v%d, v%d, 3, v%d" % (vTr, vT0, vTr))
    k.e("v_add_u32 v%d, %d, v%d" % (vTr, K3_B0, vTr))
    k.e("v_add_u32 v%d, %d, v%d" % (vTr + 1, 2 * K3_SLOT, vTr))
    for i in range(2):
        k.e("v_mov_b32 v%d, 0xbdd2d3e8" % (vCa + i))
        k.e("v_mov_b32 v%d, 0xc0135761" % (vCa + 2 + i))
        k.e("v_mov_b32 v%d, 1.0" % (vCa + 4 + i))
    k.e("s_waitcnt lgkmcnt(0)")
    srd(k, S_C, 4, 2048 * 3584, WS_HH)
    srd(k, S_ST, 4, 2048 * 64, WS_HST)
    if MERGE3:
        for i in range(112):
            k.e("v_mov_b32 v%d, 0" % (vAcc + i))
        k.e("s_barrier")
    for i in range(8):
        k.vmem("buffer_load_dwordx2 %s, v%d, %s, 0 offen offset:%d%s" % (vr(vW + 2 * i, 2), vT2, sr(S_ST, 4), 512 * i, SC), "st")
    k.wait_vm("st")
    k.e("v_add_f32 v%d, v%d, v%d" % (vT0, vW, vW + 2))
    k.e("v_add_f32 v%d, v%d, v%d" % (vT1, vW + 1, vW + 3))
    for i in range(2, 8):
        k.e("v_add_f32 v%d, v%d, v%d" % (vT0, vT0, vW + 2 * i))
        k.e("v_add_f32 v%d, v%d, v%d" % (vT1, vT1, vW + 2 * i + 1))
    k.e("v_mul_f32 v%d, 0x3b000000, v%d" % (vT0, vT0))
    k.e("v_mul_f32 v%d, 0x3b000000, v%d" % (vT1, vT1))
    k.e("v_fma_f32 v%d, -v%d, v%d, v%d" % (vT1, vT0, vT0, vT1))
    k.e("v_max_f32 v%d, 0, v%d" % (vT1, vT1))
    k.e("v_add_f32 v%d, 0x3727c5ac, v%d" % (vT1, vT1))
    k.e("v_rsq_f32 v%d, v%d" % (vRstd, vT1))
    k.e("s_nop 0")
    k.e("v_mul_f32 v%d, v%d, v%d" % (vNmr, vT0, vRstd))
    k.e("v_sub_f32 v%d, 0, v%d" % (vNmr, vNmr))

    k.e("v_mov_b32 v%d, v%d" % (vRp, vRstd))
    k.e("v_mov_b32 v%d, v%d" % (vRp + 1, vRstd))
    k.e("v_mov_b32 v%d, v%d" % (vRp + 2, vNmr))
    k.e("v_mov_b32 v%d, v%d" % (vRp + 3, vNmr))

    def norm_ops(j):
        src = vAr + (j & 1) * 4
        dst = vN + (j & 1) * 4
        ops = []
        for i in range(4):
            a = vT0 if i & 1 == 0 else vT2
            ops.append("v_lshlrev_b32 v%d, 16, v%d" % (a, src + i))
            ops.append("v_and_b32 v%d, 0xffff0000, v%d" % (a + 1, src + i))
            if PKN:
                ops.append("v_pk_fma_f32 %s, %s, %s, %s" % (vr(a, 2), vr(a, 2), vr(vRp, 2), vr(vRp + 2, 2)))
            else:
                ops.append("v_fma_f32 v%d, v%d, v%d, v%d" % (a, a, vRstd, vNmr))
                ops.append("v_fma_f32 v%d, v%d, v%d, v%d" % (a + 1, a + 1, vRstd, vNmr))
            ops.append("v_cvt_pk_bf16_f32 v%d, v%d, v%d" % (dst + i, a, a + 1))
        return ops

    vXn = 20
    sBs, sAs, sIt = 40, 41, 42

    def tr_rd(j, t):
        u = j % 4
        base = vTr + (1 if j >= 4 else 0)
        buf = vW + (j & 1) * 28
        k.lds("ds_read_b64_tr_b16 %s, v%d offset:%d" % (vr(buf + 4 * t, 2), base, u * 3584 + 32 * t), ("w", j % 4, t))
        k.lds("ds_read_b64_tr_b16 %s, v%d offset:%d" % (vr(buf + 4 * t + 2, 2), base, u * 3584 + 32 * t + 896), ("w", j % 4, t))

    def a_rd(j):
        u = j % 4
        base = (vXn + u) if j >= 4 else (vXa + u)
        k.lds("ds_read_b128 %s, v%d" % (vr(vAr + (j & 1) * 4, 4), base), ("a", j % 4))

    k.e("v_add_u32 v%d, %d, v%d" % (vTr + 1, K3_SLOT, vTr))
    k.e("v_add_u32 v%d, %d, v%d" % (vXn, K3_A, vXa))
    k.e("v_add_u32 v%d, %d, v%d" % (vXn + 1, K3_A, vXa + 1))
    k.e("s_mov_b32 s%d, 1" % sBs)
    k.e("s_mov_b32 s%d, 1" % sAs)
    k.e("s_mov_b32 s%d, 0" % sIt)
    if not MERGE3:
        for i in range(112):
            k.e("v_mov_b32 v%d, 0" % (vAcc + i))
    k.stamp(2)
    k.e("s_barrier")
    k.stamp(3)
    a_rd(0)
    k.wait_lds(("a", 0))
    for t in range(7):
        tr_rd(0, t)
        if t == 3:
            a_rd(1)
    for op in norm_ops(0):
        k.e(op)
    k.e("s_nop 0")
    k.lab("%s_loop" % name)
    body_start = len(k.lines)
    lq0 = list(k.lq)
    for j in range(4):
        u = j
        buf = vW + (j & 1) * 28
        boundary = (u == 3)
        nrm = norm_ops(j + 1)
        ni = 0
        pend = list(range(7))
        for t in range(7):
            a = vAcc + 16 * t
            if t % 2 == 0:
                if not k.wait_lds(("w", j, min(t + 1, 6))) and t == 0:
                    k.e("s_nop 0")
            k.e("v_mfma_f32_32x32x16_bf16 %s, %s, %s, %s" % (vr(a, 16), vr(buf + 4 * t, 4), vr(vN + (j & 1) * 4, 4), vr(a, 16)))
            if t == 0:
                k.wait_lds(("a", (j + 1) % 4))
            if boundary and t < 2:
                pass
            else:
                if boundary and t == 2:
                    k.wait_lds_all()
                    k.e("s_barrier")
                nrd = 1 if not boundary else 2
                for _ in range(nrd):
                    if pend:
                        tr_rd(j + 1, pend.pop(0))
            if t == 3:
                a_rd(j + 2)
            for _ in range(V_NRM[t]):
                if ni < len(nrm):
                    k.e(nrm[ni]); ni += 1
        assert not pend and ni == len(nrm), (pend, ni)
        if j < 3:
            k.e("s_nop 0")
    k.e("v_mov_b32 v%d, v%d" % (vTr, vTr + 1))
    k.e("s_add_u32 s%d, s%d, 1" % (sBs, sBs))
    k.e("s_cmp_eq_u32 s%d, %d" % (sBs, K3_NS))
    k.e("s_cselect_b32 s%d, 0, s%d" % (sBs, sBs))
    k.e("s_cselect_b32 s3, %d, %d" % (-(K3_NS - 1) * K3_SLOT & 0xffffffff, K3_SLOT) if False else "s_mov_b32 s3, %d" % K3_SLOT)
    k.e("s_cmov_b32 s3, 0x%x" % ((-(K3_NS - 1) * K3_SLOT) & 0xffffffff))
    k.e("v_add_u32 v%d, s3, v%d" % (vTr + 1, vTr + 1))
    k.e("v_mov_b32 v%d, v%d" % (vXa, vXn))
    k.e("v_mov_b32 v%d, v%d" % (vXa + 1, vXn + 1))
    k.e("v_xor_b32 v%d, 64, v%d" % (vXa + 2, vXn))
    k.e("v_xor_b32 v%d, 96, v%d" % (vXa + 3, vXn))
    k.e("v_add_u32 v%d, %d, v%d" % (vXn, K3_A, vXn))
    k.e("v_and_b32 v%d, 0x%x, v%d" % (vXn, K3_NA * K3_A - 1, vXn))
    k.e("v_xor_b32 v%d, 32, v%d" % (vXn + 1, vXn))
    k.e("s_add_u32 s%d, s%d, 1" % (sIt, sIt))
    k.e("s_cmp_lt_u32 s%d, 8" % sIt)
    k.e("s_cbranch_scc1 %s_loop" % name)
    assert k.lq == lq0[len(lq0) - len(k.lq):] or DIAG, (k.lq, lq0)
    k.wait_lds_all()
    k.stamp(11)
    if MERGE4:
        k.e("v_and_b32 v%d, 31, v%d" % (vT0, vL))
        k.e("v_mul_u32_u24 v%d, 240, v%d" % (vXa, vT0))
        k.e("v_lshrrev_b32 v%d, 5, v%d" % (vT0, vL))
        k.e("v_lshl_add_u32 v%d, v%d, 4, v%d" % (vXa, vT0, vXa))
        k.e("s_mul_i32 s3, s%d, 7680" % sW)
        k.e("v_add_u32 v%d, s3, v%d" % (vXa, vXa))
        k.e("v_lshrrev_b32 v%d, 3, v%d" % (vT0, vL))
        k.e("v_and_b32 v%d, 7, v%d" % (vT1, vL))
        k.e("v_mul_u32_u24 v%d, 240, v%d" % (vXa + 1, vT0))
        k.e("v_lshl_add_u32 v%d, v%d, 4, v%d" % (vXa + 1, vT1, vXa + 1))
        k.e("v_add_u32 v%d, s3, v%d" % (vXa + 1, vXa + 1))
        k.e("s_lshl_b32 s3, s%d, 7" % sRB)
        k.e("s_lshl_b32 s%d, s%d, 5" % (sT, sW))
        k.e("s_add_u32 s3, s3, s%d" % sT)
        k.e("v_add_u32 v%d, s3, v%d" % (vT0, vT0))
        k.e("v_mul_u32_u24 v%d, 3584, v%d" % (vXa + 2, vT0))
        k.e("v_lshl_add_u32 v%d, v%d, 4, v%d" % (vXa + 2, vT1, vXa + 2))
        k.e("s_mul_i32 s3, s%d, 224" % sFB)
        k.e("v_add_u32 v%d, s3, v%d" % (vXa + 2, vXa + 2))
    k.e("s_nop 7")
    k.e("s_nop 7")
    tmp = vW
    for t in range(7):
        a = vAcc + 16 * t
        o = tmp + 8 * (t & 1) + 32
        for half in range(2):
            prs = [(a + 4 * half + 2 * i, a + 8 + 4 * half + 2 * i, tmp + 8 * i, tmp + 8 * i + 2) for i in range(2)]
            for g, u_, x0, x1 in prs:
                k.e("v_pk_mul_f32 %s, %s, %s" % (vr(x0, 2), vr(g, 2), vr(g, 2)))
            for g, u_, x0, x1 in prs:
                k.e("v_pk_fma_f32 %s, %s, %s, %s" % (vr(x1, 2), vr(x0, 2), vr(vCa, 2), vr(vCa + 2, 2)))
            for g, u_, x0, x1 in prs:
                k.e("v_pk_mul_f32 %s, %s, %s" % (vr(x1, 2), vr(x1, 2), vr(g, 2)))
            for g, u_, x0, x1 in prs:
                k.e("v_exp_f32 v%d, v%d" % (x1, x1))
                k.e("v_exp_f32 v%d, v%d" % (x1 + 1, x1 + 1))
            for g, u_, x0, x1 in prs:
                k.e("v_pk_mul_f32 %s, %s, %s" % (vr(x0, 2), vr(g, 2), vr(u_, 2)))
            for g, u_, x0, x1 in prs:
                k.e("v_pk_add_f32 %s, %s, %s" % (vr(x1, 2), vr(x1, 2), vr(vCa + 4, 2)))
            for g, u_, x0, x1 in prs:
                k.e("v_rcp_f32 v%d, v%d" % (x1, x1))
                k.e("v_rcp_f32 v%d, v%d" % (x1 + 1, x1 + 1))
            k.e("s_nop 0")
            for g, u_, x0, x1 in prs:
                k.e("v_pk_mul_f32 %s, %s, %s" % (vr(x0, 2), vr(x0, 2), vr(x1, 2)))
            for i, (g, u_, x0, x1) in enumerate(prs):
                k.e("v_cvt_pk_bf16_f32 v%d, v%d, v%d" % (o + 2 * half + i, x0, x0 + 1))
        if MERGE4:
            k.e("ds_write_b128 v%d, %s offset:%d" % (vXa, vr(o, 4), 32 * t))
            if t == 3:
                k.e("s_waitcnt lgkmcnt(0)")
                for n in range(4):
                    k.e("ds_read_b128 %s, v%d offset:%d" % (vr(vAcc + 4 * n, 4), vXa + 1, 1920 * n))
                for n in range(4):
                    k.e("s_waitcnt lgkmcnt(%d)" % (3 - n))
                    k.e("s_mov_b32 s3, %d" % (8 * 3584 * n))
                    k.vmem("buffer_store_dwordx4 %s, v%d, %s, s3 offen sc1" % (vr(vAcc + 4 * n, 4), vXa + 2, sr(S_C, 4)), "st")
        else:
            k.vmem("buffer_store_dwordx4 %s, v%d, %s, 0 offen offset:%d%s" % (vr(o, 4), vO, sr(S_C, 4), 32 * t, STF), "st")
    if MERGE4:
        k.e("v_and_b32 v%d, 7, v%d" % (vT0, vL))
        k.e("v_cmp_gt_u32 vcc, 6, v%d" % vT0)
        k.e("s_waitcnt lgkmcnt(0)")
        k.e("s_and_saveexec_b64 s[40:41], vcc")
        for n in range(4):
            k.e("ds_read_b128 %s, v%d offset:%d" % (vr(vAcc + 16 + 4 * n, 4), vXa + 1, 1920 * n + 128))
        for n in range(4):
            k.e("s_waitcnt lgkmcnt(%d)" % (3 - n))
            k.e("s_mov_b32 s3, %d" % (8 * 3584 * n))
            k.vmem("buffer_store_dwordx4 %s, v%d, %s, s3 offen offset:128 sc1" % (vr(vAcc + 16 + 4 * n, 4), vXa + 2, sr(S_C, 4)), "st")
        k.e("s_mov_b64 exec, s[40:41]")
    k.stamp(12)
    if DIAG or MERGE4:
        k.e("s_waitcnt vmcnt(0)")
    k.stamp(13)
    k.stamp_rt(14)
    if MERGE4:
        k.e("s_barrier")
        if DIAG:
            k.e("v_mov_b32 v250, v0")
    k.dump(2, sW, 15)
    if MERGE4:
        if DIAG:
            k.e("v_mov_b32 v0, v250")
        k.e("s_branch k4_kernel")
    else:
        k.e("s_endpgm")

    k.lab("%s_loader" % name)
    k.vm = []
    k.lq = []
    vOff = 4
    vAo = 12
    sKA = 40
    k.e("s_and_b32 s%d, s%d, 1" % (sT, sW))
    k.e("s_mul_i32 s3, s%d, 448" % sT)
    k.e("s_mul_i32 s%d, s%d, 224" % (sOff, sFB))
    for p in range(7):
        k.e("v_add_u32 v2, s3, v1")
        if p:
            k.e("v_add_u32 v2, %d, v2" % (64 * p))
        k.e("v_mul_u32_u24 v3, 4682, v2")
        k.e("v_lshrrev_b32 v3, 16, v3")
        k.e("v_mul_u32_u24 v11, 14, v3")
        k.e("v_sub_u32 v2, v2, v11")
        k.e("v_mul_u32_u24 v3, 3584, v3")
        k.e("v_lshl_add_u32 v3, v2, 4, v3")
        k.e("v_add_u32 v%d, s%d, v3" % (vOff + p, sOff))
    k.e("s_sub_u32 s3, s%d, 4" % sW)
    k.e("s_lshl_b32 s%d, s3, 12" % sMA)
    k.e("s_lshl_b32 s3, s3, 5")
    k.e("s_lshl_b32 s%d, s%d, 7" % (sOff, sRB))
    k.e("s_add_u32 s3, s3, s%d" % sOff)
    k.e("v_lshrrev_b32 v2, 3, v1")
    k.e("v_add_u32 v2, s3, v2")
    k.e("v_lshlrev_b32 v2, 10, v2")
    k.e("v_and_b32 v3, 7, v1")
    k.e("v_lshrrev_b32 v11, 4, v1")
    k.e("v_xor_b32 v3, v3, v11")
    k.e("v_lshl_add_u32 v%d, v3, 4, v2" % vAo)
    k.e("v_xor_b32 v3, 4, v3")
    k.e("v_lshl_add_u32 v%d, v3, 4, v2" % (vAo + 1))
    k.e("s_mov_b32 s%d, s%d" % (sKA, sK))
    k.e("s_waitcnt lgkmcnt(0)")
    k.e("s_cmp_ge_u32 s%d, 6" % sW)
    k.e("s_cselect_b32 s6, s46, s44")
    k.e("s_cselect_b32 s7, s47, s45")
    k.e("s_cselect_b32 s%d, %d, 0" % (sM, K3_UP))
    k.e("s_add_u32 s%d, s%d, %d" % (sM, sM, K3_B0))
    srd(k, S_B, 6, 512 * 3584)
    srd(k, S_A, 4, 2 << 20, WS_H)
    k.e("s_mul_i32 s3, s%d, 7168" % sT)
    k.e("s_add_u32 s%d, s%d, s3" % (sM, sM))

    def lda(st, tag):
        k.e("s_lshl_b32 s%d, s%d, 7" % (sKa, sKA))
        k.e("s_add_u32 s%d, s%d, 1" % (sKA, sKA))
        k.e("s_and_b32 s%d, s%d, 7" % (sKA, sKA))
        for p in range(4):
            k.e("s_add_u32 m0, s%d, %d" % (sMA, (st % K3_NA) * K3_A + p * 1024))
            k.e("s_add_u32 s%d, s%d, %d" % (sOffA, sKa, p * 8192))
            k.vmem("buffer_load_dwordx4 v%d, %s, s%d offen%s lds" % (vAo + (p & 1), sr(S_A, 4), sOffA, SC), tag)

    def ld(st, with_a=True):
        slot = st % K3_NS
        k.e("s_mul_i32 s%d, s%d, %d" % (sOff, sK, 64 * 3584))
        k.e("s_add_u32 s%d, s%d, 1" % (sK, sK))
        k.e("s_and_b32 s%d, s%d, 7" % (sK, sK))
        for p in range(7):
            k.e("s_add_u32 m0, s%d, %d" % (sM, slot * K3_SLOT + p * 1024))
            k.e("s_nop 0")
            k.vmem("buffer_load_dwordx4 v%d, %s, s%d offen lds" % (vOff + p, sr(S_B, 4), sOff), ("s", st))
        if st + 1 < 8 and with_a:
            lda(st + 1, ("s", st))

    k.stamp(2)
    if MERGE3:
        for st_ in range(NPRE):
            ld(st_, False)
        k.e("s_cmp_lg_u32 s%d, 5" % sW)
        k.e("s_cbranch_scc1 %s_nopoll" % name)
        srd(k, S_C, 4, 256 * 128, WS_FLAG + 32768)
        k.e("s_lshl_b32 s3, s%d, 11" % sRB)
        k.e("v_and_b32 v3, 15, v1")
        k.e("v_lshlrev_b32 v3, 7, v3")
        k.e("v_add_u32 v3, s3, v3")
        k.e("s_mov_b32 s%d, 0" % sOffA)
        k.lab("%s_poll" % name)
        k.e("buffer_load_dwordx4 v[16:19], v3, %s, 0 offen sc1" % sr(S_C, 4))
        k.e("s_waitcnt vmcnt(0)")
        k.e("v_xor_b32 v18, v18, v16")
        k.e("v_xor_b32 v19, v19, v17")
        k.e("v_subrev_co_u32 v16, vcc, s54, v16")
        k.e("v_mov_b32 v20, s55")
        k.e("s_nop 0")
        k.e("v_subb_co_u32 v17, vcc, v17, v20, vcc")
        k.e("v_xor_b32 v18, 0x5bd1e995, v18")
        k.e("v_xor_b32 v19, 0x9e3779b9, v19")
        k.e("v_lshrrev_b32 v16, 20, v16")
        k.e("v_or_b32 v16, v16, v17")
        k.e("v_or3_b32 v16, v16, v18, v19")
        k.e("v_cmp_eq_u32 vcc, 0, v16")
        k.e("s_add_u32 s%d, s%d, 1" % (sOffA, sOffA))
        k.e("s_cmp_eq_u64 vcc, exec")
        k.e("s_cbranch_scc1 %s_nopoll" % name)
        k.e("s_cmp_lt_u32 s%d, 0x10000" % sOffA)
        k.e("s_cbranch_scc1 %s_poll" % name)
        k.lab("%s_nopoll" % name)
        k.e("s_barrier")
        lda(0, ("s", 0))
        lda(1, ("s", 0))
        if NPRE < 2:
            ld(1, False)
    else:
        lda(0, ("s", 0))
        ld(0)
    k.stamp(3)
    for i in range(8):
        if i == 0 and not EARLY and not MERGE3:
            ld(1)
        k.wait_vm(("s", i))
        k.stamp(4 + i)
        k.e("s_barrier")
        if i == 0 and EARLY and not MERGE3:
            ld(1)
        if MERGE3 and i == 0:
            lda(2, ("s", 1))
            if NPRE < 3:
                ld(2, False)
            lda(3, ("s", 2))
        elif i + 2 < 8:
            ld(i + 2)
        if i == 6 and PREF and MAP48:
            srd(k, S_C, 48, 1792 * 1024)
            k.e("s_lshr_b32 s3, s2, 3")
            k.e("s_mul_i32 s3, s3, 56")
            k.e("s_sub_u32 s%d, s%d, 4" % (sOff, sW))
            k.e("s_mul_i32 s%d, s%d, 14" % (sOff, sOff))
            k.e("s_add_u32 s3, s3, s%d" % sOff)
            k.e("s_lshl_b32 s3, s3, 10")
            k.e("v_lshlrev_b32 v2, 7, v1")
            k.vmem("buffer_load_dword v3, v2, %s, s3 offen" % sr(S_C, 4), "pf")
            k.e("s_add_u32 s3, s3, 8192")
            k.e("v_cmp_gt_u32 vcc, 48, v1")
            k.e("s_and_saveexec_b64 s[40:41], vcc")
            k.vmem("buffer_load_dword v3, v2, %s, s3 offen" % sr(S_C, 4), "pf")
            k.e("s_mov_b64 exec, s[40:41]")
    k.e("s_barrier")
    if MERGE4:
        k.e("s_barrier")
        k.e("s_cmp_lg_u32 s%d, 5" % sW)
        k.e("s_cbranch_scc1 k4_kernel")
        srd(k, S_C, 4, 256 * 128, WS_FLAG + 65536)
        k.e("s_lshl_b32 s3, s%d, 4" % sRB)
        k.e("s_add_u32 s3, s3, s%d" % sFB)
        k.e("s_lshl_b32 s3, s3, 7")
        k.e("v_mov_b32 v2, s3")
        k.e("s_waitcnt lgkmcnt(0)")
        k.e("v_mov_b32 v4, s56")
        k.e("v_mov_b32 v5, s57")
        k.e("v_xor_b32 v6, 0x5bd1e995, v4")
        k.e("v_xor_b32 v7, 0x9e3779b9, v5")
        k.e("v_cmp_eq_u32 vcc, 0, v1")
        k.e("s_and_saveexec_b64 s[40:41], vcc")
        k.e("buffer_store_dwordx4 v[4:7], v2, %s, 0 offen sc1" % sr(S_C, 4))
        k.e("s_mov_b64 exec, s[40:41]")
        k.e("s_branch k4_kernel")
    k.stamp(12)
    k.e("s_waitcnt vmcnt(0)")
    k.stamp(13)
    k.stamp_rt(14)
    k.dump(2, sW, 15)
    k.lab("%s_end" % name)
    k.e("s_endpgm")
    return k.text(), nv, K3_B0 + K3_NS * K3_SLOT


import struct


def f32bits(x):
    return struct.unpack("<I", struct.pack("<f", x))[0]


def main():
    from gen_k1 import gen_k1
    parts = []
    descs = []
    launches = []
    t, nv, lds = gen_k1("k1_kernel")
    parts.append(t); descs.append(descriptor("k1_kernel", nv)); launches.append(("k1_kernel", 512, lds))
    if not MERGE:
        t, nv, lds = gen_t2("k2_kernel", 512, 1024, ('ws', WS_O), KA_WO, ('ka', KA_X), ('ws', WS_H), True, 1)
        parts.append(t); descs.append(descriptor("k2_kernel", nv)); launches.append(("k2_kernel", 256, lds))
    t, nv, lds = gen_k3("k3_kernel")
    c0 = -2.0 * 1.4426950408889634 * 0.7978845608028654
    t = t.replace("0xc0135761", "0x%08x" % f32bits(c0)).replace("0xbdd2d3e8", "0x%08x" % f32bits(c0 * 0.044715))
    parts.append(t)
    if MERGE3:
        launches[0] = (launches[0][0], 512, max(launches[0][2], lds))
    else:
        descs.append(descriptor("k3_kernel", nv)); launches.append(("k3_kernel", 512, lds))
    t, nv, lds = gen_t2("k4_kernel", 1792, 3584, ('ws', WS_HH), KA_WD, ('ws', WS_H), ('ka', KA_OUT), False, 3)
    parts.append(t)
    if MERGE4:
        launches[0] = (launches[0][0], 512, max(launches[0][2], lds))
    else:
        descs.append(descriptor("k4_kernel", nv)); launches.append(("k4_kernel", 256, lds))
    out = []
    single = len(launches) == 1 and not os.environ.get("ASLIST")
    for n, b, lds in launches:
        if single:
            out.append("; @launch grid=(256,1,1) block=(%d,1,1) lds=%d" % (b, lds))
        else:
            out.append("; @launch kernel=%s grid=(256,1,1) block=(%d,1,1) lds=%d" % (n, b, lds))
    out.append('.amdgcn_target "amdgcn-amd-amdhsa--gfx950"')
    out.append(".text")
    out += parts
    out.append("code_end:")
    out.append('.section .rodata,"a"')
    out += descs
    path = sys.argv[1] if len(sys.argv) > 1 else "cdna_kernels/%s.s" % NAME
    text = "\n".join(out)
    if single:
        text = text.replace("k1_kernel", NAME + "_kernel")
    open(path, "w").write(text)
    print("wrote", path)


if __name__ == "__main__":
    main()
```
